```python
import torch

def _softmax(x, axis=-1):
    return torch.softmax(x, dim=axis)
def _gelu(x):
    return torch.nn.functional.gelu(x, approximate="tanh")
def _silu(x):
    return torch.nn.functional.silu(x)
def _sigmoid(x):
    return torch.sigmoid(x)
def _layernorm(x, axis=-1, eps=1e-5):
    m = x.mean(dim=axis, keepdim=True)
    v = x.var(dim=axis, keepdim=True, unbiased=False)
    return (x - m) / torch.sqrt(v + eps)
def _scatter_add(tgt, idx, src, axis=0):
    return tgt.clone().index_add_(axis, idx, src)
def _segment_sum(src, seg, n):
    out = torch.zeros((n,) + src.shape[1:], dtype=src.dtype)
    return out.index_add_(0, seg, src)
def _pad(x, pw):
    flat = tuple(v for pair in reversed(pw) for v in pair)
    return torch.nn.functional.pad(x, flat)

kernel_name = 'gated_mix__spectral_fnet__geglu_ffn__prompt'

def setup_inputs():

    _w = (lambda a: (lambda t: t.to(torch.bfloat16) if t.is_floating_point() else t)(torch.as_tensor(a)))
    def _A_setup():
        B, S, D = 1, 2048, 1024
        ns = torch.arange(S)[:, None] * torch.arange(S)[None, :]
        nd = torch.arange(D)[:, None] * torch.arange(D)[None, :]
        Ws_re = torch.cos(-2.0 * torch.pi * ns / S).to(float)
        Ws_im = torch.sin(-2.0 * torch.pi * ns / S).to(float)
        Wd_re = torch.cos(-2.0 * torch.pi * nd / D).to(float)
        Wd_im = torch.sin(-2.0 * torch.pi * nd / D).to(float)
        return {
            "x": _w((lambda *s: torch.randn(*s, dtype=torch.bfloat16) * 0.05)(B, S, D)),
            "dft_seq_re": _w(Ws_re),
            "dft_seq_im": _w(Ws_im),
            "dft_hid_re": _w(Wd_re),
            "dft_hid_im": _w(Wd_im),
        }
    _A_in = _A_setup()

    def _B_setup():
        B, S, D, F = 1, 2048, 1024, 3584
        return {
            "x": _w((lambda *s: torch.randn(*s, dtype=torch.bfloat16) * 0.05)(B, S, D)),
            "w_gate": _w((lambda *s: torch.randn(*s, dtype=torch.bfloat16) * 0.4)(D, F)),
            "w_up": _w((lambda *s: torch.randn(*s, dtype=torch.bfloat16) * 0.4)(D, F)),
            "w_down": _w((lambda *s: torch.randn(*s, dtype=torch.bfloat16) * 0.4)(F, D)),
        }
    _B_in = _B_setup()

    return {
        "A_x": _A_in["x"],
        "A_dft_seq_re": _A_in["dft_seq_re"],
        "A_dft_seq_im": _A_in["dft_seq_im"],
        "A_dft_hid_re": _A_in["dft_hid_re"],
        "A_dft_hid_im": _A_in["dft_hid_im"],
        "B_x": _B_in["x"],
        "B_w_gate": _B_in["w_gate"],
        "B_w_up": _B_in["w_up"],
        "B_w_down": _B_in["w_down"],
        "gate_w": _w((lambda *s: torch.randn(*s, dtype=torch.bfloat16) * 0.05)(1024) * 16.0),
    }

def reference(A_x, A_dft_seq_re, A_dft_seq_im, A_dft_hid_re, A_dft_hid_im, B_x, B_w_gate, B_w_up, B_w_down, gate_w):
    def _A_ref(x, dft_seq_re, dft_seq_im, dft_hid_re, dft_hid_im):
        a = torch.einsum("bsd,ed->bse", x, dft_hid_re)
        b = torch.einsum("bsd,ed->bse", x, dft_hid_im)
        y = torch.einsum("ts,bse->bte", dft_seq_re, a) - torch.einsum("ts,bse->bte", dft_seq_im, b)
        return y

    def _B_ref(x, w_gate, w_up, w_down):
        return (_gelu(x @ w_gate) * (x @ w_up)) @ w_down

    x = A_x
    g = _sigmoid((x * gate_w).sum(-1, keepdims=True))
    a = _A_ref(x, A_dft_seq_re, A_dft_seq_im, A_dft_hid_re, A_dft_hid_im)
    b = _B_ref(x, B_w_gate, B_w_up, B_w_down)
    return g * a + (1 - g) * b
```

```python
class Asm:
    def __init__(self): self.l = []
    def __call__(self, s):
        for x in s.strip('\n').split('\n'): self.l.append('    ' + x.strip() if not x.strip().endswith(':') else x.strip())
    def raw(self, s): self.l.append(s)
    def text(self): return '\n'.join(self.l) + '\n'

def kernel(name, body, vgpr=256, agpr=0, sgpr=102):
    acc = (vgpr + 3)//4*4
    nfv = acc + agpr if agpr else vgpr
    return (f""".text
.globl {name}
.p2align 8
.type {name},@function
{name}:
{body}
    s_endpgm
""", f""".section .rodata,"a"
.p2align 6
.amdhsa_kernel {name}
  .amdhsa_next_free_vgpr {nfv}
  .amdhsa_next_free_sgpr {sgpr}
  .amdhsa_accum_offset {acc}
  .amdhsa_group_segment_fixed_size 0
  .amdhsa_kernarg_size 104
  .amdhsa_user_sgpr_count 2
  .amdhsa_user_sgpr_kernarg_segment_ptr 1
  .amdhsa_system_sgpr_workgroup_id_x 1
.end_amdhsa_kernel
""")

def module(launches, kernels):
    s = ''
    for n, g, b, lds in launches:
        s += f'; @launch kernel={n} grid=({g},1,1) block=({b},1,1) lds={lds}\n'
    s += '.amdgcn_target "amdgcn-amd-amdhsa--gfx950"\n'
    for c, d in kernels: s += c
    s += '.text\n.fill 64, 4, 0xbf800000\n'
    for c, d in kernels: s += d
    return s
```

```python
import sys, math, struct
from ab import *

WS_H   = 0
WS_XE  = 16 << 20
WS_AE  = 18 << 20
WS_P   = 20 << 20
WS_PQD = 4 << 20
WS_LP  = 28 << 20
WS_UP  = WS_LP + 32768
WS_CV  = WS_UP + 32768
WS_RV  = WS_CV + 4096
WS_TS  = 30 << 20
WS_SZ  = 256 << 20

R1 = 5; SLOT1 = 32768
class Opt: pass
opt = Opt()
opt.stamp = False; opt.trace = False
opt.hflags = ''
fbits = lambda x: struct.unpack('<I', struct.pack('<f', x))[0]

def srd(a, d, base, size):
    a(f"s_mov_b32 s{d}, s{base}\n s_and_b32 s{d+1}, s{base+1}, 0xffff\n s_mov_b32 s{d+2}, {size}\n s_mov_b32 s{d+3}, 0x20000")

def interleave(a, mfmas, fill):
    for s in fill.get(-1, []): a(s)
    for i, m in enumerate(mfmas):
        a(m)
        for s in fill.get(i, []): a(s)

def stamp(a, idx, sreg_base=90):
    if not opt.stamp: return
    a(f"s_memrealtime s[{sreg_base}:{sreg_base+1}]\n s_memtime s[{sreg_base+2}:{sreg_base+3}]\n s_waitcnt lgkmcnt(0)")
    a(f"s_mov_b32 s{70+2*idx}, s{sreg_base}\n s_mov_b32 s{71+2*idx}, s{sreg_base+2}")

def trace_ops(sidx):
    return ["s_memtime s[92:93]", "s_memrealtime s[94:95]", "s_waitcnt lgkmcnt(0)", f"v_cmp_eq_u32 vcc, {sidx}, v1", "v_mov_b32 v28, s92", "v_mov_b32 v29, s94",
            "v_cndmask_b32 v30, v30, v28, vcc", "v_cndmask_b32 v31, v31, v29, vcc"]

def stamp_flush(a, n, wssrd, kid, vt=2):
    if not opt.stamp: return
    a(f"s_lshl_b32 s90, s2, 2\n s_add_u32 s90, s90, s3\n s_lshl_b32 s90, s90, 6\n s_add_u32 s90, s90, {WS_TS + kid*65536}")
    a(f"v_mov_b32 v{vt}, 0")
    for i in range(n):
        a(f"v_mov_b32 v{vt+2}, s{70+2*i}\n v_mov_b32 v{vt+3}, s{71+2*i}")
        a(f"buffer_store_dwordx2 v[{vt+2}:{vt+3}], v{vt}, s[{wssrd}:{wssrd+3}], s90 offen offset:{8*i}\n s_nop 1")
    a(f"s_lshl_b32 s90, s2, 2\n s_add_u32 s90, s90, s3\n s_lshl_b32 s90, s90, 9\n s_add_u32 s90, s90, {WS_TS + (1<<20) + kid*524288}")
    a(f"v_lshlrev_b32 v{vt}, 3, v1\n buffer_store_dwordx2 v[30:31], v{vt}, s[{wssrd}:{wssrd+3}], s90 offen")
    a("s_waitcnt vmcnt(0)")

MF = "v_mfma_f32_16x16x32_bf16"
def ACCG(mb, nb): return 128 + (nb*4+mb)*4
def ACCU(mb, nb): return (nb*4+mb)*4
def FR(st, i): return 128 + st*64 + i*4

def gemm1(a):
    a("s_cmp_ge_u32 s3, 2\n s_cselect_b32 s44, s46, s44\n s_cselect_b32 s45, s47, s45")
    srd(a, 8, 44, 1024*3584*2)
    a("""
    v_lshrrev_b32 v2, 2, v1
    s_lshl_b32 s26, s24, 8
    s_lshl_b32 s27, s3, 6
    s_add_u32 s26, s26, s27
    v_add_u32 v2, s26, v2
    v_lshlrev_b32 v2, 11, v2
    v_lshrrev_b32 v3, 5, v1
    v_lshlrev_b32 v3, 1, v3
    v_and_b32 v4, 3, v1
    v_xor_b32 v3, v3, v4
    v_lshl_add_u32 v8, v3, 4, v2
    """)
    for i in range(1, 4): a(f"v_add_u32 v{8+i}, {i*(16*2048-1024)}, v8")
    a("""
    v_lshrrev_b32 v2, 4, v1
    s_and_b32 s26, s3, 1
    s_lshl_b32 s26, s26, 4
    v_add_u32 v3, s26, v2
    s_mov_b32 s27, 7168
    v_mul_lo_u32 v3, v3, s27
    s_lshl_b32 s26, s25, 8
    v_add_u32 v3, s26, v3
    v_lshlrev_b32 v2, 1, v2
    v_and_b32 v4, 15, v1
    v_xor_b32 v2, v2, v4
    v_lshl_add_u32 v12, v2, 4, v3
    v_xor_b32 v2, 8, v2
    v_lshl_add_u32 v14, v2, 4, v3
    """)
    a(f"v_add_u32 v13, {1*(4*7168-1024)}, v12\n v_add_u32 v15, {3*(4*7168-1024)}, v14\n v_add_u32 v14, {2*(4*7168-1024)}, v14")
    a("s_mov_b32 s16, 0\n s_mov_b32 s17, 0\n s_lshl_b32 s21, s3, 12")
    def dma_x(): return [f"buffer_load_dwordx4 v{8+i}, s[4:7], s16 offen offset:{i*1024} lds" for i in range(4)]
    def dma_w(): return [f"buffer_load_dwordx4 v{12+i}, s[8:11], s17 offen offset:{i*1024} lds" for i in range(4)]
    for s in range(R1):
        a(f"s_add_u32 m0, s21, {s*SLOT1}\n s_nop 0")
        for x in dma_x(): a(x)
        a(f"s_add_u32 m0, s21, {s*SLOT1+16384}\n s_add_u32 s16, s16, 64")
        for x in dma_w(): a(x)
        a(f"s_add_u32 s17, s17, {32*7168}")
    a("""
    s_lshr_b32 s26, s3, 1
    s_lshl_b32 s26, s26, 7
    v_and_b32 v2, 15, v1
    v_add_u32 v2, s26, v2
    v_lshlrev_b32 v2, 6, v2
    v_lshrrev_b32 v3, 4, v1
    v_lshrrev_b32 v4, 2, v1
    v_and_b32 v5, 2, v4
    v_xor_b32 v5, v3, v5
    v_lshl_add_u32 v16, v5, 4, v2
    v_and_b32 v4, 3, v4
    v_lshl_add_u32 v5, v3, 3, v4
    v_lshlrev_b32 v5, 8, v5
    v_add_u32 v5, 16384, v5
    v_and_b32 v6, 3, v1
    v_lshl_add_u32 v5, v6, 3, v5
    v_and_b32 v6, 1, v3
    v_lshl_or_b32 v6, v6, 2, v4
    s_and_b32 s26, s3, 1
    s_lshl_b32 s26, s26, 2
    v_xor_b32 v6, s26, v6
    """)
    for mb in range(4):
        a(f"v_xor_b32 v7, {mb}, v6\n v_lshl_add_u32 v{17+mb}, v7, 5, v5")
    for i in range(5): a(f"v_mov_b32 v{21+i}, v{16+i}")
    def reads(st):
        def wr(mat, mb):
            b = FR(st, mat*4+mb)
            return [f"ds_read_b64_tr_b16 a[{b}:{b+1}], v{22+mb} offset:{mat*8192}",
                    f"ds_read_b64_tr_b16 a[{b+2}:{b+3}], v{22+mb} offset:{mat*8192+1024}"]
        def xr(nb):
            b = FR(st, 8+nb)
            return [f"ds_read_b128 a[{b}:{b+3}], v21 offset:{nb*1024}"]
        r = []
        for i in range(8): r += wr(i & 1, i >> 1) + xr(i)
        return r
    def mf(st, first=False):
        m = []
        for nb in range(8):
            for mb in range(4):
                for mat in range(2):
                    c = f"v[{ACCG(mb,nb)}:{ACCG(mb,nb)+3}]" if mat == 0 else f"a[{ACCU(mb,nb)}:{ACCU(mb,nb)+3}]"
                    fa = FR(st, mat*4+mb); fb_ = FR(st, 8+nb)
                    m.append(f"{MF} {c}, a[{fa}:{fa+3}], a[{fb_}:{fb_+3}], {'0' if first else c}")
        return m
    for i in range(128): a(f"v_mov_b32 v{128+i}, 0")
    for i in range(128): a(f"v_accvgpr_write_b32 a{i}, 0")
    stamp(a, 1)
    a(f"s_waitcnt vmcnt({(R1-1)*8})\n s_barrier")
    for x in reads(0): a(x)
    a(f"s_mov_b32 s19, 0\n s_mov_b32 s20, {SLOT1}\n s_mov_b32 s18, 0")
    for i in range(5): a(f"v_add_u32 v{21+i}, s20, v{16+i}")
    stamp(a, 2)
    a(".p2align 6\nL_g1_loop:")
    for st in range(2):
        f = {-1: ["s_waitcnt lgkmcnt(0)"]}
        if opt.trace: f[-1] = trace_ops("s18")
        f[0] = [f"s_waitcnt vmcnt({(R1-2)*8})", "s_barrier"]
        rd = reads(st ^ 1)
        pos = opt.rdpos if hasattr(opt, 'rdpos') else [1 + 2*i for i in range(24)]
        for i, x in enumerate(rd): f.setdefault(pos[i], []).append(x)
        dpos = opt.dpos if hasattr(opt, 'dpos') else [4, 12, 20, 28, 36, 44, 52, 58]
        f.setdefault(2, []).append("s_add_u32 m0, s21, s19")
        for i, x in enumerate(dma_x()): f.setdefault(dpos[i], []).append(x)
        f.setdefault(dpos[3]+2, []).append("s_add_u32 m0, m0, 16384")
        for i, x in enumerate(dma_w()): f.setdefault(dpos[4+i], []).append(x)
        f.setdefault(dpos[3]+4, []).extend(["s_add_u32 s16, s16, 64", "s_cmp_eq_u32 s16, 2048"])
        f.setdefault(dpos[3]+5, []).append(f"s_cselect_b32 s16, {0x40000000}, s16")
        f.setdefault(6, []).append("s_mov_b32 s19, s20")
        f.setdefault(8, []).append(f"s_add_u32 s20, s20, {SLOT1}")
        f.setdefault(10, []).extend([f"s_cmp_eq_u32 s20, {R1*SLOT1}", "s_cselect_b32 s20, 0, s20"])
        f.setdefault(14, []).append("s_add_u32 s18, s18, 1")
        for i in range(5): f.setdefault(50+2*i, []).append(f"v_add_u32 v{21+i}, s20, v{16+i}")
        f.setdefault(60, []).append(f"s_add_u32 s17, s17, {32*7168}")
        if st == 1: f.setdefault(63, []).extend(["s_cmp_lt_u32 s18, 32", "s_cbranch_scc1 L_g1_loop"])
        interleave(a, mf(st), f)
    stamp(a, 3)
    a("s_waitcnt vmcnt(0) lgkmcnt(0)\n s_nop 7")
    c0 = -2*math.sqrt(2/math.pi)*math.log2(math.e); c1 = c0*0.044715
    a(f"s_mov_b32 s26, {fbits(c0)}\n s_mov_b32 s28, {fbits(c1)}\n s_mov_b32 s29, {fbits(c1)}")
    a("v_mov_b32 v24, s26\n v_mov_b32 v25, s26")
    a("""
    s_lshl_b32 s30, s24, 3
    s_lshr_b32 s31, s3, 1
    s_lshl_b32 s31, s31, 2
    s_add_u32 s30, s30, s31
    s_mul_i32 s30, s30, 112
    s_lshl_b32 s31, s25, 2
    s_add_u32 s30, s30, s31
    s_and_b32 s31, s3, 1
    s_lshl_b32 s31, s31, 1
    s_add_u32 s30, s30, s31
    s_lshl_b32 s30, s30, 11
    v_lshlrev_b32 v26, 4, v1
    """)
    T = 32
    for nb in range(8):
        g0 = ACCG(0, nb); u0 = ACCU(0, nb)
        t = T + (nb % 2)*48
        U = t; Z = t+16; O = t+32
        for i in range(16): a(f"v_accvgpr_read_b32 v{U+i}, a{u0+i}")
        for i in range(0, 16, 2): a(f"v_pk_mul_f32 v[{Z+i}:{Z+i+1}], v[{g0+i}:{g0+i+1}], v[{g0+i}:{g0+i+1}]")
        for i in range(0, 16, 2): a(f"v_pk_fma_f32 v[{Z+i}:{Z+i+1}], v[{Z+i}:{Z+i+1}], s[28:29], v[24:25]")
        for i in range(0, 16, 2): a(f"v_pk_mul_f32 v[{Z+i}:{Z+i+1}], v[{Z+i}:{Z+i+1}], v[{g0+i}:{g0+i+1}]")
        for i in range(16): a(f"v_exp_f32 v{Z+i}, v{Z+i}")
        for i in range(0, 16, 2): a(f"v_pk_mul_f32 v[{U+i}:{U+i+1}], v[{U+i}:{U+i+1}], v[{g0+i}:{g0+i+1}]")
        for i in range(0, 16, 2): a(f"v_pk_add_f32 v[{Z+i}:{Z+i+1}], v[{Z+i}:{Z+i+1}], 1.0 op_sel_hi:[1,0]")
        for i in range(16): a(f"v_rcp_f32 v{Z+i}, v{Z+i}")
        a("s_nop 0")
        for i in range(0, 16, 2): a(f"v_pk_mul_f32 v[{U+i}:{U+i+1}], v[{U+i}:{U+i+1}], v[{Z+i}:{Z+i+1}]")
        for i in range(0, 16, 2): a(f"v_cvt_pk_bf16_f32 v{O+i//2}, v{U+i}, v{U+i+1}")
        for p in range(2):
            off = (((nb >> 1)*112 + p)*2 + (nb & 1))*1024
            a(f"s_add_u32 s31, s30, {off}")
            a(f"buffer_store_dwordx4 v[{O+4*p}:{O+4*p+3}], v26, s[12:15], s31 offen {opt.hflags}")
    stamp(a, 4)

PTB = 129*256
ALT = 0xBF803F80
def fold_loads(a):
    a("""
    v_and_b32 v40, 3, v1
    s_lshl_b32 s26, s2, 2
    v_add_u32 v40, s26, v40                 ; s'
    v_sub_u32 v41, 2048, v40
    v_mov_b32 v42, 1024
    v_cmp_eq_u32 s[62:63], 0, v40
    v_lshrrev_b32 v43, 2, v1
    s_lshl_b32 s26, s3, 4
    v_cndmask_b32 v41, v41, v42, s[62:63]   ; sp
    v_add_u32 v43, s26, v43                 ; c
    v_lshlrev_b32 v44, 4, v43               ; 16c
    v_sub_u32 v45, 2032, v44                ; mirror byte off
    v_lshl_add_u32 v46, v40, 11, v44
    v_lshl_add_u32 v47, v40, 11, v45
    v_lshl_add_u32 v48, v41, 11, v44
    v_lshl_add_u32 v49, v41, 11, v45
    buffer_load_dwordx4 v[52:55], v46, s[4:7], 0 offen
    buffer_load_dwordx4 v[56:59], v47, s[4:7], 0 offen
    buffer_load_ushort v50, v47, s[4:7], 0 offen offset:16
    buffer_load_dwordx4 v[60:63], v48, s[4:7], 0 offen
    buffer_load_dwordx4 v[64:67], v49, s[4:7], 0 offen
    buffer_load_ushort v51, v49, s[4:7], 0 offen offset:16
    buffer_load_dwordx4 v[68:71], v44, s[32:35], 0 offen
    buffer_load_dwordx4 v[72:75], v45, s[32:35], 0 offen
    v_lshlrev_b32 v46, 4, v1
    s_mov_b32 s26, 0x200000
    buffer_load_dwordx4 v[76:79], v46, s[4:7], s26 offen
    buffer_load_dwordx4 v[80:83], v46, s[4:7], s26 offen offset:1024
    s_lshl_b32 s26, s2, 1
    s_and_b32 s27, s3, 1
    s_add_u32 s26, s26, s27
    s_lshl_b32 s27, s26, 11
    buffer_load_dwordx4 v[84:87], v46, s[36:39], s27 offen
    buffer_load_dwordx4 v[88:91], v46, s[36:39], s27 offen offset:1024
    """)
    return 12
def reduce_lanes(a, regs, tmp, steps):
    for st in steps:
        if st.startswith('ror'):
            a("s_nop 1")
            for r in regs: a(f"v_add_f32_dpp v{r}, v{r}, v{r} row_ror:{st[3:]} row_mask:0xf bank_mask:0xf")
        else:
            for i, r in enumerate(regs): a(f"v_mov_b32 v{tmp+i}, v{r}")
            a("s_nop 1")
            for i, r in enumerate(regs): a(f"v_permlane{st[1:]}_swap_b32 v{r}, v{tmp+i}")
            a("s_nop 1")
            for i, r in enumerate(regs): a(f"v_add_f32 v{r}, v{r}, v{tmp+i}")
def fold_compute(a):
    A1, A2, B1, B2, G1, G2 = 52, 56, 60, 64, 68, 72
    a(f"v_mov_b32 v92, {ALT}")
    for r in range(93, 98): a(f"v_mov_b32 v{r}, 0")
    for i in range(4):
        a(f"v_dot2_f32_bf16 v93, v{A1+i}, v{G1+i}, v93\n v_dot2_f32_bf16 v94, v{B1+i}, v{G1+i}, v94\n v_dot2_f32_bf16 v95, v{A1+i}, v92, v95\n v_dot2_f32_bf16 v96, v{B1+i}, v92, v96\n v_dot2_f32_bf16 v97, v{76+i}, v{84+i}, v97")
        a(f"v_dot2_f32_bf16 v93, v{A2+i}, v{G2+i}, v93\n v_dot2_f32_bf16 v94, v{B2+i}, v{G2+i}, v94\n v_dot2_f32_bf16 v95, v{A2+i}, v92, v95\n v_dot2_f32_bf16 v96, v{B2+i}, v92, v96\n v_dot2_f32_bf16 v97, v{80+i}, v{88+i}, v97")
    a("v_cmp_eq_u32 vcc, 0, v43")
    for i in range(8): a(f"v_cndmask_b32 v{B1+i}, v{B1+i}, 0, s[62:63]")
    a("v_cndmask_b32 v51, v51, 0, s[62:63]\n v_cndmask_b32 v50, v50, 0, vcc\n v_cndmask_b32 v51, v51, 0, vcc")
    a_, ma, b_, mb_ = 100, 108, 68, 76
    def unp(dst, src, j):
        return f"v_lshlrev_b32 v{dst}, 16, v{src+j//2}" if j % 2 == 0 else f"v_and_b32 v{dst}, 0xffff0000, v{src+j//2}"
    for j in range(8): a(unp(a_+j, A1, j))
    for j in range(8): a(unp(b_+j, B1, j))
    a(f"v_lshlrev_b32 v{ma}, 16, v50\n v_lshlrev_b32 v{mb_}, 16, v51")
    for j in range(1, 8): a(unp(ma+j, A2, 8-j)); a(unp(mb_+j, B2, 8-j))
    a(f"v_lshlrev_b32 v98, 16, v{A2}\n v_lshlrev_b32 v99, 16, v{B2}\n v_add_f32 v98, v98, v99")
    for j in range(0, 8, 2):
        a(f"v_pk_add_f32 v[{84+j}:{85+j}], v[{a_+j}:{a_+j+1}], v[{ma+j}:{ma+j+1}]")
        a(f"v_pk_add_f32 v[{a_+j}:{a_+j+1}], v[{a_+j}:{a_+j+1}], v[{ma+j}:{ma+j+1}] neg_lo:[0,1] neg_hi:[0,1]")
        a(f"v_pk_add_f32 v[{116+j}:{117+j}], v[{b_+j}:{b_+j+1}], v[{mb_+j}:{mb_+j+1}]")
        a(f"v_pk_add_f32 v[{b_+j}:{b_+j+1}], v[{b_+j}:{b_+j+1}], v[{mb_+j}:{mb_+j+1}] neg_lo:[0,1] neg_hi:[0,1]")
    for j in range(0, 8, 2):
        a(f"v_pk_add_f32 v[{84+j}:{85+j}], v[{84+j}:{85+j}], v[{116+j}:{117+j}]")
        a(f"v_pk_add_f32 v[{a_+j}:{a_+j+1}], v[{a_+j}:{a_+j+1}], v[{b_+j}:{b_+j+1}] neg_lo:[0,1] neg_hi:[0,1]")
    for j in range(4):
        a(f"v_cvt_pk_bf16_f32 v{52+j}, v{84+2*j}, v{85+2*j}\n v_cvt_pk_bf16_f32 v{56+j}, v{a_+2*j}, v{a_+2*j+1}")
    a(f"""
    v_lshrrev_b32 v60, 6, v40
    v_lshlrev_b32 v60, 16, v60
    v_lshrrev_b32 v61, 2, v43
    v_lshl_add_u32 v60, v61, 12, v60
    v_bfe_u32 v61, v40, 4, 2
    v_lshl_add_u32 v60, v61, 10, v60
    v_and_b32 v61, 3, v43
    v_lshl_add_u32 v60, v61, 8, v60
    v_and_b32 v61, 15, v40
    v_lshl_add_u32 v60, v61, 4, v60
    s_mov_b32 s26, {WS_XE}
    s_mov_b32 s27, {WS_XE + (1<<20)}
    buffer_store_dwordx4 v[52:55], v60, s[12:15], s26 offen sc1
    buffer_store_dwordx4 v[56:59], v60, s[12:15], s27 offen sc1
    """)
    reduce_lanes(a, [93, 94, 95, 96, 97], 62, ['ror4', 'ror8', 'p16', 'p32'])
    reduce_lanes(a, [97], 62, ['ror1', 'ror2'])
    a(f"""
    v_add_f32 v62, v95, v96
    v_cndmask_b32 v62, v62, v95, s[62:63]
    s_lshl_b32 s26, s3, 2
    v_lshl_add_u32 v63, v40, 4, s26
    v_lshl_add_u32 v64, v41, 4, s26
    v_lshlrev_b32 v65, 2, v40
    s_lshl_b32 s28, s2, 1
    s_and_b32 s27, s3, 1
    s_add_u32 s28, s28, s27
    s_lshl_b32 s28, s28, 2
    v_mov_b32 v66, s28
    s_mov_b32 s26, {WS_LP}
    s_mov_b32 s27, {WS_UP}
    s_mov_b32 s28, {WS_CV}
    s_mov_b32 s29, {WS_RV}
    v_cmp_eq_u32 vcc, 63, v43
    s_mov_b64 s[64:65], exec
    s_mov_b64 exec, 15
    buffer_store_dword v93, v63, s[12:15], s26 offen sc1
    buffer_store_dword v94, v64, s[12:15], s26 offen sc1
    buffer_store_dword v62, v63, s[12:15], s27 offen sc1
    buffer_store_dword v97, v66, s[12:15], s29 offen sc1
    s_and_b64 exec, exec, s[62:63]
    s_cbranch_execz L_f1_%=
    buffer_store_dword v96, v64, s[12:15], s27 offen sc1
    L_f1_%=:
    s_mov_b64 exec, vcc
    s_cbranch_execz L_f2_%=
    buffer_store_dword v98, v65, s[12:15], s28 offen sc1
    L_f2_%=:
    s_mov_b64 exec, s[64:65]
    """.replace('%=', str(id(a) % 100000) + str(len(a.l))))
def publish(a, off):
    a("s_waitcnt vmcnt(0)\n s_barrier")
    lab = f"L_pub_{len(a.l)}"
    a(f"""
    s_cmp_lg_u32 s3, 0
    s_cbranch_scc1 {lab}
    v_mov_b32 v2, {off}
    v_mov_b32 v3, 1
    s_mov_b64 s[64:65], exec
    s_mov_b64 exec, 1
    global_atomic_add v2, v3, s[50:51] sc1
    s_mov_b64 exec, s[64:65]
    {lab}:
    """)
def poll(a, off, target):
    lab = f"L_poll_{len(a.l)}"
    a(f"""
    s_cmp_lg_u32 s3, 0
    s_cbranch_scc1 {lab}_done
    v_mov_b32 v2, {off}
    s_mov_b32 s27, 0
    {lab}:
    global_load_dword v3, v2, s[50:51] sc1
    s_waitcnt vmcnt(0)
    v_readfirstlane_b32 s26, v3
    s_cmp_ge_u32 s26, {target}
    s_cbranch_scc1 {lab}_done
    s_sleep 2
    s_add_u32 s27, s27, 1
    s_cmp_lt_u32 s27, 0x40000
    s_cbranch_scc1 {lab}
    {lab}_done:
    s_barrier
    """)

R3 = 8; SLOT3 = 16384
def dgemm_setup(a, rs_shift):
    a(f"""
    v_lshrrev_b32 v2, 3, v1
    s_lshl_b32 s26, s3, 5
    s_add_u32 s26, s26, s27
    v_add_u32 v2, s26, v2
    v_lshlrev_b32 v2, {rs_shift}, v2
    v_lshrrev_b32 v3, 4, v1
    v_and_b32 v4, 7, v1
    v_xor_b32 v3, v3, v4
    v_lshl_add_u32 v8, v3, 4, v2
    v_xor_b32 v3, 4, v3
    v_lshl_add_u32 v9, v3, 4, v2
    v_add_u32 v10, {2*((8<<rs_shift)-1024)}, v8
    v_add_u32 v11, {3*((8<<rs_shift)-1024)}, v9
    v_add_u32 v9, {((8<<rs_shift)-1024)}, v9
    s_mov_b32 s17, 0
    """)
def dgemm_dma(): return [f"buffer_load_dwordx4 v{8+i}, s[8:11], s17 offen offset:{i*1024} lds" for i in range(4)]
def dgemm_prefill(a, kbytes):
    for s in range(R3):
        a(f"s_add_u32 m0, s21, {s*SLOT3}\n s_nop 0")
        for x in dgemm_dma(): a(x)
        a(f"s_add_u32 s17, s17, 128")
    a(f"s_cmp_eq_u32 s17, {kbytes}\n s_cselect_b32 s17, {0x40000000}, s17")
def dgemm(a, name, niter, kbytes, extra):
    PB = 128; SF = 32
    def pl(i, off): return f"buffer_load_dwordx4 v[{PB+4*i}:{PB+4*i+3}], v12, s[32:35], s16 offen offset:{off} sc1"
    a("s_mov_b32 s16, 0")
    for t in range(8):
        for i in range(4): a(pl(t*4+i, i*1024))
        a("s_add_u32 s16, s16, 4096")
    def sreads(st, ks): return [f"ds_read_b128 v[{SF+st*32+4*nb}:{SF+st*32+4*nb+3}], v{18+ks} offset:{nb*2048}" for nb in range(8)]
    a("v_mov_b32 v18, v16\n v_mov_b32 v19, v17")
    a(f"s_waitcnt vmcnt(32)\n s_barrier")
    for x in sreads(0, 0): a(x)
    a(f"s_mov_b32 s19, 0\n s_mov_b32 s20, {SLOT3}\n s_mov_b32 s18, 0")
    a(f".p2align 6\nL_{name}_loop:")
    for t in range(8):
        ks = t & 1
        ms = []
        for mb in range(4):
            for nb in range(8):
                c = (nb*4+mb)*4; pa = PB + (t*4+mb)*4; sb = SF + ks*32 + nb*4
                ms.append(f"{MF} a[{c}:{c+3}], v[{pa}:{pa+3}], v[{sb}:{sb+3}], a[{c}:{c+3}]")
        f = {-1: ["s_waitcnt vmcnt(28) lgkmcnt(0)"]}
        if extra:
            lab = f"L_{name}_x{t}"
            f[-1] += ["s_cmp_eq_u32 s31, 0", f"s_cbranch_scc1 {lab}"] + \
                     [f"{MF} a[{128+4*mb}:{131+4*mb}], v[{PB+(t*4+mb)*4}:{PB+(t*4+mb)*4+3}], v[24:27], a[{128+4*mb}:{131+4*mb}]" for mb in range(4)] + [f"{lab}:"]
        if ks == 1:
            f[0] = ["s_barrier", "v_add_u32 v18, s20, v16"]
            rd = sreads(0, 0)
        else:
            rd = sreads(1, 1)
        for k, x in enumerate(rd): f.setdefault(1+2*k, []).append(x)
        for mb in range(4): f.setdefault(8*mb+7, []).append(pl(t*4+mb, mb*1024))
        f[31].append("s_add_u32 s16, s16, 4096")
        if ks == 1:
            f.setdefault(2, []).append("s_add_u32 m0, s21, s19")
            for k, x in enumerate(dgemm_dma()): f.setdefault(4+6*k, []).append(x)
            f.setdefault(18, []).append("v_add_u32 v19, s20, v17")
            f.setdefault(24, []).extend(["s_add_u32 s17, s17, 128", f"s_cmp_eq_u32 s17, {kbytes}"])
            f.setdefault(25, []).append(f"s_cselect_b32 s17, {0x40000000}, s17")
            f.setdefault(26, []).extend(["s_mov_b32 s19, s20", f"s_add_u32 s20, s20, {SLOT3}"])
            f.setdefault(28, []).append(f"s_and_b32 s20, s20, {R3*SLOT3-1}")
        interleave(a, ms, f)
    a(f"s_add_u32 s18, s18, 1\n s_cmp_lt_u32 s18, {niter}\n s_cbranch_scc1 L_{name}_loop")
    a("s_waitcnt vmcnt(0) lgkmcnt(0)\n s_nop 7")
def acc_init(a, vec_off_s, withx):
    lab = f"L_ai_{len(a.l)}"
    a(f"""
    v_lshrrev_b32 v2, 4, v1
    v_lshlrev_b32 v2, 4, v2
    s_lshl_b32 s26, s3, 8
    v_add_u32 v2, s26, v2
    """)
    for mb in range(4): a(f"buffer_load_dwordx4 v[{32+4*mb}:{35+4*mb}], v2, s[12:15], s{vec_off_s} offen offset:{mb*64} sc1")
    a(f"v_lshlrev_b32 v3, 31, v1\n s_cmp_eq_u32 s30, 0\n s_cselect_b32 s26, 1.0, 0\n s_waitcnt vmcnt(0)")
    for i in range(16): a(f"v_mul_f32 v{32+i}, s26, v{32+i}")
    if withx:
        for i in range(16): a(f"v_accvgpr_write_b32 a{128+i}, v{32+i}")
    for i in range(16): a(f"v_xor_b32 v{32+i}, v3, v{32+i}")
    for nb in range(8):
        for i in range(16): a(f"v_accvgpr_write_b32 a{nb*16+i}, v{32+i}")
def dft(a):
    a("""
    s_lshr_b32 s30, s66, 2                  ; parity
    s_lshl_b32 s21, s3, 12
    v_lshlrev_b32 v12, 4, v1
    v_and_b32 v2, 15, v1
    v_lshrrev_b32 v3, 1, v2
    v_lshrrev_b32 v4, 4, v1
    v_xor_b32 v3, v3, v4
    v_lshlrev_b32 v2, 7, v2
    v_lshl_add_u32 v16, v3, 4, v2
    v_xor_b32 v3, 4, v3
    v_lshl_add_u32 v17, v3, 4, v2
    """)
    a("s_cmp_eq_u32 s30, 0\n s_cselect_b32 s42, s56, s58\n s_cselect_b32 s43, s57, s59")
    srd(a, 8, 42, 1024*1024*2)
    a("s_lshl_b32 s27, s67, 7")
    dgemm_setup(a, 11)
    dgemm_prefill(a, 1024)
    a(f"""
    s_and_b32 s26, s66, 3
    s_lshl_b32 s26, s26, 2
    s_add_u32 s26, s26, s3
    s_lshl_b32 s26, s26, 16
    s_lshl_b32 s27, s30, 20
    s_add_u32 s26, s26, s27
    s_add_u32 s26, s26, {WS_XE}
    s_add_u32 s32, s48, s26
    s_addc_u32 s33, s49, 0
    s_and_b32 s33, s33, 0xffff
    s_mov_b32 s34, 65536
    s_mov_b32 s35, 0x20000
    """)
    stamp(a, 1)
    poll(a, 0, 256)
    stamp(a, 2)
    a(f"v_lshlrev_b32 v2, 6, v0\n s_mov_b32 s26, {WS_UP}")
    for i in range(4): a(f"buffer_load_dwordx4 v[{64+4*i}:{67+4*i}], v2, s[12:15], s26 offen offset:{16*i} sc1")
    a(f"v_mov_b32 v3, 16384\n buffer_load_dwordx4 v[80:83], v3, s[12:15], s26 offen sc1")
    a(f"s_and_b32 s26, s66, 3\n s_lshl_b32 s26, s26, 10\n s_add_u32 s25, s26, {WS_CV}")
    acc_init(a, 25, False)
    for i in range(5): a(f"v_add_f32 v{64+4*i}, v{64+4*i}, v{65+4*i}\n v_add_f32 v{66+4*i}, v{66+4*i}, v{67+4*i}\n v_add_f32 v{64+4*i}, v{64+4*i}, v{66+4*i}")
    a("v_cvt_pk_bf16_f32 v84, v64, v68\n v_cvt_pk_bf16_f32 v85, v72, v76\n v_lshlrev_b32 v2, 3, v0\n v_add_u32 v2, 131072, v2\n ds_write_b64 v2, v[84:85]\n v_mov_b32 v13, v80")
    dgemm(a, 'd1', 2, 1024, False)
    stamp(a, 3)
    a("s_barrier")
    a("s_cmp_eq_u32 s30, 0\n s_cselect_b32 s42, s52, s54\n s_cselect_b32 s43, s53, s55")
    srd(a, 8, 42, 2048*2048*2)
    a("s_and_b32 s27, s66, 1\n s_lshl_b32 s27, s27, 2\n s_add_u32 s24, s27, s67\n s_lshl_b32 s27, s24, 7")
    dgemm_setup(a, 12)
    dgemm_prefill(a, 2048)
    a(f"""
    v_lshrrev_b32 v2, 4, v1
    v_and_b32 v3, 1, v2
    v_lshrrev_b32 v2, 1, v2
    v_lshl_add_u32 v2, v3, 1, v2
    v_and_b32 v3, 15, v1
    v_lshlrev_b32 v3, 4, v3
    v_lshl_add_u32 v14, v2, 8, v3
    s_lshl_b32 s26, s67, 6
    s_and_b32 s27, s66, 3
    s_lshl_b32 s27, s27, 3
    s_add_u32 s26, s26, s27
    s_lshl_b32 s27, s3, 1
    s_add_u32 s26, s26, s27
    s_lshl_b32 s26, s26, 12
    s_lshl_b32 s27, s30, 20
    s_add_u32 s26, s26, s27
    s_add_u32 s25, s26, {WS_AE}
    """)
    for nb in range(8):
        t = 32 + (nb & 1)*24
        for i in range(16): a(f"v_accvgpr_read_b32 v{t+i}, a{nb*16+i}")
        for i in range(8): a(f"v_cvt_pk_bf16_f32 v{t+16+i}, v{t+2*i}, v{t+2*i+1}")
        a("s_nop 1")
        for p in range(2):
            a(f"v_permlane16_swap_b32 v{t+16+4*p}, v{t+18+4*p}\n v_permlane16_swap_b32 v{t+17+4*p}, v{t+19+4*p}")
        for p in range(2):
            a(f"s_add_u32 s26, s25, {(((nb >> 2)*32 + p)*4 + (nb & 3))*1024}")
            a(f"buffer_store_dwordx4 v[{t+16+4*p}:{t+19+4*p}], v14, s[12:15], s26 offen sc1")
    a("s_lshl_b32 s26, s30, 1\n s_lshr_b32 s27, s67, 1\n s_add_u32 s26, s26, s27\n s_lshl_b32 s26, s26, 4\n s_add_u32 s23, s26, 64")
    publish(a, 's23')
    srd(a, 36, 52, 2048*2048*2)
    a("""
    s_lshl_b32 s26, s66, 2
    s_add_u32 s26, s26, s67
    s_lshl_b32 s26, s26, 5
    s_lshl_b32 s27, s3, 3
    s_add_u32 s22, s26, s27
    s_lshl_b32 s26, s22, 12
    """)
    for i in range(9):
        if i == 8: a("s_mov_b32 s26, 0x400000")
        a(f"buffer_load_dwordx4 v[{128+8*i}:{131+8*i}], v12, s[36:39], s26 offen\n buffer_load_dwordx4 v[{132+8*i}:{135+8*i}], v12, s[36:39], s26 offen offset:1024\n s_add_u32 s26, s26, 4096")
    a("v_add_u32 v2, 131072, v12\n ds_read_b128 v[32:35], v2\n ds_read_b128 v[36:39], v2 offset:1024")
    for i in range(9): a(f"v_mov_b32 v{40+i}, 0")
    a("s_waitcnt vmcnt(0) lgkmcnt(0)")
    for j in range(8):
        for i in range(9): a(f"v_dot2_f32_bf16 v{40+i}, v{128+8*i+j}, v{32+j}, v{40+i}")
    a("s_nop 2")
    reduce_lanes(a, list(range(40, 49)), 50, ['ror1', 'ror2', 'ror4', 'ror8', 'p16', 'p32'])
    for i in range(1, 9): a(f"v_cmp_eq_u32 vcc, {i}, v1\n s_nop 1\n v_cndmask_b32 v40, v40, v{40+i}, vcc")
    a(f"""
    v_lshlrev_b32 v2, 31, v1
    v_xor_b32 v2, v2, v13
    v_add_f32 v40, v40, v2
    v_add_u32 v3, s22, v1
    v_mov_b32 v4, 1024
    v_cndmask_b32 v3, v3, v4, vcc
    v_lshrrev_b32 v4, 4, v3
    s_mov_b32 s26, {PTB}
    v_mul_lo_u32 v4, v4, s26
    v_and_b32 v3, 15, v3
    v_lshl_add_u32 v3, v3, 4, v4
    v_mov_b32 v41, 0
    s_mov_b32 s26, {WS_P + 128*256}
    s_mov_b32 s27, {WS_P + WS_PQD + 128*256}
    s_mov_b64 s[64:65], exec
    s_mov_b64 exec, 0x1ff
    buffer_store_dword v40, v3, s[12:15], s26 offen
    buffer_store_dword v41, v3, s[12:15], s27 offen
    s_mov_b64 exec, s[64:65]
    """)
    a(f"""
    s_bfe_u32 s25, s66, 0x10001
    s_lshl_b32 s26, s30, 1
    s_add_u32 s26, s26, s25
    s_lshl_b32 s26, s26, 4
    s_add_u32 s23, s26, 64
    s_lshl_b32 s26, s25, 2
    s_add_u32 s26, s26, s3
    s_lshl_b32 s26, s26, 17
    s_lshl_b32 s27, s30, 20
    s_add_u32 s26, s26, s27
    s_add_u32 s26, s26, {WS_AE}
    s_add_u32 s32, s48, s26
    s_addc_u32 s33, s49, 0
    s_and_b32 s33, s33, 0xffff
    s_mov_b32 s34, 131072
    s_mov_b32 s35, 0x20000
    s_lshl_b32 s22, s25, 10
    s_add_u32 s22, s22, {WS_RV}
    s_or_b32 s31, s30, s24
    s_cmp_eq_u32 s31, 0
    s_cselect_b32 s31, 1, 0
    v_mov_b32 v24, {ALT}
    v_mov_b32 v25, {ALT}
    v_mov_b32 v26, {ALT}
    v_mov_b32 v27, {ALT}
    """)
    acc_init(a, 22, True)
    poll(a, 's23', 8)
    dgemm(a, 'd2', 4, 2048, True)
    a(f"""
    s_mul_i32 s26, s24, {8*PTB}
    s_lshl_b32 s27, s25, 14
    s_lshl_b32 s22, s3, 12
    s_add_u32 s27, s27, s22
    s_lshl_b32 s22, s30, 22
    s_add_u32 s27, s27, s22
    s_add_u32 s27, s27, {WS_P}
    s_add_u32 s26, s26, s27
    """)
    for nb in range(8):
        for mb in range(4):
            a(f"buffer_store_dwordx4 a[{(nb*4+mb)*4}:{(nb*4+mb)*4+3}], v12, s[12:15], s26 offen offset:{mb*1024}")
        a(f"s_add_u32 s26, s26, {PTB}")
    a(f"""
    s_cmp_lg_u32 s24, 0
    s_cbranch_scc1 L_dft_done
    s_add_u32 s27, s27, {64*PTB}
    s_mov_b32 exec_lo, 0x00010001
    s_mov_b32 exec_hi, 0x00010001
    """)
    for mb in range(4): a(f"buffer_store_dwordx4 a[{128+4*mb}:{131+4*mb}], v12, s[12:15], s27 offen offset:{mb*1024}")
    a("s_mov_b64 exec, -1\nL_dft_done:")
    stamp(a, 4)

def k1():
    a = Asm()
    a("""
    s_cmp_ge_u32 s2, 256
    s_cbranch_scc1 L_k1_end
    s_load_dwordx2 s[40:41], s[0:1], 0
    s_load_dwordx4 s[44:47], s[0:1], 48
    s_load_dwordx2 s[48:49], s[0:1], 96
    s_load_dwordx2 s[50:51], s[0:1], 88
    s_load_dwordx8 s[52:59], s[0:1], 8
    s_load_dwordx2 s[60:61], s[0:1], 72
    v_and_b32 v1, 63, v0
    v_lshrrev_b32 v2, 6, v0
    s_nop 0
    v_readfirstlane_b32 s3, v2
    """)
    stamp(a, 0)
    a("s_waitcnt lgkmcnt(0)")
    srd(a, 4, 40, 2048*1024*2)
    srd(a, 12, 48, WS_SZ)
    srd(a, 32, 60, 2048)
    srd(a, 36, 56, 1024*1024*2)
    fold_loads(a)
    a("s_waitcnt vmcnt(0)")
    fold_compute(a)
    publish(a, 0)
    a("""
    s_and_b32 s26, s2, 7
    s_lshr_b32 s27, s2, 3
    s_mov_b32 s66, s26
    s_sub_u32 s67, s27, 28
    s_cmp_ge_u32 s27, 28
    s_cbranch_scc1 L_k1_dft
    s_and_b32 s24, s26, 1
    s_lshl_b32 s24, s24, 2
    s_and_b32 s28, s27, 3
    s_add_u32 s24, s24, s28
    s_lshr_b32 s25, s26, 1
    s_mul_i32 s25, s25, 7
    s_lshr_b32 s28, s27, 2
    s_add_u32 s25, s25, s28
    """)
    gemm1(a)
    stamp_flush(a, 5, 12, 0)
    a("s_branch L_k1_end")
    a("L_k1_dft:")
    dft(a)
    stamp_flush(a, 5, 12, 0)
    a("L_k1_end:")
    return kernel('k1_kernel', a.text(), vgpr=256, agpr=256)

R2 = 6; SLOT2 = 16384
def k2():
    a = Asm()
    a("""
    s_cmp_ge_u32 s2, 256
    s_cbranch_scc1 L_k2_end
    s_load_dwordx2 s[40:41], s[0:1], 64
    s_load_dwordx2 s[42:43], s[0:1], 80
    s_load_dwordx2 s[46:47], s[0:1], 96
    v_and_b32 v1, 63, v0
    v_lshrrev_b32 v2, 6, v0
    s_nop 0
    v_readfirstlane_b32 s3, v2
    """)
    stamp(a, 0)
    a("""
    s_and_b32 s26, s2, 7
    s_lshr_b32 s27, s2, 3
    s_and_b32 s24, s26, 3
    s_lshl_b32 s24, s24, 2
    s_and_b32 s28, s27, 3
    s_add_u32 s24, s24, s28
    s_lshr_b32 s25, s26, 2
    s_lshl_b32 s25, s25, 3
    s_lshr_b32 s28, s27, 2
    s_add_u32 s25, s25, s28
    s_waitcnt lgkmcnt(0)
    """)
    srd(a, 4, 40, 3584*1024*2)
    srd(a, 8, 42, 2048*1024*2)
    srd(a, 12, 46, WS_SZ)
    a("""
    s_lshl_b32 s16, s24, 2
    s_add_u32 s16, s16, s3
    s_mul_i32 s16, s16, 229376
    s_add_u32 s36, s46, s16
    s_addc_u32 s37, s47, 0
    s_and_b32 s37, s37, 0xffff
    s_mov_b32 s38, 229376
    s_mov_b32 s39, 0x20000
    s_mov_b32 s16, 0
    v_lshlrev_b32 v8, 4, v1
    """)
    a("""
    v_lshrrev_b32 v2, 3, v1
    s_lshl_b32 s26, s3, 5
    v_add_u32 v2, s26, v2
    v_lshlrev_b32 v2, 11, v2
    v_lshrrev_b32 v3, 4, v1
    v_lshlrev_b32 v3, 1, v3
    v_and_b32 v4, 7, v1
    v_xor_b32 v3, v3, v4
    v_lshl_add_u32 v2, v3, 4, v2
    s_lshl_b32 s26, s25, 7
    v_add_u32 v12, s26, v2
    """)
    for i in range(1, 4): a(f"v_add_u32 v{12+i}, {i*(8*2048-1024)}, v12")
    a("s_mov_b32 s17, 0\n s_lshl_b32 s21, s3, 12")
    a(f"""
    s_lshl_b32 s26, s24, 7
    s_lshl_b32 s27, s3, 5
    s_add_u32 s26, s26, s27
    v_and_b32 v2, 15, v1
    v_add_u32 v24, s26, v2
    v_add_u32 v25, 16, v24
    s_mov_b32 s26, {WS_LP}
    v_lshlrev_b32 v2, 4, v24
    buffer_load_dwordx4 a[128:131], v2, s[12:15], s26 offen
    buffer_load_dwordx4 a[132:135], v2, s[12:15], s26 offen offset:256
    s_cmp_ge_u32 s25, 8
    s_cselect_b64 s[62:63], -1, 0
    v_lshrrev_b32 v3, 4, v1
    s_lshl_b32 s26, s25, 4
    v_add_u32 v3, s26, v3
    v_sub_u32 v4, 243, v3
    v_cndmask_b32 v3, v3, v4, s[62:63]
    v_lshlrev_b32 v3, 8, v3
    s_mov_b32 s26, {PTB}
    s_mov_b32 s28, {WS_P}
    s_mov_b32 s29, {WS_P + WS_PQD}
    """)
    for nb in range(2):
        a(f"""
        v_sub_u32 v4, 2048, v{24+nb}
        v_min_u32 v4, v4, v{24+nb}
        v_lshrrev_b32 v5, 4, v4
        v_mul_lo_u32 v5, v5, s26
        v_and_b32 v4, 15, v4
        v_lshl_add_u32 v4, v4, 4, v5
        v_add_u32 v4, v4, v3
        v_add_u32 v5, 256, v4
        v_cndmask_b32 v5, v4, v5, s[62:63]
        """)
        for j in range(4):
            k = 32 + (nb*4+j)*12
            a(f"buffer_load_dwordx4 a[{k}:{k+3}], v4, s[12:15], s28 offen offset:{j*1024}")
            a(f"buffer_load_dwordx4 a[{k+4}:{k+7}], v4, s[12:15], s29 offen offset:{j*1024}")
            a(f"buffer_load_dword a{k+8}, v5, s[12:15], s28 offen offset:{j*1024}")
            a(f"buffer_load_dword a{k+9}, v5, s[12:15], s29 offen offset:{j*1024}")
    def dma_w(sreg): return [f"buffer_load_dwordx4 v{12+i}, s[4:7], s{sreg} offen offset:{i*1024} lds" for i in range(4)]
    HB = 128
    def hload(i, off): return f"buffer_load_dwordx4 v[{HB+4*i}:{HB+4*i+3}], v8, s[36:39], s16 offen offset:{off}"
    for s in range(R2):
        a(f"s_add_u32 m0, s21, {s*SLOT2}\n s_nop 0")
        for x in dma_w(17): a(x)
        a(f"s_add_u32 s17, s17, {128*2048}")
        if s < 4:
            for i in range(8):
                a(hload(s*8+i, (i % 4)*1024))
                if i % 4 == 3: a("s_add_u32 s16, s16, 4096")
    a("""
    v_lshrrev_b32 v3, 4, v1
    v_lshrrev_b32 v4, 2, v1
    v_and_b32 v4, 3, v4
    v_lshl_add_u32 v5, v3, 2, v4
    v_lshrrev_b32 v6, 1, v5
    v_and_b32 v6, 3, v6
    v_lshlrev_b32 v5, 7, v5
    v_and_b32 v7, 3, v1
    v_lshl_add_u32 v5, v7, 3, v5
    """)
    for mb in range(4):
        a(f"v_xor_b32 v7, {mb}, v6\n v_lshl_add_u32 v{16+mb}, v7, 5, v5\n v_mov_b32 v{20+mb}, v{16+mb}")
    for i in range(32): a(f"v_accvgpr_write_b32 a{i}, 0")
    WF = 32
    def wreads(st, p):
        r = []
        for mb in range(4):
            b = WF + st*16 + mb*4
            r.append(f"ds_read_b64_tr_b16 v[{b}:{b+1}], v{20+mb} offset:{p*4096}")
            r.append(f"ds_read_b64_tr_b16 v[{b+2}:{b+3}], v{20+mb} offset:{p*4096+2048}")
        return r
    stamp(a, 1)
    a(f"s_waitcnt vmcnt({32 + (R2-1)*4})\n s_barrier")
    for x in wreads(0, 0): a(x)
    a(f"s_mov_b32 s19, 0\n s_mov_b32 s20, {SLOT2}\n s_mov_b32 s18, 0")
    stamp(a, 2)
    a(".p2align 6\nL_g2_loop:")
    for ss in range(4):
        if opt.trace:
            a(f"s_lshl_b32 s96, s18, 2\n s_add_u32 s96, s96, {ss}")
            for x in trace_ops("s96"): a(x)
        for p in range(4):
            i = (ss*4 + p)*2
            st = p & 1
            a(f"s_waitcnt vmcnt(46) lgkmcnt(0)")
            ms = []
            for nb in range(2):
                for mb in range(4):
                    b = WF + st*16 + mb*4; c = (nb*4+mb)*4
                    ms.append(f"{MF} a[{c}:{c+3}], v[{b}:{b+3}], v[{HB+4*(i+nb)}:{HB+4*(i+nb)+3}], a[{c}:{c+3}]")
            f = {}
            if p == 3:
                f[0] = ["s_barrier"] + [f"v_add_u32 v{20+mb}, s20, v{16+mb}" for mb in range(4)]
                rd = wreads(st ^ 1, 0)
            else:
                rd = wreads(st ^ 1, p+1)
            for k, x in enumerate(rd): f.setdefault(k, []).append(x)
            f[4].append(hload(i, (i % 4)*1024))
            f[7].append(hload(i+1, ((i+1) % 4)*1024))
            if (i+1) % 4 == 3: f[7].append("s_add_u32 s16, s16, 4096")
            interleave(a, ms, f)
            if p == 3:
                a("s_add_u32 m0, s21, s19\n s_mov_b32 s19, s20")
                for x in dma_w(17): a(x)
                a(f"s_add_u32 s17, s17, {128*2048}\n s_add_u32 s20, s20, {SLOT2}\n s_cmp_eq_u32 s20, {R2*SLOT2}\n s_cselect_b32 s20, 0, s20")
    a("s_add_u32 s18, s18, 1\n s_cmp_lt_u32 s18, 7\n s_cbranch_scc1 L_g2_loop")
    stamp(a, 3)
    a("s_waitcnt vmcnt(0) lgkmcnt(0)\n s_nop 7")
    a("""
    s_lshl_b32 s26, s24, 7
    s_lshl_b32 s27, s3, 5
    s_add_u32 s26, s26, s27
    v_and_b32 v2, 15, v1
    v_add_u32 v2, s26, v2
    v_lshlrev_b32 v2, 11, v2
    v_lshrrev_b32 v3, 4, v1
    v_and_b32 v4, 1, v3
    v_lshl_add_u32 v2, v4, 5, v2
    v_lshrrev_b32 v4, 1, v3
    v_lshl_add_u32 v2, v4, 4, v2
    s_lshl_b32 s26, s25, 7
    v_add_u32 v2, s26, v2
    v_add_u32 v3, 32768, v2
    """)
    for i in range(32): a(f"v_accvgpr_read_b32 v{64+i}, a{i}")
    for nb in range(2):
        for i in range(4): a(f"v_accvgpr_read_b32 v{40+i}, a{128+4*nb+i}")
        a(f"""
        v_add_f32 v40, v40, v41
        v_add_f32 v42, v42, v43
        v_add_f32 v40, v40, v42
        v_cvt_pk_bf16_f32 v40, v40, v40
        v_lshlrev_b32 v40, 16, v40
        v_mul_f32 v40, {fbits(-math.log2(math.e))}, v40
        v_exp_f32 v40, v40
        s_nop 0
        v_add_f32 v40, 1.0, v40
        v_rcp_f32 v40, v40
        s_nop 0
        v_cvt_pk_bf16_f32 v40, v40, v40
        v_lshlrev_b32 v{32+nb}, 16, v40
        v_sub_f32 v40, 1.0, v{32+nb}
        v_cvt_pk_bf16_f32 v40, v40, v40
        v_lshlrev_b32 v{34+nb}, 16, v40
        v_cmp_lt_u32 vcc, 1024, v{24+nb}
        s_xor_b64 vcc, vcc, s[62:63]
        v_mov_b32 v40, -1.0
        v_mov_b32 v41, 1.0
        v_cndmask_b32 v{36+nb}, v40, v41, vcc
        """)
    for nb in range(2):
        for j in range(4):
            k = 32 + (nb*4+j)*12; d = 128 + (nb*4+j)*4
            for i in range(10): a(f"v_accvgpr_read_b32 v{40+i}, a{k+i}")
            a(f"v_fma_f32 v{d}, v49, v{36+nb}, v48\n v_fma_f32 v41, v45, v{36+nb}, v41\n v_fma_f32 v{d+2}, v46, v{36+nb}, v42\n v_fma_f32 v43, v47, v{36+nb}, v43")
            a(f"v_cndmask_b32 v{d+1}, v41, v43, s[62:63]\n v_cndmask_b32 v{d+3}, v43, v41, s[62:63]")
        for mb in range(4):
            for r in range(4):
                o = 64 + (nb*4+mb)*4 + r
                a(f"v_cndmask_b32 v40, v{128+(nb*4+mb)*4+r}, v{128+(nb*4+3-mb)*4+r}, s[62:63]\n v_mul_f32 v{o}, v{34+nb}, v{o}\n v_fma_f32 v{o}, v40, v{32+nb}, v{o}")
    for i in range(16): a(f"v_cvt_pk_bf16_f32 v{96+i}, v{64+2*i}, v{64+2*i+1}")
    a("s_nop 1")
    for p in range(4):
        a(f"v_permlane16_swap_b32 v{96+4*p}, v{96+4*p+2}\n v_permlane16_swap_b32 v{96+4*p+1}, v{96+4*p+3}")
    for p in range(4):
        a(f"buffer_store_dwordx4 v[{96+4*p}:{96+4*p+3}], v{2+(p>>1)}, s[8:11], 0 offen offset:{(p&1)*64}")
    stamp(a, 4)
    stamp_flush(a, 5, 12, 1)
    a("L_k2_end:")
    return kernel('k2_kernel', a.text(), vgpr=256, agpr=136)

def main():
    fn = sys.argv[1]
    for o in sys.argv[2:]:
        k, v = o.split('=', 1)
        setattr(opt, k, eval(v))
    src = module([('k1_kernel', 256, 256, R1*SLOT1), ('k2_kernel', 256, 256, R2*SLOT2)], [k1(), k2()])
    open(fn, 'w').write(src)
if __name__ == '__main__': main()
```

```python
import sys, math, struct
from ab import *

WS_H   = 0
HS     = 262144
WS_Z   = (16 << 20) + 65536
WS_AT  = (18 << 20) + 131072
WS_Y   = (20 << 20) + 196608
YD     = 2 << 20
YS     = 1152
WS_LP  = (24 << 20) + 131072
WS_UP  = WS_LP + 32768
WS_CV  = WS_UP + 32768
WS_RV  = WS_CV + 4096
WS_FL  = 25 << 20
WS_TS  = 30 << 20
WS_SZ  = 256 << 20
OOB = 0x40000000
ALT = 0xBF803F80
R1 = 5; SLOT1 = 32768
R2 = 8; SLOT2 = 16384
R3 = 8; SLOT3 = 16384
MF = "v_mfma_f32_16x16x32_bf16"
class Opt: pass
opt = Opt()
opt.stamp = False; opt.trace = False; opt.hflags = 'sc1'; opt.psleep = 2; opt.order = 3; opt.tlb = True; opt.smem = True; opt.g2touch = False; opt.tflags = ''; opt.killw = None
fbits = lambda x: struct.unpack('<I', struct.pack('<f', x))[0]
CODE_LINES = 12

def srd(a, d, base, size):
    a(f"s_mov_b32 s{d}, s{base}\n s_and_b32 s{d+1}, s{base+1}, 0xffff\n s_mov_b32 s{d+2}, {size}\n s_mov_b32 s{d+3}, 0x20000")
def srd_ws(a, d, soff, size):
    a(f"s_add_u32 s{d}, s48, s{soff}\n s_addc_u32 s{d+1}, s49, 0\n s_and_b32 s{d+1}, s{d+1}, 0xffff\n s_mov_b32 s{d+2}, {size}\n s_mov_b32 s{d+3}, 0x20000")
def interleave(a, mfmas, fill):
    for s in fill.get(-1, []): a(s)
    for i, m in enumerate(mfmas):
        a(m)
        for s in fill.get(i, []): a(s)
def lab(a, p): return f"L_{p}_{len(a.l)}"

def stamp(a, idx):
    if not opt.stamp: return
    a(f"s_memrealtime s[92:93]\n s_memtime s[94:95]\n s_waitcnt lgkmcnt(0)\n v_writelane_b32 v31, s92, {40+idx}\n v_writelane_b32 v30, s94, {40+idx}")
def trace_ops(sidx):
    return ["s_memtime s[92:93]", "s_memrealtime s[94:95]", "s_waitcnt lgkmcnt(0)", f"v_cmp_eq_u32 vcc, {sidx}, v1", "v_mov_b32 v28, s92", "v_mov_b32 v29, s94",
            "v_cndmask_b32 v30, v30, v28, vcc", "v_cndmask_b32 v31, v31, v29, vcc"]
def stamp_flush(a, half):
    if not opt.stamp: return
    a(f"s_lshl_b32 s90, s2, 2\n s_add_u32 s90, s90, s3\n s_lshl_b32 s90, s90, 9\n s_add_u32 s90, s90, {WS_TS + half*524288}")
    a(f"v_lshlrev_b32 v28, 3, v1\n buffer_store_dwordx2 v[30:31], v28, s[12:15], s90 offen")

def nonce(a):
    a("s_mul_i32 s98, s98, 0x9E3779B1\n s_add_u32 s98, s98, 0x7F4A7C15\n s_xor_b32 s99, s98, 0x5bd1e995")
def flag_store(a, soff, vt=2):
    a(f"""
    v_mov_b32 v{vt}, 0
    v_mov_b32 v{vt+2}, s98
    v_mov_b32 v{vt+3}, s99
    s_mov_b64 exec, 1
    buffer_store_dwordx2 v[{vt+2}:{vt+3}], v{vt}, s[12:15], {soff} offen sc1
    s_mov_b64 exec, -1
    """)
def publish(a, soff):
    a("s_waitcnt vmcnt(0)\n s_barrier")
    L = lab(a, 'pub')
    a(f"s_cmp_lg_u32 s3, 0\n s_cbranch_scc1 {L}")
    flag_store(a, soff)
    a(f"{L}:")
def poll(a, items):
    L = lab(a, 'poll')
    a(f"v_lshlrev_b32 v6, 3, v1\n s_mov_b32 s27, 0\n {L}:")
    for i, (so, mk) in enumerate(items): a(f"buffer_load_dwordx2 v[{2+2*i}:{3+2*i}], v6, s[12:15], {so} offen sc1")
    a("s_waitcnt vmcnt(0)\n s_mov_b64 s[64:65], 0")
    for i, (so, mk) in enumerate(items):
        a(f"v_cmp_ne_u32 vcc, s98, v{2+2*i}\n v_cmp_ne_u32 s[28:29], s99, v{3+2*i}\n s_or_b64 vcc, vcc, s[28:29]\n s_and_b64 vcc, vcc, {mk}\n s_or_b64 s[64:65], s[64:65], vcc")
    a(f"""
    s_cbranch_scc0 {L}_done
    s_sleep {opt.psleep}
    s_add_u32 s27, s27, 1
    s_cmp_lt_u32 s27, 0x40000
    s_cbranch_scc1 {L}
    {L}_done:
    """)
def reduce_lanes(a, regs, tmp, steps):
    for st in steps:
        if st.startswith('ror'):
            a("s_nop 1")
            for r in regs: a(f"v_add_f32_dpp v{r}, v{r}, v{r} row_ror:{st[3:]} row_mask:0xf bank_mask:0xf")
        else:
            for i, r in enumerate(regs): a(f"v_mov_b32 v{tmp+i}, v{r}")
            a("s_nop 1")
            for i, r in enumerate(regs): a(f"v_permlane{st[1:]}_swap_b32 v{r}, v{tmp+i}")
            a("s_nop 1")
            for i, r in enumerate(regs): a(f"v_add_f32 v{r}, v{r}, v{tmp+i}")
def unp(dst, src, j):
    return f"v_lshlrev_b32 v{dst}, 16, v{src+j//2}" if j % 2 == 0 else f"v_and_b32 v{dst}, 0xffff0000, v{src+j//2}"
def pk(op, d, x, y, neg=False):
    return f"v_pk_add_f32 v[{d}:{d+1}], v[{x}:{x+1}], v[{y}:{y+1}]" + (" neg_lo:[0,1] neg_hi:[0,1]" if neg else "")

def tlb_setup(a, vd):
    a(f"""
    s_mov_b32 s76, s48
    s_mov_b32 s77, s49
    s_mov_b32 s78, {26 << 20}
    s_cmp_eq_u32 s3, 1
    s_cselect_b32 s76, s42, s76
    s_cselect_b32 s77, s43, s77
    s_cselect_b32 s78, {4 << 20}, s78
    s_cmp_eq_u32 s3, 2
    s_cselect_b32 s76, s88, s76
    s_cselect_b32 s77, s89, s77
    s_cselect_b32 s78, {3584*2048}, s78
    s_cmp_eq_u32 s3, 3
    s_cselect_b32 s76, s52, s76
    s_cselect_b32 s77, s53, s77
    s_cselect_b32 s78, {5 << 20}, s78
    s_and_b32 s77, s77, 0xffff
    s_mov_b32 s79, 0x20000
    v_lshlrev_b32 v{vd}, 20, v1
    v_add_u32 v{vd}, {(1 << 20) - 128}, v{vd}
    v_cmp_eq_u32 vcc, 16, v1
    v_mov_b32 v2, {(16 << 20) + 128}
    s_nop 0
    v_cndmask_b32 v{vd}, v{vd}, v2, vcc
    v_cmp_le_u32 vcc, 17, v1
    v_mov_b32 v2, {(18 << 20) + 65536 + 128}
    s_nop 0
    v_cndmask_b32 v{vd}, v{vd}, v2, vcc
    v_cmp_le_u32 vcc, 18, v1
    v_lshlrev_b32 v2, 21, v1
    v_subrev_u32 v2, {(18 << 21) - ((22 << 20) - 128)}, v2
    v_cndmask_b32 v{vd}, v{vd}, v2, vcc
    """)

def g2_tile(a):
    a("""
    s_and_b32 s26, s2, 7
    s_lshr_b32 s27, s2, 3
    s_and_b32 s50, s26, 3
    s_lshl_b32 s50, s50, 2
    s_and_b32 s51, s27, 3
    s_add_u32 s50, s50, s51
    s_lshr_b32 s51, s26, 2
    s_lshl_b32 s51, s51, 3
    s_lshr_b32 s27, s27, 2
    s_add_u32 s51, s51, s27
    """)
def g2_voff(a, vb, wshift, t=2):
    a(f"""
    v_lshrrev_b32 v{t}, 3, v1
    s_lshl_b32 s26, s3, {wshift}
    v_add_u32 v{t}, s26, v{t}
    v_lshlrev_b32 v{t}, 11, v{t}
    v_lshrrev_b32 v{t+1}, 4, v1
    v_lshlrev_b32 v{t+1}, 1, v{t+1}
    v_and_b32 v{vb}, 7, v1
    v_xor_b32 v{t+1}, v{t+1}, v{vb}
    v_lshl_add_u32 v{t}, v{t+1}, 4, v{t}
    s_lshl_b32 s26, s51, 7
    v_add_u32 v{vb}, s26, v{t}
    """)
    for i in range(1, 4): a(f"v_add_u32 v{vb+i}, {i*(8*2048-1024)}, v{vb}")
def g2_slot(a, s):
    a(f"s_add_u32 m0, s21, {s*SLOT2}\n s_nop 0")
    for x in g2_dma(): a(x)
    a(f"s_add_u32 s17, s17, {128*2048}")
def g2_dma(): return [f"buffer_load_dwordx4 v{12+i}, s[4:7], s17 offen offset:{i*1024} lds" for i in range(4)]

def gemm2(a):
    a(f"s_mov_b32 s24, s50\n s_mov_b32 s25, s51\n s_mov_b32 s17, {R2*128*2048}\n s_lshl_b32 s21, s3, 12")
    srd(a, 4, 88, 3584*1024*2)
    g2_voff(a, 12, 5)
    srd(a, 8, 42, 2048*1024*2)
    a("s_lshl_b32 s16, s24, 2\n s_add_u32 s16, s16, s3\n s_lshl_b32 s16, s16, 18")
    srd_ws(a, 36, 16, 229376)
    a("s_mov_b32 s16, 0\n v_lshlrev_b32 v8, 4, v1\n v_mov_b32 v22, 0x40000000")
    a("""
    v_lshrrev_b32 v3, 4, v1
    v_lshrrev_b32 v4, 2, v1
    v_and_b32 v4, 3, v4
    v_lshl_add_u32 v5, v3, 2, v4
    v_lshrrev_b32 v6, 1, v5
    v_and_b32 v6, 3, v6
    v_lshlrev_b32 v5, 7, v5
    v_and_b32 v7, 3, v1
    v_lshl_add_u32 v5, v7, 3, v5
    """)
    for mb in range(4):
        a(f"v_xor_b32 v7, {mb}, v6\n v_lshl_add_u32 v{16+mb}, v7, 5, v5\n v_mov_b32 v{24+mb}, v{16+mb}")
    for i in range(32): a(f"v_accvgpr_write_b32 a{i}, 0")
    a(f"""
    s_lshl_b32 s26, s24, 9
    s_add_u32 s22, s26, {WS_FL+4096}
    s_mov_b32 s23, {WS_FL+2048}
    s_mov_b32 s60, -1
    s_mov_b32 s61, 0x00ffffff
    """)
    stamp(a, 5)
    poll(a, [('s22', 's[60:61]'), ('s23', '0xffffffff')])
    stamp(a, 6)
    HB = 128; WF = 32
    def hload(i, off): return f"buffer_load_dwordx4 v[{HB+4*i}:{HB+4*i+3}], v8, s[36:39], s16 offen offset:{off} sc1"
    for i in range(16):
        a(hload(i, (i % 4)*1024))
        if i % 4 == 3: a("s_add_u32 s16, s16, 4096")
        if i % 8 == 7:
            for k in range(4): a("buffer_load_dword v9, v22, s[36:39], 0 offen")
    def wreads(st, p):
        r = []
        for mb in range(4):
            b = WF + st*16 + mb*4
            r.append(f"ds_read_b64_tr_b16 v[{b}:{b+1}], v{24+mb} offset:{p*4096}")
            r.append(f"ds_read_b64_tr_b16 v[{b+2}:{b+3}], v{24+mb} offset:{p*4096+2048}")
        return r
    a("s_barrier")
    for x in wreads(0, 0): a(x)
    a(f"s_mov_b32 s19, 0\n s_mov_b32 s20, {SLOT2}\n s_mov_b32 s18, 0")
    def y_loads():
        a(f"""
        s_lshl_b32 s26, s24, 7
        s_lshl_b32 s27, s3, 5
        s_add_u32 s26, s26, s27
        v_and_b32 v2, 15, v1
        v_add_u32 v10, s26, v2
        v_add_u32 v11, 16, v10
        s_mov_b32 s26, {WS_LP}
        v_lshlrev_b32 v2, 4, v10
        buffer_load_dwordx4 a[64:67], v2, s[12:15], s26 offen sc1
        buffer_load_dwordx4 a[68:71], v2, s[12:15], s26 offen offset:256 sc1
        s_cmp_ge_u32 s25, 8
        s_cselect_b64 s[62:63], -1, 0
        s_lshl_b32 s26, s25, 7
        s_sub_u32 s27, 1920, s26
        s_cmp_ge_u32 s25, 8
        s_cselect_b32 s28, s27, s26
        s_add_u32 s28, s28, {WS_Y}
        s_lshl_b32 s26, s24, 7
        s_lshl_b32 s27, s3, 5
        s_add_u32 s27, s26, s27
        s_mov_b32 s26, {YS}
        """)
        for j in range(5):
            if j < 4: a(f"v_lshrrev_b32 v2, 3, v1\n v_add_u32 v2, {8*j}, v2\n v_and_b32 v3, 7, v1\n v_lshlrev_b32 v3, 4, v3")
            else: a("v_and_b32 v2, 31, v1\n v_mov_b32 v3, 128")
            a(f"""
            v_add_u32 v2, s27, v2
            v_sub_u32 v4, 2048, v2
            v_min_u32 v4, v4, v2
            v_mul_lo_u32 v4, v4, s26
            v_cmp_lt_u32 vcc, 1024, v2
            s_xor_b64 vcc, vcc, s[62:63]
            v_add_u32 v4, v4, v3
            v_add_u32 v5, {YD}, v4
            v_cndmask_b32 v4, v4, v5, vcc
            """)
            if j < 4: a(f"buffer_load_dwordx4 a[{32+4*j}:{35+4*j}], v4, s[12:15], s28 offen sc1")
            else: a(f"buffer_load_dword a48, v4, s[12:15], s28 offen sc1")
    a(".p2align 6\nL_g2_loop:")
    for ss in range(4):
        if ss == 2:
            a("s_cmp_lg_u32 s18, 6\n s_cbranch_scc1 L_g2_nopq")
            y_loads()
            a("L_g2_nopq:")
        if opt.trace:
            a(f"s_lshl_b32 s96, s18, 2\n s_add_u32 s96, s96, {ss}")
            for x in trace_ops("s96"): a(x)
        for p in range(4):
            i = ((ss*4 + p)*2) % 16
            st = p & 1
            a(f"s_waitcnt vmcnt({23 if opt.g2touch else 22}) lgkmcnt(0)")
            ms = []
            for nb in range(2):
                for mb in range(4):
                    b = WF + st*16 + mb*4; c = (nb*4+mb)*4
                    ms.append(f"{MF} a[{c}:{c+3}], v[{b}:{b+3}], v[{HB+4*(i+nb)}:{HB+4*(i+nb)+3}], a[{c}:{c+3}]")
            f = {}
            if p == 3:
                f[0] = ["s_barrier"] + [f"v_add_u32 v{24+mb}, s20, v{16+mb}" for mb in range(4)]
                rd = wreads(st ^ 1, 0)
            else:
                rd = wreads(st ^ 1, p+1)
            for k, x in enumerate(rd): f.setdefault(k, []).append(x)
            f[4].append(hload(i, (i % 4)*1024))
            f[7].append(hload(i+1, ((i+1) % 4)*1024))
            if (i+1) % 4 == 3: f[7].append("s_add_u32 s16, s16, 4096")
            if p == 1 and opt.g2touch:
                f[1] += ["s_cmp_ge_u32 s84, s86", f"s_cselect_b32 s87, {OOB}, s84"]
                f[2] += ["buffer_load_dword v9, v23, s[80:83], s87 offen", "s_add_u32 s84, s84, s85"]
            interleave(a, ms, f)
            if p == 3:
                a("s_add_u32 m0, s21, s19\n s_mov_b32 s19, s20")
                for x in g2_dma(): a(x)
                a(f"s_add_u32 s17, s17, {128*2048}\n s_add_u32 s20, s20, {SLOT2}\n s_and_b32 s20, s20, {R2*SLOT2-1}")
    a("s_add_u32 s18, s18, 1\n s_cmp_lt_u32 s18, 7\n s_cbranch_scc1 L_g2_loop")
    stamp(a, 7)
    a("s_waitcnt vmcnt(0) lgkmcnt(0)\n s_nop 7")
    a("""
    v_lshlrev_b32 v2, 11, v10
    v_lshrrev_b32 v3, 4, v1
    v_and_b32 v4, 1, v3
    v_lshl_add_u32 v2, v4, 5, v2
    v_lshrrev_b32 v4, 1, v3
    v_lshl_add_u32 v2, v4, 4, v2
    s_lshl_b32 s26, s25, 7
    v_add_u32 v2, s26, v2
    v_add_u32 v3, 32768, v2
    """)
    a("""
    s_mul_i32 s26, s3, 4608
    s_add_u32 s26, s26, 131072
    v_lshrrev_b32 v4, 3, v1
    v_mul_u32_u24 v4, 144, v4
    v_and_b32 v5, 7, v1
    v_lshl_add_u32 v4, v5, 4, v4
    v_add_u32 v4, s26, v4
    v_and_b32 v5, 31, v1
    v_mul_u32_u24 v5, 144, v5
    v_add_u32 v5, s26, v5
    """)
    for j in range(4): a(f"ds_write_b128 v4, a[{32+4*j}:{35+4*j}] offset:{j*8*144}")
    a("ds_write_b32 v5, a48 offset:128")
    a("""
    v_and_b32 v4, 15, v1
    v_mul_u32_u24 v4, 144, v4
    v_lshrrev_b32 v5, 4, v1
    v_lshlrev_b32 v5, 3, v5
    v_sub_u32 v6, 24, v5
    v_cndmask_b32 v5, v5, v6, s[62:63]
    v_add3_u32 v4, v4, v5, s26
    s_waitcnt lgkmcnt(0)
    """)
    for k in range(8):
        a(f"ds_read_b64 v[{128+4*k}:{129+4*k}], v4 offset:{(k>>2)*16*144 + (k&3)*32}\n ds_read_b32 v{130+4*k}, v4 offset:{(k>>2)*16*144 + (k&3)*32 + 8}")
    for i in range(32): a(f"v_accvgpr_read_b32 v{64+i}, a{i}")
    for nb in range(2):
        for i in range(4): a(f"v_accvgpr_read_b32 v{40+i}, a{64+4*nb+i}")
        a(f"""
        v_add_f32 v40, v40, v41
        v_add_f32 v42, v42, v43
        v_add_f32 v40, v40, v42
        v_cvt_pk_bf16_f32 v40, v40, v40
        v_lshlrev_b32 v40, 16, v40
        v_mul_f32 v40, {fbits(-math.log2(math.e))}, v40
        v_exp_f32 v40, v40
        s_nop 0
        v_add_f32 v40, 1.0, v40
        v_rcp_f32 v40, v40
        s_nop 0
        v_cvt_pk_bf16_f32 v40, v40, v40
        v_lshlrev_b32 v{32+nb}, 16, v40
        v_sub_f32 v40, 1.0, v{32+nb}
        v_cvt_pk_bf16_f32 v40, v40, v40
        v_lshlrev_b32 v{34+nb}, 16, v40
        """)
    for nb in range(2):
        for i in range(16): a(f"v_mul_f32 v{64+nb*16+i}, v{34+nb}, v{64+nb*16+i}")
    a("s_waitcnt lgkmcnt(0)")
    a("s_cmp_ge_u32 s25, 8\n s_cbranch_scc1 L_g2_mir")
    for mir in range(2):
        if mir: a("L_g2_mir:")
        for nb in range(2):
            for mb in range(4):
                d = 128 + (nb*4 + (3-mb if mir else mb))*4; o = 64 + (nb*4+mb)*4
                els = [4, 3, 2, 1] if mir else [0, 1, 2, 3]
                for r in range(4): a(unp(40+r, d, els[r]))
                for r in range(4): a(f"v_fma_f32 v{o+r}, v{40+r}, v{32+nb}, v{o+r}")
        if not mir: a("s_branch L_g2_st")
    a("L_g2_st:")
    for i in range(16): a(f"v_cvt_pk_bf16_f32 v{96+i}, v{64+2*i}, v{64+2*i+1}")
    a("s_nop 1")
    for p in range(4):
        a(f"v_permlane16_swap_b32 v{96+4*p}, v{96+4*p+2}\n v_permlane16_swap_b32 v{96+4*p+1}, v{96+4*p+3}")
    for p in range(4):
        a(f"buffer_store_dwordx4 v[{96+4*p}:{96+4*p+3}], v{2+(p>>1)}, s[8:11], 0 offen offset:{(p&1)*64}")
    a(f"s_cmp_lg_u32 s2, 0\n s_cbranch_scc1 L_end\n s_lshl_b32 s22, s3, 11\n s_add_u32 s22, s22, {WS_FL+4096}")
    a("s_add_u32 s23, s22, 512\n s_add_u32 s30, s22, 1024\n s_add_u32 s31, s22, 1536")
    L = lab(a, 'ep')
    poll(a, [('s22', 's[60:61]'), ('s23', 's[60:61]')])
    poll(a, [('s30', 's[60:61]'), ('s31', 's[60:61]')])
    a(f"s_barrier\n s_cmp_lg_u32 s3, 0\n s_cbranch_scc1 L_end\n s_mov_b32 s23, {WS_FL}")
    flag_store(a, 's23')

def ACCG(mb, nb): return 128 + (nb*4+mb)*4
def ACCU(mb, nb): return (nb*4+mb)*4
def FR(st, i): return 128 + st*64 + i*4

def gemm1(a):
    XS = 32768; WB = 98304; WSL = 16384
    a("s_cmp_ge_u32 s3, 2\n s_cselect_b32 s26, s46, s44\n s_cselect_b32 s27, s47, s45")
    srd(a, 8, 26, 1024*3584*2)
    a(f"""
    s_cmp_eq_u32 s3, 1
    s_cselect_b32 s80, s46, s44
    s_cselect_b32 s81, s47, s45
    s_mov_b32 s82, {1024*3584*2}
    s_cmp_eq_u32 s3, 2
    s_cselect_b32 s80, s40, s80
    s_cselect_b32 s81, s41, s81
    s_cselect_b32 s82, {2048*1024*2}, s82
    s_cmp_eq_u32 s3, 3
    s_cselect_b32 s80, s88, s80
    s_cselect_b32 s81, s89, s81
    s_and_b32 s81, s81, 0xffff
    s_mov_b32 s83, 0x20000
    v_mov_b32 v3, {OOB}
    s_add_u32 s86, s67, 28
    s_cmp_ge_u32 s3, 2
    s_cbranch_scc1 L_t_x
    v_lshrrev_b32 v2, 4, v1
    v_lshlrev_b32 v2, 5, v2
    v_bfe_u32 v4, v1, 1, 3
    v_add_u32 v2, v2, v4
    s_lshl_b32 s26, s68, 3
    v_add_u32 v2, s26, v2
    s_mov_b32 s27, 7168
    v_mul_lo_u32 v2, v2, s27
    v_and_b32 v4, 1, v1
    v_lshl_add_u32 v2, v4, 7, v2
    s_lshl_b32 s26, s25, 8
    v_add_u32 v26, s26, v2
    v_cmp_gt_u32 vcc, 32, v1
    s_mov_b32 s84, 0
    s_mov_b32 s85, {2*32*7168}
    v_cndmask_b32 v27, v3, v26, vcc
    s_mov_b32 s87, {4*32*7168}
    s_mov_b32 s75, s85
    v_mov_b32 v42, v27
    v_mov_b32 v35, v3
    s_branch L_t_done
    L_t_x:
    s_cmp_eq_u32 s3, 3
    s_cbranch_scc1 L_t_wd
    s_mul_i32 s26, s69, 37
    s_lshl_b32 s27, s24, 8
    s_add_u32 s26, s26, s27
    v_add_u32 v2, s26, v1
    v_lshlrev_b32 v2, 11, v2
    v_cmp_gt_u32 vcc, 37, v1
    s_mov_b32 s84, 0
    s_mov_b32 s85, 0
    v_cndmask_b32 v26, v3, v2, vcc
    s_mov_b32 s87, 128
    s_mov_b32 s75, 128
    v_mov_b32 v27, v3
    v_mov_b32 v42, v26
    v_mov_b32 v35, v3
    s_branch L_t_done
    L_t_wd:
    s_mul_i32 s27, s86, 49
    v_cmp_gt_u32 vcc, 49, v1
    s_lshl_b32 s28, s66, 6
    """)
    for k in range(3):
        a(f"""
        v_add_u32 v2, s27, v1
        v_add_u32 v2, {1372*k}, v2
        v_bfe_u32 v4, v2, 4, 3
        v_bfe_u32 v5, v2, 7, 2
        v_lshl_add_u32 v4, v5, 4, v4
        v_bfe_u32 v5, v2, 11, 1
        v_lshl_add_u32 v4, v5, 3, v4
        v_add_u32 v4, s28, v4
        v_bfe_u32 v5, v2, 9, 2
        v_and_b32 v6, 1, v5
        v_lshrrev_b32 v7, 1, v5
        v_xor_b32 v6, v6, v7
        v_sub_u32 v7, 0, v4
        v_cmp_eq_u32 s[62:63], 1, v6
        v_and_b32 v2, 15, v2
        v_lshlrev_b32 v2, 7, v2
        v_cndmask_b32 v4, v4, v7, s[62:63]
        v_lshlrev_b32 v6, 11, v5
        v_cmp_le_u32 s[62:63], 2, v5
        v_mov_b32 v7, 1024
        s_nop 0
        v_cndmask_b32 v6, v6, v7, s[62:63]
        v_add_u32 v4, v4, v6
        v_lshl_add_u32 v2, v4, 11, v2
        v_cndmask_b32 v35, v3, v2, vcc
        """)
        a("buffer_load_dword v127, v35, s[4:7], 0 offen")
    a(f"""
    v_lshlrev_b32 v2, 7, v1
    v_cmp_gt_u32 vcc, 32, v1
    s_mul_i32 s84, s66, 28
    s_add_u32 s84, s84, s86
    s_lshl_b32 s84, s84, 12
    v_cndmask_b32 v27, v3, v2, vcc
    s_mov_b32 s85, {224*4096}
    s_mov_b32 s87, 0
    s_mov_b32 s75, 0
    v_mov_b32 v26, v3
    v_mov_b32 v42, v3
    L_t_done:
    """)
    stamp(a, 19)
    a("buffer_load_dword v127, v42, s[80:83], s84 offen\n s_add_u32 s84, s84, s75")
    stamp(a, 20)
    a(f"""
    s_cmp_lt_u32 s66, 4
    s_cselect_b32 s36, s56, s58
    s_cselect_b32 s37, s57, s59
    s_cmp_eq_u32 s3, 2
    s_cselect_b32 s36, s52, s36
    s_cselect_b32 s37, s53, s37
    s_cmp_eq_u32 s3, 3
    s_cselect_b32 s36, s54, s36
    s_cselect_b32 s37, s55, s37
    s_and_b32 s37, s37, 0xffff
    s_mov_b32 s39, 0x20000
    s_and_b32 s28, s66, 3
    s_lshl_b32 s26, s28, 18
    s_lshl_b32 s28, s28, 8
    s_lshr_b32 s27, s66, 2
    s_add_u32 s28, s28, s27
    s_lshl_b32 s28, s28, 12
    s_cmp_eq_u32 s3, 1
    s_cselect_b32 s28, s26, s28
    s_cselect_b32 s26, 11, 13
    s_cselect_b32 s38, {1024*1024*2}, s82
    s_mul_i32 s27, s86, 37
    v_add_u32 v2, s27, v1
    v_lshrrev_b32 v4, 3, v2
    v_lshlrev_b32 v4, s26, v4
    v_and_b32 v2, 7, v2
    v_lshl_add_u32 v2, v2, 7, v4
    s_cmp_eq_u32 s3, 0
    s_cselect_b32 s27, 0, 37
    v_cmp_gt_u32 vcc, s27, v1
    v_mov_b32 v3, {OOB}
    s_nop 0
    v_cndmask_b32 v2, v3, v2, vcc
    v_add_u32 v34, s28, v2
    s_cmp_lg_u32 s3, 1
    s_cbranch_scc1 L_t_nm
    buffer_load_dword v127, v34, s[36:39], 0 offen
    v_mov_b32 v34, v3
    L_t_nm:
    """)
    a("s_lshl_b32 s29, s24, 19\n s_lshl_b32 s26, s3, 16\n s_add_u32 s29, s29, s26")
    sh_voff(a, 8, 11, 29)
    a("""
    v_lshrrev_b32 v2, 4, v1
    s_and_b32 s26, s3, 1
    s_lshl_b32 s26, s26, 4
    v_add_u32 v3, s26, v2
    s_mov_b32 s27, 7168
    v_mul_lo_u32 v3, v3, s27
    s_lshl_b32 s26, s25, 8
    v_add_u32 v3, s26, v3
    v_lshlrev_b32 v2, 1, v2
    v_and_b32 v4, 15, v1
    v_xor_b32 v2, v2, v4
    v_lshl_add_u32 v12, v2, 4, v3
    v_xor_b32 v2, 8, v2
    v_lshl_add_u32 v14, v2, 4, v3
    """)
    a(f"v_add_u32 v13, {1*(4*7168-1024)}, v12\n v_add_u32 v15, {3*(4*7168-1024)}, v14\n v_add_u32 v14, {2*(4*7168-1024)}, v14")
    a(f"s_mov_b32 s16, 0\n s_mov_b32 s22, 65536\n s_mov_b32 s17, 0\n s_lshl_b32 s21, s3, 12\n s_add_u32 s21, s21, {WB}\n s_lshl_b32 s23, s3, 13")
    def dma_x(h): return [f"buffer_load_dwordx4 v{8+i}, s[4:7], s{(16, 22)[h]} offen offset:{i*1024} lds" for i in range(4)]
    def dma_w(): return [f"buffer_load_dwordx4 v{12+i}, s[8:11], s17 offen offset:{i*1024} lds" for i in range(4)]
    def px(s):
        a(f"s_add_u32 m0, s23, {s*XS}\n s_nop 0")
        for x in dma_x(0): a(x)
        a(f"s_add_u32 m0, s23, {s*XS+4096}\n s_add_u32 s16, s16, 128")
        for x in dma_x(1): a(x)
        a("s_add_u32 s22, s22, 128")
    def pw(s):
        a(f"s_add_u32 m0, s21, {s*WSL}\n s_nop 0")
        for x in dma_w(): a(x)
        a(f"s_add_u32 s17, s17, {32*7168}")
    if opt.tlb:
        a("v_lshlrev_b32 v40, 21, v1\n v_add_u32 v40, 0x100000, v40")
    a(f"""
    s_lshr_b32 s26, s3, 1
    s_lshl_b32 s26, s26, 7
    v_and_b32 v2, 15, v1
    v_lshrrev_b32 v5, 1, v2
    v_add_u32 v2, s26, v2
    v_lshlrev_b32 v2, 7, v2
    v_lshrrev_b32 v3, 4, v1
    v_xor_b32 v5, v3, v5
    v_lshl_add_u32 v16, v5, 4, v2
    v_xor_b32 v5, 4, v5
    v_lshl_add_u32 v33, v5, 4, v2
    v_lshrrev_b32 v4, 2, v1
    v_and_b32 v4, 3, v4
    v_lshl_add_u32 v5, v3, 3, v4
    v_lshlrev_b32 v5, 8, v5
    v_add_u32 v5, {WB}, v5
    v_and_b32 v6, 3, v1
    v_lshl_add_u32 v5, v6, 3, v5
    v_and_b32 v6, 1, v3
    v_lshl_or_b32 v6, v6, 2, v4
    s_and_b32 s26, s3, 1
    s_lshl_b32 s26, s26, 2
    v_xor_b32 v6, s26, v6
    """)
    for mb in range(4):
        a(f"v_xor_b32 v7, {mb}, v6\n v_lshl_add_u32 v{17+mb}, v7, 5, v5")
    for i in range(5): a(f"v_mov_b32 v{21+i}, v{16+i}")
    def reads(st):
        def wr(mat, mb):
            b = FR(st, mat*4+mb)
            return [f"ds_read_b64_tr_b16 a[{b}:{b+1}], v{22+mb} offset:{mat*8192}",
                    f"ds_read_b64_tr_b16 a[{b+2}:{b+3}], v{22+mb} offset:{mat*8192+1024}"]
        def xr(nb):
            b = FR(st, 8+nb)
            return [f"ds_read_b128 a[{b}:{b+3}], v21 offset:{nb*2048}"]
        r = []
        for i in range(8): r += wr(i & 1, i >> 1) + xr(i)
        return r
    def mf(st):
        m = []
        od = [(nb if (mb*2+mat) % 2 == 0 else 7-nb, mb, mat) for mb in range(4) for mat in range(2) for nb in range(8)]
        for nb, mb, mat in od:
            c = f"v[{ACCG(mb,nb)}:{ACCG(mb,nb)+3}]" if mat == 0 else f"a[{ACCU(mb,nb)}:{ACCU(mb,nb)+3}]"
            fa = FR(st, mat*4+mb); fb_ = FR(st, 8+nb)
            m.append(f"{MF} {c}, a[{fa}:{fa+3}], a[{fb_}:{fb_+3}], {c}")
        return m
    for i in range(4): a(f"v_mov_b32 v{36+i}, 0")
    a("s_nop 1")
    for i in range(8): a(f"v_mfma_f32_32x32x16_bf16 v[{128+16*i}:{143+16*i}], v[36:39], v[36:39], 0\n v_mfma_f32_32x32x16_bf16 a[{16*i}:{15+16*i}], v[36:39], v[36:39], 0")
    stamp(a, 21)
    pw(0); px(0); pw(1)
    stamp(a, 22)
    stamp(a, 1)
    a(f"s_waitcnt vmcnt(4) lgkmcnt(0)\n s_barrier")
    for x in reads(0): a(x)
    nonce(a)
    a(f"s_mov_b32 s19, 0\n s_mov_b32 s20, {XS}\n s_mov_b32 s18, 0\n s_mov_b32 s28, {WSL}\n s_mov_b32 s29, 0")
    a("v_mov_b32 v21, v33")
    for i in range(4): a(f"v_add_u32 v{22+i}, s28, v{17+i}")
    a(f"s_mov_b32 s72, {32*7168}\n s_mov_b32 s73, 128")
    stamp(a, 2)
    for st in (2, 0, 1):
        peel = st == 2
        if peel: st = 0
        if not peel and st == 0: a(".p2align 6\nL_g1_loop:")
        if st == 1: a("L_g1_mid:")
        f = {-1: ["s_waitcnt lgkmcnt(0)"]}
        if opt.trace: f[-1] = trace_ops("s18")
        f[0] = [f"s_waitcnt vmcnt({0 if peel else (24, 12)[st]})", "s_barrier"]
        if peel:
            A = Asm(); save = a
            def cap(fn, *args):
                n0 = len(a.l); fn(*args); out = [x.strip() for x in a.l[n0:]]; del a.l[n0:]; return out
            T2 = ["buffer_load_dword v127, v26, s[80:83], s84 offen", "s_add_u32 s84, s84, s87"]
            ops = T2 + cap(pw, 2) + cap(px, 1) + cap(pw, 3) + T2 + ["buffer_load_dword v127, v40, s[80:83], 0 offen"] + cap(px, 2)
            g = 2
            for x in ops:
                if x == 's_nop 0': continue
                f.setdefault(g-1 if 'm0' in x else g, []).append(x)
                if x.startswith('buffer'): g += 2
            assert g <= 63, g
            f.setdefault(63, []).append("s_branch L_g1_mid")
        rd = reads(st ^ 1)
        for i, x in enumerate(rd): f.setdefault(1 + 2*i, []).append(x)
        f.setdefault(2, []).append(f"s_add_u32 s28, s28, {WSL}")
        f.setdefault(4, []).append(f"s_and_b32 s28, s28, {4*WSL-1}")
        f.setdefault(6, []).append("s_add_u32 s18, s18, 1")
        for i in range(4): f.setdefault(50+2*i, []).append(f"v_add_u32 v{22+i}, s28, v{17+i}")
        if st == 0:
            f.setdefault(58, []).append("v_add_u32 v21, s20, v16")
        else:
            f.setdefault(58, []).append("v_add_u32 v21, s19, v33")
            dq = dma_w() + dma_w() + dma_x(0) + dma_x(1)
            dp = opt.dp if hasattr(opt, 'dp') else [2 + 4*i - (i > 11)*(i-11) for i in range(16)]
            f[0].append("s_add_u32 m0, s21, s29")
            for i, x in enumerate(dq): f.setdefault(dp[i], []).append(x)
            f[dp[3]] += [f"s_add_u32 m0, m0, {WSL}", "s_add_u32 s17, s17, s72"]
            f[dp[7]] += ["s_add_u32 m0, s23, s19", "s_add_u32 s17, s17, s72"]
            f[dp[8]] += [f"s_xor_b32 s29, s29, {2*WSL}"]
            f[dp[9]] += ["s_mov_b32 s19, s20"]
            f[dp[10]] += [f"s_add_u32 s20, s20, {XS}", f"s_cmp_eq_u32 s20, {3*XS}"]
            f[dp[11]] += ["s_cselect_b32 s20, 0, s20", "s_add_u32 m0, m0, 4096"]
            f[dp[12]] += ["s_add_u32 s16, s16, s73"]
            f[dp[15]] += ["s_cmp_ge_u32 s18, 26", "s_cbranch_scc1 L_g1_sw", "L_g1_swd:", "s_add_u32 s22, s16, 65536"]
            f.setdefault(62, []).extend([f"buffer_load_dword v127, v27, s[80:83], s84 offen {opt.tflags}", "s_add_u32 s84, s84, s85"])
            f[62] += ["s_cmp_lg_u32 s18, 4", "s_cbranch_scc1 L_g1_noseq", "buffer_load_dword v127, v34, s[36:39], 0 offen", "L_g1_noseq:"]
            f.setdefault(63, []).extend(["s_cmp_lt_u32 s18, 32", "s_cbranch_scc1 L_g1_loop"])
        interleave(a, mf(st), f)
    a("s_branch L_g1_done")
    a("L_g1_sw:\n s_cmp_eq_u32 s18, 26\n s_cbranch_scc0 L_g1_sw2")
    srd(a, 4, 88, 3584*1024*2)
    g2_voff(a, 8, 6)
    a(f"s_mov_b32 s16, {256*2048}\n s_mov_b32 s73, {256*2048}\n s_branch L_g1_swd")
    a("L_g1_sw2:\n s_cmp_eq_u32 s18, 28\n s_cbranch_scc0 L_g1_sw3")
    srd(a, 8, 88, 3584*1024*2)
    g2_voff(a, 12, 5)
    a(f"s_mov_b32 s17, {768*2048}\n s_mov_b32 s72, {128*2048}\n s_branch L_g1_swd")
    a(f"L_g1_sw3:\n s_mov_b32 s16, 0\n s_mov_b32 s17, {OOB}\n s_branch L_g1_swd")
    a("L_g1_done:")
    stamp(a, 3)
    a(f"""
    s_lshl_b32 s30, s24, 3
    s_lshr_b32 s31, s3, 1
    s_lshl_b32 s31, s31, 2
    s_add_u32 s30, s30, s31
    s_lshl_b32 s23, s30, 7
    s_lshl_b32 s30, s30, 7
    s_lshl_b32 s31, s25, 2
    s_add_u32 s30, s30, s31
    s_and_b32 s31, s3, 1
    s_lshl_b32 s31, s31, 1
    s_add_u32 s30, s30, s31
    s_lshl_b32 s30, s30, 11
    s_lshl_b32 s31, s25, 1
    s_and_b32 s26, s3, 1
    s_add_u32 s31, s31, s26
    s_lshl_b32 s31, s31, 3
    s_add_u32 s23, s23, s31
    s_add_u32 s23, s23, {WS_FL+4096}
    s_waitcnt lgkmcnt(0)
    s_nop 7
    """)
    c0 = -2*math.sqrt(2/math.pi)*math.log2(math.e); c1 = c0*0.044715
    a(f"s_mov_b32 s26, {fbits(c0)}\n s_mov_b32 s28, {fbits(c1)}\n s_mov_b32 s29, {fbits(c1)}")
    a("v_mov_b32 v24, s26\n v_mov_b32 v25, s26\n v_lshlrev_b32 v26, 4, v1")
    T = 32
    for nb in range(8):
        g0 = ACCG(0, nb); u0 = ACCU(0, nb)
        t = T + (nb % 2)*48
        U = t; Z = t+16; O = t+32
        for i in range(16): a(f"v_accvgpr_read_b32 v{U+i}, a{u0+i}")
        for i in range(0, 16, 2): a(f"v_pk_mul_f32 v[{Z+i}:{Z+i+1}], v[{g0+i}:{g0+i+1}], v[{g0+i}:{g0+i+1}]")
        for i in range(0, 16, 2): a(f"v_pk_fma_f32 v[{Z+i}:{Z+i+1}], v[{Z+i}:{Z+i+1}], s[28:29], v[24:25]")
        for i in range(0, 16, 2): a(f"v_pk_mul_f32 v[{Z+i}:{Z+i+1}], v[{Z+i}:{Z+i+1}], v[{g0+i}:{g0+i+1}]")
        for i in range(16): a(f"v_exp_f32 v{Z+i}, v{Z+i}")
        for i in range(0, 16, 2): a(f"v_pk_mul_f32 v[{U+i}:{U+i+1}], v[{U+i}:{U+i+1}], v[{g0+i}:{g0+i+1}]")
        for i in range(0, 16, 2): a(f"v_pk_add_f32 v[{Z+i}:{Z+i+1}], v[{Z+i}:{Z+i+1}], 1.0 op_sel_hi:[1,0]")
        for i in range(16): a(f"v_rcp_f32 v{Z+i}, v{Z+i}")
        a("s_nop 0")
        for i in range(0, 16, 2): a(f"v_pk_mul_f32 v[{U+i}:{U+i+1}], v[{U+i}:{U+i+1}], v[{Z+i}:{Z+i+1}]")
        for i in range(0, 16, 2): a(f"v_cvt_pk_bf16_f32 v{O+i//2}, v{U+i}, v{U+i+1}")
        for p in range(2):
            off = (((nb >> 1)*128 + p)*2 + (nb & 1))*1024
            a(f"s_add_u32 s31, s30, {off}")
            a(f"buffer_store_dwordx4 v[{O+4*p}:{O+4*p+3}], v26, s[12:15], s31 offen {opt.hflags}")
    stamp(a, 4)
    a("s_waitcnt vmcnt(0)")
    flag_store(a, 's23')

class VM:
    def __init__(s): s.ops = []
    def add(s, tag, n=1): s.ops += [tag]*n
    def wait(s, a, tag, extra=""):
        last = max(i for i, t in enumerate(s.ops) if t == tag)
        a(f"s_waitcnt vmcnt({min(63, len(s.ops)-1-last)}) {extra}")
RAW = 64; GT = 192; EU = 208; SV = 216
def fold_loads(a, vm):
    a("""
    s_lshl_b32 s26, s66, 2
    s_add_u32 s26, s26, s67
    s_lshl_b32 s26, s26, 4
    v_lshrrev_b32 v40, 3, v1
    v_add_u32 v40, s26, v40
    v_cmp_eq_u32 s[62:63], 0, v40
    v_and_b32 v2, 7, v1
    v_cmp_eq_u32 s[70:71], 0, v2
    v_add_u32 v44, 8, v40
    v_lshlrev_b32 v2, 4, v2
    s_lshl_b32 s26, s3, 8
    v_add_u32 v2, s26, v2
    v_sub_u32 v3, 1904, v2
    v_sub_u32 v41, 2048, v40
    v_sub_u32 v42, 1024, v40
    v_add_u32 v43, 1024, v40
    v_sub_u32 v45, 2048, v44
    v_sub_u32 v46, 1024, v44
    v_add_u32 v47, 1024, v44
    v_mov_b32 v4, 512
    v_mov_b32 v5, 1536
    v_cndmask_b32 v41, v41, v4, s[62:63]
    v_cndmask_b32 v43, v43, v5, s[62:63]
    s_sub_u32 s74, 2048, s26
    """)
    for k in range(8): a(f"v_lshl_add_u32 v{224+8*(k>>2)+(k&3)}, v{40+k}, 11, v2\n v_lshl_add_u32 v{228+8*(k>>2)+(k&3)}, v{40+k}, 11, v3")
    for gi in range(2):
        a(f"buffer_load_dwordx4 v[{GT+8*gi}:{GT+8*gi+3}], v2, s[32:35], 0 offen offset:{gi*128}")
        a(f"buffer_load_dwordx4 v[{GT+8*gi+4}:{GT+8*gi+7}], v3, s[32:35], 0 offen offset:{(1-gi)*128}")
        vm.add('g', 2)
def fold_round_loads(a, vm, rnd):
    if True:
        hf, gi = rnd >> 1, rnd & 1
        b = RAW + 32*rnd
        for i in range(4):
            a(f"buffer_load_dwordx4 v[{b+8*i}:{b+8*i+3}], v{224+8*hf+i}, s[4:7], 0 offen offset:{gi*128}")
            a(f"buffer_load_dwordx4 v[{b+8*i+4}:{b+8*i+7}], v{228+8*hf+i}, s[4:7], 0 offen offset:{(1-gi)*128}")
        if gi == 0:
            for i in range(4):
                a(f"v_lshlrev_b32 v4, 11, v{40+4*hf+i}\n buffer_load_ushort v{EU+4*hf+i}, v4, s[4:7], s74 offen")
            vm.add(f'r{rnd}', 12)
        else: vm.add(f'r{rnd}', 8)
def fold_compute(a, vm, between):
    LP = 8; UU = 16
    a(f"v_mov_b32 v24, {ALT}")
    for r in range(8, 24): a(f"v_mov_b32 v{r}, 0")
    a(f"""
    s_lshl_b32 s26, s66, 2
    s_add_u32 s26, s26, s67
    s_lshr_b32 s27, s26, 2
    s_lshl_b32 s27, s27, 16
    s_and_b32 s26, s26, 3
    s_lshl_b32 s26, s26, 10
    s_add_u32 s26, s26, s27
    s_lshl_b32 s27, s3, 14
    s_add_u32 s26, s26, s27
    s_add_u32 s22, s26, {WS_Z}
    v_bfe_u32 v2, v1, 2, 1
    v_lshlrev_b32 v25, 12, v2
    v_and_b32 v2, 3, v1
    v_lshl_add_u32 v25, v2, 8, v25
    v_lshrrev_b32 v2, 3, v1
    v_lshl_add_u32 v25, v2, 4, v25
    s_cmp_eq_u32 s3, 0
    s_cselect_b64 s[72:73], s[70:71], 0
    """)
    T = 240
    for rnd in range(4):
        hf, gi = rnd >> 1, rnd & 1
        b = RAW + 32*rnd; g = GT + 8*gi
        S = [224, RAW+96 if rnd < 2 else RAW+8, 48, 56]
        vm.wait(a, f'r{rnd}')
        if rnd in (0, 1): stamp(a, 19+2*rnd)
        for j in range(4):
            for i in range(4):
                a(f"v_dot2_f32_bf16 v{LP+4*hf+i}, v{b+8*i+j}, v{g+j}, v{LP+4*hf+i}")
            for i in range(4):
                a(f"v_dot2_f32_bf16 v{LP+4*hf+i}, v{b+8*i+4+j}, v{g+4+j}, v{LP+4*hf+i}")
        if hf == 0:
            for i in (1, 3):
                for j in range(8): a(f"v_cndmask_b32 v{b+8*i+j}, v{b+8*i+j}, 0, s[62:63]")
                if gi == 0: a(f"v_cndmask_b32 v{EU+i}, v{EU+i}, 0, s[62:63]")
        if gi == 0:
            for i in range(4): a(f"v_cndmask_b32 v{EU+4*hf+i}, v{EU+4*hf+i}, 0, s[72:73]")
            for i in range(4): a(f"v_mov_b32 v{SV+i}, v{b+8*i+4}")
        else:
            for i in range(4): a(f"v_mov_b32_dpp v{EU+4*hf+i}, v{SV+i} row_shl:7 row_mask:0xf bank_mask:0xf")
            for i in range(4): a(f"v_lshlrev_b32 v{2+i}, 16, v{b+8*i+4}")
            a(f"v_add_f32 v2, v2, v3\n v_add_f32 v4, v4, v5\n v_add_f32 v{26+2*hf}, v2, v4\n v_sub_f32 v{27+2*hf}, v2, v4")
        for i in range(4): a(f"v_mov_b32_dpp v{SV+4+i}, v{b+8*i+4} row_shr:1 row_mask:0xf bank_mask:0xf")
        for i in range(4): a(f"v_cndmask_b32 v{SV+4+i}, v{SV+4+i}, v{EU+4*hf+i}, s[70:71]")
        for i in range(4):
            for j in range(8): a(unp(T+j, b+8*i, j))
            a(f"v_lshlrev_b32 v{T+8}, 16, v{SV+4+i}")
            for j in range(1, 8): a(unp(T+8+j, b+8*i+4, 8-j))
            for j in range(0, 8, 2):
                a(pk('', S[i]+j, T+j, T+8+j))
                a(pk('', b+8*i+j, T+j, T+8+j, neg=True))
        for j in range(0, 8, 2):
            a(pk('', S[0]+j, S[0]+j, S[1]+j)); a(pk('', S[2]+j, S[2]+j, S[3]+j))
            a(pk('', b+j, b+j, b+8+j, neg=True)); a(pk('', b+16+j, b+16+j, b+24+j, neg=True))
        for j in range(0, 8, 2):
            a(pk('', S[1]+j, S[0]+j, S[2]+j)); a(pk('', S[3]+j, S[0]+j, S[2]+j, neg=True))
            a(pk('', b+8+j, b+j, b+16+j, neg=True)); a(pk('', b+24+j, b+j, b+16+j))
        for j in range(0, 8, 2):
            a(pk('', UU+4*hf, UU+4*hf, S[1]+j)); a(pk('', UU+4*hf+2, UU+4*hf+2, S[3]+j))
        for cls, src in enumerate((S[1], S[3], b+8, b+24)):
            o = b + 4*(cls & 1) + 16*(cls >> 1)
            for j in range(4): a(f"v_cvt_pk_bf16_f32 v{o+j}, v{src+2*j}, v{src+2*j+1}")
            a(f"s_add_u32 s26, s22, {cls*524288 + gi*8192 + hf*128}")
            a(f"buffer_store_dwordx4 v[{o}:{o+3}], v25, s[12:15], s26 offen sc1")
            vm.add('st')
        if rnd in (0, 1): stamp(a, 20+2*rnd)
        between(rnd)
    a("""
    s_cmp_eq_u32 s3, 3
    s_cselect_b32 s26, 0x80808080, 0
    s_mov_b32 s27, s26
    v_sub_f32 v16, v16, v17
    v_sub_f32 v17, v18, v19
    v_sub_f32 v18, v20, v21
    v_sub_f32 v19, v22, v23
    """)
    for k in range(4): a(f"v_cndmask_b32 v{20+k}, 0, v{26+k}, s[26:27]")
    for k in range(4): a(f"v_add_f32 v{16+k}, v{16+k}, v{20+k}")
    a("s_nop 0")
    for ctl in ("quad_perm:[1,0,3,2]", "quad_perm:[2,3,0,1]", "row_half_mirror"):
        for r in range(8, 20): a(f"v_add_f32_dpp v{r}, v{r}, v{r} {ctl} row_mask:0xf bank_mask:0xf")
    a(f"""
    s_lshl_b32 s26, s3, 2
    s_lshl_b32 s27, s3, 11
    s_add_u32 s27, s27, {WS_UP}
    s_mov_b32 s28, {WS_CV}
    s_add_u32 s29, s27, 8192
    """)
    for k in range(8): a(f"v_lshl_add_u32 v{68+k}, v{40+k}, 4, s26")
    a(f"v_lshlrev_b32 v76, 2, v40\n s_mov_b32 s26, {WS_LP}\n s_mov_b64 exec, s[70:71]")
    for k in range(8): a(f"buffer_store_dword v{8+k}, v{68+k}, s[12:15], s26 offen sc1")
    for hf in range(2):
        a(f"buffer_store_dword v{16+2*hf}, v76, s[12:15], s27 offen offset:{32*hf} sc1\n buffer_store_dword v{17+2*hf}, v76, s[12:15], s29 offen offset:{32*hf} sc1")
    a(f"""
    s_mov_b64 exec, -1
    s_cmp_lg_u32 s3, 3
    s_cbranch_scc1 L_fc2
    s_mov_b32 exec_lo, 0x80808080
    s_mov_b32 exec_hi, 0x80808080
    buffer_store_dword v26, v76, s[12:15], s28 offen sc1
    buffer_store_dword v27, v76, s[12:15], s28 offen offset:2048 sc1
    buffer_store_dword v28, v76, s[12:15], s28 offen offset:32 sc1
    buffer_store_dword v29, v76, s[12:15], s28 offen offset:2080 sc1
    s_mov_b64 exec, -1
    L_fc2:
    """)

def sh_voff(a, vb, rs_shift, srow):
    a(f"""
    v_lshrrev_b32 v2, 3, v1
    s_lshl_b32 s26, s3, 5
    v_add_u32 v2, s26, v2
    v_lshlrev_b32 v2, {rs_shift}, v2
    v_add_u32 v2, s{srow}, v2
    v_lshrrev_b32 v3, 4, v1
    v_and_b32 v4, 7, v1
    v_xor_b32 v3, v3, v4
    v_lshl_add_u32 v{vb}, v3, 4, v2
    v_xor_b32 v3, 4, v3
    v_lshl_add_u32 v{vb+1}, v3, 4, v2
    v_add_u32 v{vb+2}, {2*((8<<rs_shift)-1024)}, v{vb}
    v_add_u32 v{vb+3}, {3*((8<<rs_shift)-1024)}, v{vb+1}
    v_add_u32 v{vb+1}, {((8<<rs_shift)-1024)}, v{vb+1}
    """)
def sh_touch(a, sr, rs_shift, srow):
    a(f"""
    s_lshl_b32 s26, s67, 5
    s_lshl_b32 s27, s3, 3
    s_add_u32 s26, s26, s27
    v_lshrrev_b32 v2, 3, v1
    v_add_u32 v2, s26, v2
    v_lshlrev_b32 v2, {rs_shift}, v2
    v_and_b32 v3, 7, v1
    v_lshl_add_u32 v2, v3, 7, v2
    buffer_load_dword a255, v2, s[{sr}:{sr+3}], s{srow} offen
    """)
def sh_dma(vb, sr): return [f"buffer_load_dwordx4 v{vb+i}, s[{sr}:{sr+3}], s17 offen offset:{i*1024} lds" for i in range(4)]

def dloop(a, name, nm, accb, dma, extra=False, first=True, init=None, D=8, inc=128):
    PB = 128; SF = 64
    def pl(i, off): return f"buffer_load_dwordx4 v[{PB+4*i}:{PB+4*i+3}], v12, s[32:35], s16 offen offset:{off} sc1"
    def sreads(st, ks): return [f"ds_read_b128 v[{SF+st*32+4*nb}:{SF+st*32+4*nb+3}], v{18+ks} offset:{nb*2048}" for nb in range(8)]
    if first:
        a("s_mov_b32 s16, 0")
        for t in range(D):
            for i in range(nm): a(pl(t*nm+i, i*1024))
            a(f"s_add_u32 s16, s16, {nm*1024}")
        a("v_mov_b32 v18, v16\n v_mov_b32 v19, v17")
        for x in sreads(0, 0): a(x)
        a(f"s_mov_b32 s19, 0\n s_mov_b32 s20, {SLOT3}\n s_waitcnt vmcnt({D*nm})")
        init()
    a(f"s_mov_b32 s18, 0\n s_mov_b32 s17, 0")
    a(f".p2align 6\nL_{name}_loop:")
    NM = 8*nm
    for t in range(8):
        ks = t & 1
        ms = []
        for mb in range(nm):
            for nb in range(8):
                c = accb + (nb*nm+mb)*4; pa = PB + ((t % D)*nm+mb)*4; sb = SF + ks*32 + nb*4
                ms.append(f"{MF} a[{c}:{c+3}], v[{pa}:{pa+3}], v[{sb}:{sb+3}], a[{c}:{c+3}]")
        f = {-1: [f"s_waitcnt vmcnt({(D-1)*nm}) lgkmcnt(0)"]}
        if extra:
            L = f"L_{name}_x{t}"
            f[-1] += ["s_cmp_eq_u32 s31, 0", f"s_cbranch_scc1 {L}"] + \
                     [f"{MF} a[{128+4*mb}:{131+4*mb}], v[{PB+(t*nm+mb)*4}:{PB+(t*nm+mb)*4+3}], v[24:27], a[{128+4*mb}:{131+4*mb}]" for mb in range(nm)] + [f"{L}:"]
        if ks == 1:
            f[0] = ["s_barrier", "v_add_u32 v18, s20, v16"]
            rd = sreads(0, 0)
        else:
            rd = sreads(1, 1)
        sp = NM // 16
        for k, x in enumerate(rd): f.setdefault(1+sp*k, []).append(x)
        for mb in range(nm): f.setdefault(8*mb+7, []).append(pl((t % D)*nm+mb, mb*1024))
        f[NM-1].append(f"s_add_u32 s16, s16, {nm*1024}")
        if ks == 1:
            if dma:
                f.setdefault(1, []).append("s_add_u32 m0, s21, s19")
                for k, x in enumerate(sh_dma(*dma)): f.setdefault(2+(NM//5)*k, []).append(x)
                f.setdefault(NM-3, []).append(f"s_add_u32 s17, s17, {inc}")
            f.setdefault(NM//2+1, []).append("v_add_u32 v19, s20, v17")
            f.setdefault(NM-3, []).extend(["s_mov_b32 s19, s20", f"s_add_u32 s20, s20, {SLOT3}"])
            f.setdefault(NM-2, []).append(f"s_and_b32 s20, s20, {R3*SLOT3-1}")
        interleave(a, ms, f)
    a(f"s_add_u32 s18, s18, 1\n s_cmp_lt_u32 s18, 2\n s_cbranch_scc1 L_{name}_loop")

def tile_vec(a, vec):
    a("""
    s_lshl_b32 s26, s67, 5
    s_lshl_b32 s27, s3, 3
    s_add_u32 s26, s26, s27
    s_lshl_b32 s27, s26, 7
    v_lshrrev_b32 v2, 3, v1
    v_lshlrev_b32 v2, 14, v2
    v_add_u32 v2, s27, v2
    s_lshr_b32 s26, s26, 1
    v_and_b32 v3, 7, v1
    v_xor_b32 v3, s26, v3
    v_and_b32 v3, 7, v3
    """)
    for i in range(8):
        a(f"v_xor_b32 v4, {i>>1}, v3\n v_lshl_add_u32 v4, v4, 4, v2\n ds_read_b128 v[{96+4*i}:{99+4*i}], v4 offset:{i*128}")
    for i in range(8): a(f"v_mov_b32 v{40+i}, 0")
    a("s_waitcnt lgkmcnt(0)")
    for j in range(4):
        for i in range(8): a(f"v_dot2_f32_bf16 v{40+i}, v{96+4*i+j}, v{vec+j}, v{40+i}")
    a("s_nop 2")
    reduce_lanes(a, list(range(40, 48)), 48, ['ror1', 'ror2', 'ror4', 'ror8', 'p16', 'p32'])
    for i in range(1, 8): a(f"v_cmp_eq_u32 vcc, {i}, v1\n s_nop 1\n v_cndmask_b32 v40, v40, v{40+i}, vcc")

def acc_load(a, nm, vb, svec, wshift, off=0):
    a(f"v_lshrrev_b32 v2, 4, v1\n v_lshlrev_b32 v2, 4, v2\n s_lshl_b32 s26, s3, {wshift}\n v_add_u32 v2, s26, v2")
    for mb in range(nm): a(f"buffer_load_dwordx4 v[{vb+4*mb}:{vb+3+4*mb}], v2, s[12:15], s{svec} offen offset:{off+mb*64} sc1")
def acc_init(a, nm, vb, accb, sscale, withx=False):
    a(f"v_lshlrev_b32 v3, 31, v1")
    for i in range(4*nm): a(f"v_mul_f32 v{vb+i}, s{sscale}, v{vb+i}")
    if withx:
        for i in range(4*nm): a(f"v_accvgpr_write_b32 a{128+i}, v{vb+i}")
    for i in range(4*nm): a(f"v_xor_b32 v{vb+i}, v3, v{vb+i}")
    for nb in range(8):
        for i in range(4*nm): a(f"v_accvgpr_write_b32 a{accb+nb*4*nm+i}, v{vb+i}")

def dft(a):
    vm = VM()
    srd(a, 32, 60, 2048)
    a("""
    v_lshlrev_b32 v2, 4, v1
    v_sub_u32 v3, 2032, v2
    s_mov_b32 s26, 0x100000
    s_mov_b32 s27, 0x300000
    buffer_load_dwordx4 v[128:131], v2, s[4:7], s26 offen
    buffer_load_dwordx4 v[132:135], v3, s[4:7], s26 offen
    buffer_load_dwordx4 v[140:143], v2, s[4:7], s27 offen
    buffer_load_dwordx4 v[144:147], v3, s[4:7], s27 offen
    """); vm.add('z', 4)
    fold_loads(a, vm)
    fold_round_loads(a, vm, 0); fold_round_loads(a, vm, 1)
    a("s_lshr_b32 s30, s66, 2\n s_cmp_eq_u32 s30, 0\n s_cselect_b32 s26, s56, s58\n s_cselect_b32 s27, s57, s59")
    srd(a, 8, 26, 1024*1024*2)
    a("s_and_b32 s25, s66, 3\n s_lshl_b32 s25, s25, 18\n s_lshl_b32 s21, s3, 12")
    sh_voff(a, 32, 11, 25)
    srd(a, 36, 52, 2048*2048*2)
    srd(a, 80, 54, 2048*2048*2)
    a("s_and_b32 s24, s66, 3\n s_lshl_b32 s24, s24, 8\n s_add_u32 s24, s24, s30\n s_lshl_b32 s24, s24, 12")
    a("s_waitcnt lgkmcnt(0)\n s_mov_b32 s17, 0")
    nonce(a)
    stamp(a, 9)
    vm.wait(a, 'z')
    a("v_mov_b32 v136, 0\n v_mov_b32 v148, 0\n s_cmp_eq_u32 s30, 0\n s_cselect_b32 s26, 1.0, -1.0")
    a("v_mov_b32_dpp v136, v132 wave_shr:1 row_mask:0xf bank_mask:0xf\n v_mov_b32_dpp v148, v144 wave_shr:1 row_mask:0xf bank_mask:0xf")
    for k, b in enumerate((128, 140)):
        for j in range(8): a(unp(160+16*k+j, b, j))
        a(f"v_lshlrev_b32 v{168+16*k}, 16, v{b+8}")
        for j in range(1, 8): a(unp(168+16*k+j, b+4, 8-j))
    for j in range(16): a(f"v_fma_f32 v{160+j}, v{176+j}, s26, v{160+j}")
    for j in range(8): a(f"v_fma_f32 v{160+j}, v{168+j}, s26, v{160+j}")
    for j in range(4): a(f"v_cvt_pk_bf16_f32 v{36+j}, v{160+2*j}, v{161+2*j}")
    a("v_lshlrev_b32 v2, 16, v132\n v_lshlrev_b32 v3, 16, v144\n v_add_f32 v2, v2, v3\n s_nop 0\n v_readlane_b32 s75, v2, 63\n s_cselect_b32 s75, s75, 0")
    a(pk('', 160, 160, 162)); a(pk('', 164, 164, 166)); a(pk('', 160, 160, 164)); a("v_sub_f32 v160, v160, v161")
    reduce_lanes(a, [160], 176, ['ror1', 'ror2', 'ror4', 'ror8', 'p16', 'p32'])
    a("v_add_f32 v160, s75, v160\n s_nop 0\n v_readfirstlane_b32 s97, v160")
    def between(rnd):
        if rnd < 2: fold_round_loads(a, vm, rnd+2)
        for s in ((0, 1, 2), (3, 4, 5), (6, 7), ())[rnd]:
            a(f"s_add_u32 m0, s21, {s*SLOT3}\n s_nop 0")
            for x in sh_dma(32, 8): a(x)
            a("s_add_u32 s17, s17, 128")
            vm.add('pf', 4)
    fold_compute(a, vm, between)
    stamp(a, 1)
    a("s_waitcnt vmcnt(16)\n s_barrier")
    tile_vec(a, 36)
    a(f"""
    v_lshlrev_b32 v2, 31, v1
    v_xor_b32 v2, s75, v2
    v_add_f32 v40, v40, v2
    s_lshl_b32 s26, s66, 7
    s_lshl_b32 s27, s67, 5
    s_add_u32 s26, s26, s27
    s_lshl_b32 s27, s3, 3
    s_add_u32 s26, s26, s27
    s_lshl_b32 s26, s26, 2
    s_add_u32 s26, s26, {WS_RV}
    v_lshlrev_b32 v2, 2, v1
    s_waitcnt vmcnt(0)
    s_barrier
    s_mov_b64 exec, 0xff
    buffer_store_dword v40, v2, s[12:15], s26 offen sc1
    s_mov_b64 exec, -1
    s_lshl_b32 s23, s66, 2
    s_add_u32 s23, s23, s67
    s_lshl_b32 s23, s23, 3
    s_add_u32 s23, s23, {WS_FL+1024}
    s_cmp_lg_u32 s3, 0
    s_cbranch_scc1 L_s1p
    """)
    flag_store(a, 's23')
    a("L_s1p:")
    stamp(a, 10)
    sh_voff(a, 20, 13, 24)
    a("v_lshlrev_b32 v12, 4, v1")
    a("""
    v_and_b32 v2, 15, v1
    v_lshrrev_b32 v3, 1, v2
    v_lshrrev_b32 v4, 4, v1
    v_xor_b32 v3, v3, v4
    v_lshlrev_b32 v2, 7, v2
    v_lshl_add_u32 v16, v3, 4, v2
    v_xor_b32 v3, 4, v3
    v_lshl_add_u32 v17, v3, 4, v2
    """)
    a(f"""
    s_lshl_b32 s26, s30, 1
    s_lshr_b32 s27, s67, 1
    s_add_u32 s26, s26, s27
    s_lshl_b32 s26, s26, 3
    s_and_b32 s27, s67, 1
    s_lshl_b32 s27, s27, 2
    s_add_u32 s26, s26, s27
    s_add_u32 s26, s26, s3
    s_lshl_b32 s26, s26, 16
    s_add_u32 s22, s26, {WS_Z}
    """)
    srd_ws(a, 32, 22, 65536)
    a(f"s_and_b32 s23, s67, 1\n s_lshl_b32 s23, s23, 2\n s_add_u32 s23, s23, s3\n s_lshl_b32 s23, s23, 5\n s_add_u32 s23, s23, {WS_FL+1024}")
    poll(a, [('s23', '0xf')])
    stamp(a, 2)
    a(f"s_lshl_b32 s22, s67, 10\n s_add_u32 s22, s22, {WS_CV}\n s_cmp_eq_u32 s30, 0\n s_cselect_b32 s23, 1.0, 0")
    acc_load(a, 4, 32, 22, 8)
    dloop(a, 'd1', 4, 0, (20, 36), D=4, init=lambda: (acc_init(a, 4, 32, 0, 23), stamp(a, 11)))
    a("s_lshl_b32 s22, s30, 13\n" + f"s_add_u32 s22, s22, {WS_UP}\n v_lshlrev_b32 v2, 5, v1\n s_add_u32 s23, s22, 4096")
    a(f"s_waitcnt lgkmcnt(0)\n s_mov_b32 s31, {WS_FL+1024}")
    poll(a, [('s31', '0xffffffff')])
    a("v_lshlrev_b32 v2, 5, v1")
    stamp(a, 3)
    for i in range(8): a(f"buffer_load_dwordx4 v[{128+4*i}:{131+4*i}], v2, s[12:15], s{22+(i>>2)} offen offset:{((i>>1)&1)*2048+(i&1)*16} sc1")
    a(f"""
    v_lshrrev_b32 v2, 4, v1
    v_and_b32 v3, 1, v2
    v_lshrrev_b32 v2, 1, v2
    v_lshl_add_u32 v2, v3, 1, v2
    v_and_b32 v3, 15, v1
    v_lshlrev_b32 v3, 4, v3
    v_lshl_add_u32 v14, v2, 8, v3
    s_lshr_b32 s26, s67, 1
    s_lshl_b32 s26, s26, 4
    s_and_b32 s27, s66, 3
    s_lshl_b32 s27, s27, 2
    s_add_u32 s26, s26, s27
    s_lshl_b32 s26, s26, 16
    s_lshl_b32 s27, s30, 15
    s_add_u32 s26, s26, s27
    s_and_b32 s27, s67, 1
    s_lshl_b32 s27, s27, 14
    s_add_u32 s26, s26, s27
    s_lshl_b32 s27, s3, 12
    s_add_u32 s26, s26, s27
    s_add_u32 s25, s26, {WS_AT}
    """)
    for nb in range(8):
        t = 32 + (nb & 1)*24
        for i in range(16): a(f"v_accvgpr_read_b32 v{t+i}, a{nb*16+i}")
        for i in range(8): a(f"v_cvt_pk_bf16_f32 v{t+16+i}, v{t+2*i}, v{t+2*i+1}")
        a("s_nop 1")
        for p in range(2):
            a(f"v_permlane16_swap_b32 v{t+16+4*p}, v{t+18+4*p}\n v_permlane16_swap_b32 v{t+17+4*p}, v{t+19+4*p}")
        for p in range(2):
            a(f"s_add_u32 s26, s25, {(nb >> 1)*65536 + p*2048 + (nb & 1)*1024}")
            a(f"buffer_store_dwordx4 v[{t+16+4*p}:{t+19+4*p}], v14, s[12:15], s26 offen sc1")
    a(f"s_and_b32 s26, s66, 3\n s_lshl_b32 s26, s26, 1\n s_add_u32 s26, s26, s30\n s_lshl_b32 s26, s26, 2\n s_add_u32 s26, s26, s67\n s_lshl_b32 s26, s26, 3\n s_add_u32 s23, s26, {WS_FL+1536}")
    stamp(a, 12)
    a("s_waitcnt vmcnt(16)\n s_barrier")
    for j in range(0, 8, 2): a(pk('', 128+j, 128+j, 136+j)); a(pk('', 144+j, 144+j, 152+j))
    for j in range(0, 8, 2): a(pk('', 128+j, 128+j, 144+j))
    for j in range(4): a(f"v_cvt_pk_bf16_f32 v{60+j}, v{128+2*j}, v{129+2*j}")
    tile_vec(a, 60)
    a(f"v_mov_b32 v41, 0\n v_mov_b32 v42, {ALT}")
    for j in range(4): a(f"v_dot2_f32_bf16 v41, v{60+j}, v42, v41")
    a("s_nop 2")
    reduce_lanes(a, [41], 48, ['ror1', 'ror2', 'ror4', 'ror8', 'p16', 'p32'])
    a(f"""
    v_cmp_eq_u32 vcc, 8, v1
    s_cmp_eq_u32 s30, 0
    s_cselect_b32 s26, 1.0, 0
    v_cndmask_b32 v40, v40, v41, vcc
    v_mov_b32 v160, s97
    v_mul_f32 v160, s26, v160
    v_lshlrev_b32 v2, 31, v1
    v_xor_b32 v2, v2, v160
    v_add_f32 v40, v40, v2
    v_cvt_pk_bf16_f32 v40, v40, v40
    s_and_b32 s26, s66, 3
    s_lshl_b32 s26, s26, 7
    s_lshl_b32 s27, s67, 5
    s_add_u32 s26, s26, s27
    s_lshl_b32 s27, s3, 3
    s_add_u32 s26, s26, s27
    v_add_u32 v3, s26, v1
    v_lshlrev_b32 v3, 1, v3
    v_add_u32 v3, s30, v3
    v_mov_b32 v4, 1024
    v_cndmask_b32 v3, v3, v4, vcc
    s_mov_b32 s26, {YS}
    v_mul_lo_u32 v3, v3, s26
    s_mov_b32 s26, {WS_Y + 1024}
    s_mov_b32 s27, {WS_Y + YD + 1024}
    s_cmp_eq_u32 s30, 0
    s_mov_b32 s28, 0xff
    s_cselect_b32 exec_lo, 0x1ff, s28
    s_mov_b32 exec_hi, 0
    v_mov_b32 v41, v3
    s_mov_b64 s[76:77], exec
    s_mov_b64 exec, -1
    """)
    publish(a, 's23')
    a("s_mov_b64 exec, s[76:77]\n buffer_store_dword v40, v41, s[12:15], s26 offen sc1\n buffer_store_dword v40, v41, s[12:15], s27 offen sc1\n s_mov_b64 exec, -1")
    stamp(a, 13)
    a(f"""
    s_lshl_b32 s26, s30, 4
    s_lshl_b32 s27, s67, 2
    s_add_u32 s26, s26, s27
    s_add_u32 s26, s26, s3
    s_lshl_b32 s26, s26, 16
    s_add_u32 s22, s26, {WS_AT}
    """)
    srd_ws(a, 32, 22, 65536)
    a(f"""
    s_lshl_b32 s23, s67, 6
    s_add_u32 s23, s23, {WS_FL+1536}
    s_cmp_eq_u32 s66, 0
    s_cselect_b32 s31, 1, 0
    v_mov_b32 v24, {ALT}
    v_mov_b32 v25, {ALT}
    v_mov_b32 v26, {ALT}
    v_mov_b32 v27, {ALT}
    """)
    srd(a, 4, 88, 3584*1024*2)
    g2_voff(a, 8, 5)
    poll(a, [('s23', '0xff')])
    stamp(a, 4)
    a(f"s_lshl_b32 s22, s67, 9\n s_add_u32 s22, s22, {WS_RV}\n s_cmp_eq_u32 s30, 0\n s_cselect_b32 s23, 1.0, 0")
    a("s_cselect_b32 s25, 0, -1.0")
    acc_load(a, 2, 32, 22, 7)
    acc_load(a, 2, 40, 22, 7, 2048)
    dloop(a, 'd2a', 2, 0, (20, 80), extra=True, init=lambda: (acc_init(a, 2, 32, 0, 23, True), acc_init(a, 2, 40, 64, 25), stamp(a, 14)))
    stamp(a, 15)
    dloop(a, 'd2b', 2, 64, (8, 4), first=False, inc=128*2048)
    stamp(a, 16)
    a("s_waitcnt lgkmcnt(0)\n s_nop 7")
    a(f"""
    s_and_b32 s26, s66, 3
    s_lshl_b32 s26, s26, 7
    v_and_b32 v2, 15, v1
    v_add_u32 v2, s26, v2
    v_lshlrev_b32 v2, 1, v2
    v_add_u32 v2, s30, v2
    s_mov_b32 s26, {YS}
    v_mul_lo_u32 v20, v2, s26
    v_lshrrev_b32 v3, 4, v1
    v_and_b32 v4, 1, v3
    v_lshl_add_u32 v20, v4, 5, v20
    v_lshrrev_b32 v4, 1, v3
    v_lshl_add_u32 v20, v4, 4, v20
    v_lshlrev_b32 v21, 3, v3
    s_lshl_b32 s22, s67, 8
    s_lshl_b32 s27, s3, 6
    s_add_u32 s22, s22, s27
    s_add_u32 s22, s22, {WS_Y}
    """)
    for nb in range(8):
        t = 32 + (nb & 1)*32
        for i in range(8): a(f"v_accvgpr_read_b32 v{t+i}, a{nb*8+i}\n v_accvgpr_read_b32 v{t+8+i}, a{64+nb*8+i}")
        for i in range(0, 8, 2): a(pk('', t+16+i, t+i, t+8+i, neg=True)); a(pk('', t+i, t+i, t+8+i))
        for i in range(4): a(f"v_cvt_pk_bf16_f32 v{t+24+i}, v{t+16+2*i}, v{t+17+2*i}\n v_cvt_pk_bf16_f32 v{t+28+i}, v{t+2*i}, v{t+2*i+1}")
        a("s_nop 1")
        for p in range(2):
            a(f"v_permlane16_swap_b32 v{t+24+4*p}, v{t+26+4*p}\n v_permlane16_swap_b32 v{t+25+4*p}, v{t+27+4*p}")
        for p in range(2):
            a(f"s_add_u32 s26, s22, {nb*32*YS + p*YD}")
            a(f"buffer_store_dwordx4 v[{t+24+4*p}:{t+27+4*p}], v20, s[12:15], s26 offen sc1")
    a("s_cmp_eq_u32 s31, 0\n s_cbranch_scc1 L_dft_nox")
    for i in range(8): a(f"v_accvgpr_read_b32 v{32+i}, a{128+i}")
    for i in range(4): a(f"v_cvt_pk_bf16_f32 v{40+i}, v{32+2*i}, v{33+2*i}")
    a(f"s_add_u32 s26, s22, {1024*YS}\n s_add_u32 s27, s26, {YD}\n s_mov_b32 exec_lo, 0x00010001\n s_mov_b32 exec_hi, 0x00010001")
    for mb in range(2):
        a(f"buffer_store_dwordx2 v[{40+2*mb}:{41+2*mb}], v21, s[12:15], s26 offen offset:{mb*32} sc1\n buffer_store_dwordx2 v[{40+2*mb}:{41+2*mb}], v21, s[12:15], s27 offen offset:{mb*32} sc1")
    a("s_mov_b64 exec, -1\nL_dft_nox:")
    stamp(a, 17)
    a(f"s_lshl_b32 s23, s66, 2\n s_add_u32 s23, s23, s67\n s_lshl_b32 s23, s23, 3\n s_add_u32 s23, s23, {WS_FL+2048}")
    publish(a, 's23')
    stamp(a, 18)


def kern():
    a = Asm()
    a(f"""
    s_cmp_ge_u32 s2, 256
    s_cbranch_scc1 L_end
    s_load_dwordx2 s[40:41], s[0:1], 0
    s_load_dwordx4 s[44:47], s[0:1], 48
    s_load_dwordx2 s[48:49], s[0:1], 96
    s_load_dwordx2 s[88:89], s[0:1], 64
    s_load_dwordx2 s[42:43], s[0:1], 80
    s_load_dwordx8 s[52:59], s[0:1], 8
    s_load_dwordx2 s[60:61], s[0:1], 72
    s_getpc_b64 s[28:29]
    s_lshr_b32 s27, s2, 3
    s_mul_i32 s26, s27, {CODE_LINES*128}
    v_lshlrev_b32 v2, 7, v0
    v_add_u32 v2, s26, v2
    v_cmp_gt_u32 vcc, {CODE_LINES}, v0
    s_and_saveexec_b64 s[30:31], vcc
    s_cbranch_execz L_nocp
    global_load_dword a255, v2, s[28:29]
    L_nocp:
    s_mov_b64 exec, s[30:31]
    v_and_b32 v1, 63, v0
    v_lshrrev_b32 v2, 6, v0
    s_and_b32 s66, s2, 7
    v_readfirstlane_b32 s3, v2
    s_lshr_b32 s27, s2, 3
    s_sub_u32 s67, s27, 28
    s_and_b32 s24, s66, 1
    s_lshl_b32 s24, s24, 2
    s_and_b32 s68, s27, 3
    s_add_u32 s24, s24, s68
    s_lshr_b32 s25, s66, 1
    s_mul_i32 s25, s25, 7
    s_lshr_b32 s69, s27, 2
    s_add_u32 s25, s25, s69
    """)
    stamp(a, 0)
    a(f"s_waitcnt lgkmcnt(0)\n s_add_u32 s28, s48, {WS_FL}\n s_addc_u32 s29, s49, 0\n s_load_dword s98, s[28:29], 0")
    if opt.stamp: stamp(a, 23)
    srd(a, 4, 40, 2048*1024*2)
    srd(a, 12, 48, WS_SZ)
    g2_tile(a)
    a("s_lshr_b32 s27, s2, 3\n s_cmp_ge_u32 s27, 28\n s_cbranch_scc1 L_dft")
    gemm1(a)
    a("s_branch L_g2")
    a("L_dft:")
    dft(a)
    a("L_g2:")
    if opt.trace: stamp_flush(a, 1)
    gemm2(a)
    a("L_end:")
    if opt.stamp:
        a("s_cmp_ge_u32 s2, 256\n s_cbranch_scc1 L_end2\n s_mov_b64 exec, -1")
        srd(a, 12, 48, WS_SZ)
        stamp(a, 8)
        stamp_flush(a, 0)
        a("L_end2:")
    return kernel(KN, a.text(), vgpr=256, agpr=256)

KN = 'gated_mix__spectral_fnet__geglu_ffn__prompt_kernel'
def main():
    fn = sys.argv[1]
    for o in sys.argv[2:]:
        k, v = o.split('=', 1)
        setattr(opt, k, eval(v))
    c, d = kern()
    hdr = open('gated_mix__spectral_fnet__geglu_ffn__prompt.s.ref').read().split('; Override launch')[0]
    src = hdr + f'; @launch grid=(256,1,1) block=(256,1,1) lds={R1*SLOT1}\n.amdgcn_target "amdgcn-amd-amdhsa--gfx950"\n' + c + '.text\n.fill 1024, 4, 0xbf800000\n' + d
    open(fn, 'w').write(src)
if __name__ == '__main__': main()
```

```python
import sys, math, struct
from ab import *

WS_H   = 0
HS     = 262144
WS_Z   = (16 << 20) + 65536
WS_AT  = (18 << 20) + 131072
WS_Y   = (20 << 20) + 196608
YD     = 2 << 20
YS     = 1152
WS_LP  = (24 << 20) + 131072
WS_UP  = WS_LP + 32768
WS_CV  = WS_UP + 32768
WS_RV  = WS_CV + 4096
WS_FL  = 25 << 20
WS_TS  = 30 << 20
WS_SZ  = 256 << 20
OOB = 0x40000000
ALT = 0xBF803F80
R1 = 5; SLOT1 = 32768
R2 = 8; SLOT2 = 16384
R3 = 8; SLOT3 = 16384
MF = "v_mfma_f32_16x16x32_bf16"
class Opt: pass
opt = Opt()
opt.stamp = False; opt.trace = False; opt.hflags = 'sc1'; opt.psleep = 2; opt.order = 3; opt.tlb = True; opt.smem = True; opt.dbgmax = False; opt.oflags = ''; opt.g2touch = False; opt.tflags = ''; opt.killw = None
fbits = lambda x: struct.unpack('<I', struct.pack('<f', x))[0]
CODE_LINES = 12

def srd(a, d, base, size):
    a(f"s_mov_b32 s{d}, s{base}\n s_and_b32 s{d+1}, s{base+1}, 0xffff\n s_mov_b32 s{d+2}, {size}\n s_mov_b32 s{d+3}, 0x20000")
def srd_ws(a, d, soff, size):
    a(f"s_add_u32 s{d}, s48, s{soff}\n s_addc_u32 s{d+1}, s49, 0\n s_and_b32 s{d+1}, s{d+1}, 0xffff\n s_mov_b32 s{d+2}, {size}\n s_mov_b32 s{d+3}, 0x20000")
def interleave(a, mfmas, fill):
    for s in fill.get(-1, []): a(s)
    for i, m in enumerate(mfmas):
        a(m)
        for s in fill.get(i, []): a(s)
def lab(a, p): return f"L_{p}_{len(a.l)}"

def stamp(a, idx):
    if not opt.stamp: return
    a(f"s_memrealtime s[92:93]\n s_memtime s[94:95]\n s_waitcnt lgkmcnt(0)\n v_writelane_b32 v31, s92, {40+idx}\n v_writelane_b32 v30, s94, {40+idx}")
def trace_ops(sidx):
    return ["s_memtime s[92:93]", "s_memrealtime s[94:95]", "s_waitcnt lgkmcnt(0)", f"v_cmp_eq_u32 vcc, {sidx}, v1", "v_mov_b32 v28, s92", "v_mov_b32 v29, s94",
            "v_cndmask_b32 v30, v30, v28, vcc", "v_cndmask_b32 v31, v31, v29, vcc"]
def stamp_flush(a, half):
    if not opt.stamp: return
    a(f"s_lshl_b32 s90, s2, 2\n s_add_u32 s90, s90, s3\n s_lshl_b32 s90, s90, 9\n s_add_u32 s90, s90, {WS_TS + half*524288}")
    a(f"v_lshlrev_b32 v28, 3, v1\n buffer_store_dwordx2 v[30:31], v28, s[12:15], s90 offen")

def nonce(a):
    a("s_mul_i32 s98, s98, 0x9E3779B1\n s_add_u32 s98, s98, 0x7F4A7C15\n s_xor_b32 s99, s98, 0x5bd1e995")
def flag_store(a, soff, vt=2):
    a(f"""
    v_mov_b32 v{vt}, 0
    v_mov_b32 v{vt+2}, s98
    v_mov_b32 v{vt+3}, s99
    s_mov_b64 exec, 1
    buffer_store_dwordx2 v[{vt+2}:{vt+3}], v{vt}, s[12:15], {soff} offen sc1
    s_mov_b64 exec, -1
    """)
def publish(a, soff):
    a("s_waitcnt vmcnt(0)\n s_barrier")
    L = lab(a, 'pub')
    a(f"s_cmp_lg_u32 s3, 0\n s_cbranch_scc1 {L}")
    flag_store(a, soff)
    a(f"{L}:")
def poll(a, items):
    L = lab(a, 'poll')
    a(f"v_lshlrev_b32 v6, 3, v1\n s_mov_b32 s27, 0\n {L}:")
    for i, (so, mk) in enumerate(items): a(f"buffer_load_dwordx2 v[{2+2*i}:{3+2*i}], v6, s[12:15], {so} offen sc1")
    a("s_waitcnt vmcnt(0)\n s_mov_b64 s[64:65], 0")
    for i, (so, mk) in enumerate(items):
        a(f"v_cmp_ne_u32 vcc, s98, v{2+2*i}\n v_cmp_ne_u32 s[28:29], s99, v{3+2*i}\n s_or_b64 vcc, vcc, s[28:29]\n s_and_b64 vcc, vcc, {mk}\n s_or_b64 s[64:65], s[64:65], vcc")
    a(f"""
    s_cbranch_scc0 {L}_done
    s_sleep {opt.psleep}
    s_add_u32 s27, s27, 1
    s_cmp_lt_u32 s27, 0x40000
    s_cbranch_scc1 {L}
    {L}_done:
    """)
def reduce_lanes(a, regs, tmp, steps):
    for st in steps:
        if st.startswith('ror'):
            a("s_nop 1")
            for r in regs: a(f"v_add_f32_dpp v{r}, v{r}, v{r} row_ror:{st[3:]} row_mask:0xf bank_mask:0xf")
        else:
            for i, r in enumerate(regs): a(f"v_mov_b32 v{tmp+i}, v{r}")
            a("s_nop 1")
            for i, r in enumerate(regs): a(f"v_permlane{st[1:]}_swap_b32 v{r}, v{tmp+i}")
            a("s_nop 1")
            for i, r in enumerate(regs): a(f"v_add_f32 v{r}, v{r}, v{tmp+i}")
def unp(dst, src, j):
    return f"v_lshlrev_b32 v{dst}, 16, v{src+j//2}" if j % 2 == 0 else f"v_and_b32 v{dst}, 0xffff0000, v{src+j//2}"
def pk(op, d, x, y, neg=False):
    return f"v_pk_add_f32 v[{d}:{d+1}], v[{x}:{x+1}], v[{y}:{y+1}]" + (" neg_lo:[0,1] neg_hi:[0,1]" if neg else "")

def tlb_setup(a, vd):
    a(f"""
    s_mov_b32 s76, s48
    s_mov_b32 s77, s49
    s_mov_b32 s78, {26 << 20}
    s_cmp_eq_u32 s3, 1
    s_cselect_b32 s76, s42, s76
    s_cselect_b32 s77, s43, s77
    s_cselect_b32 s78, {4 << 20}, s78
    s_cmp_eq_u32 s3, 2
    s_cselect_b32 s76, s88, s76
    s_cselect_b32 s77, s89, s77
    s_cselect_b32 s78, {3584*2048}, s78
    s_cmp_eq_u32 s3, 3
    s_cselect_b32 s76, s52, s76
    s_cselect_b32 s77, s53, s77
    s_cselect_b32 s78, {5 << 20}, s78
    s_and_b32 s77, s77, 0xffff
    s_mov_b32 s79, 0x20000
    v_lshlrev_b32 v{vd}, 20, v1
    v_add_u32 v{vd}, {(1 << 20) - 128}, v{vd}
    v_cmp_eq_u32 vcc, 16, v1
    v_mov_b32 v2, {(16 << 20) + 128}
    s_nop 0
    v_cndmask_b32 v{vd}, v{vd}, v2, vcc
    v_cmp_le_u32 vcc, 17, v1
    v_mov_b32 v2, {(18 << 20) + 65536 + 128}
    s_nop 0
    v_cndmask_b32 v{vd}, v{vd}, v2, vcc
    v_cmp_le_u32 vcc, 18, v1
    v_lshlrev_b32 v2, 21, v1
    v_subrev_u32 v2, {(18 << 21) - ((22 << 20) - 128)}, v2
    v_cndmask_b32 v{vd}, v{vd}, v2, vcc
    """)

def g2_tile(a):
    a("""
    s_and_b32 s26, s2, 7
    s_lshr_b32 s27, s2, 3
    s_and_b32 s50, s26, 3
    s_lshl_b32 s50, s50, 2
    s_and_b32 s51, s27, 3
    s_add_u32 s50, s50, s51
    s_lshr_b32 s51, s26, 2
    s_lshl_b32 s51, s51, 3
    s_lshr_b32 s27, s27, 2
    s_add_u32 s51, s51, s27
    """)
def g2_voff(a, vb, wshift, t=2):
    a(f"""
    v_lshrrev_b32 v{t}, 3, v1
    s_lshl_b32 s26, s3, {wshift}
    v_add_u32 v{t}, s26, v{t}
    v_lshlrev_b32 v{t}, 11, v{t}
    v_lshrrev_b32 v{t+1}, 4, v1
    v_lshlrev_b32 v{t+1}, 1, v{t+1}
    v_and_b32 v{vb}, 7, v1
    v_xor_b32 v{t+1}, v{t+1}, v{vb}
    v_lshl_add_u32 v{t}, v{t+1}, 4, v{t}
    s_lshl_b32 s26, s51, 7
    v_add_u32 v{vb}, s26, v{t}
    """)
    for i in range(1, 4): a(f"v_add_u32 v{vb+i}, {i*(8*2048-1024)}, v{vb}")
def g2_slot(a, s):
    a(f"s_add_u32 m0, s21, {s*SLOT2}\n s_nop 0")
    for x in g2_dma(): a(x)
    a(f"s_add_u32 s17, s17, {128*2048}")
def g2_dma(): return [f"buffer_load_dwordx4 v{12+i}, s[4:7], s17 offen offset:{i*1024} lds" for i in range(4)]

def gemm2(a):
    a(f"s_mov_b32 s24, s50\n s_mov_b32 s25, s51\n s_mov_b32 s17, {R2*128*2048}\n s_lshl_b32 s21, s3, 12")
    srd(a, 4, 88, 3584*1024*2)
    g2_voff(a, 12, 5)
    srd(a, 8, 42, 2048*1024*2)
    a("s_lshl_b32 s16, s24, 2\n s_add_u32 s16, s16, s3\n s_lshl_b32 s16, s16, 18")
    srd_ws(a, 36, 16, 229376)
    a("s_mov_b32 s16, 0\n v_lshlrev_b32 v8, 4, v1\n v_mov_b32 v22, 0x40000000")
    a("""
    v_lshrrev_b32 v3, 4, v1
    v_lshrrev_b32 v4, 2, v1
    v_and_b32 v4, 3, v4
    v_lshl_add_u32 v5, v3, 2, v4
    v_lshrrev_b32 v6, 1, v5
    v_and_b32 v6, 3, v6
    v_lshlrev_b32 v5, 7, v5
    v_and_b32 v7, 3, v1
    v_lshl_add_u32 v5, v7, 3, v5
    """)
    for mb in range(4):
        a(f"v_xor_b32 v7, {mb}, v6\n v_lshl_add_u32 v{16+mb}, v7, 5, v5\n v_mov_b32 v{24+mb}, v{16+mb}")
    for i in range(32): a(f"v_accvgpr_write_b32 a{i}, 0")
    a(f"""
    s_lshl_b32 s26, s24, 9
    s_add_u32 s22, s26, {WS_FL+4096}
    s_mov_b32 s23, {WS_FL+2048}
    s_mov_b32 s60, -1
    s_mov_b32 s61, 0x00ffffff
    """)
    stamp(a, 5)
    poll(a, [('s22', 's[60:61]'), ('s23', '0xffffffff')])
    stamp(a, 6)
    HB = 128; WF = 32
    def hload(i, off): return f"buffer_load_dwordx4 v[{HB+4*i}:{HB+4*i+3}], v8, s[36:39], s16 offen offset:{off} sc1"
    for i in range(16):
        a(hload(i, (i % 4)*1024))
        if i % 4 == 3: a("s_add_u32 s16, s16, 4096")
        if i % 8 == 7:
            for k in range(4): a("buffer_load_dword v9, v22, s[36:39], 0 offen")
    def wreads(st, p):
        r = []
        for mb in range(4):
            b = WF + st*16 + mb*4
            r.append(f"ds_read_b64_tr_b16 v[{b}:{b+1}], v{24+mb} offset:{p*4096}")
            r.append(f"ds_read_b64_tr_b16 v[{b+2}:{b+3}], v{24+mb} offset:{p*4096+2048}")
        return r
    a("s_barrier")
    for x in wreads(0, 0): a(x)
    a(f"s_mov_b32 s19, 0\n s_mov_b32 s20, {SLOT2}\n s_mov_b32 s18, 0")
    def y_loads():
        a(f"""
        s_lshl_b32 s26, s24, 7
        s_lshl_b32 s27, s3, 5
        s_add_u32 s26, s26, s27
        v_and_b32 v2, 15, v1
        v_add_u32 v10, s26, v2
        v_add_u32 v11, 16, v10
        s_mov_b32 s26, {WS_LP}
        v_lshlrev_b32 v2, 4, v10
        buffer_load_dwordx4 a[64:67], v2, s[12:15], s26 offen sc1
        buffer_load_dwordx4 a[68:71], v2, s[12:15], s26 offen offset:256 sc1
        s_cmp_ge_u32 s25, 8
        s_cselect_b64 s[62:63], -1, 0
        s_lshl_b32 s26, s25, 7
        s_sub_u32 s27, 1920, s26
        s_cmp_ge_u32 s25, 8
        s_cselect_b32 s28, s27, s26
        s_add_u32 s28, s28, {WS_Y}
        s_lshl_b32 s26, s24, 7
        s_lshl_b32 s27, s3, 5
        s_add_u32 s27, s26, s27
        s_mov_b32 s26, {YS}
        """)
        for j in range(5):
            if j < 4: a(f"v_lshrrev_b32 v2, 3, v1\n v_add_u32 v2, {8*j}, v2\n v_and_b32 v3, 7, v1\n v_lshlrev_b32 v3, 4, v3")
            else: a("v_and_b32 v2, 31, v1\n v_mov_b32 v3, 128")
            a(f"""
            v_add_u32 v2, s27, v2
            v_sub_u32 v4, 2048, v2
            v_min_u32 v4, v4, v2
            v_mul_lo_u32 v4, v4, s26
            v_cmp_lt_u32 vcc, 1024, v2
            s_xor_b64 vcc, vcc, s[62:63]
            v_add_u32 v4, v4, v3
            v_add_u32 v5, {YD}, v4
            v_cndmask_b32 v4, v4, v5, vcc
            """)
            if j < 4: a(f"buffer_load_dwordx4 a[{32+4*j}:{35+4*j}], v4, s[12:15], s28 offen sc1")
            else: a(f"buffer_load_dword a48, v4, s[12:15], s28 offen sc1")
    a(".p2align 6\nL_g2_loop:")
    for ss in range(4):
        if ss == 2:
            a("s_cmp_lg_u32 s18, 6\n s_cbranch_scc1 L_g2_nopq")
            y_loads()
            a("L_g2_nopq:")
        if opt.trace:
            a(f"s_lshl_b32 s96, s18, 2\n s_add_u32 s96, s96, {ss}")
            for x in trace_ops("s96"): a(x)
        for p in range(4):
            i = ((ss*4 + p)*2) % 16
            st = p & 1
            a(f"s_waitcnt vmcnt({23 if opt.g2touch else 22}) lgkmcnt(0)")
            ms = []
            for nb in range(2):
                for mb in range(4):
                    b = WF + st*16 + mb*4; c = (nb*4+mb)*4
                    ms.append(f"{MF} a[{c}:{c+3}], v[{b}:{b+3}], v[{HB+4*(i+nb)}:{HB+4*(i+nb)+3}], a[{c}:{c+3}]")
            f = {}
            if p == 3:
                f[0] = ["s_barrier"] + [f"v_add_u32 v{24+mb}, s20, v{16+mb}" for mb in range(4)]
                rd = wreads(st ^ 1, 0)
            else:
                rd = wreads(st ^ 1, p+1)
            for k, x in enumerate(rd): f.setdefault(k, []).append(x)
            f[4].append(hload(i, (i % 4)*1024))
            f[7].append(hload(i+1, ((i+1) % 4)*1024))
            if (i+1) % 4 == 3: f[7].append("s_add_u32 s16, s16, 4096")
            if p == 1 and opt.g2touch:
                f[1] += ["s_cmp_ge_u32 s84, s86", f"s_cselect_b32 s87, {OOB}, s84"]
                f[2] += ["buffer_load_dword v9, v23, s[80:83], s87 offen", "s_add_u32 s84, s84, s85"]
            interleave(a, ms, f)
            if p == 3:
                a("s_add_u32 m0, s21, s19\n s_mov_b32 s19, s20")
                for x in g2_dma(): a(x)
                a(f"s_add_u32 s17, s17, {128*2048}\n s_add_u32 s20, s20, {SLOT2}\n s_and_b32 s20, s20, {R2*SLOT2-1}")
    a("s_add_u32 s18, s18, 1\n s_cmp_lt_u32 s18, 7\n s_cbranch_scc1 L_g2_loop")
    stamp(a, 7)
    a("s_waitcnt vmcnt(0) lgkmcnt(0)\n s_nop 7")
    a("""
    v_lshlrev_b32 v2, 11, v10
    v_lshrrev_b32 v3, 4, v1
    v_and_b32 v4, 1, v3
    v_lshl_add_u32 v2, v4, 5, v2
    v_lshrrev_b32 v4, 1, v3
    v_lshl_add_u32 v2, v4, 4, v2
    s_lshl_b32 s26, s25, 7
    v_add_u32 v2, s26, v2
    v_add_u32 v3, 32768, v2
    """)
    a("""
    s_mul_i32 s26, s3, 4608
    s_add_u32 s26, s26, 131072
    v_lshrrev_b32 v4, 3, v1
    v_mul_u32_u24 v4, 144, v4
    v_and_b32 v5, 7, v1
    v_lshl_add_u32 v4, v5, 4, v4
    v_add_u32 v4, s26, v4
    v_and_b32 v5, 31, v1
    v_mul_u32_u24 v5, 144, v5
    v_add_u32 v5, s26, v5
    """)
    for j in range(4): a(f"ds_write_b128 v4, a[{32+4*j}:{35+4*j}] offset:{j*8*144}")
    a("ds_write_b32 v5, a48 offset:128")
    a("""
    v_and_b32 v4, 15, v1
    v_mul_u32_u24 v4, 144, v4
    v_lshrrev_b32 v5, 4, v1
    v_lshlrev_b32 v5, 3, v5
    v_sub_u32 v6, 24, v5
    v_cndmask_b32 v5, v5, v6, s[62:63]
    v_add3_u32 v4, v4, v5, s26
    s_waitcnt lgkmcnt(0)
    """)
    for k in range(8):
        a(f"ds_read_b64 v[{128+4*k}:{129+4*k}], v4 offset:{(k>>2)*16*144 + (k&3)*32}\n ds_read_b32 v{130+4*k}, v4 offset:{(k>>2)*16*144 + (k&3)*32 + 8}")
    for i in range(32): a(f"v_accvgpr_read_b32 v{64+i}, a{i}")
    for nb in range(2):
        for i in range(4): a(f"v_accvgpr_read_b32 v{40+i}, a{64+4*nb+i}")
        a(f"""
        v_add_f32 v40, v40, v41
        v_add_f32 v42, v42, v43
        v_add_f32 v40, v40, v42
        v_cvt_pk_bf16_f32 v40, v40, v40
        v_lshlrev_b32 v40, 16, v40
        v_mul_f32 v40, {fbits(-math.log2(math.e))}, v40
        v_exp_f32 v40, v40
        s_nop 0
        v_add_f32 v40, 1.0, v40
        v_rcp_f32 v40, v40
        s_nop 0
        v_cvt_pk_bf16_f32 v40, v40, v40
        v_lshlrev_b32 v{32+nb}, 16, v40
        v_sub_f32 v40, 1.0, v{32+nb}
        v_cvt_pk_bf16_f32 v40, v40, v40
        v_lshlrev_b32 v{34+nb}, 16, v40
        """)
    for nb in range(2):
        for i in range(16): a(f"v_mul_f32 v{64+nb*16+i}, v{34+nb}, v{64+nb*16+i}")
    a("s_waitcnt lgkmcnt(0)")
    a("s_cmp_ge_u32 s25, 8\n s_cbranch_scc1 L_g2_mir")
    for mir in range(2):
        if mir: a("L_g2_mir:")
        for nb in range(2):
            for mb in range(4):
                d = 128 + (nb*4 + (3-mb if mir else mb))*4; o = 64 + (nb*4+mb)*4
                els = [4, 3, 2, 1] if mir else [0, 1, 2, 3]
                for r in range(4): a(unp(40+r, d, els[r]))
                for r in range(4): a(f"v_fma_f32 v{o+r}, v{40+r}, v{32+nb}, v{o+r}")
        if not mir: a("s_branch L_g2_st")
    a("L_g2_st:")
    for i in range(16): a(f"v_cvt_pk_bf16_f32 v{96+i}, v{64+2*i}, v{64+2*i+1}")
    a("s_nop 1")
    for p in range(4):
        a(f"v_permlane16_swap_b32 v{96+4*p}, v{96+4*p+2}\n v_permlane16_swap_b32 v{96+4*p+1}, v{96+4*p+3}")
    for p in range(4):
        a(f"buffer_store_dwordx4 v[{96+4*p}:{96+4*p+3}], v{2+(p>>1)}, s[8:11], 0 offen offset:{(p&1)*64} {opt.oflags}")
    a(f"s_cmp_lg_u32 s2, 0\n s_cbranch_scc1 L_end\n s_lshl_b32 s22, s3, 11\n s_add_u32 s22, s22, {WS_FL+4096}")
    a("s_add_u32 s23, s22, 512\n s_add_u32 s30, s22, 1024\n s_add_u32 s31, s22, 1536")
    L = lab(a, 'ep')
    poll(a, [('s22', 's[60:61]'), ('s23', 's[60:61]')])
    poll(a, [('s30', 's[60:61]'), ('s31', 's[60:61]')])
    a(f"s_barrier\n s_cmp_lg_u32 s3, 0\n s_cbranch_scc1 L_end\n s_mov_b32 s23, {WS_FL}")
    flag_store(a, 's23')

def ACCG(mb, nb): return 128 + (nb*4+mb)*4
def ACCU(mb, nb): return (nb*4+mb)*4
def FR(st, i): return 128 + st*64 + i*4

def gemm1(a):
    XS = 32768; WB = 98304; WSL = 16384
    a("s_cmp_ge_u32 s3, 2\n s_cselect_b32 s26, s46, s44\n s_cselect_b32 s27, s47, s45")
    srd(a, 8, 26, 1024*3584*2)
    a(f"""
    s_cmp_eq_u32 s3, 1
    s_cselect_b32 s80, s46, s44
    s_cselect_b32 s81, s47, s45
    s_mov_b32 s82, {1024*3584*2}
    s_cmp_eq_u32 s3, 2
    s_cselect_b32 s80, s40, s80
    s_cselect_b32 s81, s41, s81
    s_cselect_b32 s82, {2048*1024*2}, s82
    s_cmp_eq_u32 s3, 3
    s_cselect_b32 s80, s88, s80
    s_cselect_b32 s81, s89, s81
    s_and_b32 s81, s81, 0xffff
    s_mov_b32 s83, 0x20000
    v_mov_b32 v3, {OOB}
    s_add_u32 s86, s67, 28
    s_cmp_ge_u32 s3, 2
    s_cbranch_scc1 L_t_x
    v_lshrrev_b32 v2, 4, v1
    v_lshlrev_b32 v2, 5, v2
    v_bfe_u32 v4, v1, 1, 3
    v_add_u32 v2, v2, v4
    s_lshl_b32 s26, s68, 3
    v_add_u32 v2, s26, v2
    s_mov_b32 s27, 7168
    v_mul_lo_u32 v2, v2, s27
    v_and_b32 v4, 1, v1
    v_lshl_add_u32 v2, v4, 7, v2
    s_lshl_b32 s26, s25, 8
    v_add_u32 v26, s26, v2
    v_cmp_gt_u32 vcc, 32, v1
    s_mov_b32 s84, 0
    s_mov_b32 s85, {2*32*7168}
    v_cndmask_b32 v27, v3, v26, vcc
    s_mov_b32 s87, {4*32*7168}
    s_mov_b32 s75, s85
    v_mov_b32 v42, v27
    v_mov_b32 v35, v3
    s_branch L_t_done
    L_t_x:
    s_cmp_eq_u32 s3, 3
    s_cbranch_scc1 L_t_wd
    s_mul_i32 s26, s69, 37
    s_lshl_b32 s27, s24, 8
    s_add_u32 s26, s26, s27
    v_add_u32 v2, s26, v1
    v_lshlrev_b32 v2, 11, v2
    v_cmp_gt_u32 vcc, 37, v1
    s_mov_b32 s84, 0
    s_mov_b32 s85, 0
    v_cndmask_b32 v26, v3, v2, vcc
    s_mov_b32 s87, 128
    s_mov_b32 s75, 128
    v_mov_b32 v27, v3
    v_mov_b32 v42, v26
    v_mov_b32 v35, v3
    s_branch L_t_done
    L_t_wd:
    s_mul_i32 s27, s86, 49
    v_cmp_gt_u32 vcc, 49, v1
    s_lshl_b32 s28, s66, 6
    """)
    for k in range(3):
        a(f"""
        v_add_u32 v2, s27, v1
        v_add_u32 v2, {1372*k}, v2
        v_bfe_u32 v4, v2, 4, 3
        v_bfe_u32 v5, v2, 7, 2
        v_lshl_add_u32 v4, v5, 4, v4
        v_bfe_u32 v5, v2, 11, 1
        v_lshl_add_u32 v4, v5, 3, v4
        v_add_u32 v4, s28, v4
        v_bfe_u32 v5, v2, 9, 2
        v_and_b32 v6, 1, v5
        v_lshrrev_b32 v7, 1, v5
        v_xor_b32 v6, v6, v7
        v_sub_u32 v7, 0, v4
        v_cmp_eq_u32 s[62:63], 1, v6
        v_and_b32 v2, 15, v2
        v_lshlrev_b32 v2, 7, v2
        v_cndmask_b32 v4, v4, v7, s[62:63]
        v_lshlrev_b32 v6, 11, v5
        v_cmp_le_u32 s[62:63], 2, v5
        v_mov_b32 v7, 1024
        s_nop 0
        v_cndmask_b32 v6, v6, v7, s[62:63]
        v_add_u32 v4, v4, v6
        v_lshl_add_u32 v2, v4, 11, v2
        v_cndmask_b32 v35, v3, v2, vcc
        """)
        a("buffer_load_dword v127, v35, s[4:7], 0 offen")
    a(f"""
    v_lshlrev_b32 v2, 7, v1
    v_cmp_gt_u32 vcc, 32, v1
    s_mul_i32 s84, s66, 28
    s_add_u32 s84, s84, s86
    s_lshl_b32 s84, s84, 12
    v_cndmask_b32 v27, v3, v2, vcc
    s_mov_b32 s85, {224*4096}
    s_mov_b32 s87, 0
    s_mov_b32 s75, 0
    v_mov_b32 v26, v3
    v_mov_b32 v42, v3
    L_t_done:
    """)
    stamp(a, 19)
    a("buffer_load_dword v127, v42, s[80:83], s84 offen\n s_add_u32 s84, s84, s75")
    stamp(a, 20)
    a(f"""
    s_cmp_lt_u32 s66, 4
    s_cselect_b32 s36, s56, s58
    s_cselect_b32 s37, s57, s59
    s_cmp_eq_u32 s3, 2
    s_cselect_b32 s36, s52, s36
    s_cselect_b32 s37, s53, s37
    s_cmp_eq_u32 s3, 3
    s_cselect_b32 s36, s54, s36
    s_cselect_b32 s37, s55, s37
    s_and_b32 s37, s37, 0xffff
    s_mov_b32 s39, 0x20000
    s_and_b32 s28, s66, 3
    s_lshl_b32 s26, s28, 18
    s_lshl_b32 s28, s28, 8
    s_lshr_b32 s27, s66, 2
    s_add_u32 s28, s28, s27
    s_lshl_b32 s28, s28, 12
    s_cmp_eq_u32 s3, 1
    s_cselect_b32 s28, s26, s28
    s_cselect_b32 s26, 11, 13
    s_cselect_b32 s38, {1024*1024*2}, s82
    s_mul_i32 s27, s86, 37
    v_add_u32 v2, s27, v1
    v_lshrrev_b32 v4, 3, v2
    v_lshlrev_b32 v4, s26, v4
    v_and_b32 v2, 7, v2
    v_lshl_add_u32 v2, v2, 7, v4
    s_cmp_eq_u32 s3, 0
    s_cselect_b32 s27, 0, 37
    v_cmp_gt_u32 vcc, s27, v1
    v_mov_b32 v3, {OOB}
    s_nop 0
    v_cndmask_b32 v2, v3, v2, vcc
    v_add_u32 v34, s28, v2
    s_cmp_lg_u32 s3, 1
    s_cbranch_scc1 L_t_nm
    buffer_load_dword v127, v34, s[36:39], 0 offen
    v_mov_b32 v34, v3
    L_t_nm:
    """)
    a("s_lshl_b32 s29, s24, 19\n s_lshl_b32 s26, s3, 16\n s_add_u32 s29, s29, s26")
    sh_voff(a, 8, 11, 29)
    a("""
    v_lshrrev_b32 v2, 4, v1
    s_and_b32 s26, s3, 1
    s_lshl_b32 s26, s26, 4
    v_add_u32 v3, s26, v2
    s_mov_b32 s27, 7168
    v_mul_lo_u32 v3, v3, s27
    s_lshl_b32 s26, s25, 8
    v_add_u32 v3, s26, v3
    v_lshlrev_b32 v2, 1, v2
    v_and_b32 v4, 15, v1
    v_xor_b32 v2, v2, v4
    v_lshl_add_u32 v12, v2, 4, v3
    v_xor_b32 v2, 8, v2
    v_lshl_add_u32 v14, v2, 4, v3
    """)
    a(f"v_add_u32 v13, {1*(4*7168-1024)}, v12\n v_add_u32 v15, {3*(4*7168-1024)}, v14\n v_add_u32 v14, {2*(4*7168-1024)}, v14")
    a(f"s_mov_b32 s16, 0\n s_mov_b32 s22, 65536\n s_mov_b32 s17, 0\n s_lshl_b32 s21, s3, 12\n s_add_u32 s21, s21, {WB}\n s_lshl_b32 s23, s3, 13")
    def dma_x(h): return [f"buffer_load_dwordx4 v{8+i}, s[4:7], s{(16, 22)[h]} offen offset:{i*1024} lds" for i in range(4)]
    def dma_w(): return [f"buffer_load_dwordx4 v{12+i}, s[8:11], s17 offen offset:{i*1024} lds" for i in range(4)]
    def px(s):
        a(f"s_add_u32 m0, s23, {s*XS}\n s_nop 0")
        for x in dma_x(0): a(x)
        a(f"s_add_u32 m0, s23, {s*XS+4096}\n s_add_u32 s16, s16, 128")
        for x in dma_x(1): a(x)
        a("s_add_u32 s22, s22, 128")
    def pw(s):
        a(f"s_add_u32 m0, s21, {s*WSL}\n s_nop 0")
        for x in dma_w(): a(x)
        a(f"s_add_u32 s17, s17, {32*7168}")
    if opt.tlb:
        a("v_lshlrev_b32 v40, 21, v1\n v_add_u32 v40, 0x100000, v40")
    a(f"""
    s_lshr_b32 s26, s3, 1
    s_lshl_b32 s26, s26, 7
    v_and_b32 v2, 15, v1
    v_lshrrev_b32 v5, 1, v2
    v_add_u32 v2, s26, v2
    v_lshlrev_b32 v2, 7, v2
    v_lshrrev_b32 v3, 4, v1
    v_xor_b32 v5, v3, v5
    v_lshl_add_u32 v16, v5, 4, v2
    v_xor_b32 v5, 4, v5
    v_lshl_add_u32 v33, v5, 4, v2
    v_lshrrev_b32 v4, 2, v1
    v_and_b32 v4, 3, v4
    v_lshl_add_u32 v5, v3, 3, v4
    v_lshlrev_b32 v5, 8, v5
    v_add_u32 v5, {WB}, v5
    v_and_b32 v6, 3, v1
    v_lshl_add_u32 v5, v6, 3, v5
    v_and_b32 v6, 1, v3
    v_lshl_or_b32 v6, v6, 2, v4
    s_and_b32 s26, s3, 1
    s_lshl_b32 s26, s26, 2
    v_xor_b32 v6, s26, v6
    """)
    for mb in range(4):
        a(f"v_xor_b32 v7, {mb}, v6\n v_lshl_add_u32 v{17+mb}, v7, 5, v5")
    for i in range(5): a(f"v_mov_b32 v{21+i}, v{16+i}")
    def reads(st):
        def wr(mat, mb):
            b = FR(st, mat*4+mb)
            return [f"ds_read_b64_tr_b16 a[{b}:{b+1}], v{22+mb} offset:{mat*8192}",
                    f"ds_read_b64_tr_b16 a[{b+2}:{b+3}], v{22+mb} offset:{mat*8192+1024}"]
        def xr(nb):
            b = FR(st, 8+nb)
            return [f"ds_read_b128 a[{b}:{b+3}], v21 offset:{nb*2048}"]
        r = []
        for i in range(8): r += wr(i & 1, i >> 1) + xr(i)
        return r
    def mf(st):
        m = []
        od = [(nb if (mb*2+mat) % 2 == 0 else 7-nb, mb, mat) for mb in range(4) for mat in range(2) for nb in range(8)]
        for nb, mb, mat in od:
            c = f"v[{ACCG(mb,nb)}:{ACCG(mb,nb)+3}]" if mat == 0 else f"a[{ACCU(mb,nb)}:{ACCU(mb,nb)+3}]"
            fa = FR(st, mat*4+mb); fb_ = FR(st, 8+nb)
            m.append(f"{MF} {c}, a[{fa}:{fa+3}], a[{fb_}:{fb_+3}], {c}")
        return m
    for i in range(4): a(f"v_mov_b32 v{36+i}, 0")
    a("s_nop 1")
    for i in range(8): a(f"v_mfma_f32_32x32x16_bf16 v[{128+16*i}:{143+16*i}], v[36:39], v[36:39], 0\n v_mfma_f32_32x32x16_bf16 a[{16*i}:{15+16*i}], v[36:39], v[36:39], 0")
    stamp(a, 21)
    pw(0); px(0); pw(1)
    stamp(a, 22)
    stamp(a, 1)
    a(f"s_waitcnt vmcnt(4) lgkmcnt(0)\n s_barrier")
    for x in reads(0): a(x)
    nonce(a)
    a(f"s_mov_b32 s19, 0\n s_mov_b32 s20, {XS}\n s_mov_b32 s18, 0\n s_mov_b32 s28, {WSL}\n s_mov_b32 s29, 0")
    a("v_mov_b32 v21, v33")
    for i in range(4): a(f"v_add_u32 v{22+i}, s28, v{17+i}")
    a(f"s_mov_b32 s72, {32*7168}\n s_mov_b32 s73, 128")
    stamp(a, 2)
    for st in (2, 0, 1):
        peel = st == 2
        if peel: st = 0
        if not peel and st == 0: a(".p2align 6\nL_g1_loop:")
        if st == 1: a("L_g1_mid:")
        f = {-1: ["s_waitcnt lgkmcnt(0)"]}
        if opt.trace: f[-1] = trace_ops("s18")
        f[0] = [f"s_waitcnt vmcnt({0 if peel else (24, 12)[st]})", "s_barrier"]
        if peel:
            A = Asm(); save = a
            def cap(fn, *args):
                n0 = len(a.l); fn(*args); out = [x.strip() for x in a.l[n0:]]; del a.l[n0:]; return out
            T2 = ["buffer_load_dword v127, v26, s[80:83], s84 offen", "s_add_u32 s84, s84, s87"]
            ops = T2 + cap(pw, 2) + cap(px, 1) + cap(pw, 3) + T2 + ["buffer_load_dword v127, v40, s[80:83], 0 offen"] + cap(px, 2)
            g = 2
            for x in ops:
                if x == 's_nop 0': continue
                f.setdefault(g-1 if 'm0' in x else g, []).append(x)
                if x.startswith('buffer'): g += 2
            assert g <= 63, g
            f.setdefault(63, []).append("s_branch L_g1_mid")
        rd = reads(st ^ 1)
        for i, x in enumerate(rd): f.setdefault(1 + 2*i, []).append(x)
        f.setdefault(2, []).append(f"s_add_u32 s28, s28, {WSL}")
        f.setdefault(4, []).append(f"s_and_b32 s28, s28, {4*WSL-1}")
        f.setdefault(6, []).append("s_add_u32 s18, s18, 1")
        for i in range(4): f.setdefault(50+2*i, []).append(f"v_add_u32 v{22+i}, s28, v{17+i}")
        if st == 0:
            f.setdefault(58, []).append("v_add_u32 v21, s20, v16")
        else:
            f.setdefault(58, []).append("v_add_u32 v21, s19, v33")
            dq = dma_w() + dma_w() + dma_x(0) + dma_x(1)
            dp = opt.dp if hasattr(opt, 'dp') else [2 + 4*i - (i > 11)*(i-11) for i in range(16)]
            f[0].append("s_add_u32 m0, s21, s29")
            for i, x in enumerate(dq): f.setdefault(dp[i], []).append(x)
            f[dp[3]] += [f"s_add_u32 m0, m0, {WSL}", "s_add_u32 s17, s17, s72"]
            f[dp[7]] += ["s_add_u32 m0, s23, s19", "s_add_u32 s17, s17, s72"]
            f[dp[8]] += [f"s_xor_b32 s29, s29, {2*WSL}"]
            f[dp[9]] += ["s_mov_b32 s19, s20"]
            f[dp[10]] += [f"s_add_u32 s20, s20, {XS}", f"s_cmp_eq_u32 s20, {3*XS}"]
            f[dp[11]] += ["s_cselect_b32 s20, 0, s20", "s_add_u32 m0, m0, 4096"]
            f[dp[12]] += ["s_add_u32 s16, s16, s73"]
            f[dp[15]] += ["s_cmp_ge_u32 s18, 26", "s_cbranch_scc1 L_g1_sw", "L_g1_swd:", "s_add_u32 s22, s16, 65536"]
            f.setdefault(62, []).extend([f"buffer_load_dword v127, v27, s[80:83], s84 offen {opt.tflags}", "s_add_u32 s84, s84, s85"])
            f[62] += ["s_cmp_lg_u32 s18, 4", "s_cbranch_scc1 L_g1_noseq", "buffer_load_dword v127, v34, s[36:39], 0 offen", "L_g1_noseq:"]
            f.setdefault(63, []).extend(["s_cmp_lt_u32 s18, 32", "s_cbranch_scc1 L_g1_loop"])
        interleave(a, mf(st), f)
    a("s_branch L_g1_done")
    a("L_g1_sw:\n s_cmp_eq_u32 s18, 26\n s_cbranch_scc0 L_g1_sw2")
    srd(a, 4, 88, 3584*1024*2)
    g2_voff(a, 8, 6)
    a(f"s_mov_b32 s16, {256*2048}\n s_mov_b32 s73, {256*2048}\n s_branch L_g1_swd")
    a("L_g1_sw2:\n s_cmp_eq_u32 s18, 28\n s_cbranch_scc0 L_g1_sw3")
    srd(a, 8, 88, 3584*1024*2)
    g2_voff(a, 12, 5)
    a(f"s_mov_b32 s17, {768*2048}\n s_mov_b32 s72, {128*2048}\n s_branch L_g1_swd")
    a(f"L_g1_sw3:\n s_mov_b32 s16, 0\n s_mov_b32 s17, {OOB}\n s_branch L_g1_swd")
    a("L_g1_done:")
    stamp(a, 3)
    a(f"""
    s_lshl_b32 s30, s24, 3
    s_lshr_b32 s31, s3, 1
    s_lshl_b32 s31, s31, 2
    s_add_u32 s30, s30, s31
    s_lshl_b32 s23, s30, 7
    s_lshl_b32 s30, s30, 7
    s_lshl_b32 s31, s25, 2
    s_add_u32 s30, s30, s31
    s_and_b32 s31, s3, 1
    s_lshl_b32 s31, s31, 1
    s_add_u32 s30, s30, s31
    s_lshl_b32 s30, s30, 11
    s_lshl_b32 s31, s25, 1
    s_and_b32 s26, s3, 1
    s_add_u32 s31, s31, s26
    s_lshl_b32 s31, s31, 3
    s_add_u32 s23, s23, s31
    s_add_u32 s23, s23, {WS_FL+4096}
    s_waitcnt lgkmcnt(0)
    s_nop 7
    """)
    c0 = -2*math.sqrt(2/math.pi)*math.log2(math.e); c1 = c0*0.044715
    a(f"s_mov_b32 s26, {fbits(c0)}\n s_mov_b32 s28, {fbits(c1)}\n s_mov_b32 s29, {fbits(c1)}")
    a("v_mov_b32 v24, s26\n v_mov_b32 v25, s26\n v_lshlrev_b32 v26, 4, v1")
    T = 32
    for nb in range(8):
        g0 = ACCG(0, nb); u0 = ACCU(0, nb)
        t = T + (nb % 2)*48
        U = t; Z = t+16; O = t+32
        for i in range(16): a(f"v_accvgpr_read_b32 v{U+i}, a{u0+i}")
        for i in range(0, 16, 2): a(f"v_pk_mul_f32 v[{Z+i}:{Z+i+1}], v[{g0+i}:{g0+i+1}], v[{g0+i}:{g0+i+1}]")
        for i in range(0, 16, 2): a(f"v_pk_fma_f32 v[{Z+i}:{Z+i+1}], v[{Z+i}:{Z+i+1}], s[28:29], v[24:25]")
        for i in range(0, 16, 2): a(f"v_pk_mul_f32 v[{Z+i}:{Z+i+1}], v[{Z+i}:{Z+i+1}], v[{g0+i}:{g0+i+1}]")
        for i in range(16): a(f"v_exp_f32 v{Z+i}, v{Z+i}")
        for i in range(0, 16, 2): a(f"v_pk_mul_f32 v[{U+i}:{U+i+1}], v[{U+i}:{U+i+1}], v[{g0+i}:{g0+i+1}]")
        for i in range(0, 16, 2): a(f"v_pk_add_f32 v[{Z+i}:{Z+i+1}], v[{Z+i}:{Z+i+1}], 1.0 op_sel_hi:[1,0]")
        for i in range(16): a(f"v_rcp_f32 v{Z+i}, v{Z+i}")
        a("s_nop 0")
        for i in range(0, 16, 2): a(f"v_pk_mul_f32 v[{U+i}:{U+i+1}], v[{U+i}:{U+i+1}], v[{Z+i}:{Z+i+1}]")
        for i in range(0, 16, 2): a(f"v_cvt_pk_bf16_f32 v{O+i//2}, v{U+i}, v{U+i+1}")
        for p in range(2):
            off = (((nb >> 1)*128 + p)*2 + (nb & 1))*1024
            a(f"s_add_u32 s31, s30, {off}")
            a(f"buffer_store_dwordx4 v[{O+4*p}:{O+4*p+3}], v26, s[12:15], s31 offen {opt.hflags}")
    stamp(a, 4)
    a("s_waitcnt vmcnt(0)")
    flag_store(a, 's23')

class VM:
    def __init__(s): s.ops = []
    def add(s, tag, n=1): s.ops += [tag]*n
    def wait(s, a, tag, extra=""):
        last = max(i for i, t in enumerate(s.ops) if t == tag)
        a(f"s_waitcnt vmcnt({min(63, len(s.ops)-1-last)}) {extra}")
RAW = 64; GT = 192; EU = 208; SV = 216
def fold_loads(a, vm):
    a("""
    s_lshl_b32 s26, s66, 2
    s_add_u32 s26, s26, s67
    s_lshl_b32 s26, s26, 4
    v_lshrrev_b32 v40, 3, v1
    v_add_u32 v40, s26, v40
    v_cmp_eq_u32 s[62:63], 0, v40
    v_and_b32 v2, 7, v1
    v_cmp_eq_u32 s[70:71], 0, v2
    v_add_u32 v44, 8, v40
    v_lshlrev_b32 v2, 4, v2
    s_lshl_b32 s26, s3, 8
    v_add_u32 v2, s26, v2
    v_sub_u32 v3, 1904, v2
    v_sub_u32 v41, 2048, v40
    v_sub_u32 v42, 1024, v40
    v_add_u32 v43, 1024, v40
    v_sub_u32 v45, 2048, v44
    v_sub_u32 v46, 1024, v44
    v_add_u32 v47, 1024, v44
    v_mov_b32 v4, 512
    v_mov_b32 v5, 1536
    v_cndmask_b32 v41, v41, v4, s[62:63]
    v_cndmask_b32 v43, v43, v5, s[62:63]
    s_sub_u32 s74, 2048, s26
    """)
    for k in range(8): a(f"v_lshl_add_u32 v{224+8*(k>>2)+(k&3)}, v{40+k}, 11, v2\n v_lshl_add_u32 v{228+8*(k>>2)+(k&3)}, v{40+k}, 11, v3")
    for gi in range(2):
        a(f"buffer_load_dwordx4 v[{GT+8*gi}:{GT+8*gi+3}], v2, s[32:35], 0 offen offset:{gi*128}")
        a(f"buffer_load_dwordx4 v[{GT+8*gi+4}:{GT+8*gi+7}], v3, s[32:35], 0 offen offset:{(1-gi)*128}")
        vm.add('g', 2)
def fold_round_loads(a, vm, rnd):
    if True:
        hf, gi = rnd >> 1, rnd & 1
        b = RAW + 32*rnd
        for i in range(4):
            a(f"buffer_load_dwordx4 v[{b+8*i}:{b+8*i+3}], v{224+8*hf+i}, s[4:7], 0 offen offset:{gi*128}")
            a(f"buffer_load_dwordx4 v[{b+8*i+4}:{b+8*i+7}], v{228+8*hf+i}, s[4:7], 0 offen offset:{(1-gi)*128}")
        if gi == 0:
            for i in range(4):
                a(f"v_lshlrev_b32 v4, 11, v{40+4*hf+i}\n buffer_load_ushort v{EU+4*hf+i}, v4, s[4:7], s74 offen")
            vm.add(f'r{rnd}', 12)
        else: vm.add(f'r{rnd}', 8)
def fold_compute(a, vm, between):
    LP = 8; UU = 16
    a(f"v_mov_b32 v24, {ALT}")
    for r in range(8, 24): a(f"v_mov_b32 v{r}, 0")
    a(f"""
    s_lshl_b32 s26, s66, 2
    s_add_u32 s26, s26, s67
    s_lshr_b32 s27, s26, 2
    s_lshl_b32 s27, s27, 16
    s_and_b32 s26, s26, 3
    s_lshl_b32 s26, s26, 10
    s_add_u32 s26, s26, s27
    s_lshl_b32 s27, s3, 14
    s_add_u32 s26, s26, s27
    s_add_u32 s22, s26, {WS_Z}
    v_bfe_u32 v2, v1, 2, 1
    v_lshlrev_b32 v25, 12, v2
    v_and_b32 v2, 3, v1
    v_lshl_add_u32 v25, v2, 8, v25
    v_lshrrev_b32 v2, 3, v1
    v_lshl_add_u32 v25, v2, 4, v25
    s_cmp_eq_u32 s3, 0
    s_cselect_b64 s[72:73], s[70:71], 0
    """)
    T = 240
    for rnd in range(4):
        hf, gi = rnd >> 1, rnd & 1
        b = RAW + 32*rnd; g = GT + 8*gi
        S = [224, RAW+96 if rnd < 2 else RAW+8, 48, 56]
        vm.wait(a, f'r{rnd}')
        if rnd in (0, 1): stamp(a, 19+2*rnd)
        for j in range(4):
            for i in range(4):
                a(f"v_dot2_f32_bf16 v{LP+4*hf+i}, v{b+8*i+j}, v{g+j}, v{LP+4*hf+i}")
            for i in range(4):
                a(f"v_dot2_f32_bf16 v{LP+4*hf+i}, v{b+8*i+4+j}, v{g+4+j}, v{LP+4*hf+i}")
        if hf == 0:
            for i in (1, 3):
                for j in range(8): a(f"v_cndmask_b32 v{b+8*i+j}, v{b+8*i+j}, 0, s[62:63]")
                if gi == 0: a(f"v_cndmask_b32 v{EU+i}, v{EU+i}, 0, s[62:63]")
        if gi == 0:
            for i in range(4): a(f"v_cndmask_b32 v{EU+4*hf+i}, v{EU+4*hf+i}, 0, s[72:73]")
            for i in range(4): a(f"v_mov_b32 v{SV+i}, v{b+8*i+4}")
        else:
            for i in range(4): a(f"v_mov_b32_dpp v{EU+4*hf+i}, v{SV+i} row_shl:7 row_mask:0xf bank_mask:0xf")
            for i in range(4): a(f"v_lshlrev_b32 v{2+i}, 16, v{b+8*i+4}")
            a(f"v_add_f32 v2, v2, v3\n v_add_f32 v4, v4, v5\n v_add_f32 v{26+2*hf}, v2, v4\n v_sub_f32 v{27+2*hf}, v2, v4")
        for i in range(4): a(f"v_mov_b32_dpp v{SV+4+i}, v{b+8*i+4} row_shr:1 row_mask:0xf bank_mask:0xf")
        for i in range(4): a(f"v_cndmask_b32 v{SV+4+i}, v{SV+4+i}, v{EU+4*hf+i}, s[70:71]")
        for i in range(4):
            for j in range(8): a(unp(T+j, b+8*i, j))
            a(f"v_lshlrev_b32 v{T+8}, 16, v{SV+4+i}")
            for j in range(1, 8): a(unp(T+8+j, b+8*i+4, 8-j))
            for j in range(0, 8, 2):
                a(pk('', S[i]+j, T+j, T+8+j))
                a(pk('', b+8*i+j, T+j, T+8+j, neg=True))
        for j in range(0, 8, 2):
            a(pk('', S[0]+j, S[0]+j, S[1]+j)); a(pk('', S[2]+j, S[2]+j, S[3]+j))
            a(pk('', b+j, b+j, b+8+j, neg=True)); a(pk('', b+16+j, b+16+j, b+24+j, neg=True))
        for j in range(0, 8, 2):
            a(pk('', S[1]+j, S[0]+j, S[2]+j)); a(pk('', S[3]+j, S[0]+j, S[2]+j, neg=True))
            a(pk('', b+8+j, b+j, b+16+j, neg=True)); a(pk('', b+24+j, b+j, b+16+j))
        for j in range(0, 8, 2):
            a(pk('', UU+4*hf, UU+4*hf, S[1]+j)); a(pk('', UU+4*hf+2, UU+4*hf+2, S[3]+j))
        for cls, src in enumerate((S[1], S[3], b+8, b+24)):
            o = b + 4*(cls & 1) + 16*(cls >> 1)
            for j in range(4): a(f"v_cvt_pk_bf16_f32 v{o+j}, v{src+2*j}, v{src+2*j+1}")
            a(f"s_add_u32 s26, s22, {cls*524288 + gi*8192 + hf*128}")
            a(f"buffer_store_dwordx4 v[{o}:{o+3}], v25, s[12:15], s26 offen sc1")
            vm.add('st')
        if rnd in (0, 1): stamp(a, 20+2*rnd)
        between(rnd)
    a("""
    s_cmp_eq_u32 s3, 3
    s_cselect_b32 s26, 0x80808080, 0
    s_mov_b32 s27, s26
    v_sub_f32 v16, v16, v17
    v_sub_f32 v17, v18, v19
    v_sub_f32 v18, v20, v21
    v_sub_f32 v19, v22, v23
    """)
    for k in range(4): a(f"v_cndmask_b32 v{20+k}, 0, v{26+k}, s[26:27]")
    for k in range(4): a(f"v_add_f32 v{16+k}, v{16+k}, v{20+k}")
    a("s_nop 0")
    for ctl in ("quad_perm:[1,0,3,2]", "quad_perm:[2,3,0,1]", "row_half_mirror"):
        for r in range(8, 20): a(f"v_add_f32_dpp v{r}, v{r}, v{r} {ctl} row_mask:0xf bank_mask:0xf")
    a(f"""
    s_lshl_b32 s26, s3, 2
    s_lshl_b32 s27, s3, 11
    s_add_u32 s27, s27, {WS_UP}
    s_mov_b32 s28, {WS_CV}
    s_add_u32 s29, s27, 8192
    """)
    for k in range(8): a(f"v_lshl_add_u32 v{68+k}, v{40+k}, 4, s26")
    a(f"v_lshlrev_b32 v76, 2, v40\n s_mov_b32 s26, {WS_LP}\n s_mov_b64 exec, s[70:71]")
    for k in range(8): a(f"buffer_store_dword v{8+k}, v{68+k}, s[12:15], s26 offen sc1")
    for hf in range(2):
        a(f"buffer_store_dword v{16+2*hf}, v76, s[12:15], s27 offen offset:{32*hf} sc1\n buffer_store_dword v{17+2*hf}, v76, s[12:15], s29 offen offset:{32*hf} sc1")
    a(f"""
    s_mov_b64 exec, -1
    s_cmp_lg_u32 s3, 3
    s_cbranch_scc1 L_fc2
    s_mov_b32 exec_lo, 0x80808080
    s_mov_b32 exec_hi, 0x80808080
    buffer_store_dword v26, v76, s[12:15], s28 offen sc1
    buffer_store_dword v27, v76, s[12:15], s28 offen offset:2048 sc1
    buffer_store_dword v28, v76, s[12:15], s28 offen offset:32 sc1
    buffer_store_dword v29, v76, s[12:15], s28 offen offset:2080 sc1
    s_mov_b64 exec, -1
    L_fc2:
    """)

def sh_voff(a, vb, rs_shift, srow):
    a(f"""
    v_lshrrev_b32 v2, 3, v1
    s_lshl_b32 s26, s3, 5
    v_add_u32 v2, s26, v2
    v_lshlrev_b32 v2, {rs_shift}, v2
    v_add_u32 v2, s{srow}, v2
    v_lshrrev_b32 v3, 4, v1
    v_and_b32 v4, 7, v1
    v_xor_b32 v3, v3, v4
    v_lshl_add_u32 v{vb}, v3, 4, v2
    v_xor_b32 v3, 4, v3
    v_lshl_add_u32 v{vb+1}, v3, 4, v2
    v_add_u32 v{vb+2}, {2*((8<<rs_shift)-1024)}, v{vb}
    v_add_u32 v{vb+3}, {3*((8<<rs_shift)-1024)}, v{vb+1}
    v_add_u32 v{vb+1}, {((8<<rs_shift)-1024)}, v{vb+1}
    """)
def sh_touch(a, sr, rs_shift, srow):
    a(f"""
    s_lshl_b32 s26, s67, 5
    s_lshl_b32 s27, s3, 3
    s_add_u32 s26, s26, s27
    v_lshrrev_b32 v2, 3, v1
    v_add_u32 v2, s26, v2
    v_lshlrev_b32 v2, {rs_shift}, v2
    v_and_b32 v3, 7, v1
    v_lshl_add_u32 v2, v3, 7, v2
    buffer_load_dword a255, v2, s[{sr}:{sr+3}], s{srow} offen
    """)
def sh_dma(vb, sr): return [f"buffer_load_dwordx4 v{vb+i}, s[{sr}:{sr+3}], s17 offen offset:{i*1024} lds" for i in range(4)]

def dloop(a, name, nm, accb, dma, extra=False, first=True, init=None, D=8, inc=128):
    PB = 128; SF = 64
    def pl(i, off): return f"buffer_load_dwordx4 v[{PB+4*i}:{PB+4*i+3}], v12, s[32:35], s16 offen offset:{off} sc1"
    def sreads(st, ks): return [f"ds_read_b128 v[{SF+st*32+4*nb}:{SF+st*32+4*nb+3}], v{18+ks} offset:{nb*2048}" for nb in range(8)]
    if first:
        a("s_mov_b32 s16, 0")
        for t in range(D):
            for i in range(nm): a(pl(t*nm+i, i*1024))
            a(f"s_add_u32 s16, s16, {nm*1024}")
        a("v_mov_b32 v18, v16\n v_mov_b32 v19, v17")
        for x in sreads(0, 0): a(x)
        a(f"s_mov_b32 s19, 0\n s_mov_b32 s20, {SLOT3}\n s_waitcnt vmcnt({D*nm})")
        init()
    a(f"s_mov_b32 s18, 0\n s_mov_b32 s17, 0")
    a(f".p2align 6\nL_{name}_loop:")
    NM = 8*nm
    for t in range(8):
        ks = t & 1
        ms = []
        for mb in range(nm):
            for nb in range(8):
                c = accb + (nb*nm+mb)*4; pa = PB + ((t % D)*nm+mb)*4; sb = SF + ks*32 + nb*4
                ms.append(f"{MF} a[{c}:{c+3}], v[{pa}:{pa+3}], v[{sb}:{sb+3}], a[{c}:{c+3}]")
        f = {-1: [f"s_waitcnt vmcnt({(D-1)*nm}) lgkmcnt(0)"]}
        if extra:
            L = f"L_{name}_x{t}"
            f[-1] += ["s_cmp_eq_u32 s31, 0", f"s_cbranch_scc1 {L}"] + \
                     [f"{MF} a[{128+4*mb}:{131+4*mb}], v[{PB+(t*nm+mb)*4}:{PB+(t*nm+mb)*4+3}], v[24:27], a[{128+4*mb}:{131+4*mb}]" for mb in range(nm)] + [f"{L}:"]
        if ks == 1:
            f[0] = ["s_barrier", "v_add_u32 v18, s20, v16"]
            rd = sreads(0, 0)
        else:
            rd = sreads(1, 1)
        sp = NM // 16
        for k, x in enumerate(rd): f.setdefault(1+sp*k, []).append(x)
        for mb in range(nm): f.setdefault(8*mb+7, []).append(pl((t % D)*nm+mb, mb*1024))
        f[NM-1].append(f"s_add_u32 s16, s16, {nm*1024}")
        if ks == 1:
            if dma:
                f.setdefault(1, []).append("s_add_u32 m0, s21, s19")
                for k, x in enumerate(sh_dma(*dma)): f.setdefault(2+(NM//5)*k, []).append(x)
                f.setdefault(NM-3, []).append(f"s_add_u32 s17, s17, {inc}")
            f.setdefault(NM//2+1, []).append("v_add_u32 v19, s20, v17")
            f.setdefault(NM-3, []).extend(["s_mov_b32 s19, s20", f"s_add_u32 s20, s20, {SLOT3}"])
            f.setdefault(NM-2, []).append(f"s_and_b32 s20, s20, {R3*SLOT3-1}")
        interleave(a, ms, f)
    a(f"s_add_u32 s18, s18, 1\n s_cmp_lt_u32 s18, 2\n s_cbranch_scc1 L_{name}_loop")

def tile_vec(a, vec):
    a("""
    s_lshl_b32 s26, s67, 5
    s_lshl_b32 s27, s3, 3
    s_add_u32 s26, s26, s27
    s_lshl_b32 s27, s26, 7
    v_lshrrev_b32 v2, 3, v1
    v_lshlrev_b32 v2, 14, v2
    v_add_u32 v2, s27, v2
    s_lshr_b32 s26, s26, 1
    v_and_b32 v3, 7, v1
    v_xor_b32 v3, s26, v3
    v_and_b32 v3, 7, v3
    """)
    for i in range(8):
        a(f"v_xor_b32 v4, {i>>1}, v3\n v_lshl_add_u32 v4, v4, 4, v2\n ds_read_b128 v[{96+4*i}:{99+4*i}], v4 offset:{i*128}")
    for i in range(8): a(f"v_mov_b32 v{40+i}, 0")
    a("s_waitcnt lgkmcnt(0)")
    for j in range(4):
        for i in range(8): a(f"v_dot2_f32_bf16 v{40+i}, v{96+4*i+j}, v{vec+j}, v{40+i}")
    a("s_nop 2")
    reduce_lanes(a, list(range(40, 48)), 48, ['ror1', 'ror2', 'ror4', 'ror8', 'p16', 'p32'])
    for i in range(1, 8): a(f"v_cmp_eq_u32 vcc, {i}, v1\n s_nop 1\n v_cndmask_b32 v40, v40, v{40+i}, vcc")

def acc_load(a, nm, vb, svec, wshift, off=0):
    a(f"v_lshrrev_b32 v2, 4, v1\n v_lshlrev_b32 v2, 4, v2\n s_lshl_b32 s26, s3, {wshift}\n v_add_u32 v2, s26, v2")
    for mb in range(nm): a(f"buffer_load_dwordx4 v[{vb+4*mb}:{vb+3+4*mb}], v2, s[12:15], s{svec} offen offset:{off+mb*64} sc1")
def acc_init(a, nm, vb, accb, sscale, withx=False):
    a(f"v_lshlrev_b32 v3, 31, v1")
    for i in range(4*nm): a(f"v_mul_f32 v{vb+i}, s{sscale}, v{vb+i}")
    if withx:
        for i in range(4*nm): a(f"v_accvgpr_write_b32 a{128+i}, v{vb+i}")
    for i in range(4*nm): a(f"v_xor_b32 v{vb+i}, v3, v{vb+i}")
    for nb in range(8):
        for i in range(4*nm): a(f"v_accvgpr_write_b32 a{accb+nb*4*nm+i}, v{vb+i}")

def dft(a):
    vm = VM()
    srd(a, 32, 60, 2048)
    a("""
    v_lshlrev_b32 v2, 4, v1
    v_sub_u32 v3, 2032, v2
    s_mov_b32 s26, 0x100000
    s_mov_b32 s27, 0x300000
    buffer_load_dwordx4 v[128:131], v2, s[4:7], s26 offen
    buffer_load_dwordx4 v[132:135], v3, s[4:7], s26 offen
    buffer_load_dwordx4 v[140:143], v2, s[4:7], s27 offen
    buffer_load_dwordx4 v[144:147], v3, s[4:7], s27 offen
    """); vm.add('z', 4)
    fold_loads(a, vm)
    fold_round_loads(a, vm, 0); fold_round_loads(a, vm, 1)
    a("s_lshr_b32 s30, s66, 2\n s_cmp_eq_u32 s30, 0\n s_cselect_b32 s26, s56, s58\n s_cselect_b32 s27, s57, s59")
    srd(a, 8, 26, 1024*1024*2)
    a("s_and_b32 s25, s66, 3\n s_lshl_b32 s25, s25, 18\n s_lshl_b32 s21, s3, 12")
    sh_voff(a, 32, 11, 25)
    srd(a, 36, 52, 2048*2048*2)
    srd(a, 80, 54, 2048*2048*2)
    a("s_and_b32 s24, s66, 3\n s_lshl_b32 s24, s24, 8\n s_add_u32 s24, s24, s30\n s_lshl_b32 s24, s24, 12")
    a("s_waitcnt lgkmcnt(0)\n s_mov_b32 s17, 0")
    nonce(a)
    stamp(a, 9)
    vm.wait(a, 'z')
    a("v_mov_b32 v136, 0\n v_mov_b32 v148, 0\n s_cmp_eq_u32 s30, 0\n s_cselect_b32 s26, 1.0, -1.0")
    a("v_mov_b32_dpp v136, v132 wave_shr:1 row_mask:0xf bank_mask:0xf\n v_mov_b32_dpp v148, v144 wave_shr:1 row_mask:0xf bank_mask:0xf")
    for k, b in enumerate((128, 140)):
        for j in range(8): a(unp(160+16*k+j, b, j))
        a(f"v_lshlrev_b32 v{168+16*k}, 16, v{b+8}")
        for j in range(1, 8): a(unp(168+16*k+j, b+4, 8-j))
    for j in range(16): a(f"v_fma_f32 v{160+j}, v{176+j}, s26, v{160+j}")
    for j in range(8): a(f"v_fma_f32 v{160+j}, v{168+j}, s26, v{160+j}")
    for j in range(4): a(f"v_cvt_pk_bf16_f32 v{36+j}, v{160+2*j}, v{161+2*j}")
    a("v_lshlrev_b32 v2, 16, v132\n v_lshlrev_b32 v3, 16, v144\n v_add_f32 v2, v2, v3\n s_nop 0\n v_readlane_b32 s75, v2, 63\n s_cselect_b32 s75, s75, 0")
    a(pk('', 160, 160, 162)); a(pk('', 164, 164, 166)); a(pk('', 160, 160, 164)); a("v_sub_f32 v160, v160, v161")
    reduce_lanes(a, [160], 176, ['ror1', 'ror2', 'ror4', 'ror8', 'p16', 'p32'])
    a("v_add_f32 v160, s75, v160\n s_nop 0\n v_readfirstlane_b32 s97, v160")
    def between(rnd):
        if rnd < 2: fold_round_loads(a, vm, rnd+2)
        for s in ((0, 1, 2), (3, 4, 5), (6, 7), ())[rnd]:
            a(f"s_add_u32 m0, s21, {s*SLOT3}\n s_nop 0")
            for x in sh_dma(32, 8): a(x)
            a("s_add_u32 s17, s17, 128")
            vm.add('pf', 4)
    fold_compute(a, vm, between)
    stamp(a, 1)
    a("s_waitcnt vmcnt(16)\n s_barrier")
    tile_vec(a, 36)
    a(f"""
    v_lshlrev_b32 v2, 31, v1
    v_xor_b32 v2, s75, v2
    v_add_f32 v40, v40, v2
    s_lshl_b32 s26, s66, 7
    s_lshl_b32 s27, s67, 5
    s_add_u32 s26, s26, s27
    s_lshl_b32 s27, s3, 3
    s_add_u32 s26, s26, s27
    s_lshl_b32 s26, s26, 2
    s_add_u32 s26, s26, {WS_RV}
    v_lshlrev_b32 v2, 2, v1
    s_waitcnt vmcnt(0)
    s_barrier
    s_mov_b64 exec, 0xff
    buffer_store_dword v40, v2, s[12:15], s26 offen sc1
    s_mov_b64 exec, -1
    s_lshl_b32 s23, s66, 2
    s_add_u32 s23, s23, s67
    s_lshl_b32 s23, s23, 3
    s_add_u32 s23, s23, {WS_FL+1024}
    s_cmp_lg_u32 s3, 0
    s_cbranch_scc1 L_s1p
    """)
    flag_store(a, 's23')
    a("L_s1p:")
    stamp(a, 10)
    sh_voff(a, 20, 13, 24)
    a("v_lshlrev_b32 v12, 4, v1")
    a("""
    v_and_b32 v2, 15, v1
    v_lshrrev_b32 v3, 1, v2
    v_lshrrev_b32 v4, 4, v1
    v_xor_b32 v3, v3, v4
    v_lshlrev_b32 v2, 7, v2
    v_lshl_add_u32 v16, v3, 4, v2
    v_xor_b32 v3, 4, v3
    v_lshl_add_u32 v17, v3, 4, v2
    """)
    a(f"""
    s_lshl_b32 s26, s30, 1
    s_lshr_b32 s27, s67, 1
    s_add_u32 s26, s26, s27
    s_lshl_b32 s26, s26, 3
    s_and_b32 s27, s67, 1
    s_lshl_b32 s27, s27, 2
    s_add_u32 s26, s26, s27
    s_add_u32 s26, s26, s3
    s_lshl_b32 s26, s26, 16
    s_add_u32 s22, s26, {WS_Z}
    """)
    srd_ws(a, 32, 22, 65536)
    a(f"s_and_b32 s23, s67, 1\n s_lshl_b32 s23, s23, 2\n s_add_u32 s23, s23, s3\n s_lshl_b32 s23, s23, 5\n s_add_u32 s23, s23, {WS_FL+1024}")
    poll(a, [('s23', '0xf')])
    stamp(a, 2)
    a(f"s_lshl_b32 s22, s67, 10\n s_add_u32 s22, s22, {WS_CV}\n s_cmp_eq_u32 s30, 0\n s_cselect_b32 s23, 1.0, 0")
    acc_load(a, 4, 32, 22, 8)
    dloop(a, 'd1', 4, 0, (20, 36), D=4, init=lambda: (acc_init(a, 4, 32, 0, 23), stamp(a, 11)))
    a("s_lshl_b32 s22, s30, 13\n" + f"s_add_u32 s22, s22, {WS_UP}\n v_lshlrev_b32 v2, 5, v1\n s_add_u32 s23, s22, 4096")
    a(f"s_waitcnt lgkmcnt(0)\n s_mov_b32 s31, {WS_FL+1024}")
    poll(a, [('s31', '0xffffffff')])
    a("v_lshlrev_b32 v2, 5, v1")
    stamp(a, 3)
    for i in range(8): a(f"buffer_load_dwordx4 v[{128+4*i}:{131+4*i}], v2, s[12:15], s{22+(i>>2)} offen offset:{((i>>1)&1)*2048+(i&1)*16} sc1")
    a(f"""
    v_lshrrev_b32 v2, 4, v1
    v_and_b32 v3, 1, v2
    v_lshrrev_b32 v2, 1, v2
    v_lshl_add_u32 v2, v3, 1, v2
    v_and_b32 v3, 15, v1
    v_lshlrev_b32 v3, 4, v3
    v_lshl_add_u32 v14, v2, 8, v3
    s_lshr_b32 s26, s67, 1
    s_lshl_b32 s26, s26, 4
    s_and_b32 s27, s66, 3
    s_lshl_b32 s27, s27, 2
    s_add_u32 s26, s26, s27
    s_lshl_b32 s26, s26, 16
    s_lshl_b32 s27, s30, 15
    s_add_u32 s26, s26, s27
    s_and_b32 s27, s67, 1
    s_lshl_b32 s27, s27, 14
    s_add_u32 s26, s26, s27
    s_lshl_b32 s27, s3, 12
    s_add_u32 s26, s26, s27
    s_add_u32 s25, s26, {WS_AT}
    """)
    for nb in range(8):
        t = 32 + (nb & 1)*24
        for i in range(16): a(f"v_accvgpr_read_b32 v{t+i}, a{nb*16+i}")
        for i in range(8): a(f"v_cvt_pk_bf16_f32 v{t+16+i}, v{t+2*i}, v{t+2*i+1}")
        a("s_nop 1")
        for p in range(2):
            a(f"v_permlane16_swap_b32 v{t+16+4*p}, v{t+18+4*p}\n v_permlane16_swap_b32 v{t+17+4*p}, v{t+19+4*p}")
        for p in range(2):
            a(f"s_add_u32 s26, s25, {(nb >> 1)*65536 + p*2048 + (nb & 1)*1024}")
            a(f"buffer_store_dwordx4 v[{t+16+4*p}:{t+19+4*p}], v14, s[12:15], s26 offen sc1")
    a(f"s_and_b32 s26, s66, 3\n s_lshl_b32 s26, s26, 1\n s_add_u32 s26, s26, s30\n s_lshl_b32 s26, s26, 2\n s_add_u32 s26, s26, s67\n s_lshl_b32 s26, s26, 3\n s_add_u32 s23, s26, {WS_FL+1536}")
    stamp(a, 12)
    a("s_waitcnt vmcnt(16)\n s_barrier")
    for j in range(0, 8, 2): a(pk('', 128+j, 128+j, 136+j)); a(pk('', 144+j, 144+j, 152+j))
    for j in range(0, 8, 2): a(pk('', 128+j, 128+j, 144+j))
    for j in range(4): a(f"v_cvt_pk_bf16_f32 v{60+j}, v{128+2*j}, v{129+2*j}")
    tile_vec(a, 60)
    a(f"v_mov_b32 v41, 0\n v_mov_b32 v42, {ALT}")
    for j in range(4): a(f"v_dot2_f32_bf16 v41, v{60+j}, v42, v41")
    a("s_nop 2")
    reduce_lanes(a, [41], 48, ['ror1', 'ror2', 'ror4', 'ror8', 'p16', 'p32'])
    a(f"""
    v_cmp_eq_u32 vcc, 8, v1
    s_cmp_eq_u32 s30, 0
    s_cselect_b32 s26, 1.0, 0
    v_cndmask_b32 v40, v40, v41, vcc
    v_mov_b32 v160, s97
    v_mul_f32 v160, s26, v160
    v_lshlrev_b32 v2, 31, v1
    v_xor_b32 v2, v2, v160
    v_add_f32 v40, v40, v2
    v_cvt_pk_bf16_f32 v40, v40, v40
    s_and_b32 s26, s66, 3
    s_lshl_b32 s26, s26, 7
    s_lshl_b32 s27, s67, 5
    s_add_u32 s26, s26, s27
    s_lshl_b32 s27, s3, 3
    s_add_u32 s26, s26, s27
    v_add_u32 v3, s26, v1
    v_lshlrev_b32 v3, 1, v3
    v_add_u32 v3, s30, v3
    v_mov_b32 v4, 1024
    v_cndmask_b32 v3, v3, v4, vcc
    s_mov_b32 s26, {YS}
    v_mul_lo_u32 v3, v3, s26
    s_mov_b32 s26, {WS_Y + 1024}
    s_mov_b32 s27, {WS_Y + YD + 1024}
    s_cmp_eq_u32 s30, 0
    s_mov_b32 s28, 0xff
    s_cselect_b32 exec_lo, 0x1ff, s28
    s_mov_b32 exec_hi, 0
    v_mov_b32 v41, v3
    s_mov_b64 s[76:77], exec
    s_mov_b64 exec, -1
    """)
    publish(a, 's23')
    a("s_mov_b64 exec, s[76:77]\n buffer_store_dword v40, v41, s[12:15], s26 offen sc1\n buffer_store_dword v40, v41, s[12:15], s27 offen sc1\n s_mov_b64 exec, -1")
    stamp(a, 13)
    a(f"""
    s_lshl_b32 s26, s30, 4
    s_lshl_b32 s27, s67, 2
    s_add_u32 s26, s26, s27
    s_add_u32 s26, s26, s3
    s_lshl_b32 s26, s26, 16
    s_add_u32 s22, s26, {WS_AT}
    """)
    srd_ws(a, 32, 22, 65536)
    a(f"""
    s_lshl_b32 s23, s67, 6
    s_add_u32 s23, s23, {WS_FL+1536}
    s_cmp_eq_u32 s66, 0
    s_cselect_b32 s31, 1, 0
    v_mov_b32 v24, {ALT}
    v_mov_b32 v25, {ALT}
    v_mov_b32 v26, {ALT}
    v_mov_b32 v27, {ALT}
    """)
    srd(a, 4, 88, 3584*1024*2)
    g2_voff(a, 8, 5)
    poll(a, [('s23', '0xff')])
    stamp(a, 4)
    a(f"s_lshl_b32 s22, s67, 9\n s_add_u32 s22, s22, {WS_RV}\n s_cmp_eq_u32 s30, 0\n s_cselect_b32 s23, 1.0, 0")
    a("s_cselect_b32 s25, 0, -1.0")
    acc_load(a, 2, 32, 22, 7)
    acc_load(a, 2, 40, 22, 7, 2048)
    dloop(a, 'd2a', 2, 0, (20, 80), extra=True, init=lambda: (acc_init(a, 2, 32, 0, 23, True), acc_init(a, 2, 40, 64, 25), stamp(a, 14)))
    stamp(a, 15)
    dloop(a, 'd2b', 2, 64, (8, 4), first=False, inc=128*2048)
    stamp(a, 16)
    a("s_waitcnt lgkmcnt(0)\n s_nop 7")
    a(f"""
    s_and_b32 s26, s66, 3
    s_lshl_b32 s26, s26, 7
    v_and_b32 v2, 15, v1
    v_add_u32 v2, s26, v2
    v_lshlrev_b32 v2, 1, v2
    v_add_u32 v2, s30, v2
    s_mov_b32 s26, {YS}
    v_mul_lo_u32 v20, v2, s26
    v_lshrrev_b32 v3, 4, v1
    v_and_b32 v4, 1, v3
    v_lshl_add_u32 v20, v4, 5, v20
    v_lshrrev_b32 v4, 1, v3
    v_lshl_add_u32 v20, v4, 4, v20
    v_lshlrev_b32 v21, 3, v3
    s_lshl_b32 s22, s67, 8
    s_lshl_b32 s27, s3, 6
    s_add_u32 s22, s22, s27
    s_add_u32 s22, s22, {WS_Y}
    """)
    for nb in range(8):
        t = 32 + (nb & 1)*32
        for i in range(8): a(f"v_accvgpr_read_b32 v{t+i}, a{nb*8+i}\n v_accvgpr_read_b32 v{t+8+i}, a{64+nb*8+i}")
        for i in range(0, 8, 2): a(pk('', t+16+i, t+i, t+8+i, neg=True)); a(pk('', t+i, t+i, t+8+i))
        for i in range(4): a(f"v_cvt_pk_bf16_f32 v{t+24+i}, v{t+16+2*i}, v{t+17+2*i}\n v_cvt_pk_bf16_f32 v{t+28+i}, v{t+2*i}, v{t+2*i+1}")
        a("s_nop 1")
        for p in range(2):
            a(f"v_permlane16_swap_b32 v{t+24+4*p}, v{t+26+4*p}\n v_permlane16_swap_b32 v{t+25+4*p}, v{t+27+4*p}")
        for p in range(2):
            a(f"s_add_u32 s26, s22, {nb*32*YS + p*YD}")
            a(f"buffer_store_dwordx4 v[{t+24+4*p}:{t+27+4*p}], v20, s[12:15], s26 offen sc1")
    a("s_cmp_eq_u32 s31, 0\n s_cbranch_scc1 L_dft_nox")
    for i in range(8): a(f"v_accvgpr_read_b32 v{32+i}, a{128+i}")
    for i in range(4): a(f"v_cvt_pk_bf16_f32 v{40+i}, v{32+2*i}, v{33+2*i}")
    a(f"s_add_u32 s26, s22, {1024*YS}\n s_add_u32 s27, s26, {YD}\n s_mov_b32 exec_lo, 0x00010001\n s_mov_b32 exec_hi, 0x00010001")
    for mb in range(2):
        a(f"buffer_store_dwordx2 v[{40+2*mb}:{41+2*mb}], v21, s[12:15], s26 offen offset:{mb*32} sc1\n buffer_store_dwordx2 v[{40+2*mb}:{41+2*mb}], v21, s[12:15], s27 offen offset:{mb*32} sc1")
    a("s_mov_b64 exec, -1\nL_dft_nox:")
    stamp(a, 17)
    a(f"s_lshl_b32 s23, s66, 2\n s_add_u32 s23, s23, s67\n s_lshl_b32 s23, s23, 3\n s_add_u32 s23, s23, {WS_FL+2048}")
    publish(a, 's23')
    stamp(a, 18)


def kern():
    a = Asm()
    a(f"""
    s_cmp_ge_u32 s2, 256
    s_cbranch_scc1 L_end
    s_load_dwordx2 s[40:41], s[0:1], 0
    s_load_dwordx4 s[44:47], s[0:1], 48
    s_load_dwordx2 s[48:49], s[0:1], 96
    s_load_dwordx2 s[88:89], s[0:1], 64
    s_load_dwordx2 s[42:43], s[0:1], 80
    s_load_dwordx8 s[52:59], s[0:1], 8
    s_load_dwordx2 s[60:61], s[0:1], 72
    s_getpc_b64 s[28:29]
    s_lshr_b32 s27, s2, 3
    s_mul_i32 s26, s27, {CODE_LINES*128}
    v_lshlrev_b32 v2, 7, v0
    v_add_u32 v2, s26, v2
    v_cmp_gt_u32 vcc, {CODE_LINES}, v0
    s_and_saveexec_b64 s[30:31], vcc
    s_cbranch_execz L_nocp
    global_load_dword a255, v2, s[28:29]
    L_nocp:
    s_mov_b64 exec, s[30:31]
    v_and_b32 v1, 63, v0
    v_lshrrev_b32 v2, 6, v0
    s_and_b32 s66, s2, 7
    v_readfirstlane_b32 s3, v2
    s_lshr_b32 s27, s2, 3
    s_sub_u32 s67, s27, 28
    s_and_b32 s24, s66, 1
    s_lshl_b32 s24, s24, 2
    s_and_b32 s68, s27, 3
    s_add_u32 s24, s24, s68
    s_lshr_b32 s25, s66, 1
    s_mul_i32 s25, s25, 7
    s_lshr_b32 s69, s27, 2
    s_add_u32 s25, s25, s69
    """)
    stamp(a, 0)
    a(f"s_waitcnt lgkmcnt(0)\n s_add_u32 s28, s48, {WS_FL}\n s_addc_u32 s29, s49, 0\n s_load_dword s98, s[28:29], 0")
    if opt.stamp: stamp(a, 23)
    srd(a, 4, 40, 2048*1024*2)
    srd(a, 12, 48, WS_SZ)
    g2_tile(a)
    a("s_lshr_b32 s27, s2, 3\n s_cmp_ge_u32 s27, 28\n s_cbranch_scc1 L_dft")
    gemm1(a)
    a("s_branch L_g2")
    a("L_dft:")
    dft(a)
    a("L_g2:")
    if opt.trace: stamp_flush(a, 1)
    gemm2(a)
    a("L_end:")
    if opt.stamp:
        a("s_cmp_ge_u32 s2, 256\n s_cbranch_scc1 L_end2\n s_mov_b64 exec, -1")
        srd(a, 12, 48, WS_SZ)
        stamp(a, 8)
        stamp_flush(a, 0)
        if opt.dbgmax:
            a("s_load_dwordx2 s[28:29], s[0:1], 88\n v_subrev_u32 v2, 40, v1\n v_lshlrev_b32 v2, 2, v2\n v_not_b32 v3, v31\n v_cmp_eq_u32 vcc, 40, v1\n s_nop 1\n v_cndmask_b32 v31, v31, v3, vcc")
            a("s_lshr_b32 s27, s2, 3\n s_cmp_ge_u32 s27, 28\n s_cbranch_scc1 L_dm_d\n s_mov_b32 exec_lo, 0\n s_mov_b32 exec_hi, 0x1ff00\n s_branch L_dm_go\n L_dm_d:")
            for k, w in ((1, 9), (2, 10), (3, 11), (4, 12), (16, 13), (18, 14), (0, 15)):
                a(f"v_mov_b32 v3, {4*w}\n v_cmp_eq_u32 vcc, {40+k}, v1\n s_nop 1\n v_cndmask_b32 v2, v2, v3, vcc")
            m = sum(1 << (8+k) for k in (0, 1, 2, 3, 4, 16, 18))
            a(f"s_mov_b32 exec_lo, 0\n s_mov_b32 exec_hi, {m}\n L_dm_go:\n s_waitcnt lgkmcnt(0)\n global_atomic_umax v2, v31, s[28:29] sc1\n s_waitcnt vmcnt(0)")
        a("L_end2:")
    return kernel(KN, a.text(), vgpr=256, agpr=256)

KN = 'gated_mix__spectral_fnet__geglu_ffn__prompt_kernel'
def main():
    fn = sys.argv[1]
    for o in sys.argv[2:]:
        k, v = o.split('=', 1)
        setattr(opt, k, eval(v))
    c, d = kern()
    hdr = open('gated_mix__spectral_fnet__geglu_ffn__prompt.s.ref').read().split('; Override launch')[0]
    src = hdr + f'; @launch grid=(256,1,1) block=(256,1,1) lds={R1*SLOT1}\n.amdgcn_target "amdgcn-amd-amdhsa--gfx950"\n' + c + '.text\n.fill 1024, 4, 0xbf800000\n' + d
    open(fn, 'w').write(src)
if __name__ == '__main__': main()
```

```python
import sys, math, struct
from ab import *

WS_H   = 0
HS     = 262144
WS_Z   = (16 << 20) + 65536
WS_AT  = (18 << 20) + 131072
WS_Y   = (20 << 20) + 196608
YD     = 2 << 20
EGS    = 528*64
TPS    = 17*EGS
WS_LP  = (24 << 20) + 131072
WS_UP  = WS_LP + 32768
WS_CV  = WS_UP + 32768
WS_RV  = WS_CV + 4096
WS_FL  = 25 << 20
WS_XB  = 26 << 20
WS_TS  = 40 << 20
WS_SZ  = 256 << 20
OOB = 0x40000000
ALT = 0xBF803F80
R1 = 5; SLOT1 = 32768
R2 = 8; SLOT2 = 16384
R3 = 8; SLOT3 = 16384
MF = "v_mfma_f32_16x16x32_bf16"
class Opt: pass
opt = Opt()
opt.stamp = False; opt.trace = False; opt.hflags = 'sc1'; opt.psleep = 4; opt.order = 3; opt.tlb = True; opt.smem = True; opt.dbgmax = False; opt.fmask = 0xffff; opt.x2 = 0; opt.rdo = [1,1,2,2,3,3,4,4,5,5,6,6,7,7,9,9]; opt.rde = [0,0,1,1,2,2,3,3,4,5,6,7,9,10,11,12]; opt.dmo = [3, 7]; opt.HS = 229376; opt.tlb2 = False; opt.g2gap = 2; opt.spin = 0; opt.oflags = ''; opt.g2touch = False; opt.tflags = ''; opt.killw = None
fbits = lambda x: struct.unpack('<I', struct.pack('<f', x))[0]
CODE_LINES = 12

def srd(a, d, base, size):
    a(f"s_mov_b32 s{d}, s{base}\n s_and_b32 s{d+1}, s{base+1}, 0xffff\n s_mov_b32 s{d+2}, {size}\n s_mov_b32 s{d+3}, 0x20000")
def srd_ws(a, d, soff, size):
    a(f"s_add_u32 s{d}, s48, s{soff}\n s_addc_u32 s{d+1}, s49, 0\n s_and_b32 s{d+1}, s{d+1}, 0xffff\n s_mov_b32 s{d+2}, {size}\n s_mov_b32 s{d+3}, 0x20000")
def interleave(a, mfmas, fill):
    for s in fill.get(-1, []): a(s)
    for i, m in enumerate(mfmas):
        a(m)
        for s in fill.get(i, []): a(s)
def lab(a, p): return f"L_{p}_{len(a.l)}"

def stamp(a, idx):
    if not opt.stamp: return
    a(f"s_memrealtime s[92:93]\n s_memtime s[94:95]\n s_waitcnt lgkmcnt(0)\n v_writelane_b32 v31, s92, {40+idx}\n v_writelane_b32 v30, s94, {40+idx}")
def trace_ops(sidx):
    return ["s_memtime s[92:93]", "s_memrealtime s[94:95]", "s_waitcnt lgkmcnt(0)", f"v_cmp_eq_u32 vcc, {sidx}, v1", "v_mov_b32 v28, s92", "v_mov_b32 v29, s94",
            "v_cndmask_b32 v30, v30, v28, vcc", "v_cndmask_b32 v31, v31, v29, vcc"]
def stamp_flush(a, half):
    if not opt.stamp: return
    a(f"s_lshl_b32 s90, s2, 2\n s_add_u32 s90, s90, s3\n s_lshl_b32 s90, s90, 9\n s_add_u32 s90, s90, {WS_TS + half*524288}")
    a(f"v_lshlrev_b32 v28, 3, v1\n buffer_store_dwordx2 v[30:31], v28, s[12:15], s90 offen")

def nonce(a):
    a("s_mul_i32 s98, s98, 0x9E3779B1\n s_add_u32 s98, s98, 0x7F4A7C15\n s_xor_b32 s99, s98, 0x5bd1e995")
def started(a, vt=2):
    L = lab(a, 'st0')
    a(f"s_cmp_lg_u32 s3, 0\n s_cbranch_scc1 {L}\n s_lshl_b32 s26, s2, 7\n s_add_u32 s26, s26, {WS_FL+393216}")
    flag_store(a, 's26', vt)
    a(f"{L}:")
def flag_store(a, soff, vt=2):
    a(f"""
    v_lshlrev_b32 v{vt}, 3, v1
    v_mov_b32 v{vt+2}, s98
    v_mov_b32 v{vt+3}, s99
    s_mov_b64 exec, {opt.fmask}
    buffer_store_dwordx2 v[{vt+2}:{vt+3}], v{vt}, s[12:15], {soff} offen sc1
    s_mov_b64 exec, -1
    """)
def publish(a, soff):
    a("s_waitcnt vmcnt(0)\n s_barrier")
    L = lab(a, 'pub')
    a(f"s_cmp_lg_u32 s3, 0\n s_cbranch_scc1 {L}")
    flag_store(a, soff)
    a(f"{L}:")
def poll(a, items, vb=48, gap=1, cnt=56):
    L = lab(a, 'poll'); n = len(items)
    def issue(k):
        for i, (so, mk) in enumerate(items): a(f"buffer_load_dwordx2 v[{vb+2*(k*n+i)}:{vb+2*(k*n+i)+1}], v6, s[12:15], {so} offen sc1")
    a(f"v_cmp_gt_u32 vcc, {cnt}, v1\n v_lshlrev_b32 v6, 7, v1\n v_mov_b32 v7, {OOB}\n v_cndmask_b32 v6, v7, v6, vcc\n s_mov_b32 s27, 0")
    issue(0); a(f"s_sleep {opt.psleep}"); issue(1); a(f"s_sleep {opt.psleep}");
    a(f"{L}:")
    for k in range(3):
        issue((k+2) % 3)
        a(f"s_waitcnt vmcnt({2*n})")
        for i, (so, mk) in enumerate(items):
            r = vb + 2*(k*n+i)
            a(f"v_cmp_ne_u32 vcc, s98, v{r}\n v_cmp_ne_u32 s[28:29], s99, v{r+1}\n s_or_b64 vcc, vcc, s[28:29]")
            a(f"s_and_b64 {'s[64:65]' if i == 0 else 'vcc'}, vcc, {mk}")
            if i: a("s_or_b64 s[64:65], s[64:65], vcc")
        a(f"s_cbranch_scc0 {L}_done\n s_sleep {gap}")
    a(f"""
    s_add_u32 s27, s27, 1
    s_cmp_lt_u32 s27, 0x20000
    s_cbranch_scc1 {L}
    {L}_done:
    """)
def reduce_lanes(a, regs, tmp, steps):
    for st in steps:
        if st.startswith('ror'):
            a("s_nop 1")
            for r in regs: a(f"v_add_f32_dpp v{r}, v{r}, v{r} row_ror:{st[3:]} row_mask:0xf bank_mask:0xf")
        else:
            for i, r in enumerate(regs): a(f"v_mov_b32 v{tmp+i}, v{r}")
            a("s_nop 1")
            for i, r in enumerate(regs): a(f"v_permlane{st[1:]}_swap_b32 v{r}, v{tmp+i}")
            a("s_nop 1")
            for i, r in enumerate(regs): a(f"v_add_f32 v{r}, v{r}, v{tmp+i}")
def unp(dst, src, j):
    return f"v_lshlrev_b32 v{dst}, 16, v{src+j//2}" if j % 2 == 0 else f"v_and_b32 v{dst}, 0xffff0000, v{src+j//2}"
def pk(op, d, x, y, neg=False):
    return f"v_pk_add_f32 v[{d}:{d+1}], v[{x}:{x+1}], v[{y}:{y+1}]" + (" neg_lo:[0,1] neg_hi:[0,1]" if neg else "")

def tlb_setup(a, vd):
    a(f"""
    s_mov_b32 s76, s48
    s_mov_b32 s77, s49
    s_mov_b32 s78, {26 << 20}
    s_cmp_eq_u32 s3, 1
    s_cselect_b32 s76, s42, s76
    s_cselect_b32 s77, s43, s77
    s_cselect_b32 s78, {4 << 20}, s78
    s_cmp_eq_u32 s3, 2
    s_cselect_b32 s76, s88, s76
    s_cselect_b32 s77, s89, s77
    s_cselect_b32 s78, {3584*2048}, s78
    s_cmp_eq_u32 s3, 3
    s_cselect_b32 s76, s52, s76
    s_cselect_b32 s77, s53, s77
    s_cselect_b32 s78, {5 << 20}, s78
    s_and_b32 s77, s77, 0xffff
    s_mov_b32 s79, 0x20000
    v_lshlrev_b32 v{vd}, 20, v1
    v_add_u32 v{vd}, {(1 << 20) - 128}, v{vd}
    v_cmp_eq_u32 vcc, 16, v1
    v_mov_b32 v2, {(16 << 20) + 128}
    s_nop 0
    v_cndmask_b32 v{vd}, v{vd}, v2, vcc
    v_cmp_le_u32 vcc, 17, v1
    v_mov_b32 v2, {(18 << 20) + 65536 + 128}
    s_nop 0
    v_cndmask_b32 v{vd}, v{vd}, v2, vcc
    v_cmp_le_u32 vcc, 18, v1
    v_lshlrev_b32 v2, 21, v1
    v_subrev_u32 v2, {(18 << 21) - ((22 << 20) - 128)}, v2
    v_cndmask_b32 v{vd}, v{vd}, v2, vcc
    """)

def g2_tile(a):
    a(f"""
    s_and_b32 s26, s2, 7
    s_lshr_b32 s27, s2, 3
    s_lshr_b32 s50, s26, 1
    s_lshl_b32 s50, s50, 2
    s_and_b32 s51, s27, 3
    s_add_u32 s50, s50, s51
    s_lshr_b32 s51, s27, 2
    s_and_b32 s96, s2, 1
    s_mul_i32 s96, s96, {1792*2048}
    """)
def g2_voff(a, vb, wshift, t=2):
    a(f"""
    v_lshrrev_b32 v{t+1}, 4, v1
    s_lshl_b32 s26, s3, {wshift}
    v_add_u32 v{t}, s26, v{t+1}
    v_lshlrev_b32 v{t}, 11, v{t}
    s_lshl_b32 s26, s51, 8
    s_add_u32 s26, s26, s96
    v_add_u32 v{t}, s26, v{t}
    v_lshlrev_b32 v{t+1}, 1, v{t+1}
    v_and_b32 v{vb}, 15, v1
    v_xor_b32 v{t+1}, v{t+1}, v{vb}
    v_lshl_add_u32 v{vb}, v{t+1}, 4, v{t}
    v_xor_b32 v{t+1}, 8, v{t+1}
    v_lshl_add_u32 v{vb+1}, v{t+1}, 4, v{t}
    v_add_u32 v{vb+2}, {2*(4*2048-1024)}, v{vb}
    v_add_u32 v{vb+3}, {3*(4*2048-1024)}, v{vb+1}
    v_add_u32 v{vb+1}, {1*(4*2048-1024)}, v{vb+1}
    """)
def g2_dma(): return [f"buffer_load_dwordx4 v{12+i}, s[4:7], s17 offen offset:{i*1024} lds" for i in range(4)]

def gemm2(a):
    a(f"s_mov_b32 s24, s50\n s_and_b32 s31, s2, 1\n s_lshl_b32 s25, s51, 1\n s_add_u32 s25, s25, s31\n s_mov_b32 s17, {R2*64*2048}\n s_lshl_b32 s21, s3, 12")
    srd(a, 4, 88, 3584*1024*2)
    g2_voff(a, 12, 4)
    srd(a, 8, 42, 2048*1024*2)
    a(f"s_lshl_b32 s16, s24, 2\n s_add_u32 s16, s16, s3\n s_mul_i32 s16, s16, {opt.HS}\n s_mul_i32 s26, s31, 114688\n s_add_u32 s16, s16, s26")
    srd_ws(a, 36, 16, 114688)
    a(f"s_mov_b32 s16, 0\n v_lshlrev_b32 v8, 4, v1\n v_mov_b32 v22, {OOB}\n s_mov_b32 s23, {28*64*2048}")
    a("""
    v_lshrrev_b32 v3, 4, v1
    v_lshrrev_b32 v4, 2, v1
    v_and_b32 v4, 3, v4
    v_lshl_add_u32 v5, v3, 2, v4
    v_and_b32 v6, 7, v5
    s_lshl_b32 s26, s31, 2
    v_xor_b32 v6, s26, v6
    v_lshlrev_b32 v5, 8, v5
    v_lshl_add_u32 v5, v6, 5, v5
    v_and_b32 v7, 3, v1
    v_lshl_add_u32 v16, v7, 3, v5
    """)
    AD = 96
    for mb in range(8): a(f"v_xor_b32 v{AD+mb}, {mb*32}, v16")
    for i in range(4): a(f"v_mov_b32 v{104+i}, 0")
    a("s_nop 1")
    for i in range(4): a(f"v_mfma_f32_32x32x16_bf16 a[{16*i}:{15+16*i}], v[104:107], v[104:107], 0")
    a(f"""
    s_lshl_b32 s26, s24, 13
    s_mul_i32 s22, s31, {28*128}
    s_add_u32 s22, s22, s26
    s_add_u32 s22, s22, {WS_FL+65536}
    s_mov_b32 s30, {WS_FL+32768}
    s_mov_b32 s60, -1
    s_mov_b32 s61, 0x00ffffff
    """)
    stamp(a, 5)
    a(f"s_cmp_lg_u32 s2, 0\n s_cbranch_scc1 L_g2_noep\n s_lshl_b32 s26, s3, 13\n s_add_u32 s26, s26, {WS_FL+393216}")
    poll(a, [('s26', '-1')], vb=120, gap=2, cnt=64)
    a("L_g2_noep:")
    a("s_cmp_lg_u32 s3, 0\n s_cbranch_scc1 L_g2_nopoll")
    poll(a, [('s22', '0x0fffffff')], vb=108, gap=opt.g2gap, cnt=28)
    a("s_branch L_g2_polled\n L_g2_nopoll:\n s_waitcnt vmcnt(0)\n L_g2_polled:\n s_barrier")
    a(f"s_or_b32 s26, s2, s3\n s_cmp_lg_u32 s26, 0\n s_cbranch_scc1 L_g2_noep2\n s_mov_b32 s26, {WS_FL}")
    flag_store(a, 's26')
    a("L_g2_noep2:")
    stamp(a, 6)
    HB = 128; WF = 32
    def hload(i, off): return f"buffer_load_dwordx4 v[{HB+4*i}:{HB+4*i+3}], v8, s[36:39], s16 offen offset:{off} sc1"
    for i in range(16):
        a(hload(i, (i % 4)*1024))
        if i % 4 == 3: a("s_add_u32 s16, s16, 4096")
        if i % 2 == 1 and i < 15:
            for k in range(2): a("buffer_load_dword v9, v22, s[36:39], 0 offen")
    def wreads(st, p):
        r = []
        for mb in range(8):
            b = WF + st*32 + mb*4
            r.append(f"ds_read_b64_tr_b16 v[{b}:{b+1}], v{AD+mb} offset:{p*8192}")
            r.append(f"ds_read_b64_tr_b16 v[{b+2}:{b+3}], v{AD+mb} offset:{p*8192+4096}")
        return r
    for x in wreads(0, 0): a(x)
    a(f"s_mov_b32 s19, 0\n s_mov_b32 s18, 0\n s_mov_b32 s30, s17\n s_mov_b32 s17, {OOB}\n s_add_u32 m0, s21, 147456")
    def y_loads():
        a(f"""
        s_lshl_b32 s26, s24, 7
        s_lshl_b32 s27, s3, 5
        s_add_u32 s26, s26, s27
        v_and_b32 v2, 15, v1
        v_add_u32 v10, s26, v2
        v_add_u32 v11, 16, v10
        s_mov_b32 s26, {WS_LP}
        v_lshlrev_b32 v2, 4, v10
        buffer_load_dwordx4 a[96:99], v2, s[12:15], s26 offen sc1
        buffer_load_dwordx4 a[100:103], v2, s[12:15], s26 offen offset:256 sc1
        s_cmp_ge_u32 s25, 8
        s_cselect_b64 s[62:63], -1, 0
        s_lshl_b32 s26, s25, 1
        s_sub_u32 s27, 30, s26
        s_cmp_ge_u32 s25, 8
        s_cselect_b32 s28, s27, s26
        s_mul_i32 s28, s28, {EGS}
        s_add_u32 s28, s28, {WS_Y}
        s_lshl_b32 s26, s24, 7
        s_lshl_b32 s27, s3, 5
        s_add_u32 s27, s26, s27
        s_mov_b32 s26, {TPS}
        """)
        for j in range(5):
            if j < 4: a(f"v_lshrrev_b32 v2, 2, v1\n v_lshl_add_u32 v2, v2, 1, {j&1}\n v_and_b32 v3, 3, v1\n v_lshlrev_b32 v3, 4, v3\n v_add_u32 v3, {(j>>1)*EGS}, v3")
            else: a(f"v_and_b32 v2, 31, v1\n v_mov_b32 v3, {2*EGS}")
            a(f"""
            v_add_u32 v2, s27, v2
            v_sub_u32 v4, 2048, v2
            v_min_u32 v4, v4, v2
            v_cmp_lt_u32 vcc, 1024, v2
            v_and_b32 v5, 1, v4
            v_mul_lo_u32 v5, v5, s26
            v_lshrrev_b32 v4, 1, v4
            v_lshl_add_u32 v4, v4, 6, v5
            s_xor_b64 vcc, vcc, s[62:63]
            v_add_u32 v4, v4, v3
            v_add_u32 v5, {YD}, v4
            v_cndmask_b32 v4, v4, v5, vcc
            """)
            if j < 4: a(f"buffer_load_dwordx4 a[{72+4*j}:{75+4*j}], v4, s[12:15], s28 offen sc1")
            else: a(f"buffer_load_dword a88, v4, s[12:15], s28 offen sc1")
    a(f"v_and_b32 v20, 31, v1\n v_lshlrev_b32 v20, 7, v20\n v_add_u32 v20, {WS_FL+32768}, v20")
    a(".p2align 6\nL_g2_loop:")
    a("s_cmp_lg_u32 s18, 5\n s_cbranch_scc1 L_g2_nos4\n buffer_load_dwordx2 v[18:19], v20, s[12:15], 0 offen sc1\n L_g2_nos4:")
    for t in range(8):
        p = t & 1; i = 2*t
        if t == 4:
            a("s_cmp_lg_u32 s18, 6\n s_cbranch_scc1 L_g2_nopq")
            a("v_cmp_ne_u32 vcc, s98, v18\n v_cmp_ne_u32 s[28:29], s99, v19\n s_or_b64 vcc, vcc, s[28:29]\n s_cbranch_scc0 L_g2_s4ok")
            a(f"s_mov_b32 s26, {WS_FL+32768}")
            poll(a, [('s26', '0xffffffff')], vb=108, gap=2, cnt=32)
            a("L_g2_s4ok:")
            y_loads()
            a("L_g2_nopq:")
        if opt.trace and p == 0:
            a(f"s_lshl_b32 s91, s18, 2\n s_add_u32 s91, s91, {t >> 1}")
            for x in trace_ops("s91"): a(x)
        a("s_waitcnt vmcnt(28) lgkmcnt(8)")
        ms = []
        for nb, mb in [(0, 0), (0, 1), (0, 2), (0, 3), (1, 3), (1, 2), (1, 1), (1, 0), (1, 4), (1, 5), (1, 6), (1, 7), (0, 7), (0, 6), (0, 5), (0, 4)]:
            b = WF + p*32 + mb*4; c = (nb*8+mb)*4
            ms.append(f"{MF} a[{c}:{c+3}], v[{b}:{b+3}], v[{HB+4*(i+nb)}:{HB+4*(i+nb)+3}], a[{c}:{c+3}]")
        f = {}
        rd = wreads(p ^ 1, p ^ 1)
        for k, x in enumerate(rd):
            f.setdefault(k, [])
            if not (opt.x2 & 1) and not ((opt.x2 & 16) and k % 2): f[k].append(x.replace('ds_read_b64_tr_b16', 'ds_read_b64') if opt.x2 & 8 else x)
        f[7].append("s_waitcnt lgkmcnt(8)")
        for k in range(2): f[opt.dmo[k]].append(g2_dma()[2*p + k])
        if p == 1:
            f[8] += ["s_barrier", "s_add_u32 m0, s21, s19", "s_mov_b32 s17, s30"]
            f[9] += [f"s_add_u32 s30, s30, {64*2048}", "s_cmp_eq_u32 s30, s23"]
            f[10] += [f"s_cselect_b32 s30, {OOB}, s30"]
            f[12] += [f"s_add_u32 s19, s19, {SLOT2}"]
            f[13] += [f"s_and_b32 s19, s19, {R2*SLOT2-1}"]
        else:
            f[1].append(f"s_add_u32 s20, s19, {SLOT2}")
            f[3].append(f"s_and_b32 s20, s20, {R2*SLOT2-1}")
            f[5].append(f"v_add_u32 v17, s20, v16")
            for mb in range(8): f[min(15, max(2*mb+1, 6+mb//2) if mb < 4 else 2*mb+1)].append(f"v_xor_b32 v{AD+mb}, {mb*32}, v17")
        f[11].append(hload(i+1, ((i+1) % 4)*1024))
        f[15].append(hload(i, (i % 4)*1024))
        if p == 1: f[15].append("s_add_u32 s16, s16, 4096")
        if opt.x2 & 32:
            ms2 = []; f2 = {}
            for k in range(8):
                b = WF + p*32 + (k if k < 4 else k)*4; c = (k & 3)*16
                ms2.append(f"v_mfma_f32_32x32x16_bf16 a[{c}:{c+15}], v[{b}:{b+3}], v[{HB+4*(i+(1 if k < 4 else 0))}:{HB+4*(i+(1 if k < 4 else 0))+3}], a[{c}:{c+15}]")
                f2[k] = f.get(2*k, []) + f.get(2*k+1, [])
            ms, f = ms2, f2
        interleave(a, ms, f)
    a("s_add_u32 s18, s18, 1\n s_cmp_lt_u32 s18, 7\n s_cbranch_scc1 L_g2_loop")
    stamp(a, 7)
    a(f"""
    s_lshl_b32 s26, s2, 2
    s_add_u32 s26, s26, s3
    s_lshl_b32 s22, s26, 12
    s_add_u32 s22, s22, {WS_XB}
    s_lshl_b32 s23, s26, 7
    s_add_u32 s23, s23, {WS_FL+262144}
    s_nop 3
    """)
    for g in range(4):
        for i in range(8): a(f"v_accvgpr_read_b32 v{192+8*g+i}, a{(g>>1)*32+16+(g&1)*8+i}")
        for i in range(4): a(f"v_cvt_pk_bf16_f32 v{224+4*g+i}, v{192+8*g+2*i}, v{193+8*g+2*i}")
        a(f"buffer_store_dwordx4 v[{224+4*g}:{227+4*g}], v8, s[12:15], s22 offen offset:{g*1024} sc1")
    a("""
    s_mul_i32 s26, s3, 4608
    s_add_u32 s26, s26, 131072
    v_lshrrev_b32 v4, 2, v1
    v_mul_u32_u24 v4, 288, v4
    v_and_b32 v5, 3, v1
    v_lshl_add_u32 v4, v5, 4, v4
    v_add_u32 v4, s26, v4
    v_and_b32 v5, 31, v1
    v_mul_u32_u24 v5, 144, v5
    v_add_u32 v5, s26, v5
    s_waitcnt vmcnt(4)
    """)
    for j in range(4): a(f"ds_write_b128 v4, a[{72+4*j}:{75+4*j}] offset:{(j&1)*144 + (j>>1)*64}")
    a("ds_write_b32 v5, a88 offset:128")
    a("""
    v_and_b32 v4, 15, v1
    v_mul_u32_u24 v4, 144, v4
    v_lshrrev_b32 v5, 4, v1
    v_lshlrev_b32 v5, 3, v5
    v_sub_u32 v6, 24, v5
    v_cndmask_b32 v5, v5, v6, s[62:63]
    v_add3_u32 v4, v4, v5, s26
    s_waitcnt lgkmcnt(0)
    """)
    for k in range(8):
        a(f"ds_read_b64 v[{128+4*k}:{129+4*k}], v4 offset:{(k>>2)*16*144 + (k&3)*32}\n ds_read_b32 v{130+4*k}, v4 offset:{(k>>2)*16*144 + (k&3)*32 + 8}")
    a("s_waitcnt vmcnt(0)")
    flag_store(a, 's23')
    a("s_xor_b32 s23, s23, 512\n s_xor_b32 s22, s22, 16384")
    for nb in range(2):
        for i in range(4): a(f"v_accvgpr_read_b32 v{40+i}, a{96+4*nb+i}")
        a(f"""
        v_add_f32 v40, v40, v41
        v_add_f32 v42, v42, v43
        v_add_f32 v40, v40, v42
        v_cvt_pk_bf16_f32 v40, v40, v40
        v_lshlrev_b32 v40, 16, v40
        v_mul_f32 v40, {fbits(-math.log2(math.e))}, v40
        v_exp_f32 v40, v40
        s_nop 0
        v_add_f32 v40, 1.0, v40
        v_rcp_f32 v40, v40
        s_nop 0
        v_cvt_pk_bf16_f32 v40, v40, v40
        v_lshlrev_b32 v{32+nb}, 16, v40
        v_sub_f32 v40, 1.0, v{32+nb}
        v_cvt_pk_bf16_f32 v40, v40, v40
        v_lshlrev_b32 v{34+nb}, 16, v40
        """)
    for nb in range(2):
        for i in range(16): a(f"v_accvgpr_read_b32 v{64+nb*16+i}, a{nb*32+i}")
    for nb in range(2):
        for i in range(16): a(f"v_mul_f32 v{64+nb*16+i}, v{34+nb}, v{64+nb*16+i}")
    a("s_waitcnt lgkmcnt(0)\n s_cmp_ge_u32 s25, 8\n s_cbranch_scc1 L_g2_mir")
    for mir in range(2):
        if mir: a("L_g2_mir:")
        for nb in range(2):
            for mb in range(4):
                d = 128 + (nb*4 + (3-mb if mir else mb))*4; o = 64 + (nb*4+mb)*4
                els = [4, 3, 2, 1] if mir else [0, 1, 2, 3]
                for r in range(4): a(unp(40+r, d, els[r]))
                for r in range(4): a(f"v_fma_f32 v{o+r}, v{40+r}, v{32+nb}, v{o+r}")
        if not mir: a("s_branch L_g2_st")
    a("L_g2_st:")
    a("""
    v_lshlrev_b32 v2, 11, v10
    v_lshrrev_b32 v3, 4, v1
    v_and_b32 v4, 1, v3
    v_lshl_add_u32 v2, v4, 5, v2
    v_lshrrev_b32 v4, 1, v3
    v_lshl_add_u32 v2, v4, 4, v2
    s_lshl_b32 s26, s25, 7
    v_add_u32 v2, s26, v2
    v_add_u32 v3, 32768, v2
    """)
    stamp(a, 9)
    poll(a, [('s23', '1')], vb=44, gap=1, cnt=1)
    stamp(a, 10)
    for k in range(4): a(f"buffer_load_dwordx4 v[{160+4*k}:{163+4*k}], v8, s[12:15], s22 offen offset:{k*1024} sc1")
    for k in range(4):
        a(f"s_waitcnt vmcnt({3-k})")
        for r in range(8): a(unp(176+r, 160+4*k, r))
        for r in range(8): a(f"v_fma_f32 v{64+8*k+r}, v{176+r}, v{34+(k>>1)}, v{64+8*k+r}")
    for i in range(16): a(f"v_cvt_pk_bf16_f32 v{96+i}, v{64+2*i}, v{64+2*i+1}")
    a("s_nop 1")
    for p in range(4):
        a(f"v_permlane16_swap_b32 v{96+4*p}, v{96+4*p+2}\n v_permlane16_swap_b32 v{96+4*p+1}, v{96+4*p+3}")
    for p in range(4):
        a(f"buffer_store_dwordx4 v[{96+4*p}:{96+4*p+3}], v{2+(p>>1)}, s[8:11], 0 offen offset:{(p&1)*64} {opt.oflags}")

def ACCG(mb, nb): return 128 + (nb*4+mb)*4
def ACCU(mb, nb): return (nb*4+mb)*4
def FR(st, i): return 128 + st*64 + i*4

def gemm1(a):
    XS = 32768; WB = 98304; WSL = 16384
    a("s_cmp_ge_u32 s3, 2\n s_cselect_b32 s26, s46, s44\n s_cselect_b32 s27, s47, s45")
    srd(a, 8, 26, 1024*3584*2)
    a(f"""
    s_cmp_eq_u32 s3, 1
    s_cselect_b32 s80, s46, s44
    s_cselect_b32 s81, s47, s45
    s_mov_b32 s82, {1024*3584*2}
    s_cmp_eq_u32 s3, 2
    s_cselect_b32 s80, s40, s80
    s_cselect_b32 s81, s41, s81
    s_cselect_b32 s82, {2048*1024*2}, s82
    s_cmp_eq_u32 s3, 3
    s_cselect_b32 s80, s88, s80
    s_cselect_b32 s81, s89, s81
    s_and_b32 s81, s81, 0xffff
    s_mov_b32 s83, 0x20000
    v_mov_b32 v3, {OOB}
    s_add_u32 s86, s67, 28
    s_cmp_ge_u32 s3, 2
    s_cbranch_scc1 L_t_x
    v_lshrrev_b32 v2, 4, v1
    v_lshlrev_b32 v2, 5, v2
    v_bfe_u32 v4, v1, 1, 3
    v_add_u32 v2, v2, v4
    s_lshl_b32 s26, s68, 3
    v_add_u32 v2, s26, v2
    s_mov_b32 s27, 7168
    v_mul_lo_u32 v2, v2, s27
    v_and_b32 v4, 1, v1
    v_lshl_add_u32 v2, v4, 7, v2
    s_lshl_b32 s26, s25, 8
    v_add_u32 v26, s26, v2
    v_cmp_gt_u32 vcc, 32, v1
    s_mov_b32 s84, 0
    s_mov_b32 s85, {2*32*7168}
    v_cndmask_b32 v27, v3, v26, vcc
    s_mov_b32 s87, {4*32*7168}
    s_mov_b32 s75, s85
    v_mov_b32 v42, v27
    v_mov_b32 v35, v3
    s_branch L_t_done
    L_t_x:
    s_cmp_eq_u32 s3, 3
    s_cbranch_scc1 L_t_wd
    s_mul_i32 s26, s69, 37
    s_lshl_b32 s27, s24, 8
    s_add_u32 s26, s26, s27
    v_add_u32 v2, s26, v1
    v_lshlrev_b32 v2, 11, v2
    v_cmp_gt_u32 vcc, 37, v1
    s_mov_b32 s84, 0
    s_mov_b32 s85, 0
    v_cndmask_b32 v26, v3, v2, vcc
    s_mov_b32 s87, 128
    s_mov_b32 s75, 128
    v_mov_b32 v27, v3
    v_mov_b32 v42, v26
    v_mov_b32 v35, v3
    s_branch L_t_done
    L_t_wd:
    s_mul_i32 s27, s86, 49
    v_cmp_gt_u32 vcc, 49, v1
    s_lshl_b32 s28, s66, 6
    """)
    for k in range(3):
        a(f"""
        v_add_u32 v2, s27, v1
        v_add_u32 v2, {1372*k}, v2
        v_bfe_u32 v4, v2, 4, 3
        v_bfe_u32 v5, v2, 7, 2
        v_lshl_add_u32 v4, v5, 4, v4
        v_bfe_u32 v5, v2, 11, 1
        v_lshl_add_u32 v4, v5, 3, v4
        v_add_u32 v4, s28, v4
        v_bfe_u32 v5, v2, 9, 2
        v_and_b32 v6, 1, v5
        v_lshrrev_b32 v7, 1, v5
        v_xor_b32 v6, v6, v7
        v_sub_u32 v7, 0, v4
        v_cmp_eq_u32 s[62:63], 1, v6
        v_and_b32 v2, 15, v2
        v_lshlrev_b32 v2, 7, v2
        v_cndmask_b32 v4, v4, v7, s[62:63]
        v_lshlrev_b32 v6, 11, v5
        v_cmp_le_u32 s[62:63], 2, v5
        v_mov_b32 v7, 1024
        s_nop 0
        v_cndmask_b32 v6, v6, v7, s[62:63]
        v_add_u32 v4, v4, v6
        v_lshl_add_u32 v2, v4, 11, v2
        v_cndmask_b32 v35, v3, v2, vcc
        """)
        a("buffer_load_dword v127, v35, s[4:7], 0 offen")
    a(f"""
    v_lshlrev_b32 v2, 7, v1
    v_cmp_gt_u32 vcc, 32, v1
    s_mul_i32 s84, s66, 28
    s_add_u32 s84, s84, s86
    s_lshl_b32 s84, s84, 12
    v_cndmask_b32 v27, v3, v2, vcc
    s_mov_b32 s85, {224*4096}
    s_mov_b32 s87, 0
    s_mov_b32 s75, 0
    v_mov_b32 v26, v3
    v_mov_b32 v42, v3
    L_t_done:
    """)
    stamp(a, 19)
    a("buffer_load_dword v127, v42, s[80:83], s84 offen\n s_add_u32 s84, s84, s75")
    stamp(a, 20)
    a(f"""
    s_cmp_lt_u32 s66, 4
    s_cselect_b32 s36, s56, s58
    s_cselect_b32 s37, s57, s59
    s_cmp_eq_u32 s3, 2
    s_cselect_b32 s36, s52, s36
    s_cselect_b32 s37, s53, s37
    s_cmp_eq_u32 s3, 3
    s_cselect_b32 s36, s54, s36
    s_cselect_b32 s37, s55, s37
    s_and_b32 s37, s37, 0xffff
    s_mov_b32 s39, 0x20000
    s_and_b32 s28, s66, 3
    s_lshl_b32 s26, s28, 18
    s_lshl_b32 s28, s28, 8
    s_lshr_b32 s27, s66, 2
    s_add_u32 s28, s28, s27
    s_lshl_b32 s28, s28, 12
    s_cmp_eq_u32 s3, 1
    s_cselect_b32 s28, s26, s28
    s_cselect_b32 s26, 11, 13
    s_cselect_b32 s38, {1024*1024*2}, s82
    s_mul_i32 s27, s86, 37
    v_add_u32 v2, s27, v1
    v_lshrrev_b32 v4, 3, v2
    v_lshlrev_b32 v4, s26, v4
    v_and_b32 v2, 7, v2
    v_lshl_add_u32 v2, v2, 7, v4
    s_cmp_eq_u32 s3, 0
    s_cselect_b32 s27, 0, 37
    v_cmp_gt_u32 vcc, s27, v1
    v_mov_b32 v3, {OOB}
    s_nop 0
    v_cndmask_b32 v2, v3, v2, vcc
    v_add_u32 v34, s28, v2
    s_cmp_lg_u32 s3, 1
    s_cbranch_scc1 L_t_nm
    buffer_load_dword v127, v34, s[36:39], 0 offen
    v_mov_b32 v34, v3
    L_t_nm:
    """)
    a("s_lshl_b32 s29, s24, 19\n s_lshl_b32 s26, s3, 16\n s_add_u32 s29, s29, s26")
    sh_voff(a, 8, 11, 29)
    a("""
    v_lshrrev_b32 v2, 4, v1
    s_and_b32 s26, s3, 1
    s_lshl_b32 s26, s26, 4
    v_add_u32 v3, s26, v2
    s_mov_b32 s27, 7168
    v_mul_lo_u32 v3, v3, s27
    s_lshl_b32 s26, s25, 8
    v_add_u32 v3, s26, v3
    v_lshlrev_b32 v2, 1, v2
    v_and_b32 v4, 15, v1
    v_xor_b32 v2, v2, v4
    v_lshl_add_u32 v12, v2, 4, v3
    v_xor_b32 v2, 8, v2
    v_lshl_add_u32 v14, v2, 4, v3
    """)
    a(f"v_add_u32 v13, {1*(4*7168-1024)}, v12\n v_add_u32 v15, {3*(4*7168-1024)}, v14\n v_add_u32 v14, {2*(4*7168-1024)}, v14")
    a(f"s_mov_b32 s16, 0\n s_mov_b32 s22, 65536\n s_mov_b32 s17, 0\n s_lshl_b32 s21, s3, 12\n s_add_u32 s21, s21, {WB}\n s_lshl_b32 s23, s3, 13")
    def dma_x(h): return [f"buffer_load_dwordx4 v{8+i}, s[4:7], s{(16, 22)[h]} offen offset:{i*1024} lds" for i in range(4)]
    def dma_w(): return [f"buffer_load_dwordx4 v{12+i}, s[8:11], s17 offen offset:{i*1024} lds" for i in range(4)]
    def px(s):
        a(f"s_add_u32 m0, s23, {s*XS}\n s_nop 0")
        for x in dma_x(0): a(x)
        a(f"s_add_u32 m0, s23, {s*XS+4096}\n s_add_u32 s16, s16, 128")
        for x in dma_x(1): a(x)
        a("s_add_u32 s22, s22, 128")
    def pw(s):
        a(f"s_add_u32 m0, s21, {s*WSL}\n s_nop 0")
        for x in dma_w(): a(x)
        a(f"s_add_u32 s17, s17, {32*7168}")
    if opt.tlb:
        a("v_lshlrev_b32 v40, 21, v1\n v_add_u32 v40, 0x100000, v40")
    if opt.tlb2:
        a(f"""
        s_cmp_eq_u32 s3, 1
        s_cselect_b32 s76, s42, s48
        s_cselect_b32 s77, s43, s49
        s_cselect_b32 s26, 16, 18
        s_and_b32 s77, s77, 0xffff
        s_cmp_ge_u32 s3, 2
        s_cselect_b32 s78, 0, {16 << 20}
        s_cmp_eq_u32 s3, 1
        s_cselect_b32 s78, {4 << 20}, s78
        s_mov_b32 s79, 0x20000
        v_add_u32 v41, 1, v1
        v_lshlrev_b32 v41, s26, v41
        v_subrev_u32 v41, 128, v41
        """)
    a(f"""
    s_lshr_b32 s26, s3, 1
    s_lshl_b32 s26, s26, 7
    v_and_b32 v2, 15, v1
    v_lshrrev_b32 v5, 1, v2
    v_add_u32 v2, s26, v2
    v_lshlrev_b32 v2, 7, v2
    v_lshrrev_b32 v3, 4, v1
    v_xor_b32 v5, v3, v5
    v_lshl_add_u32 v16, v5, 4, v2
    v_xor_b32 v5, 4, v5
    v_lshl_add_u32 v33, v5, 4, v2
    v_lshrrev_b32 v4, 2, v1
    v_and_b32 v4, 3, v4
    v_lshl_add_u32 v5, v3, 3, v4
    v_lshlrev_b32 v5, 8, v5
    v_add_u32 v5, {WB}, v5
    v_and_b32 v6, 3, v1
    v_lshl_add_u32 v5, v6, 3, v5
    v_and_b32 v6, 1, v3
    v_lshl_or_b32 v6, v6, 2, v4
    s_and_b32 s26, s3, 1
    s_lshl_b32 s26, s26, 2
    v_xor_b32 v6, s26, v6
    """)
    for mb in range(4):
        a(f"v_xor_b32 v7, {mb}, v6\n v_lshl_add_u32 v{17+mb}, v7, 5, v5")
    for i in range(5): a(f"v_mov_b32 v{21+i}, v{16+i}")
    def reads(st):
        def wr(mat, mb):
            b = FR(st, mat*4+mb)
            return [f"ds_read_b64_tr_b16 a[{b}:{b+1}], v{22+mb} offset:{mat*8192}",
                    f"ds_read_b64_tr_b16 a[{b+2}:{b+3}], v{22+mb} offset:{mat*8192+1024}"]
        def xr(nb):
            b = FR(st, 8+nb)
            return [f"ds_read_b128 a[{b}:{b+3}], v21 offset:{nb*2048}"]
        r = []
        for i in range(8): r += wr(i & 1, i >> 1) + xr(i)
        return r
    def mf(st):
        m = []
        od = [(nb if (mb*2+mat) % 2 == 0 else 7-nb, mb, mat) for mb in range(4) for mat in range(2) for nb in range(8)]
        for nb, mb, mat in od:
            c = f"v[{ACCG(mb,nb)}:{ACCG(mb,nb)+3}]" if mat == 0 else f"a[{ACCU(mb,nb)}:{ACCU(mb,nb)+3}]"
            fa = FR(st, mat*4+mb); fb_ = FR(st, 8+nb)
            m.append(f"{MF} {c}, a[{fa}:{fa+3}], a[{fb_}:{fb_+3}], {c}")
        return m
    for i in range(4): a(f"v_mov_b32 v{36+i}, 0")
    a("s_nop 1")
    for i in range(8): a(f"v_mfma_f32_32x32x16_bf16 v[{128+16*i}:{143+16*i}], v[36:39], v[36:39], 0\n v_mfma_f32_32x32x16_bf16 a[{16*i}:{15+16*i}], v[36:39], v[36:39], 0")
    stamp(a, 21)
    pw(0); px(0); pw(1)
    stamp(a, 22)
    stamp(a, 1)
    a(f"s_waitcnt vmcnt(4) lgkmcnt(0)\n s_barrier")
    for x in reads(0): a(x)
    nonce(a)
    a(f"s_lshl_b32 s26, s2, 7\n s_add_u32 s26, s26, {WS_FL+393216}\n s_cmp_eq_u32 s3, 0\n s_cselect_b32 s26, s26, {OOB}\n v_and_b32 v43, 15, v1\n v_lshl_add_u32 v43, v43, 3, s26\n v_mov_b32 v44, s98\n v_mov_b32 v45, s99")
    a(f"s_mov_b32 s19, 0\n s_mov_b32 s20, {XS}\n s_mov_b32 s18, 0\n s_mov_b32 s28, {WSL}\n s_mov_b32 s29, 0")
    a("v_mov_b32 v21, v33")
    for i in range(4): a(f"v_add_u32 v{22+i}, s28, v{17+i}")
    a(f"s_mov_b32 s72, {32*7168}\n s_mov_b32 s73, 128\n s_mov_b32 s74, 65536")
    stamp(a, 2)
    for st in (2, 0, 1):
        peel = st == 2
        if peel: st = 0
        if not peel and st == 0: a(".p2align 6\nL_g1_loop:")
        if st == 1: a("L_g1_mid:")
        f = {-1: ["s_waitcnt lgkmcnt(0)"]}
        if opt.trace: f[-1] = trace_ops("s18")
        f[0] = [f"s_waitcnt vmcnt({0 if peel else (24, 12)[st]})", "s_barrier"]
        if peel:
            A = Asm(); save = a
            def cap(fn, *args):
                n0 = len(a.l); fn(*args); out = [x.strip() for x in a.l[n0:]]; del a.l[n0:]; return out
            T2 = ["buffer_load_dword v127, v26, s[80:83], s84 offen", "s_add_u32 s84, s84, s87"]
            ops = T2 + cap(pw, 2) + cap(px, 1) + cap(pw, 3) + T2 + ["buffer_load_dword v127, v40, s[80:83], 0 offen"] + cap(px, 2) + ["buffer_store_dwordx2 v[44:45], v43, s[12:15], 0 offen sc1"]
            g = 2
            for x in ops:
                if x == 's_nop 0': continue
                f.setdefault(g-1 if 'm0' in x else g, []).append(x)
                if x.startswith('buffer'): g += 2
            assert g <= 63, g
            f.setdefault(63, []).append("s_branch L_g1_mid")
        rd = reads(st ^ 1)
        for i, x in enumerate(rd): f.setdefault(1 + 2*i, []).append(x)
        f.setdefault(2, []).append(f"s_add_u32 s28, s28, {WSL}")
        f.setdefault(4, []).append(f"s_and_b32 s28, s28, {4*WSL-1}")
        f.setdefault(6, []).append("s_add_u32 s18, s18, 1")
        for i in range(4): f.setdefault(50+2*i, []).append(f"v_add_u32 v{22+i}, s28, v{17+i}")
        if st == 0:
            f.setdefault(58, []).append("v_add_u32 v21, s20, v16")
        else:
            f.setdefault(58, []).append("v_add_u32 v21, s19, v33")
            dq = dma_w() + dma_w() + dma_x(0) + dma_x(1)
            dp = opt.dp if hasattr(opt, 'dp') else [2 + 4*i - (i > 11)*(i-11) for i in range(16)]
            f[0].append("s_add_u32 m0, s21, s29")
            for i, x in enumerate(dq): f.setdefault(dp[i], []).append(x)
            f[dp[3]] += [f"s_add_u32 m0, m0, {WSL}", "s_add_u32 s17, s17, s72"]
            f[dp[7]] += ["s_add_u32 m0, s23, s19", "s_add_u32 s17, s17, s72"]
            f[dp[8]] += [f"s_xor_b32 s29, s29, {2*WSL}"]
            f[dp[9]] += ["s_mov_b32 s19, s20"]
            f[dp[10]] += [f"s_add_u32 s20, s20, {XS}", f"s_cmp_eq_u32 s20, {3*XS}"]
            f[dp[11]] += ["s_cselect_b32 s20, 0, s20", "s_add_u32 m0, m0, 4096"]
            f[dp[12]] += ["s_add_u32 s16, s16, s73"]
            f[dp[15]] += ["s_cmp_ge_u32 s18, 26", "s_cbranch_scc1 L_g1_sw", "L_g1_swd:", "s_add_u32 s22, s16, s74"]
            f.setdefault(62, []).extend([f"buffer_load_dword v127, v27, s[80:83], s84 offen {opt.tflags}", "s_add_u32 s84, s84, s85"])
            f[62] += ["s_cmp_lg_u32 s18, 4", "s_cbranch_scc1 L_g1_noseq", "buffer_load_dword v127, v34, s[36:39], 0 offen"] + (["buffer_load_dword v127, v41, s[76:79], 0 offen"] if opt.tlb2 else []) + ["L_g1_noseq:"]
            f.setdefault(63, []).extend(["s_cmp_lt_u32 s18, 32", "s_cbranch_scc1 L_g1_loop"])
        interleave(a, mf(st), f)
    a("s_branch L_g1_done")
    a("L_g1_sw:\n s_cmp_eq_u32 s18, 26\n s_cbranch_scc0 L_g1_sw2")
    srd(a, 4, 88, 3584*1024*2)
    g2_voff(a, 8, 5)
    a(f"s_mov_b32 s16, {128*2048}\n s_mov_b32 s73, {128*2048}\n s_mov_b32 s74, {16*2048}\n s_branch L_g1_swd")
    a("L_g1_sw2:\n s_cmp_eq_u32 s18, 28\n s_cbranch_scc0 L_g1_sw3")
    srd(a, 8, 88, 3584*1024*2)
    g2_voff(a, 12, 4)
    a(f"s_mov_b32 s17, {384*2048}\n s_mov_b32 s72, {64*2048}\n s_branch L_g1_swd")
    a(f"L_g1_sw3:\n s_mov_b32 s16, 0\n s_mov_b32 s17, {OOB}\n s_branch L_g1_swd")
    a("L_g1_done:")
    stamp(a, 3)
    a(f"""
    s_lshl_b32 s30, s24, 3
    s_lshr_b32 s31, s3, 1
    s_lshl_b32 s31, s31, 2
    s_add_u32 s30, s30, s31
    s_lshl_b32 s23, s30, 11
    s_mul_i32 s30, s30, {opt.HS}
    s_lshl_b32 s31, s25, 13
    s_add_u32 s30, s30, s31
    s_and_b32 s31, s3, 1
    s_lshl_b32 s31, s31, 12
    s_add_u32 s30, s30, s31
    s_lshl_b32 s31, s25, 1
    s_and_b32 s26, s3, 1
    s_add_u32 s31, s31, s26
    s_lshl_b32 s31, s31, 7
    s_add_u32 s23, s23, s31
    s_add_u32 s23, s23, {WS_FL+65536}
    s_waitcnt lgkmcnt(0)
    s_nop 7
    """)
    c0 = -2*math.sqrt(2/math.pi)*math.log2(math.e); c1 = c0*0.044715
    a(f"s_mov_b32 s26, {fbits(c0)}\n s_mov_b32 s28, {fbits(c1)}\n s_mov_b32 s29, {fbits(c1)}")
    a("v_mov_b32 v24, s26\n v_mov_b32 v25, s26\n v_lshlrev_b32 v26, 4, v1")
    T = 32
    for nb in range(8):
        g0 = ACCG(0, nb); u0 = ACCU(0, nb)
        t = T + (nb % 2)*48
        U = t; Z = t+16; O = t+32
        for i in range(16): a(f"v_accvgpr_read_b32 v{U+i}, a{u0+i}")
        for i in range(0, 16, 2): a(f"v_pk_mul_f32 v[{Z+i}:{Z+i+1}], v[{g0+i}:{g0+i+1}], v[{g0+i}:{g0+i+1}]")
        for i in range(0, 16, 2): a(f"v_pk_fma_f32 v[{Z+i}:{Z+i+1}], v[{Z+i}:{Z+i+1}], s[28:29], v[24:25]")
        for i in range(0, 16, 2): a(f"v_pk_mul_f32 v[{Z+i}:{Z+i+1}], v[{Z+i}:{Z+i+1}], v[{g0+i}:{g0+i+1}]")
        for i in range(16): a(f"v_exp_f32 v{Z+i}, v{Z+i}")
        for i in range(0, 16, 2): a(f"v_pk_mul_f32 v[{U+i}:{U+i+1}], v[{U+i}:{U+i+1}], v[{g0+i}:{g0+i+1}]")
        for i in range(0, 16, 2): a(f"v_pk_add_f32 v[{Z+i}:{Z+i+1}], v[{Z+i}:{Z+i+1}], 1.0 op_sel_hi:[1,0]")
        for i in range(16): a(f"v_rcp_f32 v{Z+i}, v{Z+i}")
        a("s_nop 0")
        for i in range(0, 16, 2): a(f"v_pk_mul_f32 v[{U+i}:{U+i+1}], v[{U+i}:{U+i+1}], v[{Z+i}:{Z+i+1}]")
        for i in range(0, 16, 2): a(f"v_cvt_pk_bf16_f32 v{O+i//2}, v{U+i}, v{U+i+1}")
        for p in range(2):
            off = (nb >> 1)*opt.HS + (p*2 + (nb & 1))*1024
            a(f"s_add_u32 s31, s30, {off}")
            a(f"buffer_store_dwordx4 v[{O+4*p}:{O+4*p+3}], v26, s[12:15], s31 offen {opt.hflags}")
    stamp(a, 4)
    a("s_waitcnt vmcnt(0)")
    flag_store(a, 's23')

class VM:
    def __init__(s): s.ops = []
    def add(s, tag, n=1): s.ops += [tag]*n
    def wait(s, a, tag, extra=""):
        last = max(i for i, t in enumerate(s.ops) if t == tag)
        a(f"s_waitcnt vmcnt({min(63, len(s.ops)-1-last)}) {extra}")
RAW = 64; GT = 192; EU = 208; SV = 216
def fold_loads(a, vm):
    a("""
    s_lshl_b32 s26, s66, 2
    s_add_u32 s26, s26, s67
    s_lshl_b32 s26, s26, 4
    v_lshrrev_b32 v40, 3, v1
    v_add_u32 v40, s26, v40
    v_cmp_eq_u32 s[62:63], 0, v40
    v_and_b32 v2, 7, v1
    v_cmp_eq_u32 s[70:71], 0, v2
    v_add_u32 v44, 8, v40
    v_lshlrev_b32 v2, 4, v2
    s_lshl_b32 s26, s3, 8
    v_add_u32 v2, s26, v2
    v_sub_u32 v3, 1904, v2
    v_sub_u32 v41, 2048, v40
    v_sub_u32 v42, 1024, v40
    v_add_u32 v43, 1024, v40
    v_sub_u32 v45, 2048, v44
    v_sub_u32 v46, 1024, v44
    v_add_u32 v47, 1024, v44
    v_mov_b32 v4, 512
    v_mov_b32 v5, 1536
    v_cndmask_b32 v41, v41, v4, s[62:63]
    v_cndmask_b32 v43, v43, v5, s[62:63]
    s_sub_u32 s74, 2048, s26
    """)
    for k in range(8): a(f"v_lshl_add_u32 v{224+8*(k>>2)+(k&3)}, v{40+k}, 11, v2\n v_lshl_add_u32 v{228+8*(k>>2)+(k&3)}, v{40+k}, 11, v3")
    for gi in range(2):
        a(f"buffer_load_dwordx4 v[{GT+8*gi}:{GT+8*gi+3}], v2, s[32:35], 0 offen offset:{gi*128}")
        a(f"buffer_load_dwordx4 v[{GT+8*gi+4}:{GT+8*gi+7}], v3, s[32:35], 0 offen offset:{(1-gi)*128}")
        vm.add('g', 2)
def fold_round_loads(a, vm, rnd):
    if True:
        hf, gi = rnd >> 1, rnd & 1
        b = RAW + 32*rnd
        for i in range(4):
            a(f"buffer_load_dwordx4 v[{b+8*i}:{b+8*i+3}], v{224+8*hf+i}, s[4:7], 0 offen offset:{gi*128}")
            a(f"buffer_load_dwordx4 v[{b+8*i+4}:{b+8*i+7}], v{228+8*hf+i}, s[4:7], 0 offen offset:{(1-gi)*128}")
        if gi == 0:
            for i in range(4):
                a(f"v_lshlrev_b32 v4, 11, v{40+4*hf+i}\n buffer_load_ushort v{EU+4*hf+i}, v4, s[4:7], s74 offen")
            vm.add(f'r{rnd}', 12)
        else: vm.add(f'r{rnd}', 8)
def fold_compute(a, vm, between):
    LP = 8; UU = 16
    a(f"v_mov_b32 v24, {ALT}")
    for r in range(8, 24): a(f"v_mov_b32 v{r}, 0")
    a(f"""
    s_lshl_b32 s26, s66, 2
    s_add_u32 s26, s26, s67
    s_lshr_b32 s27, s26, 2
    s_lshl_b32 s27, s27, 16
    s_and_b32 s26, s26, 3
    s_lshl_b32 s26, s26, 10
    s_add_u32 s26, s26, s27
    s_lshl_b32 s27, s3, 14
    s_add_u32 s26, s26, s27
    s_add_u32 s22, s26, {WS_Z}
    v_bfe_u32 v2, v1, 2, 1
    v_lshlrev_b32 v25, 12, v2
    v_and_b32 v2, 3, v1
    v_lshl_add_u32 v25, v2, 8, v25
    v_lshrrev_b32 v2, 3, v1
    v_lshl_add_u32 v25, v2, 4, v25
    s_cmp_eq_u32 s3, 0
    s_cselect_b64 s[72:73], s[70:71], 0
    """)
    T = 240
    for rnd in range(4):
        hf, gi = rnd >> 1, rnd & 1
        b = RAW + 32*rnd; g = GT + 8*gi
        S = [224, RAW+96 if rnd < 2 else RAW+8, 48, 56]
        vm.wait(a, f'r{rnd}')
        if rnd in (0, 1): stamp(a, 19+2*rnd)
        for j in range(4):
            for i in range(4):
                a(f"v_dot2_f32_bf16 v{LP+4*hf+i}, v{b+8*i+j}, v{g+j}, v{LP+4*hf+i}")
            for i in range(4):
                a(f"v_dot2_f32_bf16 v{LP+4*hf+i}, v{b+8*i+4+j}, v{g+4+j}, v{LP+4*hf+i}")
        if hf == 0:
            for i in (1, 3):
                for j in range(8): a(f"v_cndmask_b32 v{b+8*i+j}, v{b+8*i+j}, 0, s[62:63]")
                if gi == 0: a(f"v_cndmask_b32 v{EU+i}, v{EU+i}, 0, s[62:63]")
        if gi == 0:
            for i in range(4): a(f"v_cndmask_b32 v{EU+4*hf+i}, v{EU+4*hf+i}, 0, s[72:73]")
            for i in range(4): a(f"v_mov_b32 v{SV+i}, v{b+8*i+4}")
        else:
            for i in range(4): a(f"v_mov_b32_dpp v{EU+4*hf+i}, v{SV+i} row_shl:7 row_mask:0xf bank_mask:0xf")
            for i in range(4): a(f"v_lshlrev_b32 v{2+i}, 16, v{b+8*i+4}")
            a(f"v_add_f32 v2, v2, v3\n v_add_f32 v4, v4, v5\n v_add_f32 v{26+2*hf}, v2, v4\n v_sub_f32 v{27+2*hf}, v2, v4")
        for i in range(4): a(f"v_mov_b32_dpp v{SV+4+i}, v{b+8*i+4} row_shr:1 row_mask:0xf bank_mask:0xf")
        for i in range(4): a(f"v_cndmask_b32 v{SV+4+i}, v{SV+4+i}, v{EU+4*hf+i}, s[70:71]")
        for i in range(4):
            for j in range(8): a(unp(T+j, b+8*i, j))
            a(f"v_lshlrev_b32 v{T+8}, 16, v{SV+4+i}")
            for j in range(1, 8): a(unp(T+8+j, b+8*i+4, 8-j))
            for j in range(0, 8, 2):
                a(pk('', S[i]+j, T+j, T+8+j))
                a(pk('', b+8*i+j, T+j, T+8+j, neg=True))
        for j in range(0, 8, 2):
            a(pk('', S[0]+j, S[0]+j, S[1]+j)); a(pk('', S[2]+j, S[2]+j, S[3]+j))
            a(pk('', b+j, b+j, b+8+j, neg=True)); a(pk('', b+16+j, b+16+j, b+24+j, neg=True))
        for j in range(0, 8, 2):
            a(pk('', S[1]+j, S[0]+j, S[2]+j)); a(pk('', S[3]+j, S[0]+j, S[2]+j, neg=True))
            a(pk('', b+8+j, b+j, b+16+j, neg=True)); a(pk('', b+24+j, b+j, b+16+j))
        for j in range(0, 8, 2):
            a(pk('', UU+4*hf, UU+4*hf, S[1]+j)); a(pk('', UU+4*hf+2, UU+4*hf+2, S[3]+j))
        for cls, src in enumerate((S[1], S[3], b+8, b+24)):
            o = b + 4*(cls & 1) + 16*(cls >> 1)
            for j in range(4): a(f"v_cvt_pk_bf16_f32 v{o+j}, v{src+2*j}, v{src+2*j+1}")
            a(f"s_add_u32 s26, s22, {cls*524288 + gi*8192 + hf*128}")
            a(f"buffer_store_dwordx4 v[{o}:{o+3}], v25, s[12:15], s26 offen sc1")
            vm.add('st')
        if rnd in (0, 1): stamp(a, 20+2*rnd)
        between(rnd)
    a("""
    s_cmp_eq_u32 s3, 3
    s_cselect_b32 s26, 0x80808080, 0
    s_mov_b32 s27, s26
    v_sub_f32 v16, v16, v17
    v_sub_f32 v17, v18, v19
    v_sub_f32 v18, v20, v21
    v_sub_f32 v19, v22, v23
    """)
    for k in range(4): a(f"v_cndmask_b32 v{20+k}, 0, v{26+k}, s[26:27]")
    for k in range(4): a(f"v_add_f32 v{16+k}, v{16+k}, v{20+k}")
    a("s_nop 0")
    for ctl in ("quad_perm:[1,0,3,2]", "quad_perm:[2,3,0,1]", "row_half_mirror"):
        for r in range(8, 20): a(f"v_add_f32_dpp v{r}, v{r}, v{r} {ctl} row_mask:0xf bank_mask:0xf")
    a(f"""
    s_lshl_b32 s26, s3, 2
    s_lshl_b32 s27, s3, 11
    s_add_u32 s27, s27, {WS_UP}
    s_mov_b32 s28, {WS_CV}
    s_add_u32 s29, s27, 8192
    """)
    for k in range(8): a(f"v_lshl_add_u32 v{68+k}, v{40+k}, 4, s26")
    a(f"v_lshlrev_b32 v76, 2, v40\n s_mov_b32 s26, {WS_LP}\n s_mov_b64 exec, s[70:71]")
    for k in range(8): a(f"buffer_store_dword v{8+k}, v{68+k}, s[12:15], s26 offen sc1")
    for hf in range(2):
        a(f"buffer_store_dword v{16+2*hf}, v76, s[12:15], s27 offen offset:{32*hf} sc1\n buffer_store_dword v{17+2*hf}, v76, s[12:15], s29 offen offset:{32*hf} sc1")
    a(f"""
    s_mov_b64 exec, -1
    s_cmp_lg_u32 s3, 3
    s_cbranch_scc1 L_fc2
    s_mov_b32 exec_lo, 0x80808080
    s_mov_b32 exec_hi, 0x80808080
    buffer_store_dword v26, v76, s[12:15], s28 offen sc1
    buffer_store_dword v27, v76, s[12:15], s28 offen offset:2048 sc1
    buffer_store_dword v28, v76, s[12:15], s28 offen offset:32 sc1
    buffer_store_dword v29, v76, s[12:15], s28 offen offset:2080 sc1
    s_mov_b64 exec, -1
    L_fc2:
    """)

def sh_voff(a, vb, rs_shift, srow):
    a(f"""
    v_lshrrev_b32 v2, 3, v1
    s_lshl_b32 s26, s3, 5
    v_add_u32 v2, s26, v2
    v_lshlrev_b32 v2, {rs_shift}, v2
    v_add_u32 v2, s{srow}, v2
    v_lshrrev_b32 v3, 4, v1
    v_and_b32 v4, 7, v1
    v_xor_b32 v3, v3, v4
    v_lshl_add_u32 v{vb}, v3, 4, v2
    v_xor_b32 v3, 4, v3
    v_lshl_add_u32 v{vb+1}, v3, 4, v2
    v_add_u32 v{vb+2}, {2*((8<<rs_shift)-1024)}, v{vb}
    v_add_u32 v{vb+3}, {3*((8<<rs_shift)-1024)}, v{vb+1}
    v_add_u32 v{vb+1}, {((8<<rs_shift)-1024)}, v{vb+1}
    """)
def sh_touch(a, sr, rs_shift, srow):
    a(f"""
    s_lshl_b32 s26, s67, 5
    s_lshl_b32 s27, s3, 3
    s_add_u32 s26, s26, s27
    v_lshrrev_b32 v2, 3, v1
    v_add_u32 v2, s26, v2
    v_lshlrev_b32 v2, {rs_shift}, v2
    v_and_b32 v3, 7, v1
    v_lshl_add_u32 v2, v3, 7, v2
    buffer_load_dword a255, v2, s[{sr}:{sr+3}], s{srow} offen
    """)
def sh_dma(vb, sr): return [f"buffer_load_dwordx4 v{vb+i}, s[{sr}:{sr+3}], s17 offen offset:{i*1024} lds" for i in range(4)]

def dloop(a, name, nm, accb, dma, extra=False, first=True, init=None, D=8, inc=128, mid=None):
    PB = 128; SF = 64
    def pl(i, off): return f"buffer_load_dwordx4 v[{PB+4*i}:{PB+4*i+3}], v12, s[32:35], s16 offen offset:{off} sc1"
    def sreads(st, ks): return [f"ds_read_b128 v[{SF+st*32+4*nb}:{SF+st*32+4*nb+3}], v{18+ks} offset:{nb*2048}" for nb in range(8)]
    if first:
        a("s_mov_b32 s16, 0")
        for t in range(D):
            for i in range(nm): a(pl(t*nm+i, i*1024))
            a(f"s_add_u32 s16, s16, {nm*1024}")
        a("v_mov_b32 v18, v16\n v_mov_b32 v19, v17")
        for x in sreads(0, 0): a(x)
        a(f"s_mov_b32 s19, 0\n s_mov_b32 s20, {SLOT3}\n s_waitcnt vmcnt({D*nm})")
        init()
    a(f"s_mov_b32 s18, 0\n s_mov_b32 s17, 0")
    a(f".p2align 6\nL_{name}_loop:")
    NM = 8*nm
    if mid: mid()
    for t in range(8):
        ks = t & 1
        ms = []
        for mb in range(nm):
            for nb in range(8):
                c = accb + (nb*nm+mb)*4; pa = PB + ((t % D)*nm+mb)*4; sb = SF + ks*32 + nb*4
                ms.append(f"{MF} a[{c}:{c+3}], v[{pa}:{pa+3}], v[{sb}:{sb+3}], a[{c}:{c+3}]")
        f = {-1: [f"s_waitcnt vmcnt({(D-1)*nm}) lgkmcnt(0)"]}
        if extra:
            L = f"L_{name}_x{t}"
            f[-1] += ["s_cmp_eq_u32 s31, 0", f"s_cbranch_scc1 {L}"] + \
                     [f"{MF} a[{128+4*mb}:{131+4*mb}], v[{PB+(t*nm+mb)*4}:{PB+(t*nm+mb)*4+3}], v[24:27], a[{128+4*mb}:{131+4*mb}]" for mb in range(nm)] + [f"{L}:"]
        if ks == 1:
            f[0] = ["s_barrier", "v_add_u32 v18, s20, v16"]
            rd = sreads(0, 0)
        else:
            rd = sreads(1, 1)
        sp = NM // 16
        for k, x in enumerate(rd): f.setdefault(1+sp*k, []).append(x)
        for mb in range(nm): f.setdefault(8*mb+7, []).append(pl((t % D)*nm+mb, mb*1024))
        f[NM-1].append(f"s_add_u32 s16, s16, {nm*1024}")
        if ks == 1:
            if dma:
                f.setdefault(1, []).append("s_add_u32 m0, s21, s19")
                for k, x in enumerate(sh_dma(*dma)): f.setdefault(2+(NM//5)*k, []).append(x)
                f.setdefault(NM-3, []).append(f"s_add_u32 s17, s17, {inc}")
            f.setdefault(NM//2+1, []).append("v_add_u32 v19, s20, v17")
            f.setdefault(NM-3, []).extend(["s_mov_b32 s19, s20", f"s_add_u32 s20, s20, {SLOT3}"])
            f.setdefault(NM-2, []).append(f"s_and_b32 s20, s20, {R3*SLOT3-1}")
        interleave(a, ms, f)
    a(f"s_add_u32 s18, s18, 1\n s_cmp_lt_u32 s18, 2\n s_cbranch_scc1 L_{name}_loop")

def tile_vec(a, vec):
    a("""
    s_lshl_b32 s26, s67, 5
    s_lshl_b32 s27, s3, 3
    s_add_u32 s26, s26, s27
    s_lshl_b32 s27, s26, 7
    v_lshrrev_b32 v2, 3, v1
    v_lshlrev_b32 v2, 14, v2
    v_add_u32 v2, s27, v2
    s_lshr_b32 s26, s26, 1
    v_and_b32 v3, 7, v1
    v_xor_b32 v3, s26, v3
    v_and_b32 v3, 7, v3
    """)
    for i in range(8):
        a(f"v_xor_b32 v4, {i>>1}, v3\n v_lshl_add_u32 v4, v4, 4, v2\n ds_read_b128 v[{96+4*i}:{99+4*i}], v4 offset:{i*128}")
    for i in range(8): a(f"v_mov_b32 v{40+i}, 0")
    a("s_waitcnt lgkmcnt(0)")
    for j in range(4):
        for i in range(8): a(f"v_dot2_f32_bf16 v{40+i}, v{96+4*i+j}, v{vec+j}, v{40+i}")
    a("s_nop 2")
    reduce_lanes(a, list(range(40, 48)), 48, ['ror1', 'ror2', 'ror4', 'ror8', 'p16', 'p32'])
    for i in range(1, 8): a(f"v_cmp_eq_u32 vcc, {i}, v1\n s_nop 1\n v_cndmask_b32 v40, v40, v{40+i}, vcc")

def acc_load(a, nm, vb, svec, wshift, off=0):
    a(f"v_lshrrev_b32 v2, 4, v1\n v_lshlrev_b32 v2, 4, v2\n s_lshl_b32 s26, s3, {wshift}\n v_add_u32 v2, s26, v2")
    for mb in range(nm): a(f"buffer_load_dwordx4 v[{vb+4*mb}:{vb+3+4*mb}], v2, s[12:15], s{svec} offen offset:{off+mb*64} sc1")
def acc_init(a, nm, vb, accb, sscale, withx=False):
    a(f"v_lshlrev_b32 v3, 31, v1")
    for i in range(4*nm): a(f"v_mul_f32 v{vb+i}, s{sscale}, v{vb+i}")
    if withx:
        for i in range(4*nm): a(f"v_accvgpr_write_b32 a{128+i}, v{vb+i}")
    for i in range(4*nm): a(f"v_xor_b32 v{vb+i}, v3, v{vb+i}")
    for nb in range(8):
        for i in range(4*nm): a(f"v_accvgpr_write_b32 a{accb+nb*4*nm+i}, v{vb+i}")

def dft(a):
    vm = VM()
    srd(a, 32, 60, 2048)
    a("""
    v_lshlrev_b32 v2, 4, v1
    v_sub_u32 v3, 2032, v2
    s_mov_b32 s26, 0x100000
    s_mov_b32 s27, 0x300000
    buffer_load_dwordx4 v[128:131], v2, s[4:7], s26 offen
    buffer_load_dwordx4 v[132:135], v3, s[4:7], s26 offen
    buffer_load_dwordx4 v[140:143], v2, s[4:7], s27 offen
    buffer_load_dwordx4 v[144:147], v3, s[4:7], s27 offen
    """); vm.add('z', 4)
    fold_loads(a, vm)
    fold_round_loads(a, vm, 0); fold_round_loads(a, vm, 1)
    a("s_lshr_b32 s30, s66, 2\n s_cmp_eq_u32 s30, 0\n s_cselect_b32 s26, s56, s58\n s_cselect_b32 s27, s57, s59")
    srd(a, 8, 26, 1024*1024*2)
    a("s_and_b32 s25, s66, 3\n s_lshl_b32 s25, s25, 18\n s_lshl_b32 s21, s3, 12")
    sh_voff(a, 32, 11, 25)
    srd(a, 36, 52, 2048*2048*2)
    srd(a, 80, 54, 2048*2048*2)
    a("s_and_b32 s24, s66, 3\n s_lshl_b32 s24, s24, 8\n s_add_u32 s24, s24, s30\n s_lshl_b32 s24, s24, 12")
    a("s_waitcnt lgkmcnt(0)\n s_mov_b32 s17, 0")
    nonce(a)
    started(a)
    stamp(a, 9)
    vm.wait(a, 'z')
    a("v_mov_b32 v136, 0\n v_mov_b32 v148, 0\n s_cmp_eq_u32 s30, 0\n s_cselect_b32 s26, 1.0, -1.0")
    a("v_mov_b32_dpp v136, v132 wave_shr:1 row_mask:0xf bank_mask:0xf\n v_mov_b32_dpp v148, v144 wave_shr:1 row_mask:0xf bank_mask:0xf")
    for k, b in enumerate((128, 140)):
        for j in range(8): a(unp(160+16*k+j, b, j))
        a(f"v_lshlrev_b32 v{168+16*k}, 16, v{b+8}")
        for j in range(1, 8): a(unp(168+16*k+j, b+4, 8-j))
    for j in range(16): a(f"v_fma_f32 v{160+j}, v{176+j}, s26, v{160+j}")
    for j in range(8): a(f"v_fma_f32 v{160+j}, v{168+j}, s26, v{160+j}")
    for j in range(4): a(f"v_cvt_pk_bf16_f32 v{36+j}, v{160+2*j}, v{161+2*j}")
    a("v_lshlrev_b32 v2, 16, v132\n v_lshlrev_b32 v3, 16, v144\n v_add_f32 v2, v2, v3\n s_nop 0\n v_readlane_b32 s75, v2, 63\n s_cselect_b32 s75, s75, 0")
    a(pk('', 160, 160, 162)); a(pk('', 164, 164, 166)); a(pk('', 160, 160, 164)); a("v_sub_f32 v160, v160, v161")
    reduce_lanes(a, [160], 176, ['ror1', 'ror2', 'ror4', 'ror8', 'p16', 'p32'])
    a("v_add_f32 v160, s75, v160\n s_nop 0\n v_readfirstlane_b32 s97, v160")
    def between(rnd):
        if rnd < 2: fold_round_loads(a, vm, rnd+2)
        for s in ((0, 1, 2), (3, 4, 5), (6, 7), ())[rnd]:
            a(f"s_add_u32 m0, s21, {s*SLOT3}\n s_nop 0")
            for x in sh_dma(32, 8): a(x)
            a("s_add_u32 s17, s17, 128")
            vm.add('pf', 4)
    fold_compute(a, vm, between)
    stamp(a, 1)
    a("s_waitcnt vmcnt(16)\n s_barrier")
    tile_vec(a, 36)
    a(f"""
    v_lshlrev_b32 v2, 31, v1
    v_xor_b32 v2, s75, v2
    v_add_f32 v40, v40, v2
    s_lshl_b32 s26, s66, 7
    s_lshl_b32 s27, s67, 5
    s_add_u32 s26, s26, s27
    s_lshl_b32 s27, s3, 3
    s_add_u32 s26, s26, s27
    s_lshl_b32 s26, s26, 2
    s_add_u32 s26, s26, {WS_RV}
    v_lshlrev_b32 v2, 2, v1
    s_waitcnt vmcnt(0)
    s_barrier
    s_mov_b64 exec, 0xff
    buffer_store_dword v40, v2, s[12:15], s26 offen sc1
    s_mov_b64 exec, -1
    s_lshl_b32 s23, s66, 2
    s_add_u32 s23, s23, s67
    s_lshl_b32 s23, s23, 7
    s_add_u32 s23, s23, {WS_FL+16384}
    s_cmp_lg_u32 s3, 0
    s_cbranch_scc1 L_s1p
    """)
    flag_store(a, 's23')
    a("L_s1p:")
    stamp(a, 10)
    sh_voff(a, 20, 13, 24)
    a("v_lshlrev_b32 v12, 4, v1")
    a("""
    v_and_b32 v2, 15, v1
    v_lshrrev_b32 v3, 1, v2
    v_lshrrev_b32 v4, 4, v1
    v_xor_b32 v3, v3, v4
    v_lshlrev_b32 v2, 7, v2
    v_lshl_add_u32 v16, v3, 4, v2
    v_xor_b32 v3, 4, v3
    v_lshl_add_u32 v17, v3, 4, v2
    """)
    a(f"""
    s_lshl_b32 s26, s30, 1
    s_lshr_b32 s27, s67, 1
    s_add_u32 s26, s26, s27
    s_lshl_b32 s26, s26, 3
    s_and_b32 s27, s67, 1
    s_lshl_b32 s27, s27, 2
    s_add_u32 s26, s26, s27
    s_add_u32 s26, s26, s3
    s_lshl_b32 s26, s26, 16
    s_add_u32 s22, s26, {WS_Z}
    """)
    srd_ws(a, 32, 22, 65536)
    a(f"s_and_b32 s23, s67, 1\n s_lshl_b32 s23, s23, 2\n s_add_u32 s23, s23, s3\n s_lshl_b32 s23, s23, 9\n s_add_u32 s23, s23, {WS_FL+16384}")
    poll(a, [('s23', '0xf')], cnt=4)
    stamp(a, 2)
    a(f"s_lshl_b32 s22, s67, 10\n s_add_u32 s22, s22, {WS_CV}\n s_cmp_eq_u32 s30, 0\n s_cselect_b32 s23, 1.0, 0")
    acc_load(a, 4, 32, 22, 8)
    dloop(a, 'd1', 4, 0, (20, 36), D=4, mid=lambda: a(f"s_mov_b32 s31, {WS_FL+16384}\n v_and_b32 v6, 31, v1\n v_lshlrev_b32 v6, 7, v6\n buffer_load_dwordx2 v[48:49], v6, s[12:15], s31 offen sc1"), init=lambda: (acc_init(a, 4, 32, 0, 23), stamp(a, 11)))
    a("s_lshl_b32 s22, s30, 13\n" + f"s_add_u32 s22, s22, {WS_UP}\n v_lshlrev_b32 v2, 5, v1\n s_add_u32 s23, s22, 4096")
    a(f"s_waitcnt lgkmcnt(0)\n s_nop 7")
    stamp(a, 3)
    a("v_cmp_ne_u32 vcc, s98, v48\n v_cmp_ne_u32 s[28:29], s99, v49\n s_or_b64 vcc, vcc, s[28:29]\n s_and_b64 vcc, vcc, 0xffffffff\n s_cbranch_scc0 L_uok")
    poll(a, [('s31', '0xffffffff')], cnt=32)
    a("s_waitcnt vmcnt(0)\n L_uok:")
    for i in range(8): a(f"buffer_load_dwordx4 v[{128+4*i}:{131+4*i}], v2, s[12:15], s{22+(i>>2)} offen offset:{((i>>1)&1)*2048+(i&1)*16} sc1")
    a(f"""
    v_lshrrev_b32 v2, 4, v1
    v_and_b32 v3, 1, v2
    v_lshrrev_b32 v2, 1, v2
    v_lshl_add_u32 v2, v3, 1, v2
    v_and_b32 v3, 15, v1
    v_lshlrev_b32 v3, 4, v3
    v_lshl_add_u32 v14, v2, 8, v3
    s_lshr_b32 s26, s67, 1
    s_lshl_b32 s26, s26, 4
    s_and_b32 s27, s66, 3
    s_lshl_b32 s27, s27, 2
    s_add_u32 s26, s26, s27
    s_lshl_b32 s26, s26, 16
    s_lshl_b32 s27, s30, 15
    s_add_u32 s26, s26, s27
    s_and_b32 s27, s67, 1
    s_lshl_b32 s27, s27, 14
    s_add_u32 s26, s26, s27
    s_lshl_b32 s27, s3, 12
    s_add_u32 s26, s26, s27
    s_add_u32 s25, s26, {WS_AT}
    """)
    for nb in range(8):
        t = 32 + (nb & 1)*24
        for i in range(16): a(f"v_accvgpr_read_b32 v{t+i}, a{nb*16+i}")
        for i in range(8): a(f"v_cvt_pk_bf16_f32 v{t+16+i}, v{t+2*i}, v{t+2*i+1}")
        a("s_nop 1")
        for p in range(2):
            a(f"v_permlane16_swap_b32 v{t+16+4*p}, v{t+18+4*p}\n v_permlane16_swap_b32 v{t+17+4*p}, v{t+19+4*p}")
        for p in range(2):
            a(f"s_add_u32 s26, s25, {(nb >> 1)*65536 + p*2048 + (nb & 1)*1024}")
            a(f"buffer_store_dwordx4 v[{t+16+4*p}:{t+19+4*p}], v14, s[12:15], s26 offen sc1")
    a(f"s_and_b32 s26, s66, 3\n s_lshl_b32 s26, s26, 1\n s_add_u32 s26, s26, s30\n s_lshl_b32 s26, s26, 2\n s_add_u32 s26, s26, s67\n s_lshl_b32 s26, s26, 7\n s_add_u32 s23, s26, {WS_FL+24576}")
    stamp(a, 12)
    a("s_waitcnt vmcnt(16)\n s_barrier")
    for j in range(0, 8, 2): a(pk('', 128+j, 128+j, 136+j)); a(pk('', 144+j, 144+j, 152+j))
    for j in range(0, 8, 2): a(pk('', 128+j, 128+j, 144+j))
    for j in range(4): a(f"v_cvt_pk_bf16_f32 v{60+j}, v{128+2*j}, v{129+2*j}")
    tile_vec(a, 60)
    a(f"v_mov_b32 v41, 0\n v_mov_b32 v42, {ALT}")
    for j in range(4): a(f"v_dot2_f32_bf16 v41, v{60+j}, v42, v41")
    a("s_nop 2")
    reduce_lanes(a, [41], 48, ['ror1', 'ror2', 'ror4', 'ror8', 'p16', 'p32'])
    a(f"""
    v_cmp_eq_u32 vcc, 8, v1
    s_cmp_eq_u32 s30, 0
    s_cselect_b32 s26, 1.0, 0
    v_cndmask_b32 v40, v40, v41, vcc
    v_mov_b32 v160, s97
    v_mul_f32 v160, s26, v160
    v_lshlrev_b32 v2, 31, v1
    v_xor_b32 v2, v2, v160
    v_add_f32 v40, v40, v2
    v_cvt_pk_bf16_f32 v40, v40, v40
    s_and_b32 s26, s66, 3
    s_lshl_b32 s26, s26, 7
    s_lshl_b32 s27, s67, 5
    s_add_u32 s26, s26, s27
    s_lshl_b32 s27, s3, 3
    s_add_u32 s26, s26, s27
    v_add_u32 v3, s26, v1
    v_mov_b32 v4, 512
    v_cndmask_b32 v3, v3, v4, vcc
    v_lshlrev_b32 v3, 6, v3
    s_mul_i32 s26, s30, {TPS}
    s_add_u32 s26, s26, {WS_Y + 16*EGS}
    s_add_u32 s27, s26, {YD}
    s_cmp_eq_u32 s30, 0
    s_mov_b32 s28, 0xff
    s_cselect_b32 exec_lo, 0x1ff, s28
    s_mov_b32 exec_hi, 0
    v_mov_b32 v41, v3
    s_mov_b64 s[76:77], exec
    s_mov_b64 exec, -1
    """)
    publish(a, 's23')
    a("s_mov_b64 exec, s[76:77]\n buffer_store_dword v40, v41, s[12:15], s26 offen sc1\n buffer_store_dword v40, v41, s[12:15], s27 offen sc1\n s_mov_b64 exec, -1")
    stamp(a, 13)
    a(f"""
    s_lshl_b32 s26, s30, 4
    s_lshl_b32 s27, s67, 2
    s_add_u32 s26, s26, s27
    s_add_u32 s26, s26, s3
    s_lshl_b32 s26, s26, 16
    s_add_u32 s22, s26, {WS_AT}
    """)
    srd_ws(a, 32, 22, 65536)
    a(f"""
    s_lshl_b32 s23, s67, 10
    s_add_u32 s23, s23, {WS_FL+24576}
    s_cmp_eq_u32 s66, 0
    s_cselect_b32 s31, 1, 0
    v_mov_b32 v24, {ALT}
    v_mov_b32 v25, {ALT}
    v_mov_b32 v26, {ALT}
    v_mov_b32 v27, {ALT}
    """)
    srd(a, 4, 88, 3584*1024*2)
    g2_voff(a, 8, 4)
    a("s_cmp_lg_u32 s3, 0\n s_cbranch_scc1 L_s2_nopoll")
    poll(a, [('s23', '0xff')], gap=2, cnt=8)
    a("L_s2_nopoll:\n s_barrier")
    stamp(a, 4)
    a(f"s_lshl_b32 s22, s67, 9\n s_add_u32 s22, s22, {WS_RV}\n s_cmp_eq_u32 s30, 0\n s_cselect_b32 s23, 1.0, 0")
    a("s_cselect_b32 s25, 0, -1.0")
    acc_load(a, 2, 32, 22, 7)
    acc_load(a, 2, 40, 22, 7, 2048)
    dloop(a, 'd2a', 2, 0, (20, 80), extra=True, init=lambda: (acc_init(a, 2, 32, 0, 23, True), acc_init(a, 2, 40, 64, 25), stamp(a, 14)))
    stamp(a, 15)
    dloop(a, 'd2b', 2, 64, (8, 4), first=False, inc=64*2048)
    stamp(a, 16)
    a("s_waitcnt lgkmcnt(0)\n s_nop 7")
    a(f"""
    v_and_b32 v2, 15, v1
    v_lshlrev_b32 v20, 6, v2
    v_lshrrev_b32 v3, 4, v1
    v_and_b32 v4, 1, v3
    v_lshl_add_u32 v20, v4, 5, v20
    v_lshrrev_b32 v4, 1, v3
    v_lshl_add_u32 v20, v4, 4, v20
    v_lshlrev_b32 v21, 3, v3
    s_lshl_b32 s22, s67, 2
    s_add_u32 s22, s22, s3
    s_mul_i32 s22, s22, {EGS}
    s_mul_i32 s27, s30, {TPS}
    s_add_u32 s22, s22, s27
    s_add_u32 s22, s22, {WS_Y}
    s_and_b32 s26, s66, 3
    s_lshl_b32 s26, s26, 13
    s_add_u32 s25, s22, s26
    """)
    for nb in range(8):
        t = 32 + (nb & 1)*32
        for i in range(8): a(f"v_accvgpr_read_b32 v{t+i}, a{nb*8+i}\n v_accvgpr_read_b32 v{t+8+i}, a{64+nb*8+i}")
        for i in range(0, 8, 2): a(pk('', t+16+i, t+i, t+8+i, neg=True)); a(pk('', t+i, t+i, t+8+i))
        for i in range(4): a(f"v_cvt_pk_bf16_f32 v{t+24+i}, v{t+16+2*i}, v{t+17+2*i}\n v_cvt_pk_bf16_f32 v{t+28+i}, v{t+2*i}, v{t+2*i+1}")
        a("s_nop 1")
        for p in range(2):
            a(f"v_permlane16_swap_b32 v{t+24+4*p}, v{t+26+4*p}\n v_permlane16_swap_b32 v{t+25+4*p}, v{t+27+4*p}")
        for p in range(2):
            a(f"s_add_u32 s26, s25, {nb*1024 + p*YD}")
            a(f"buffer_store_dwordx4 v[{t+24+4*p}:{t+27+4*p}], v20, s[12:15], s26 offen sc1")
    a("s_cmp_eq_u32 s31, 0\n s_cbranch_scc1 L_dft_nox")
    for i in range(8): a(f"v_accvgpr_read_b32 v{32+i}, a{128+i}")
    for i in range(4): a(f"v_cvt_pk_bf16_f32 v{40+i}, v{32+2*i}, v{33+2*i}")
    a(f"s_add_u32 s26, s22, {512*64}\n s_add_u32 s27, s26, {YD}\n s_mov_b32 exec_lo, 0x00010001\n s_mov_b32 exec_hi, 0x00010001")
    for mb in range(2):
        a(f"buffer_store_dwordx2 v[{40+2*mb}:{41+2*mb}], v21, s[12:15], s26 offen offset:{mb*32} sc1\n buffer_store_dwordx2 v[{40+2*mb}:{41+2*mb}], v21, s[12:15], s27 offen offset:{mb*32} sc1")
    a("s_mov_b64 exec, -1\nL_dft_nox:")
    stamp(a, 17)
    a(f"s_lshl_b32 s23, s66, 2\n s_add_u32 s23, s23, s67\n s_lshl_b32 s23, s23, 7\n s_add_u32 s23, s23, {WS_FL+32768}")
    publish(a, 's23')
    stamp(a, 18)


def kern():
    a = Asm()
    a(f"""
    s_cmp_ge_u32 s2, 256
    s_cbranch_scc1 L_end
    s_load_dwordx2 s[40:41], s[0:1], 0
    s_load_dwordx4 s[44:47], s[0:1], 48
    s_load_dwordx2 s[48:49], s[0:1], 96
    s_load_dwordx2 s[88:89], s[0:1], 64
    s_load_dwordx2 s[42:43], s[0:1], 80
    s_load_dwordx8 s[52:59], s[0:1], 8
    s_load_dwordx2 s[60:61], s[0:1], 72
    s_getpc_b64 s[28:29]
    s_lshr_b32 s27, s2, 3
    s_mul_i32 s26, s27, {CODE_LINES*128}
    v_lshlrev_b32 v2, 7, v0
    v_add_u32 v2, s26, v2
    v_cmp_gt_u32 vcc, {CODE_LINES}, v0
    s_and_saveexec_b64 s[30:31], vcc
    s_cbranch_execz L_nocp
    global_load_dword a255, v2, s[28:29]
    L_nocp:
    s_mov_b64 exec, s[30:31]
    v_and_b32 v1, 63, v0
    v_lshrrev_b32 v2, 6, v0
    s_and_b32 s66, s2, 7
    v_readfirstlane_b32 s3, v2
    s_lshr_b32 s27, s2, 3
    s_sub_u32 s67, s27, 28
    s_and_b32 s24, s66, 1
    s_lshl_b32 s24, s24, 2
    s_and_b32 s68, s27, 3
    s_add_u32 s24, s24, s68
    s_lshr_b32 s25, s66, 1
    s_mul_i32 s25, s25, 7
    s_lshr_b32 s69, s27, 2
    s_add_u32 s25, s25, s69
    """)
    stamp(a, 0)
    if opt.spin: a("s_memrealtime s[100:101]")
    a(f"s_waitcnt lgkmcnt(0)\n s_add_u32 s28, s48, {WS_FL}\n s_addc_u32 s29, s49, 0\n s_load_dword s98, s[28:29], 0")
    if opt.stamp: stamp(a, 23)
    srd(a, 4, 40, 2048*1024*2)
    srd(a, 12, 48, WS_SZ)
    g2_tile(a)
    a("s_lshr_b32 s27, s2, 3\n s_cmp_ge_u32 s27, 28\n s_cbranch_scc1 L_dft")
    gemm1(a)
    a("s_branch L_g2")
    a("L_dft:")
    dft(a)
    a("L_g2:")
    if opt.trace: stamp_flush(a, 1)
    gemm2(a)
    a("L_end:")
    if opt.spin:
        a(f"s_cmp_lg_u32 s2, 0\n s_cbranch_scc1 L_end3\n L_spin:\n s_memrealtime s[92:93]\n s_waitcnt lgkmcnt(0)\n s_sub_u32 s92, s92, s100\n s_cmp_lt_u32 s92, {opt.spin}\n s_cbranch_scc1 L_spin\n L_end3:")
    if opt.stamp:
        a("s_cmp_ge_u32 s2, 256\n s_cbranch_scc1 L_end2\n s_mov_b64 exec, -1")
        srd(a, 12, 48, WS_SZ)
        stamp(a, 8)
        stamp_flush(a, 0)
        if opt.dbgmax:
            a("s_load_dwordx2 s[28:29], s[0:1], 88\n v_subrev_u32 v2, 40, v1\n v_lshlrev_b32 v2, 2, v2\n v_not_b32 v3, v31\n v_cmp_eq_u32 vcc, 40, v1\n s_nop 1\n v_cndmask_b32 v31, v31, v3, vcc")
            a("s_lshr_b32 s27, s2, 3\n s_cmp_ge_u32 s27, 28\n s_cbranch_scc1 L_dm_d\n s_mov_b32 exec_lo, 0\n s_mov_b32 exec_hi, 0x1ff00\n s_branch L_dm_go\n L_dm_d:")
            for k, w in ((1, 9), (2, 10), (3, 11), (4, 12), (16, 13), (18, 14), (0, 15)):
                a(f"v_mov_b32 v3, {4*w}\n v_cmp_eq_u32 vcc, {40+k}, v1\n s_nop 1\n v_cndmask_b32 v2, v2, v3, vcc")
            m = sum(1 << (8+k) for k in (0, 1, 2, 3, 4, 16, 18))
            a(f"s_mov_b32 exec_lo, 0\n s_mov_b32 exec_hi, {m}\n L_dm_go:\n s_waitcnt lgkmcnt(0)\n global_atomic_umax v2, v31, s[28:29] sc1\n s_waitcnt vmcnt(0)")
        a("L_end2:")
    return kernel(KN, a.text(), vgpr=256, agpr=256)

KN = 'gated_mix__spectral_fnet__geglu_ffn__prompt_kernel'
def main():
    fn = sys.argv[1]
    for o in sys.argv[2:]:
        k, v = o.split('=', 1)
        setattr(opt, k, eval(v))
    c, d = kern()
    hdr = open('gated_mix__spectral_fnet__geglu_ffn__prompt.s.ref').read().split('; Override launch')[0]
    src = hdr + f'; @launch grid=(256,1,1) block=(256,1,1) lds={R1*SLOT1}\n.amdgcn_target "amdgcn-amd-amdhsa--gfx950"\n' + c + '.text\n.fill 1024, 4, 0xbf800000\n' + d
    open(fn, 'w').write(src)
if __name__ == '__main__': main()
```

```python
import sys, math, struct
from ab import *

WS_H   = 0
HS     = 262144
WS_Z   = (16 << 20) + 65536
WS_AT  = (18 << 20) + 131072
WS_Y   = (20 << 20) + 196608
YD     = 2 << 20
EGS    = 528*64
TPS    = 17*EGS
WS_LP  = (24 << 20) + 131072
WS_UP  = WS_LP + 32768
WS_CV  = WS_UP + 32768
WS_RV  = WS_CV + 4096
WS_FL  = 25 << 20
WS_XB  = 26 << 20
WS_TS  = 40 << 20
WS_SZ  = 256 << 20
OOB = 0x40000000
ALT = 0xBF803F80
R1 = 5; SLOT1 = 32768
R2 = 8; SLOT2 = 16384
R3 = 8; SLOT3 = 16384
MF = "v_mfma_f32_16x16x32_bf16"
class Opt: pass
opt = Opt()
opt.stamp = False; opt.trace = False; opt.hflags = 'sc1'; opt.psleep = 4; opt.order = 3; opt.tlb = True; opt.smem = True; opt.dbgmax = False; opt.nt_fold = ''; opt.nt_w = ''; opt.nt_c = ''; opt.fmask = 0xffff; opt.x2 = 0; opt.rdo = [1,1,2,2,3,3,4,4,5,5,6,6,7,7,9,9]; opt.rde = [0,0,1,1,2,2,3,3,4,5,6,7,9,10,11,12]; opt.dmo = [3, 7]; opt.HS = 229376; opt.tlb2 = False; opt.g2gap = 2; opt.spin = 0; opt.oflags = ''; opt.g2touch = False; opt.tflags = ''; opt.killw = None
fbits = lambda x: struct.unpack('<I', struct.pack('<f', x))[0]
CODE_LINES = 12

def srd(a, d, base, size):
    a(f"s_mov_b32 s{d}, s{base}\n s_and_b32 s{d+1}, s{base+1}, 0xffff\n s_mov_b32 s{d+2}, {size}\n s_mov_b32 s{d+3}, 0x20000")
def srd_ws(a, d, soff, size):
    a(f"s_add_u32 s{d}, s48, s{soff}\n s_addc_u32 s{d+1}, s49, 0\n s_and_b32 s{d+1}, s{d+1}, 0xffff\n s_mov_b32 s{d+2}, {size}\n s_mov_b32 s{d+3}, 0x20000")
def interleave(a, mfmas, fill):
    for s in fill.get(-1, []): a(s)
    for i, m in enumerate(mfmas):
        a(m)
        for s in fill.get(i, []): a(s)
def lab(a, p): return f"L_{p}_{len(a.l)}"

def stamp(a, idx):
    if not opt.stamp: return
    a(f"s_memrealtime s[92:93]\n s_memtime s[94:95]\n s_waitcnt lgkmcnt(0)\n v_writelane_b32 v31, s92, {40+idx}\n v_writelane_b32 v30, s94, {40+idx}")
def trace_ops(sidx):
    return ["s_memtime s[92:93]", "s_memrealtime s[94:95]", "s_waitcnt lgkmcnt(0)", f"v_cmp_eq_u32 vcc, {sidx}, v1", "v_mov_b32 v28, s92", "v_mov_b32 v29, s94",
            "v_cndmask_b32 v30, v30, v28, vcc", "v_cndmask_b32 v31, v31, v29, vcc"]
def stamp_flush(a, half):
    if not opt.stamp: return
    a(f"s_lshl_b32 s90, s2, 2\n s_add_u32 s90, s90, s3\n s_lshl_b32 s90, s90, 9\n s_add_u32 s90, s90, {WS_TS + half*524288}")
    a(f"v_lshlrev_b32 v28, 3, v1\n buffer_store_dwordx2 v[30:31], v28, s[12:15], s90 offen")

def nonce(a):
    a("s_mul_i32 s98, s98, 0x9E3779B1\n s_add_u32 s98, s98, 0x7F4A7C15\n s_xor_b32 s99, s98, 0x5bd1e995")
def started(a, vt=2):
    L = lab(a, 'st0')
    a(f"s_cmp_lg_u32 s3, 0\n s_cbranch_scc1 {L}\n s_lshl_b32 s26, s2, 7\n s_add_u32 s26, s26, {WS_FL+393216}")
    flag_store(a, 's26', vt)
    a(f"{L}:")
def flag_store(a, soff, vt=2):
    a(f"""
    v_lshlrev_b32 v{vt}, 3, v1
    v_mov_b32 v{vt+2}, s98
    v_mov_b32 v{vt+3}, s99
    s_mov_b64 exec, {opt.fmask}
    buffer_store_dwordx2 v[{vt+2}:{vt+3}], v{vt}, s[12:15], {soff} offen sc1
    s_mov_b64 exec, -1
    """)
def publish(a, soff):
    a("s_waitcnt vmcnt(0)\n s_barrier")
    L = lab(a, 'pub')
    a(f"s_cmp_lg_u32 s3, 0\n s_cbranch_scc1 {L}")
    flag_store(a, soff)
    a(f"{L}:")
def poll(a, items, vb=48, gap=1, cnt=56):
    L = lab(a, 'poll'); n = len(items)
    def issue(k):
        for i, (so, mk) in enumerate(items): a(f"buffer_load_dwordx2 v[{vb+2*(k*n+i)}:{vb+2*(k*n+i)+1}], v6, s[12:15], {so} offen sc1")
    a(f"v_cmp_gt_u32 vcc, {cnt}, v1\n v_lshlrev_b32 v6, 7, v1\n v_mov_b32 v7, {OOB}\n v_cndmask_b32 v6, v7, v6, vcc\n s_mov_b32 s27, 0")
    issue(0); a(f"s_sleep {opt.psleep}"); issue(1); a(f"s_sleep {opt.psleep}");
    a(f"{L}:")
    for k in range(3):
        issue((k+2) % 3)
        a(f"s_waitcnt vmcnt({2*n})")
        for i, (so, mk) in enumerate(items):
            r = vb + 2*(k*n+i)
            a(f"v_cmp_ne_u32 vcc, s98, v{r}\n v_cmp_ne_u32 s[28:29], s99, v{r+1}\n s_or_b64 vcc, vcc, s[28:29]")
            a(f"s_and_b64 {'s[64:65]' if i == 0 else 'vcc'}, vcc, {mk}")
            if i: a("s_or_b64 s[64:65], s[64:65], vcc")
        a(f"s_cbranch_scc0 {L}_done\n s_sleep {gap}")
    a(f"""
    s_add_u32 s27, s27, 1
    s_cmp_lt_u32 s27, 0x20000
    s_cbranch_scc1 {L}
    {L}_done:
    """)
def reduce_lanes(a, regs, tmp, steps):
    for st in steps:
        if st.startswith('ror'):
            a("s_nop 1")
            for r in regs: a(f"v_add_f32_dpp v{r}, v{r}, v{r} row_ror:{st[3:]} row_mask:0xf bank_mask:0xf")
        else:
            for i, r in enumerate(regs): a(f"v_mov_b32 v{tmp+i}, v{r}")
            a("s_nop 1")
            for i, r in enumerate(regs): a(f"v_permlane{st[1:]}_swap_b32 v{r}, v{tmp+i}")
            a("s_nop 1")
            for i, r in enumerate(regs): a(f"v_add_f32 v{r}, v{r}, v{tmp+i}")
def unp(dst, src, j):
    return f"v_lshlrev_b32 v{dst}, 16, v{src+j//2}" if j % 2 == 0 else f"v_and_b32 v{dst}, 0xffff0000, v{src+j//2}"
def pk(op, d, x, y, neg=False):
    return f"v_pk_add_f32 v[{d}:{d+1}], v[{x}:{x+1}], v[{y}:{y+1}]" + (" neg_lo:[0,1] neg_hi:[0,1]" if neg else "")

def tlb_setup(a, vd):
    a(f"""
    s_mov_b32 s76, s48
    s_mov_b32 s77, s49
    s_mov_b32 s78, {26 << 20}
    s_cmp_eq_u32 s3, 1
    s_cselect_b32 s76, s42, s76
    s_cselect_b32 s77, s43, s77
    s_cselect_b32 s78, {4 << 20}, s78
    s_cmp_eq_u32 s3, 2
    s_cselect_b32 s76, s88, s76
    s_cselect_b32 s77, s89, s77
    s_cselect_b32 s78, {3584*2048}, s78
    s_cmp_eq_u32 s3, 3
    s_cselect_b32 s76, s52, s76
    s_cselect_b32 s77, s53, s77
    s_cselect_b32 s78, {5 << 20}, s78
    s_and_b32 s77, s77, 0xffff
    s_mov_b32 s79, 0x20000
    v_lshlrev_b32 v{vd}, 20, v1
    v_add_u32 v{vd}, {(1 << 20) - 128}, v{vd}
    v_cmp_eq_u32 vcc, 16, v1
    v_mov_b32 v2, {(16 << 20) + 128}
    s_nop 0
    v_cndmask_b32 v{vd}, v{vd}, v2, vcc
    v_cmp_le_u32 vcc, 17, v1
    v_mov_b32 v2, {(18 << 20) + 65536 + 128}
    s_nop 0
    v_cndmask_b32 v{vd}, v{vd}, v2, vcc
    v_cmp_le_u32 vcc, 18, v1
    v_lshlrev_b32 v2, 21, v1
    v_subrev_u32 v2, {(18 << 21) - ((22 << 20) - 128)}, v2
    v_cndmask_b32 v{vd}, v{vd}, v2, vcc
    """)

def g2_tile(a):
    a(f"""
    s_and_b32 s26, s2, 7
    s_lshr_b32 s27, s2, 3
    s_lshr_b32 s50, s26, 1
    s_lshl_b32 s50, s50, 2
    s_and_b32 s51, s27, 3
    s_add_u32 s50, s50, s51
    s_lshr_b32 s51, s27, 2
    s_and_b32 s96, s2, 1
    s_mul_i32 s96, s96, {1792*2048}
    """)
def g2_voff(a, vb, wshift, t=2):
    a(f"""
    v_lshrrev_b32 v{t+1}, 4, v1
    s_lshl_b32 s26, s3, {wshift}
    v_add_u32 v{t}, s26, v{t+1}
    v_lshlrev_b32 v{t}, 11, v{t}
    s_lshl_b32 s26, s51, 8
    s_add_u32 s26, s26, s96
    v_add_u32 v{t}, s26, v{t}
    v_lshlrev_b32 v{t+1}, 1, v{t+1}
    v_and_b32 v{vb}, 15, v1
    v_xor_b32 v{t+1}, v{t+1}, v{vb}
    v_lshl_add_u32 v{vb}, v{t+1}, 4, v{t}
    v_xor_b32 v{t+1}, 8, v{t+1}
    v_lshl_add_u32 v{vb+1}, v{t+1}, 4, v{t}
    v_add_u32 v{vb+2}, {2*(4*2048-1024)}, v{vb}
    v_add_u32 v{vb+3}, {3*(4*2048-1024)}, v{vb+1}
    v_add_u32 v{vb+1}, {1*(4*2048-1024)}, v{vb+1}
    """)
def g2_dma(): return [f"buffer_load_dwordx4 v{12+i}, s[4:7], s17 offen offset:{i*1024} lds" for i in range(4)]

def gemm2(a):
    a(f"s_mov_b32 s24, s50\n s_and_b32 s31, s2, 1\n s_lshl_b32 s25, s51, 1\n s_add_u32 s25, s25, s31\n s_mov_b32 s17, {R2*64*2048}\n s_lshl_b32 s21, s3, 12")
    srd(a, 4, 88, 3584*1024*2)
    g2_voff(a, 12, 4)
    srd(a, 8, 42, 2048*1024*2)
    a(f"s_lshl_b32 s16, s24, 2\n s_add_u32 s16, s16, s3\n s_mul_i32 s16, s16, {opt.HS}\n s_mul_i32 s26, s31, 114688\n s_add_u32 s16, s16, s26")
    srd_ws(a, 36, 16, 114688)
    a(f"s_mov_b32 s16, 0\n v_lshlrev_b32 v8, 4, v1\n v_mov_b32 v22, {OOB}\n s_mov_b32 s23, {28*64*2048}")
    a("""
    v_lshrrev_b32 v3, 4, v1
    v_lshrrev_b32 v4, 2, v1
    v_and_b32 v4, 3, v4
    v_lshl_add_u32 v5, v3, 2, v4
    v_and_b32 v6, 7, v5
    s_lshl_b32 s26, s31, 2
    v_xor_b32 v6, s26, v6
    v_lshlrev_b32 v5, 8, v5
    v_lshl_add_u32 v5, v6, 5, v5
    v_and_b32 v7, 3, v1
    v_lshl_add_u32 v16, v7, 3, v5
    """)
    AD = 96
    for mb in range(8): a(f"v_xor_b32 v{AD+mb}, {mb*32}, v16")
    for i in range(4): a(f"v_mov_b32 v{104+i}, 0")
    a("s_nop 1")
    for i in range(4): a(f"v_mfma_f32_32x32x16_bf16 a[{16*i}:{15+16*i}], v[104:107], v[104:107], 0")
    a(f"""
    s_lshl_b32 s26, s24, 13
    s_mul_i32 s22, s31, {28*128}
    s_add_u32 s22, s22, s26
    s_add_u32 s22, s22, {WS_FL+65536}
    s_mov_b32 s30, {WS_FL+32768}
    s_mov_b32 s60, -1
    s_mov_b32 s61, 0x00ffffff
    """)
    stamp(a, 5)
    a(f"s_cmp_lg_u32 s2, 0\n s_cbranch_scc1 L_g2_noep\n s_lshl_b32 s26, s3, 13\n s_add_u32 s26, s26, {WS_FL+393216}")
    poll(a, [('s26', '-1')], vb=120, gap=2, cnt=64)
    a("L_g2_noep:")
    a("s_cmp_lg_u32 s3, 0\n s_cbranch_scc1 L_g2_nopoll")
    poll(a, [('s22', '0x0fffffff')], vb=108, gap=opt.g2gap, cnt=28)
    a("s_branch L_g2_polled\n L_g2_nopoll:\n s_waitcnt vmcnt(0)\n L_g2_polled:\n s_barrier")
    a(f"s_or_b32 s26, s2, s3\n s_cmp_lg_u32 s26, 0\n s_cbranch_scc1 L_g2_noep2\n s_mov_b32 s26, {WS_FL}")
    flag_store(a, 's26')
    a("L_g2_noep2:")
    stamp(a, 6)
    HB = 128; WF = 32
    def hload(i, off): return f"buffer_load_dwordx4 v[{HB+4*i}:{HB+4*i+3}], v8, s[36:39], s16 offen offset:{off} sc1"
    for i in range(16):
        a(hload(i, (i % 4)*1024))
        if i % 4 == 3: a("s_add_u32 s16, s16, 4096")
        if i % 2 == 1 and i < 15:
            for k in range(2): a("buffer_load_dword v9, v22, s[36:39], 0 offen")
    def wreads(st, p):
        r = []
        for mb in range(8):
            b = WF + st*32 + mb*4
            r.append(f"ds_read_b64_tr_b16 v[{b}:{b+1}], v{AD+mb} offset:{p*8192}")
            r.append(f"ds_read_b64_tr_b16 v[{b+2}:{b+3}], v{AD+mb} offset:{p*8192+4096}")
        return r
    for x in wreads(0, 0): a(x)
    a(f"s_mov_b32 s19, 0\n s_mov_b32 s18, 0\n s_mov_b32 s30, s17\n s_mov_b32 s17, {OOB}\n s_add_u32 m0, s21, 147456")
    def y_loads():
        a(f"""
        s_lshl_b32 s26, s24, 7
        s_lshl_b32 s27, s3, 5
        s_add_u32 s26, s26, s27
        v_and_b32 v2, 15, v1
        v_add_u32 v10, s26, v2
        v_add_u32 v11, 16, v10
        s_mov_b32 s26, {WS_LP}
        v_lshlrev_b32 v2, 4, v10
        buffer_load_dwordx4 a[96:99], v2, s[12:15], s26 offen sc1
        buffer_load_dwordx4 a[100:103], v2, s[12:15], s26 offen offset:256 sc1
        s_cmp_ge_u32 s25, 8
        s_cselect_b64 s[62:63], -1, 0
        s_lshl_b32 s26, s25, 1
        s_sub_u32 s27, 30, s26
        s_cmp_ge_u32 s25, 8
        s_cselect_b32 s28, s27, s26
        s_mul_i32 s28, s28, {EGS}
        s_add_u32 s28, s28, {WS_Y}
        s_lshl_b32 s26, s24, 7
        s_lshl_b32 s27, s3, 5
        s_add_u32 s27, s26, s27
        s_mov_b32 s26, {TPS}
        """)
        for j in range(5):
            if j < 4: a(f"v_lshrrev_b32 v2, 2, v1\n v_lshl_add_u32 v2, v2, 1, {j&1}\n v_and_b32 v3, 3, v1\n v_lshlrev_b32 v3, 4, v3\n v_add_u32 v3, {(j>>1)*EGS}, v3")
            else: a(f"v_and_b32 v2, 31, v1\n v_mov_b32 v3, {2*EGS}")
            a(f"""
            v_add_u32 v2, s27, v2
            v_sub_u32 v4, 2048, v2
            v_min_u32 v4, v4, v2
            v_cmp_lt_u32 vcc, 1024, v2
            v_and_b32 v5, 1, v4
            v_mul_lo_u32 v5, v5, s26
            v_lshrrev_b32 v4, 1, v4
            v_lshl_add_u32 v4, v4, 6, v5
            s_xor_b64 vcc, vcc, s[62:63]
            v_add_u32 v4, v4, v3
            v_add_u32 v5, {YD}, v4
            v_cndmask_b32 v4, v4, v5, vcc
            """)
            if j < 4: a(f"buffer_load_dwordx4 a[{72+4*j}:{75+4*j}], v4, s[12:15], s28 offen sc1")
            else: a(f"buffer_load_dword a88, v4, s[12:15], s28 offen sc1")
    a(f"v_and_b32 v20, 31, v1\n v_lshlrev_b32 v20, 7, v20\n v_add_u32 v20, {WS_FL+32768}, v20")
    a(".p2align 6\nL_g2_loop:")
    a("s_cmp_lg_u32 s18, 5\n s_cbranch_scc1 L_g2_nos4\n buffer_load_dwordx2 v[18:19], v20, s[12:15], 0 offen sc1\n L_g2_nos4:")
    for t in range(8):
        p = t & 1; i = 2*t
        if t == 4:
            a("s_cmp_lg_u32 s18, 6\n s_cbranch_scc1 L_g2_nopq")
            a("v_cmp_ne_u32 vcc, s98, v18\n v_cmp_ne_u32 s[28:29], s99, v19\n s_or_b64 vcc, vcc, s[28:29]\n s_cbranch_scc0 L_g2_s4ok")
            a(f"s_mov_b32 s26, {WS_FL+32768}")
            poll(a, [('s26', '0xffffffff')], vb=108, gap=2, cnt=32)
            a("L_g2_s4ok:")
            y_loads()
            a("L_g2_nopq:")
        if opt.trace and p == 0:
            a(f"s_lshl_b32 s91, s18, 2\n s_add_u32 s91, s91, {t >> 1}")
            for x in trace_ops("s91"): a(x)
        a("s_waitcnt vmcnt(28) lgkmcnt(8)")
        ms = []
        for nb, mb in [(0, 0), (0, 1), (0, 2), (0, 3), (1, 3), (1, 2), (1, 1), (1, 0), (1, 4), (1, 5), (1, 6), (1, 7), (0, 7), (0, 6), (0, 5), (0, 4)]:
            b = WF + p*32 + mb*4; c = (nb*8+mb)*4
            ms.append(f"{MF} a[{c}:{c+3}], v[{b}:{b+3}], v[{HB+4*(i+nb)}:{HB+4*(i+nb)+3}], a[{c}:{c+3}]")
        f = {}
        rd = wreads(p ^ 1, p ^ 1)
        for k, x in enumerate(rd):
            f.setdefault(k, [])
            if not (opt.x2 & 1) and not ((opt.x2 & 16) and k % 2): f[k].append(x.replace('ds_read_b64_tr_b16', 'ds_read_b64') if opt.x2 & 8 else x)
        f[7].append("s_waitcnt lgkmcnt(8)")
        for k in range(2): f[opt.dmo[k]].append(g2_dma()[2*p + k])
        if p == 1:
            f[8] += ["s_barrier", "s_add_u32 m0, s21, s19", "s_mov_b32 s17, s30"]
            f[9] += [f"s_add_u32 s30, s30, {64*2048}", "s_cmp_eq_u32 s30, s23"]
            f[10] += [f"s_cselect_b32 s30, {OOB}, s30"]
            f[12] += [f"s_add_u32 s19, s19, {SLOT2}"]
            f[13] += [f"s_and_b32 s19, s19, {R2*SLOT2-1}"]
        else:
            f[1].append(f"s_add_u32 s20, s19, {SLOT2}")
            f[3].append(f"s_and_b32 s20, s20, {R2*SLOT2-1}")
            f[5].append(f"v_add_u32 v17, s20, v16")
            for mb in range(8): f[min(15, max(2*mb+1, 6+mb//2) if mb < 4 else 2*mb+1)].append(f"v_xor_b32 v{AD+mb}, {mb*32}, v17")
        f[11].append(hload(i+1, ((i+1) % 4)*1024))
        f[15].append(hload(i, (i % 4)*1024))
        if p == 1: f[15].append("s_add_u32 s16, s16, 4096")
        if opt.x2 & 32:
            ms2 = []; f2 = {}
            for k in range(8):
                b = WF + p*32 + (k if k < 4 else k)*4; c = (k & 3)*16
                ms2.append(f"v_mfma_f32_32x32x16_bf16 a[{c}:{c+15}], v[{b}:{b+3}], v[{HB+4*(i+(1 if k < 4 else 0))}:{HB+4*(i+(1 if k < 4 else 0))+3}], a[{c}:{c+15}]")
                f2[k] = f.get(2*k, []) + f.get(2*k+1, [])
            ms, f = ms2, f2
        interleave(a, ms, f)
    a("s_add_u32 s18, s18, 1\n s_cmp_lt_u32 s18, 7\n s_cbranch_scc1 L_g2_loop")
    stamp(a, 7)
    a(f"""
    s_lshl_b32 s26, s2, 2
    s_add_u32 s26, s26, s3
    s_lshl_b32 s22, s26, 12
    s_add_u32 s22, s22, {WS_XB}
    s_lshl_b32 s23, s26, 7
    s_add_u32 s23, s23, {WS_FL+262144}
    s_nop 3
    """)
    for g in range(4):
        for i in range(8): a(f"v_accvgpr_read_b32 v{192+8*g+i}, a{(g>>1)*32+16+(g&1)*8+i}")
        for i in range(4): a(f"v_cvt_pk_bf16_f32 v{224+4*g+i}, v{192+8*g+2*i}, v{193+8*g+2*i}")
        a(f"buffer_store_dwordx4 v[{224+4*g}:{227+4*g}], v8, s[12:15], s22 offen offset:{g*1024} sc1")
    a("""
    s_mul_i32 s26, s3, 4608
    s_add_u32 s26, s26, 131072
    v_lshrrev_b32 v4, 2, v1
    v_mul_u32_u24 v4, 288, v4
    v_and_b32 v5, 3, v1
    v_lshl_add_u32 v4, v5, 4, v4
    v_add_u32 v4, s26, v4
    v_and_b32 v5, 31, v1
    v_mul_u32_u24 v5, 144, v5
    v_add_u32 v5, s26, v5
    s_waitcnt vmcnt(4)
    """)
    for j in range(4): a(f"ds_write_b128 v4, a[{72+4*j}:{75+4*j}] offset:{(j&1)*144 + (j>>1)*64}")
    a("ds_write_b32 v5, a88 offset:128")
    a("""
    v_and_b32 v4, 15, v1
    v_mul_u32_u24 v4, 144, v4
    v_lshrrev_b32 v5, 4, v1
    v_lshlrev_b32 v5, 3, v5
    v_sub_u32 v6, 24, v5
    v_cndmask_b32 v5, v5, v6, s[62:63]
    v_add3_u32 v4, v4, v5, s26
    s_waitcnt lgkmcnt(0)
    """)
    for k in range(8):
        a(f"ds_read_b64 v[{128+4*k}:{129+4*k}], v4 offset:{(k>>2)*16*144 + (k&3)*32}\n ds_read_b32 v{130+4*k}, v4 offset:{(k>>2)*16*144 + (k&3)*32 + 8}")
    a("s_waitcnt vmcnt(0)")
    flag_store(a, 's23')
    a("s_xor_b32 s23, s23, 512\n s_xor_b32 s22, s22, 16384")
    for nb in range(2):
        for i in range(4): a(f"v_accvgpr_read_b32 v{40+i}, a{96+4*nb+i}")
        a(f"""
        v_add_f32 v40, v40, v41
        v_add_f32 v42, v42, v43
        v_add_f32 v40, v40, v42
        v_cvt_pk_bf16_f32 v40, v40, v40
        v_lshlrev_b32 v40, 16, v40
        v_mul_f32 v40, {fbits(-math.log2(math.e))}, v40
        v_exp_f32 v40, v40
        s_nop 0
        v_add_f32 v40, 1.0, v40
        v_rcp_f32 v40, v40
        s_nop 0
        v_cvt_pk_bf16_f32 v40, v40, v40
        v_lshlrev_b32 v{32+nb}, 16, v40
        v_sub_f32 v40, 1.0, v{32+nb}
        v_cvt_pk_bf16_f32 v40, v40, v40
        v_lshlrev_b32 v{34+nb}, 16, v40
        """)
    for nb in range(2):
        for i in range(16): a(f"v_accvgpr_read_b32 v{64+nb*16+i}, a{nb*32+i}")
    for nb in range(2):
        for i in range(16): a(f"v_mul_f32 v{64+nb*16+i}, v{34+nb}, v{64+nb*16+i}")
    a("s_waitcnt lgkmcnt(0)\n s_cmp_ge_u32 s25, 8\n s_cbranch_scc1 L_g2_mir")
    for mir in range(2):
        if mir: a("L_g2_mir:")
        for nb in range(2):
            for mb in range(4):
                d = 128 + (nb*4 + (3-mb if mir else mb))*4; o = 64 + (nb*4+mb)*4
                els = [4, 3, 2, 1] if mir else [0, 1, 2, 3]
                for r in range(4): a(unp(40+r, d, els[r]))
                for r in range(4): a(f"v_fma_f32 v{o+r}, v{40+r}, v{32+nb}, v{o+r}")
        if not mir: a("s_branch L_g2_st")
    a("L_g2_st:")
    a("""
    v_lshlrev_b32 v2, 11, v10
    v_lshrrev_b32 v3, 4, v1
    v_and_b32 v4, 1, v3
    v_lshl_add_u32 v2, v4, 5, v2
    v_lshrrev_b32 v4, 1, v3
    v_lshl_add_u32 v2, v4, 4, v2
    s_lshl_b32 s26, s25, 7
    v_add_u32 v2, s26, v2
    v_add_u32 v3, 32768, v2
    """)
    stamp(a, 9)
    poll(a, [('s23', '1')], vb=44, gap=1, cnt=1)
    stamp(a, 10)
    for k in range(4): a(f"buffer_load_dwordx4 v[{160+4*k}:{163+4*k}], v8, s[12:15], s22 offen offset:{k*1024} sc1")
    for k in range(4):
        a(f"s_waitcnt vmcnt({3-k})")
        for r in range(8): a(unp(176+r, 160+4*k, r))
        for r in range(8): a(f"v_fma_f32 v{64+8*k+r}, v{176+r}, v{34+(k>>1)}, v{64+8*k+r}")
    for i in range(16): a(f"v_cvt_pk_bf16_f32 v{96+i}, v{64+2*i}, v{64+2*i+1}")
    a("s_nop 1")
    for p in range(4):
        a(f"v_permlane16_swap_b32 v{96+4*p}, v{96+4*p+2}\n v_permlane16_swap_b32 v{96+4*p+1}, v{96+4*p+3}")
    for p in range(4):
        a(f"buffer_store_dwordx4 v[{96+4*p}:{96+4*p+3}], v{2+(p>>1)}, s[8:11], 0 offen offset:{(p&1)*64} {opt.oflags}")

def ACCG(mb, nb): return 128 + (nb*4+mb)*4
def ACCU(mb, nb): return (nb*4+mb)*4
def FR(st, i): return 128 + st*64 + i*4

def gemm1(a):
    XS = 32768; WB = 98304; WSL = 16384
    a("s_cmp_ge_u32 s3, 2\n s_cselect_b32 s26, s46, s44\n s_cselect_b32 s27, s47, s45")
    srd(a, 8, 26, 1024*3584*2)
    a(f"""
    s_cmp_eq_u32 s3, 1
    s_cselect_b32 s80, s46, s44
    s_cselect_b32 s81, s47, s45
    s_mov_b32 s82, {1024*3584*2}
    s_cmp_eq_u32 s3, 2
    s_cselect_b32 s80, s40, s80
    s_cselect_b32 s81, s41, s81
    s_cselect_b32 s82, {2048*1024*2}, s82
    s_cmp_eq_u32 s3, 3
    s_cselect_b32 s80, s88, s80
    s_cselect_b32 s81, s89, s81
    s_and_b32 s81, s81, 0xffff
    s_mov_b32 s83, 0x20000
    v_mov_b32 v3, {OOB}
    s_add_u32 s86, s67, 28
    s_cmp_ge_u32 s3, 2
    s_cbranch_scc1 L_t_x
    v_lshrrev_b32 v2, 4, v1
    v_lshlrev_b32 v2, 5, v2
    v_bfe_u32 v4, v1, 1, 3
    v_add_u32 v2, v2, v4
    s_lshl_b32 s26, s68, 3
    v_add_u32 v2, s26, v2
    s_mov_b32 s27, 7168
    v_mul_lo_u32 v2, v2, s27
    v_and_b32 v4, 1, v1
    v_lshl_add_u32 v2, v4, 7, v2
    s_lshl_b32 s26, s25, 8
    v_add_u32 v26, s26, v2
    v_cmp_gt_u32 vcc, 32, v1
    s_mov_b32 s84, 0
    s_mov_b32 s85, {2*32*7168}
    v_cndmask_b32 v27, v3, v26, vcc
    s_mov_b32 s87, {4*32*7168}
    s_mov_b32 s75, s85
    v_mov_b32 v42, v27
    v_mov_b32 v35, v3
    s_branch L_t_done
    L_t_x:
    s_cmp_eq_u32 s3, 3
    s_cbranch_scc1 L_t_wd
    s_mul_i32 s26, s69, 37
    s_lshl_b32 s27, s24, 8
    s_add_u32 s26, s26, s27
    v_add_u32 v2, s26, v1
    v_lshlrev_b32 v2, 11, v2
    v_cmp_gt_u32 vcc, 37, v1
    s_mov_b32 s84, 0
    s_mov_b32 s85, 0
    v_cndmask_b32 v26, v3, v2, vcc
    s_mov_b32 s87, 128
    s_mov_b32 s75, 128
    v_mov_b32 v27, v3
    v_mov_b32 v42, v26
    v_mov_b32 v35, v3
    s_branch L_t_done
    L_t_wd:
    s_mul_i32 s27, s86, 49
    v_cmp_gt_u32 vcc, 49, v1
    s_lshl_b32 s28, s66, 6
    """)
    for k in range(3):
        a(f"""
        v_add_u32 v2, s27, v1
        v_add_u32 v2, {1372*k}, v2
        v_bfe_u32 v4, v2, 4, 3
        v_bfe_u32 v5, v2, 7, 2
        v_lshl_add_u32 v4, v5, 4, v4
        v_bfe_u32 v5, v2, 11, 1
        v_lshl_add_u32 v4, v5, 3, v4
        v_add_u32 v4, s28, v4
        v_bfe_u32 v5, v2, 9, 2
        v_and_b32 v6, 1, v5
        v_lshrrev_b32 v7, 1, v5
        v_xor_b32 v6, v6, v7
        v_sub_u32 v7, 0, v4
        v_cmp_eq_u32 s[62:63], 1, v6
        v_and_b32 v2, 15, v2
        v_lshlrev_b32 v2, 7, v2
        v_cndmask_b32 v4, v4, v7, s[62:63]
        v_lshlrev_b32 v6, 11, v5
        v_cmp_le_u32 s[62:63], 2, v5
        v_mov_b32 v7, 1024
        s_nop 0
        v_cndmask_b32 v6, v6, v7, s[62:63]
        v_add_u32 v4, v4, v6
        v_lshl_add_u32 v2, v4, 11, v2
        v_cndmask_b32 v35, v3, v2, vcc
        """)
        a(f"buffer_load_dword v127, v35, s[4:7], 0 offen {opt.nt_fold}")
    a(f"""
    v_lshlrev_b32 v2, 7, v1
    v_cmp_gt_u32 vcc, 32, v1
    s_mul_i32 s84, s66, 28
    s_add_u32 s84, s84, s86
    s_lshl_b32 s84, s84, 12
    v_cndmask_b32 v27, v3, v2, vcc
    s_mov_b32 s85, {224*4096}
    s_mov_b32 s87, 0
    s_mov_b32 s75, 0
    v_mov_b32 v26, v3
    v_mov_b32 v42, v3
    L_t_done:
    """)
    stamp(a, 19)
    a(f"buffer_load_dword v127, v42, s[80:83], s84 offen {opt.nt_w}\n s_add_u32 s84, s84, s75")
    stamp(a, 20)
    a(f"""
    s_cmp_lt_u32 s66, 4
    s_cselect_b32 s36, s56, s58
    s_cselect_b32 s37, s57, s59
    s_cmp_eq_u32 s3, 2
    s_cselect_b32 s36, s52, s36
    s_cselect_b32 s37, s53, s37
    s_cmp_eq_u32 s3, 3
    s_cselect_b32 s36, s54, s36
    s_cselect_b32 s37, s55, s37
    s_and_b32 s37, s37, 0xffff
    s_mov_b32 s39, 0x20000
    s_and_b32 s28, s66, 3
    s_lshl_b32 s26, s28, 18
    s_lshl_b32 s28, s28, 8
    s_lshr_b32 s27, s66, 2
    s_add_u32 s28, s28, s27
    s_lshl_b32 s28, s28, 12
    s_cmp_eq_u32 s3, 1
    s_cselect_b32 s28, s26, s28
    s_cselect_b32 s26, 11, 13
    s_cselect_b32 s38, {1024*1024*2}, s82
    s_mul_i32 s27, s86, 37
    v_add_u32 v2, s27, v1
    v_lshrrev_b32 v4, 3, v2
    v_lshlrev_b32 v4, s26, v4
    v_and_b32 v2, 7, v2
    v_lshl_add_u32 v2, v2, 7, v4
    s_cmp_eq_u32 s3, 0
    s_cselect_b32 s27, 0, 37
    v_cmp_gt_u32 vcc, s27, v1
    v_mov_b32 v3, {OOB}
    s_nop 0
    v_cndmask_b32 v2, v3, v2, vcc
    v_add_u32 v34, s28, v2
    s_cmp_lg_u32 s3, 1
    s_cbranch_scc1 L_t_nm
    buffer_load_dword v127, v34, s[36:39], 0 offen {opt.nt_c}
    v_mov_b32 v34, v3
    L_t_nm:
    """)
    a("s_lshl_b32 s29, s24, 19\n s_lshl_b32 s26, s3, 16\n s_add_u32 s29, s29, s26")
    sh_voff(a, 8, 11, 29)
    a("""
    v_lshrrev_b32 v2, 4, v1
    s_and_b32 s26, s3, 1
    s_lshl_b32 s26, s26, 4
    v_add_u32 v3, s26, v2
    s_mov_b32 s27, 7168
    v_mul_lo_u32 v3, v3, s27
    s_lshl_b32 s26, s25, 8
    v_add_u32 v3, s26, v3
    v_lshlrev_b32 v2, 1, v2
    v_and_b32 v4, 15, v1
    v_xor_b32 v2, v2, v4
    v_lshl_add_u32 v12, v2, 4, v3
    v_xor_b32 v2, 8, v2
    v_lshl_add_u32 v14, v2, 4, v3
    """)
    a(f"v_add_u32 v13, {1*(4*7168-1024)}, v12\n v_add_u32 v15, {3*(4*7168-1024)}, v14\n v_add_u32 v14, {2*(4*7168-1024)}, v14")
    a(f"s_mov_b32 s16, 0\n s_mov_b32 s22, 65536\n s_mov_b32 s17, 0\n s_lshl_b32 s21, s3, 12\n s_add_u32 s21, s21, {WB}\n s_lshl_b32 s23, s3, 13")
    def dma_x(h): return [f"buffer_load_dwordx4 v{8+i}, s[4:7], s{(16, 22)[h]} offen offset:{i*1024} lds" for i in range(4)]
    def dma_w(): return [f"buffer_load_dwordx4 v{12+i}, s[8:11], s17 offen offset:{i*1024} lds" for i in range(4)]
    def px(s):
        a(f"s_add_u32 m0, s23, {s*XS}\n s_nop 0")
        for x in dma_x(0): a(x)
        a(f"s_add_u32 m0, s23, {s*XS+4096}\n s_add_u32 s16, s16, 128")
        for x in dma_x(1): a(x)
        a("s_add_u32 s22, s22, 128")
    def pw(s):
        a(f"s_add_u32 m0, s21, {s*WSL}\n s_nop 0")
        for x in dma_w(): a(x)
        a(f"s_add_u32 s17, s17, {32*7168}")
    if opt.tlb:
        a("v_lshlrev_b32 v40, 21, v1\n v_add_u32 v40, 0x100000, v40")
    if opt.tlb2:
        a(f"""
        s_cmp_eq_u32 s3, 1
        s_cselect_b32 s76, s42, s48
        s_cselect_b32 s77, s43, s49
        s_cselect_b32 s26, 16, 18
        s_and_b32 s77, s77, 0xffff
        s_cmp_ge_u32 s3, 2
        s_cselect_b32 s78, 0, {16 << 20}
        s_cmp_eq_u32 s3, 1
        s_cselect_b32 s78, {4 << 20}, s78
        s_mov_b32 s79, 0x20000
        v_add_u32 v41, 1, v1
        v_lshlrev_b32 v41, s26, v41
        v_subrev_u32 v41, 128, v41
        """)
    a(f"""
    s_lshr_b32 s26, s3, 1
    s_lshl_b32 s26, s26, 7
    v_and_b32 v2, 15, v1
    v_lshrrev_b32 v5, 1, v2
    v_add_u32 v2, s26, v2
    v_lshlrev_b32 v2, 7, v2
    v_lshrrev_b32 v3, 4, v1
    v_xor_b32 v5, v3, v5
    v_lshl_add_u32 v16, v5, 4, v2
    v_xor_b32 v5, 4, v5
    v_lshl_add_u32 v33, v5, 4, v2
    v_lshrrev_b32 v4, 2, v1
    v_and_b32 v4, 3, v4
    v_lshl_add_u32 v5, v3, 3, v4
    v_lshlrev_b32 v5, 8, v5
    v_add_u32 v5, {WB}, v5
    v_and_b32 v6, 3, v1
    v_lshl_add_u32 v5, v6, 3, v5
    v_and_b32 v6, 1, v3
    v_lshl_or_b32 v6, v6, 2, v4
    s_and_b32 s26, s3, 1
    s_lshl_b32 s26, s26, 2
    v_xor_b32 v6, s26, v6
    """)
    for mb in range(4):
        a(f"v_xor_b32 v7, {mb}, v6\n v_lshl_add_u32 v{17+mb}, v7, 5, v5")
    for i in range(5): a(f"v_mov_b32 v{21+i}, v{16+i}")
    def reads(st):
        def wr(mat, mb):
            b = FR(st, mat*4+mb)
            return [f"ds_read_b64_tr_b16 a[{b}:{b+1}], v{22+mb} offset:{mat*8192}",
                    f"ds_read_b64_tr_b16 a[{b+2}:{b+3}], v{22+mb} offset:{mat*8192+1024}"]
        def xr(nb):
            b = FR(st, 8+nb)
            return [f"ds_read_b128 a[{b}:{b+3}], v21 offset:{nb*2048}"]
        r = []
        for i in range(8): r += wr(i & 1, i >> 1) + xr(i)
        return r
    def mf(st):
        m = []
        od = [(nb if (mb*2+mat) % 2 == 0 else 7-nb, mb, mat) for mb in range(4) for mat in range(2) for nb in range(8)]
        for nb, mb, mat in od:
            c = f"v[{ACCG(mb,nb)}:{ACCG(mb,nb)+3}]" if mat == 0 else f"a[{ACCU(mb,nb)}:{ACCU(mb,nb)+3}]"
            fa = FR(st, mat*4+mb); fb_ = FR(st, 8+nb)
            m.append(f"{MF} {c}, a[{fa}:{fa+3}], a[{fb_}:{fb_+3}], {c}")
        return m
    for i in range(4): a(f"v_mov_b32 v{36+i}, 0")
    a("s_nop 1")
    for i in range(8): a(f"v_mfma_f32_32x32x16_bf16 v[{128+16*i}:{143+16*i}], v[36:39], v[36:39], 0\n v_mfma_f32_32x32x16_bf16 a[{16*i}:{15+16*i}], v[36:39], v[36:39], 0")
    stamp(a, 21)
    pw(0); px(0); pw(1)
    stamp(a, 22)
    stamp(a, 1)
    a(f"s_waitcnt vmcnt(4) lgkmcnt(0)\n s_barrier")
    for x in reads(0): a(x)
    nonce(a)
    a(f"s_lshl_b32 s26, s2, 7\n s_add_u32 s26, s26, {WS_FL+393216}\n s_cmp_eq_u32 s3, 0\n s_cselect_b32 s26, s26, {OOB}\n v_and_b32 v43, 15, v1\n v_lshl_add_u32 v43, v43, 3, s26\n v_mov_b32 v44, s98\n v_mov_b32 v45, s99")
    a(f"s_mov_b32 s19, 0\n s_mov_b32 s20, {XS}\n s_mov_b32 s18, 0\n s_mov_b32 s28, {WSL}\n s_mov_b32 s29, 0")
    a("v_mov_b32 v21, v33")
    for i in range(4): a(f"v_add_u32 v{22+i}, s28, v{17+i}")
    a(f"s_mov_b32 s72, {32*7168}\n s_mov_b32 s73, 128\n s_mov_b32 s74, 65536")
    stamp(a, 2)
    for st in (2, 0, 1):
        peel = st == 2
        if peel: st = 0
        if not peel and st == 0: a(".p2align 6\nL_g1_loop:")
        if st == 1: a("L_g1_mid:")
        f = {-1: ["s_waitcnt lgkmcnt(0)"]}
        if opt.trace: f[-1] = trace_ops("s18")
        f[0] = [f"s_waitcnt vmcnt({0 if peel else (24, 12)[st]})", "s_barrier"]
        if peel:
            A = Asm(); save = a
            def cap(fn, *args):
                n0 = len(a.l); fn(*args); out = [x.strip() for x in a.l[n0:]]; del a.l[n0:]; return out
            T2 = [f"buffer_load_dword v127, v26, s[80:83], s84 offen {opt.nt_w}", "s_add_u32 s84, s84, s87"]
            ops = T2 + cap(pw, 2) + cap(px, 1) + cap(pw, 3) + T2 + ["buffer_load_dword v127, v40, s[80:83], 0 offen"] + cap(px, 2) + ["buffer_store_dwordx2 v[44:45], v43, s[12:15], 0 offen sc1"]
            g = 2
            for x in ops:
                if x == 's_nop 0': continue
                f.setdefault(g-1 if 'm0' in x else g, []).append(x)
                if x.startswith('buffer'): g += 2
            assert g <= 63, g
            if opt.stamp and opt.dbgmax: f.setdefault(63, []).extend(["s_memrealtime s[92:93]", "s_waitcnt lgkmcnt(0)", "v_writelane_b32 v31, s92, 41"])
            f.setdefault(63, []).append("s_branch L_g1_mid")
        rd = reads(st ^ 1)
        for i, x in enumerate(rd): f.setdefault(1 + 2*i, []).append(x)
        f.setdefault(2, []).append(f"s_add_u32 s28, s28, {WSL}")
        f.setdefault(4, []).append(f"s_and_b32 s28, s28, {4*WSL-1}")
        f.setdefault(6, []).append("s_add_u32 s18, s18, 1")
        for i in range(4): f.setdefault(50+2*i, []).append(f"v_add_u32 v{22+i}, s28, v{17+i}")
        if st == 0:
            f.setdefault(58, []).append("v_add_u32 v21, s20, v16")
        else:
            f.setdefault(58, []).append("v_add_u32 v21, s19, v33")
            dq = dma_w() + dma_w() + dma_x(0) + dma_x(1)
            dp = opt.dp if hasattr(opt, 'dp') else [2 + 4*i - (i > 11)*(i-11) for i in range(16)]
            f[0].append("s_add_u32 m0, s21, s29")
            for i, x in enumerate(dq): f.setdefault(dp[i], []).append(x)
            f[dp[3]] += [f"s_add_u32 m0, m0, {WSL}", "s_add_u32 s17, s17, s72"]
            f[dp[7]] += ["s_add_u32 m0, s23, s19", "s_add_u32 s17, s17, s72"]
            f[dp[8]] += [f"s_xor_b32 s29, s29, {2*WSL}"]
            f[dp[9]] += ["s_mov_b32 s19, s20"]
            f[dp[10]] += [f"s_add_u32 s20, s20, {XS}", f"s_cmp_eq_u32 s20, {3*XS}"]
            f[dp[11]] += ["s_cselect_b32 s20, 0, s20", "s_add_u32 m0, m0, 4096"]
            f[dp[12]] += ["s_add_u32 s16, s16, s73"]
            f[dp[15]] += ["s_cmp_ge_u32 s18, 26", "s_cbranch_scc1 L_g1_sw", "L_g1_swd:", "s_add_u32 s22, s16, s74"]
            f.setdefault(62, []).extend([f"buffer_load_dword v127, v27, s[80:83], s84 offen {opt.tflags}", "s_add_u32 s84, s84, s85"])
            f[62] += ["s_cmp_lg_u32 s18, 4", "s_cbranch_scc1 L_g1_noseq", "buffer_load_dword v127, v34, s[36:39], 0 offen"] + (["buffer_load_dword v127, v41, s[76:79], 0 offen"] if opt.tlb2 else []) + ["L_g1_noseq:"]
            f.setdefault(63, []).extend(["s_cmp_lt_u32 s18, 32", "s_cbranch_scc1 L_g1_loop"])
        interleave(a, mf(st), f)
    a("s_branch L_g1_done")
    a("L_g1_sw:\n s_cmp_eq_u32 s18, 26\n s_cbranch_scc0 L_g1_sw2")
    srd(a, 4, 88, 3584*1024*2)
    g2_voff(a, 8, 5)
    a(f"s_mov_b32 s16, {128*2048}\n s_mov_b32 s73, {128*2048}\n s_mov_b32 s74, {16*2048}\n s_branch L_g1_swd")
    a("L_g1_sw2:\n s_cmp_eq_u32 s18, 28\n s_cbranch_scc0 L_g1_sw3")
    srd(a, 8, 88, 3584*1024*2)
    g2_voff(a, 12, 4)
    a(f"s_mov_b32 s17, {384*2048}\n s_mov_b32 s72, {64*2048}\n s_branch L_g1_swd")
    a(f"L_g1_sw3:\n s_mov_b32 s16, 0\n s_mov_b32 s17, {OOB}\n s_branch L_g1_swd")
    a("L_g1_done:")
    stamp(a, 3)
    a(f"""
    s_lshl_b32 s30, s24, 3
    s_lshr_b32 s31, s3, 1
    s_lshl_b32 s31, s31, 2
    s_add_u32 s30, s30, s31
    s_lshl_b32 s23, s30, 11
    s_mul_i32 s30, s30, {opt.HS}
    s_lshl_b32 s31, s25, 13
    s_add_u32 s30, s30, s31
    s_and_b32 s31, s3, 1
    s_lshl_b32 s31, s31, 12
    s_add_u32 s30, s30, s31
    s_lshl_b32 s31, s25, 1
    s_and_b32 s26, s3, 1
    s_add_u32 s31, s31, s26
    s_lshl_b32 s31, s31, 7
    s_add_u32 s23, s23, s31
    s_add_u32 s23, s23, {WS_FL+65536}
    s_waitcnt lgkmcnt(0)
    s_nop 7
    """)
    c0 = -2*math.sqrt(2/math.pi)*math.log2(math.e); c1 = c0*0.044715
    a(f"s_mov_b32 s26, {fbits(c0)}\n s_mov_b32 s28, {fbits(c1)}\n s_mov_b32 s29, {fbits(c1)}")
    a("v_mov_b32 v24, s26\n v_mov_b32 v25, s26\n v_lshlrev_b32 v26, 4, v1")
    T = 32
    for nb in range(8):
        g0 = ACCG(0, nb); u0 = ACCU(0, nb)
        t = T + (nb % 2)*48
        U = t; Z = t+16; O = t+32
        for i in range(16): a(f"v_accvgpr_read_b32 v{U+i}, a{u0+i}")
        for i in range(0, 16, 2): a(f"v_pk_mul_f32 v[{Z+i}:{Z+i+1}], v[{g0+i}:{g0+i+1}], v[{g0+i}:{g0+i+1}]")
        for i in range(0, 16, 2): a(f"v_pk_fma_f32 v[{Z+i}:{Z+i+1}], v[{Z+i}:{Z+i+1}], s[28:29], v[24:25]")
        for i in range(0, 16, 2): a(f"v_pk_mul_f32 v[{Z+i}:{Z+i+1}], v[{Z+i}:{Z+i+1}], v[{g0+i}:{g0+i+1}]")
        for i in range(16): a(f"v_exp_f32 v{Z+i}, v{Z+i}")
        for i in range(0, 16, 2): a(f"v_pk_mul_f32 v[{U+i}:{U+i+1}], v[{U+i}:{U+i+1}], v[{g0+i}:{g0+i+1}]")
        for i in range(0, 16, 2): a(f"v_pk_add_f32 v[{Z+i}:{Z+i+1}], v[{Z+i}:{Z+i+1}], 1.0 op_sel_hi:[1,0]")
        for i in range(16): a(f"v_rcp_f32 v{Z+i}, v{Z+i}")
        a("s_nop 0")
        for i in range(0, 16, 2): a(f"v_pk_mul_f32 v[{U+i}:{U+i+1}], v[{U+i}:{U+i+1}], v[{Z+i}:{Z+i+1}]")
        for i in range(0, 16, 2): a(f"v_cvt_pk_bf16_f32 v{O+i//2}, v{U+i}, v{U+i+1}")
        for p in range(2):
            off = (nb >> 1)*opt.HS + (p*2 + (nb & 1))*1024
            a(f"s_add_u32 s31, s30, {off}")
            a(f"buffer_store_dwordx4 v[{O+4*p}:{O+4*p+3}], v26, s[12:15], s31 offen {opt.hflags}")
    stamp(a, 4)
    a("s_waitcnt vmcnt(0)")
    flag_store(a, 's23')

class VM:
    def __init__(s): s.ops = []
    def add(s, tag, n=1): s.ops += [tag]*n
    def wait(s, a, tag, extra=""):
        last = max(i for i, t in enumerate(s.ops) if t == tag)
        a(f"s_waitcnt vmcnt({min(63, len(s.ops)-1-last)}) {extra}")
RAW = 64; GT = 192; EU = 208; SV = 216
def fold_loads(a, vm):
    a("""
    s_lshl_b32 s26, s66, 2
    s_add_u32 s26, s26, s67
    s_lshl_b32 s26, s26, 4
    v_lshrrev_b32 v40, 3, v1
    v_add_u32 v40, s26, v40
    v_cmp_eq_u32 s[62:63], 0, v40
    v_and_b32 v2, 7, v1
    v_cmp_eq_u32 s[70:71], 0, v2
    v_add_u32 v44, 8, v40
    v_lshlrev_b32 v2, 4, v2
    s_lshl_b32 s26, s3, 8
    v_add_u32 v2, s26, v2
    v_sub_u32 v3, 1904, v2
    v_sub_u32 v41, 2048, v40
    v_sub_u32 v42, 1024, v40
    v_add_u32 v43, 1024, v40
    v_sub_u32 v45, 2048, v44
    v_sub_u32 v46, 1024, v44
    v_add_u32 v47, 1024, v44
    v_mov_b32 v4, 512
    v_mov_b32 v5, 1536
    v_cndmask_b32 v41, v41, v4, s[62:63]
    v_cndmask_b32 v43, v43, v5, s[62:63]
    s_sub_u32 s74, 2048, s26
    """)
    for k in range(8): a(f"v_lshl_add_u32 v{224+8*(k>>2)+(k&3)}, v{40+k}, 11, v2\n v_lshl_add_u32 v{228+8*(k>>2)+(k&3)}, v{40+k}, 11, v3")
    for gi in range(2):
        a(f"buffer_load_dwordx4 v[{GT+8*gi}:{GT+8*gi+3}], v2, s[32:35], 0 offen offset:{gi*128}")
        a(f"buffer_load_dwordx4 v[{GT+8*gi+4}:{GT+8*gi+7}], v3, s[32:35], 0 offen offset:{(1-gi)*128}")
        vm.add('g', 2)
def fold_round_loads(a, vm, rnd):
    if True:
        hf, gi = rnd >> 1, rnd & 1
        b = RAW + 32*rnd
        for i in range(4):
            a(f"buffer_load_dwordx4 v[{b+8*i}:{b+8*i+3}], v{224+8*hf+i}, s[4:7], 0 offen offset:{gi*128}")
            a(f"buffer_load_dwordx4 v[{b+8*i+4}:{b+8*i+7}], v{228+8*hf+i}, s[4:7], 0 offen offset:{(1-gi)*128}")
        if gi == 0:
            for i in range(4):
                a(f"v_lshlrev_b32 v4, 11, v{40+4*hf+i}\n buffer_load_ushort v{EU+4*hf+i}, v4, s[4:7], s74 offen")
            vm.add(f'r{rnd}', 12)
        else: vm.add(f'r{rnd}', 8)
def fold_compute(a, vm, between):
    LP = 8; UU = 16
    a(f"v_mov_b32 v24, {ALT}")
    for r in range(8, 24): a(f"v_mov_b32 v{r}, 0")
    a(f"""
    s_lshl_b32 s26, s66, 2
    s_add_u32 s26, s26, s67
    s_lshr_b32 s27, s26, 2
    s_lshl_b32 s27, s27, 16
    s_and_b32 s26, s26, 3
    s_lshl_b32 s26, s26, 10
    s_add_u32 s26, s26, s27
    s_lshl_b32 s27, s3, 14
    s_add_u32 s26, s26, s27
    s_add_u32 s22, s26, {WS_Z}
    v_bfe_u32 v2, v1, 2, 1
    v_lshlrev_b32 v25, 12, v2
    v_and_b32 v2, 3, v1
    v_lshl_add_u32 v25, v2, 8, v25
    v_lshrrev_b32 v2, 3, v1
    v_lshl_add_u32 v25, v2, 4, v25
    s_cmp_eq_u32 s3, 0
    s_cselect_b64 s[72:73], s[70:71], 0
    """)
    T = 240
    for rnd in range(4):
        hf, gi = rnd >> 1, rnd & 1
        b = RAW + 32*rnd; g = GT + 8*gi
        S = [224, RAW+96 if rnd < 2 else RAW+8, 48, 56]
        vm.wait(a, f'r{rnd}')
        if rnd in (0, 1): stamp(a, 19+2*rnd)
        for j in range(4):
            for i in range(4):
                a(f"v_dot2_f32_bf16 v{LP+4*hf+i}, v{b+8*i+j}, v{g+j}, v{LP+4*hf+i}")
            for i in range(4):
                a(f"v_dot2_f32_bf16 v{LP+4*hf+i}, v{b+8*i+4+j}, v{g+4+j}, v{LP+4*hf+i}")
        if hf == 0:
            for i in (1, 3):
                for j in range(8): a(f"v_cndmask_b32 v{b+8*i+j}, v{b+8*i+j}, 0, s[62:63]")
                if gi == 0: a(f"v_cndmask_b32 v{EU+i}, v{EU+i}, 0, s[62:63]")
        if gi == 0:
            for i in range(4): a(f"v_cndmask_b32 v{EU+4*hf+i}, v{EU+4*hf+i}, 0, s[72:73]")
            for i in range(4): a(f"v_mov_b32 v{SV+i}, v{b+8*i+4}")
        else:
            for i in range(4): a(f"v_mov_b32_dpp v{EU+4*hf+i}, v{SV+i} row_shl:7 row_mask:0xf bank_mask:0xf")
            for i in range(4): a(f"v_lshlrev_b32 v{2+i}, 16, v{b+8*i+4}")
            a(f"v_add_f32 v2, v2, v3\n v_add_f32 v4, v4, v5\n v_add_f32 v{26+2*hf}, v2, v4\n v_sub_f32 v{27+2*hf}, v2, v4")
        for i in range(4): a(f"v_mov_b32_dpp v{SV+4+i}, v{b+8*i+4} row_shr:1 row_mask:0xf bank_mask:0xf")
        for i in range(4): a(f"v_cndmask_b32 v{SV+4+i}, v{SV+4+i}, v{EU+4*hf+i}, s[70:71]")
        for i in range(4):
            for j in range(8): a(unp(T+j, b+8*i, j))
            a(f"v_lshlrev_b32 v{T+8}, 16, v{SV+4+i}")
            for j in range(1, 8): a(unp(T+8+j, b+8*i+4, 8-j))
            for j in range(0, 8, 2):
                a(pk('', S[i]+j, T+j, T+8+j))
                a(pk('', b+8*i+j, T+j, T+8+j, neg=True))
        for j in range(0, 8, 2):
            a(pk('', S[0]+j, S[0]+j, S[1]+j)); a(pk('', S[2]+j, S[2]+j, S[3]+j))
            a(pk('', b+j, b+j, b+8+j, neg=True)); a(pk('', b+16+j, b+16+j, b+24+j, neg=True))
        for j in range(0, 8, 2):
            a(pk('', S[1]+j, S[0]+j, S[2]+j)); a(pk('', S[3]+j, S[0]+j, S[2]+j, neg=True))
            a(pk('', b+8+j, b+j, b+16+j, neg=True)); a(pk('', b+24+j, b+j, b+16+j))
        for j in range(0, 8, 2):
            a(pk('', UU+4*hf, UU+4*hf, S[1]+j)); a(pk('', UU+4*hf+2, UU+4*hf+2, S[3]+j))
        for cls, src in enumerate((S[1], S[3], b+8, b+24)):
            o = b + 4*(cls & 1) + 16*(cls >> 1)
            for j in range(4): a(f"v_cvt_pk_bf16_f32 v{o+j}, v{src+2*j}, v{src+2*j+1}")
            a(f"s_add_u32 s26, s22, {cls*524288 + gi*8192 + hf*128}")
            a(f"buffer_store_dwordx4 v[{o}:{o+3}], v25, s[12:15], s26 offen sc1")
            vm.add('st')
        if rnd in (0, 1): stamp(a, 20+2*rnd)
        between(rnd)
    a("""
    s_cmp_eq_u32 s3, 3
    s_cselect_b32 s26, 0x80808080, 0
    s_mov_b32 s27, s26
    v_sub_f32 v16, v16, v17
    v_sub_f32 v17, v18, v19
    v_sub_f32 v18, v20, v21
    v_sub_f32 v19, v22, v23
    """)
    for k in range(4): a(f"v_cndmask_b32 v{20+k}, 0, v{26+k}, s[26:27]")
    for k in range(4): a(f"v_add_f32 v{16+k}, v{16+k}, v{20+k}")
    a("s_nop 0")
    for ctl in ("quad_perm:[1,0,3,2]", "quad_perm:[2,3,0,1]", "row_half_mirror"):
        for r in range(8, 20): a(f"v_add_f32_dpp v{r}, v{r}, v{r} {ctl} row_mask:0xf bank_mask:0xf")
    a(f"""
    s_lshl_b32 s26, s3, 2
    s_lshl_b32 s27, s3, 11
    s_add_u32 s27, s27, {WS_UP}
    s_mov_b32 s28, {WS_CV}
    s_add_u32 s29, s27, 8192
    """)
    for k in range(8): a(f"v_lshl_add_u32 v{68+k}, v{40+k}, 4, s26")
    a(f"v_lshlrev_b32 v76, 2, v40\n s_mov_b32 s26, {WS_LP}\n s_mov_b64 exec, s[70:71]")
    for k in range(8): a(f"buffer_store_dword v{8+k}, v{68+k}, s[12:15], s26 offen sc1")
    for hf in range(2):
        a(f"buffer_store_dword v{16+2*hf}, v76, s[12:15], s27 offen offset:{32*hf} sc1\n buffer_store_dword v{17+2*hf}, v76, s[12:15], s29 offen offset:{32*hf} sc1")
    a(f"""
    s_mov_b64 exec, -1
    s_cmp_lg_u32 s3, 3
    s_cbranch_scc1 L_fc2
    s_mov_b32 exec_lo, 0x80808080
    s_mov_b32 exec_hi, 0x80808080
    buffer_store_dword v26, v76, s[12:15], s28 offen sc1
    buffer_store_dword v27, v76, s[12:15], s28 offen offset:2048 sc1
    buffer_store_dword v28, v76, s[12:15], s28 offen offset:32 sc1
    buffer_store_dword v29, v76, s[12:15], s28 offen offset:2080 sc1
    s_mov_b64 exec, -1
    L_fc2:
    """)

def sh_voff(a, vb, rs_shift, srow):
    a(f"""
    v_lshrrev_b32 v2, 3, v1
    s_lshl_b32 s26, s3, 5
    v_add_u32 v2, s26, v2
    v_lshlrev_b32 v2, {rs_shift}, v2
    v_add_u32 v2, s{srow}, v2
    v_lshrrev_b32 v3, 4, v1
    v_and_b32 v4, 7, v1
    v_xor_b32 v3, v3, v4
    v_lshl_add_u32 v{vb}, v3, 4, v2
    v_xor_b32 v3, 4, v3
    v_lshl_add_u32 v{vb+1}, v3, 4, v2
    v_add_u32 v{vb+2}, {2*((8<<rs_shift)-1024)}, v{vb}
    v_add_u32 v{vb+3}, {3*((8<<rs_shift)-1024)}, v{vb+1}
    v_add_u32 v{vb+1}, {((8<<rs_shift)-1024)}, v{vb+1}
    """)
def sh_touch(a, sr, rs_shift, srow):
    a(f"""
    s_lshl_b32 s26, s67, 5
    s_lshl_b32 s27, s3, 3
    s_add_u32 s26, s26, s27
    v_lshrrev_b32 v2, 3, v1
    v_add_u32 v2, s26, v2
    v_lshlrev_b32 v2, {rs_shift}, v2
    v_and_b32 v3, 7, v1
    v_lshl_add_u32 v2, v3, 7, v2
    buffer_load_dword a255, v2, s[{sr}:{sr+3}], s{srow} offen
    """)
def sh_dma(vb, sr): return [f"buffer_load_dwordx4 v{vb+i}, s[{sr}:{sr+3}], s17 offen offset:{i*1024} lds" for i in range(4)]

def dloop(a, name, nm, accb, dma, extra=False, first=True, init=None, D=8, inc=128, mid=None):
    PB = 128; SF = 64
    def pl(i, off): return f"buffer_load_dwordx4 v[{PB+4*i}:{PB+4*i+3}], v12, s[32:35], s16 offen offset:{off} sc1"
    def sreads(st, ks): return [f"ds_read_b128 v[{SF+st*32+4*nb}:{SF+st*32+4*nb+3}], v{18+ks} offset:{nb*2048}" for nb in range(8)]
    if first:
        a("s_mov_b32 s16, 0")
        for t in range(D):
            for i in range(nm): a(pl(t*nm+i, i*1024))
            a(f"s_add_u32 s16, s16, {nm*1024}")
        a("v_mov_b32 v18, v16\n v_mov_b32 v19, v17")
        for x in sreads(0, 0): a(x)
        a(f"s_mov_b32 s19, 0\n s_mov_b32 s20, {SLOT3}\n s_waitcnt vmcnt({D*nm})")
        init()
    a(f"s_mov_b32 s18, 0\n s_mov_b32 s17, 0")
    a(f".p2align 6\nL_{name}_loop:")
    NM = 8*nm
    if mid: mid()
    for t in range(8):
        ks = t & 1
        ms = []
        for mb in range(nm):
            for nb in range(8):
                c = accb + (nb*nm+mb)*4; pa = PB + ((t % D)*nm+mb)*4; sb = SF + ks*32 + nb*4
                ms.append(f"{MF} a[{c}:{c+3}], v[{pa}:{pa+3}], v[{sb}:{sb+3}], a[{c}:{c+3}]")
        f = {-1: [f"s_waitcnt vmcnt({(D-1)*nm}) lgkmcnt(0)"]}
        if extra:
            L = f"L_{name}_x{t}"
            f[-1] += ["s_cmp_eq_u32 s31, 0", f"s_cbranch_scc1 {L}"] + \
                     [f"{MF} a[{128+4*mb}:{131+4*mb}], v[{PB+(t*nm+mb)*4}:{PB+(t*nm+mb)*4+3}], v[24:27], a[{128+4*mb}:{131+4*mb}]" for mb in range(nm)] + [f"{L}:"]
        if ks == 1:
            f[0] = ["s_barrier", "v_add_u32 v18, s20, v16"]
            rd = sreads(0, 0)
        else:
            rd = sreads(1, 1)
        sp = NM // 16
        for k, x in enumerate(rd): f.setdefault(1+sp*k, []).append(x)
        for mb in range(nm): f.setdefault(8*mb+7, []).append(pl((t % D)*nm+mb, mb*1024))
        f[NM-1].append(f"s_add_u32 s16, s16, {nm*1024}")
        if ks == 1:
            if dma:
                f.setdefault(1, []).append("s_add_u32 m0, s21, s19")
                for k, x in enumerate(sh_dma(*dma)): f.setdefault(2+(NM//5)*k, []).append(x)
                f.setdefault(NM-3, []).append(f"s_add_u32 s17, s17, {inc}")
            f.setdefault(NM//2+1, []).append("v_add_u32 v19, s20, v17")
            f.setdefault(NM-3, []).extend(["s_mov_b32 s19, s20", f"s_add_u32 s20, s20, {SLOT3}"])
            f.setdefault(NM-2, []).append(f"s_and_b32 s20, s20, {R3*SLOT3-1}")
        interleave(a, ms, f)
    a(f"s_add_u32 s18, s18, 1\n s_cmp_lt_u32 s18, 2\n s_cbranch_scc1 L_{name}_loop")

def tile_vec(a, vec):
    a("""
    s_lshl_b32 s26, s67, 5
    s_lshl_b32 s27, s3, 3
    s_add_u32 s26, s26, s27
    s_lshl_b32 s27, s26, 7
    v_lshrrev_b32 v2, 3, v1
    v_lshlrev_b32 v2, 14, v2
    v_add_u32 v2, s27, v2
    s_lshr_b32 s26, s26, 1
    v_and_b32 v3, 7, v1
    v_xor_b32 v3, s26, v3
    v_and_b32 v3, 7, v3
    """)
    for i in range(8):
        a(f"v_xor_b32 v4, {i>>1}, v3\n v_lshl_add_u32 v4, v4, 4, v2\n ds_read_b128 v[{96+4*i}:{99+4*i}], v4 offset:{i*128}")
    for i in range(8): a(f"v_mov_b32 v{40+i}, 0")
    a("s_waitcnt lgkmcnt(0)")
    for j in range(4):
        for i in range(8): a(f"v_dot2_f32_bf16 v{40+i}, v{96+4*i+j}, v{vec+j}, v{40+i}")
    a("s_nop 2")
    reduce_lanes(a, list(range(40, 48)), 48, ['ror1', 'ror2', 'ror4', 'ror8', 'p16', 'p32'])
    for i in range(1, 8): a(f"v_cmp_eq_u32 vcc, {i}, v1\n s_nop 1\n v_cndmask_b32 v40, v40, v{40+i}, vcc")

def acc_load(a, nm, vb, svec, wshift, off=0):
    a(f"v_lshrrev_b32 v2, 4, v1\n v_lshlrev_b32 v2, 4, v2\n s_lshl_b32 s26, s3, {wshift}\n v_add_u32 v2, s26, v2")
    for mb in range(nm): a(f"buffer_load_dwordx4 v[{vb+4*mb}:{vb+3+4*mb}], v2, s[12:15], s{svec} offen offset:{off+mb*64} sc1")
def acc_init(a, nm, vb, accb, sscale, withx=False):
    a(f"v_lshlrev_b32 v3, 31, v1")
    for i in range(4*nm): a(f"v_mul_f32 v{vb+i}, s{sscale}, v{vb+i}")
    if withx:
        for i in range(4*nm): a(f"v_accvgpr_write_b32 a{128+i}, v{vb+i}")
    for i in range(4*nm): a(f"v_xor_b32 v{vb+i}, v3, v{vb+i}")
    for nb in range(8):
        for i in range(4*nm): a(f"v_accvgpr_write_b32 a{accb+nb*4*nm+i}, v{vb+i}")

def dft(a):
    vm = VM()
    srd(a, 32, 60, 2048)
    a("""
    v_lshlrev_b32 v2, 4, v1
    v_sub_u32 v3, 2032, v2
    s_mov_b32 s26, 0x100000
    s_mov_b32 s27, 0x300000
    buffer_load_dwordx4 v[128:131], v2, s[4:7], s26 offen
    buffer_load_dwordx4 v[132:135], v3, s[4:7], s26 offen
    buffer_load_dwordx4 v[140:143], v2, s[4:7], s27 offen
    buffer_load_dwordx4 v[144:147], v3, s[4:7], s27 offen
    """); vm.add('z', 4)
    fold_loads(a, vm)
    fold_round_loads(a, vm, 0); fold_round_loads(a, vm, 1)
    a("s_lshr_b32 s30, s66, 2\n s_cmp_eq_u32 s30, 0\n s_cselect_b32 s26, s56, s58\n s_cselect_b32 s27, s57, s59")
    srd(a, 8, 26, 1024*1024*2)
    a("s_and_b32 s25, s66, 3\n s_lshl_b32 s25, s25, 18\n s_lshl_b32 s21, s3, 12")
    sh_voff(a, 32, 11, 25)
    srd(a, 36, 52, 2048*2048*2)
    srd(a, 80, 54, 2048*2048*2)
    a("s_and_b32 s24, s66, 3\n s_lshl_b32 s24, s24, 8\n s_add_u32 s24, s24, s30\n s_lshl_b32 s24, s24, 12")
    a("s_waitcnt lgkmcnt(0)\n s_mov_b32 s17, 0")
    nonce(a)
    started(a)
    stamp(a, 9)
    vm.wait(a, 'z')
    a("v_mov_b32 v136, 0\n v_mov_b32 v148, 0\n s_cmp_eq_u32 s30, 0\n s_cselect_b32 s26, 1.0, -1.0")
    a("v_mov_b32_dpp v136, v132 wave_shr:1 row_mask:0xf bank_mask:0xf\n v_mov_b32_dpp v148, v144 wave_shr:1 row_mask:0xf bank_mask:0xf")
    for k, b in enumerate((128, 140)):
        for j in range(8): a(unp(160+16*k+j, b, j))
        a(f"v_lshlrev_b32 v{168+16*k}, 16, v{b+8}")
        for j in range(1, 8): a(unp(168+16*k+j, b+4, 8-j))
    for j in range(16): a(f"v_fma_f32 v{160+j}, v{176+j}, s26, v{160+j}")
    for j in range(8): a(f"v_fma_f32 v{160+j}, v{168+j}, s26, v{160+j}")
    for j in range(4): a(f"v_cvt_pk_bf16_f32 v{36+j}, v{160+2*j}, v{161+2*j}")
    a("v_lshlrev_b32 v2, 16, v132\n v_lshlrev_b32 v3, 16, v144\n v_add_f32 v2, v2, v3\n s_nop 0\n v_readlane_b32 s75, v2, 63\n s_cselect_b32 s75, s75, 0")
    a(pk('', 160, 160, 162)); a(pk('', 164, 164, 166)); a(pk('', 160, 160, 164)); a("v_sub_f32 v160, v160, v161")
    reduce_lanes(a, [160], 176, ['ror1', 'ror2', 'ror4', 'ror8', 'p16', 'p32'])
    a("v_add_f32 v160, s75, v160\n s_nop 0\n v_readfirstlane_b32 s97, v160")
    def between(rnd):
        if rnd < 2: fold_round_loads(a, vm, rnd+2)
        for s in ((0, 1, 2), (3, 4, 5), (6, 7), ())[rnd]:
            a(f"s_add_u32 m0, s21, {s*SLOT3}\n s_nop 0")
            for x in sh_dma(32, 8): a(x)
            a("s_add_u32 s17, s17, 128")
            vm.add('pf', 4)
    fold_compute(a, vm, between)
    stamp(a, 1)
    a("s_waitcnt vmcnt(16)\n s_barrier")
    tile_vec(a, 36)
    a(f"""
    v_lshlrev_b32 v2, 31, v1
    v_xor_b32 v2, s75, v2
    v_add_f32 v40, v40, v2
    s_lshl_b32 s26, s66, 7
    s_lshl_b32 s27, s67, 5
    s_add_u32 s26, s26, s27
    s_lshl_b32 s27, s3, 3
    s_add_u32 s26, s26, s27
    s_lshl_b32 s26, s26, 2
    s_add_u32 s26, s26, {WS_RV}
    v_lshlrev_b32 v2, 2, v1
    s_waitcnt vmcnt(0)
    s_barrier
    s_mov_b64 exec, 0xff
    buffer_store_dword v40, v2, s[12:15], s26 offen sc1
    s_mov_b64 exec, -1
    s_lshl_b32 s23, s66, 2
    s_add_u32 s23, s23, s67
    s_lshl_b32 s23, s23, 7
    s_add_u32 s23, s23, {WS_FL+16384}
    s_cmp_lg_u32 s3, 0
    s_cbranch_scc1 L_s1p
    """)
    flag_store(a, 's23')
    a("L_s1p:")
    stamp(a, 10)
    sh_voff(a, 20, 13, 24)
    a("v_lshlrev_b32 v12, 4, v1")
    a("""
    v_and_b32 v2, 15, v1
    v_lshrrev_b32 v3, 1, v2
    v_lshrrev_b32 v4, 4, v1
    v_xor_b32 v3, v3, v4
    v_lshlrev_b32 v2, 7, v2
    v_lshl_add_u32 v16, v3, 4, v2
    v_xor_b32 v3, 4, v3
    v_lshl_add_u32 v17, v3, 4, v2
    """)
    a(f"""
    s_lshl_b32 s26, s30, 1
    s_lshr_b32 s27, s67, 1
    s_add_u32 s26, s26, s27
    s_lshl_b32 s26, s26, 3
    s_and_b32 s27, s67, 1
    s_lshl_b32 s27, s27, 2
    s_add_u32 s26, s26, s27
    s_add_u32 s26, s26, s3
    s_lshl_b32 s26, s26, 16
    s_add_u32 s22, s26, {WS_Z}
    """)
    srd_ws(a, 32, 22, 65536)
    a(f"s_and_b32 s23, s67, 1\n s_lshl_b32 s23, s23, 2\n s_add_u32 s23, s23, s3\n s_lshl_b32 s23, s23, 9\n s_add_u32 s23, s23, {WS_FL+16384}")
    poll(a, [('s23', '0xf')], cnt=4)
    stamp(a, 2)
    a(f"s_lshl_b32 s22, s67, 10\n s_add_u32 s22, s22, {WS_CV}\n s_cmp_eq_u32 s30, 0\n s_cselect_b32 s23, 1.0, 0")
    acc_load(a, 4, 32, 22, 8)
    dloop(a, 'd1', 4, 0, (20, 36), D=4, mid=lambda: a(f"s_mov_b32 s31, {WS_FL+16384}\n v_and_b32 v6, 31, v1\n v_lshlrev_b32 v6, 7, v6\n buffer_load_dwordx2 v[48:49], v6, s[12:15], s31 offen sc1"), init=lambda: (acc_init(a, 4, 32, 0, 23), stamp(a, 11)))
    a("s_lshl_b32 s22, s30, 13\n" + f"s_add_u32 s22, s22, {WS_UP}\n v_lshlrev_b32 v2, 5, v1\n s_add_u32 s23, s22, 4096")
    a(f"s_waitcnt lgkmcnt(0)\n s_nop 7")
    stamp(a, 3)
    a("v_cmp_ne_u32 vcc, s98, v48\n v_cmp_ne_u32 s[28:29], s99, v49\n s_or_b64 vcc, vcc, s[28:29]\n s_and_b64 vcc, vcc, 0xffffffff\n s_cbranch_scc0 L_uok")
    poll(a, [('s31', '0xffffffff')], cnt=32)
    a("s_waitcnt vmcnt(0)\n L_uok:")
    for i in range(8): a(f"buffer_load_dwordx4 v[{128+4*i}:{131+4*i}], v2, s[12:15], s{22+(i>>2)} offen offset:{((i>>1)&1)*2048+(i&1)*16} sc1")
    a(f"""
    v_lshrrev_b32 v2, 4, v1
    v_and_b32 v3, 1, v2
    v_lshrrev_b32 v2, 1, v2
    v_lshl_add_u32 v2, v3, 1, v2
    v_and_b32 v3, 15, v1
    v_lshlrev_b32 v3, 4, v3
    v_lshl_add_u32 v14, v2, 8, v3
    s_lshr_b32 s26, s67, 1
    s_lshl_b32 s26, s26, 4
    s_and_b32 s27, s66, 3
    s_lshl_b32 s27, s27, 2
    s_add_u32 s26, s26, s27
    s_lshl_b32 s26, s26, 16
    s_lshl_b32 s27, s30, 15
    s_add_u32 s26, s26, s27
    s_and_b32 s27, s67, 1
    s_lshl_b32 s27, s27, 14
    s_add_u32 s26, s26, s27
    s_lshl_b32 s27, s3, 12
    s_add_u32 s26, s26, s27
    s_add_u32 s25, s26, {WS_AT}
    """)
    for nb in range(8):
        t = 32 + (nb & 1)*24
        for i in range(16): a(f"v_accvgpr_read_b32 v{t+i}, a{nb*16+i}")
        for i in range(8): a(f"v_cvt_pk_bf16_f32 v{t+16+i}, v{t+2*i}, v{t+2*i+1}")
        a("s_nop 1")
        for p in range(2):
            a(f"v_permlane16_swap_b32 v{t+16+4*p}, v{t+18+4*p}\n v_permlane16_swap_b32 v{t+17+4*p}, v{t+19+4*p}")
        for p in range(2):
            a(f"s_add_u32 s26, s25, {(nb >> 1)*65536 + p*2048 + (nb & 1)*1024}")
            a(f"buffer_store_dwordx4 v[{t+16+4*p}:{t+19+4*p}], v14, s[12:15], s26 offen sc1")
    a(f"s_and_b32 s26, s66, 3\n s_lshl_b32 s26, s26, 1\n s_add_u32 s26, s26, s30\n s_lshl_b32 s26, s26, 2\n s_add_u32 s26, s26, s67\n s_lshl_b32 s26, s26, 7\n s_add_u32 s23, s26, {WS_FL+24576}")
    stamp(a, 12)
    a("s_waitcnt vmcnt(16)\n s_barrier")
    for j in range(0, 8, 2): a(pk('', 128+j, 128+j, 136+j)); a(pk('', 144+j, 144+j, 152+j))
    for j in range(0, 8, 2): a(pk('', 128+j, 128+j, 144+j))
    for j in range(4): a(f"v_cvt_pk_bf16_f32 v{60+j}, v{128+2*j}, v{129+2*j}")
    tile_vec(a, 60)
    a(f"v_mov_b32 v41, 0\n v_mov_b32 v42, {ALT}")
    for j in range(4): a(f"v_dot2_f32_bf16 v41, v{60+j}, v42, v41")
    a("s_nop 2")
    reduce_lanes(a, [41], 48, ['ror1', 'ror2', 'ror4', 'ror8', 'p16', 'p32'])
    a(f"""
    v_cmp_eq_u32 vcc, 8, v1
    s_cmp_eq_u32 s30, 0
    s_cselect_b32 s26, 1.0, 0
    v_cndmask_b32 v40, v40, v41, vcc
    v_mov_b32 v160, s97
    v_mul_f32 v160, s26, v160
    v_lshlrev_b32 v2, 31, v1
    v_xor_b32 v2, v2, v160
    v_add_f32 v40, v40, v2
    v_cvt_pk_bf16_f32 v40, v40, v40
    s_and_b32 s26, s66, 3
    s_lshl_b32 s26, s26, 7
    s_lshl_b32 s27, s67, 5
    s_add_u32 s26, s26, s27
    s_lshl_b32 s27, s3, 3
    s_add_u32 s26, s26, s27
    v_add_u32 v3, s26, v1
    v_mov_b32 v4, 512
    v_cndmask_b32 v3, v3, v4, vcc
    v_lshlrev_b32 v3, 6, v3
    s_mul_i32 s26, s30, {TPS}
    s_add_u32 s26, s26, {WS_Y + 16*EGS}
    s_add_u32 s27, s26, {YD}
    s_cmp_eq_u32 s30, 0
    s_mov_b32 s28, 0xff
    s_cselect_b32 exec_lo, 0x1ff, s28
    s_mov_b32 exec_hi, 0
    v_mov_b32 v41, v3
    s_mov_b64 s[76:77], exec
    s_mov_b64 exec, -1
    """)
    publish(a, 's23')
    a("s_mov_b64 exec, s[76:77]\n buffer_store_dword v40, v41, s[12:15], s26 offen sc1\n buffer_store_dword v40, v41, s[12:15], s27 offen sc1\n s_mov_b64 exec, -1")
    stamp(a, 13)
    a(f"""
    s_lshl_b32 s26, s30, 4
    s_lshl_b32 s27, s67, 2
    s_add_u32 s26, s26, s27
    s_add_u32 s26, s26, s3
    s_lshl_b32 s26, s26, 16
    s_add_u32 s22, s26, {WS_AT}
    """)
    srd_ws(a, 32, 22, 65536)
    a(f"""
    s_lshl_b32 s23, s67, 10
    s_add_u32 s23, s23, {WS_FL+24576}
    s_cmp_eq_u32 s66, 0
    s_cselect_b32 s31, 1, 0
    v_mov_b32 v24, {ALT}
    v_mov_b32 v25, {ALT}
    v_mov_b32 v26, {ALT}
    v_mov_b32 v27, {ALT}
    """)
    srd(a, 4, 88, 3584*1024*2)
    g2_voff(a, 8, 4)
    a("s_cmp_lg_u32 s3, 0\n s_cbranch_scc1 L_s2_nopoll")
    poll(a, [('s23', '0xff')], gap=2, cnt=8)
    a("L_s2_nopoll:\n s_barrier")
    stamp(a, 4)
    a(f"s_lshl_b32 s22, s67, 9\n s_add_u32 s22, s22, {WS_RV}\n s_cmp_eq_u32 s30, 0\n s_cselect_b32 s23, 1.0, 0")
    a("s_cselect_b32 s25, 0, -1.0")
    acc_load(a, 2, 32, 22, 7)
    acc_load(a, 2, 40, 22, 7, 2048)
    dloop(a, 'd2a', 2, 0, (20, 80), extra=True, init=lambda: (acc_init(a, 2, 32, 0, 23, True), acc_init(a, 2, 40, 64, 25), stamp(a, 14)))
    stamp(a, 15)
    dloop(a, 'd2b', 2, 64, (8, 4), first=False, inc=64*2048)
    stamp(a, 16)
    a("s_waitcnt lgkmcnt(0)\n s_nop 7")
    a(f"""
    v_and_b32 v2, 15, v1
    v_lshlrev_b32 v20, 6, v2
    v_lshrrev_b32 v3, 4, v1
    v_and_b32 v4, 1, v3
    v_lshl_add_u32 v20, v4, 5, v20
    v_lshrrev_b32 v4, 1, v3
    v_lshl_add_u32 v20, v4, 4, v20
    v_lshlrev_b32 v21, 3, v3
    s_lshl_b32 s22, s67, 2
    s_add_u32 s22, s22, s3
    s_mul_i32 s22, s22, {EGS}
    s_mul_i32 s27, s30, {TPS}
    s_add_u32 s22, s22, s27
    s_add_u32 s22, s22, {WS_Y}
    s_and_b32 s26, s66, 3
    s_lshl_b32 s26, s26, 13
    s_add_u32 s25, s22, s26
    """)
    for nb in range(8):
        t = 32 + (nb & 1)*32
        for i in range(8): a(f"v_accvgpr_read_b32 v{t+i}, a{nb*8+i}\n v_accvgpr_read_b32 v{t+8+i}, a{64+nb*8+i}")
        for i in range(0, 8, 2): a(pk('', t+16+i, t+i, t+8+i, neg=True)); a(pk('', t+i, t+i, t+8+i))
        for i in range(4): a(f"v_cvt_pk_bf16_f32 v{t+24+i}, v{t+16+2*i}, v{t+17+2*i}\n v_cvt_pk_bf16_f32 v{t+28+i}, v{t+2*i}, v{t+2*i+1}")
        a("s_nop 1")
        for p in range(2):
            a(f"v_permlane16_swap_b32 v{t+24+4*p}, v{t+26+4*p}\n v_permlane16_swap_b32 v{t+25+4*p}, v{t+27+4*p}")
        for p in range(2):
            a(f"s_add_u32 s26, s25, {nb*1024 + p*YD}")
            a(f"buffer_store_dwordx4 v[{t+24+4*p}:{t+27+4*p}], v20, s[12:15], s26 offen sc1")
    a("s_cmp_eq_u32 s31, 0\n s_cbranch_scc1 L_dft_nox")
    for i in range(8): a(f"v_accvgpr_read_b32 v{32+i}, a{128+i}")
    for i in range(4): a(f"v_cvt_pk_bf16_f32 v{40+i}, v{32+2*i}, v{33+2*i}")
    a(f"s_add_u32 s26, s22, {512*64}\n s_add_u32 s27, s26, {YD}\n s_mov_b32 exec_lo, 0x00010001\n s_mov_b32 exec_hi, 0x00010001")
    for mb in range(2):
        a(f"buffer_store_dwordx2 v[{40+2*mb}:{41+2*mb}], v21, s[12:15], s26 offen offset:{mb*32} sc1\n buffer_store_dwordx2 v[{40+2*mb}:{41+2*mb}], v21, s[12:15], s27 offen offset:{mb*32} sc1")
    a("s_mov_b64 exec, -1\nL_dft_nox:")
    stamp(a, 17)
    a(f"s_lshl_b32 s23, s66, 2\n s_add_u32 s23, s23, s67\n s_lshl_b32 s23, s23, 7\n s_add_u32 s23, s23, {WS_FL+32768}")
    publish(a, 's23')
    stamp(a, 18)


def kern():
    a = Asm()
    a(f"""
    s_cmp_ge_u32 s2, 256
    s_cbranch_scc1 L_end
    s_load_dwordx2 s[40:41], s[0:1], 0
    s_load_dwordx4 s[44:47], s[0:1], 48
    s_load_dwordx2 s[48:49], s[0:1], 96
    s_load_dwordx2 s[88:89], s[0:1], 64
    s_load_dwordx2 s[42:43], s[0:1], 80
    s_load_dwordx8 s[52:59], s[0:1], 8
    s_load_dwordx2 s[60:61], s[0:1], 72
    s_getpc_b64 s[28:29]
    s_lshr_b32 s27, s2, 3
    s_mul_i32 s26, s27, {CODE_LINES*128}
    v_lshlrev_b32 v2, 7, v0
    v_add_u32 v2, s26, v2
    v_cmp_gt_u32 vcc, {CODE_LINES}, v0
    s_and_saveexec_b64 s[30:31], vcc
    s_cbranch_execz L_nocp
    global_load_dword a255, v2, s[28:29]
    L_nocp:
    s_mov_b64 exec, s[30:31]
    v_and_b32 v1, 63, v0
    v_lshrrev_b32 v2, 6, v0
    s_and_b32 s66, s2, 7
    v_readfirstlane_b32 s3, v2
    s_lshr_b32 s27, s2, 3
    s_sub_u32 s67, s27, 28
    s_and_b32 s24, s66, 1
    s_lshl_b32 s24, s24, 2
    s_and_b32 s68, s27, 3
    s_add_u32 s24, s24, s68
    s_lshr_b32 s25, s66, 1
    s_mul_i32 s25, s25, 7
    s_lshr_b32 s69, s27, 2
    s_add_u32 s25, s25, s69
    """)
    stamp(a, 0)
    if opt.spin: a("s_memrealtime s[100:101]")
    a(f"s_waitcnt lgkmcnt(0)\n s_add_u32 s28, s48, {WS_FL}\n s_addc_u32 s29, s49, 0\n s_load_dword s98, s[28:29], 0")
    if opt.stamp: stamp(a, 23)
    srd(a, 4, 40, 2048*1024*2)
    srd(a, 12, 48, WS_SZ)
    g2_tile(a)
    a("s_lshr_b32 s27, s2, 3\n s_cmp_ge_u32 s27, 28\n s_cbranch_scc1 L_dft")
    gemm1(a)
    a("s_branch L_g2")
    a("L_dft:")
    dft(a)
    a("L_g2:")
    if opt.trace: stamp_flush(a, 1)
    gemm2(a)
    a("L_end:")
    if opt.spin:
        a(f"s_cmp_lg_u32 s2, 0\n s_cbranch_scc1 L_end3\n L_spin:\n s_memrealtime s[92:93]\n s_waitcnt lgkmcnt(0)\n s_sub_u32 s92, s92, s100\n s_cmp_lt_u32 s92, {opt.spin}\n s_cbranch_scc1 L_spin\n L_end3:")
    if opt.stamp:
        a("s_cmp_ge_u32 s2, 256\n s_cbranch_scc1 L_end2\n s_mov_b64 exec, -1")
        srd(a, 12, 48, WS_SZ)
        stamp(a, 8)
        stamp_flush(a, 0)
        if opt.dbgmax:
            a("s_load_dwordx2 s[28:29], s[0:1], 88\n v_subrev_u32 v2, 40, v1\n v_lshlrev_b32 v2, 2, v2\n v_not_b32 v3, v31\n v_cmp_eq_u32 vcc, 40, v1\n s_nop 1\n v_cndmask_b32 v31, v31, v3, vcc")
            a("s_lshr_b32 s27, s2, 3\n s_cmp_ge_u32 s27, 28\n s_cbranch_scc1 L_dm_d\n s_mov_b32 exec_lo, 0\n s_mov_b32 exec_hi, 0x1ff00\n s_branch L_dm_go\n L_dm_d:")
            for k, w in ((1, 9), (2, 10), (3, 11), (4, 12), (16, 13), (18, 14), (0, 15)):
                a(f"v_mov_b32 v3, {4*w}\n v_cmp_eq_u32 vcc, {40+k}, v1\n s_nop 1\n v_cndmask_b32 v2, v2, v3, vcc")
            m = sum(1 << (8+k) for k in (0, 1, 2, 3, 4, 16, 18))
            a(f"s_mov_b32 exec_lo, 0\n s_mov_b32 exec_hi, {m}\n L_dm_go:\n s_waitcnt lgkmcnt(0)\n global_atomic_umax v2, v31, s[28:29] sc1\n s_waitcnt vmcnt(0)")
        a("L_end2:")
    return kernel(KN, a.text(), vgpr=256, agpr=256)

KN = 'gated_mix__spectral_fnet__geglu_ffn__prompt_kernel'
def main():
    fn = sys.argv[1]
    for o in sys.argv[2:]:
        k, v = o.split('=', 1)
        setattr(opt, k, eval(v))
    c, d = kern()
    hdr = open('gated_mix__spectral_fnet__geglu_ffn__prompt.s.ref').read().split('; Override launch')[0]
    src = hdr + f'; @launch grid=(256,1,1) block=(256,1,1) lds={R1*SLOT1}\n.amdgcn_target "amdgcn-amd-amdhsa--gfx950"\n' + c + '.text\n.fill 1024, 4, 0xbf800000\n' + d
    open(fn, 'w').write(src)
if __name__ == '__main__': main()
```

```python
import sys, math, struct
from ab import *

WS_H   = 0
HS     = 262144
WS_Z   = (16 << 20) + 65536
WS_AT  = (18 << 20) + 131072
WS_Y   = (20 << 20) + 196608
YD     = 2 << 20
EGS    = 528*64
TPS    = 17*EGS
WS_LP  = (24 << 20) + 131072
WS_UP  = WS_LP + 32768
WS_CV  = WS_UP + 32768
WS_RV  = WS_CV + 4096
WS_FL  = 25 << 20
WS_XB  = 26 << 20
XBS    = 4224
WS_TS  = 40 << 20
WS_SZ  = 256 << 20
OOB = 0x40000000
ALT = 0xBF803F80
R1 = 5; SLOT1 = 32768
R2 = 8; SLOT2 = 16384
R3 = 8; SLOT3 = 16384
MF = "v_mfma_f32_16x16x32_bf16"
class Opt: pass
opt = Opt()
opt.stamp = False; opt.trace = False; opt.hflags = 'sc1'; opt.psleep = 4; opt.order = 3; opt.tlb = True; opt.smem = True; opt.dbgmax = False; opt.nt_fold = ''; opt.nt_w = ''; opt.nt_c = ''; opt.fmask = 0xffff; opt.x2 = 0; opt.rdo = [1,1,2,2,3,3,4,4,5,5,6,6,7,7,9,9]; opt.rde = [0,0,1,1,2,2,3,3,4,5,6,7,9,10,11,12]; opt.dmo = [3, 7]; opt.HS = 229504; opt.tlb2 = False; opt.g2gap = 2; opt.spin = 0; opt.oflags = ''; opt.g2touch = False; opt.tflags = ''; opt.killw = None
fbits = lambda x: struct.unpack('<I', struct.pack('<f', x))[0]
CODE_LINES = 12

def srd(a, d, base, size):
    a(f"s_mov_b32 s{d}, s{base}\n s_and_b32 s{d+1}, s{base+1}, 0xffff\n s_mov_b32 s{d+2}, {size}\n s_mov_b32 s{d+3}, 0x20000")
def srd_ws(a, d, soff, size):
    a(f"s_add_u32 s{d}, s48, s{soff}\n s_addc_u32 s{d+1}, s49, 0\n s_and_b32 s{d+1}, s{d+1}, 0xffff\n s_mov_b32 s{d+2}, {size}\n s_mov_b32 s{d+3}, 0x20000")
def interleave(a, mfmas, fill):
    for s in fill.get(-1, []): a(s)
    for i, m in enumerate(mfmas):
        a(m)
        for s in fill.get(i, []): a(s)
def lab(a, p): return f"L_{p}_{len(a.l)}"

def stamp(a, idx):
    if not opt.stamp: return
    a(f"s_memrealtime s[92:93]\n s_memtime s[94:95]\n s_waitcnt lgkmcnt(0)\n v_writelane_b32 v31, s92, {40+idx}\n v_writelane_b32 v30, s94, {40+idx}")
def trace_ops(sidx):
    return ["s_memtime s[92:93]", "s_memrealtime s[94:95]", "s_waitcnt lgkmcnt(0)", f"v_cmp_eq_u32 vcc, {sidx}, v1", "v_mov_b32 v28, s92", "v_mov_b32 v29, s94",
            "v_cndmask_b32 v30, v30, v28, vcc", "v_cndmask_b32 v31, v31, v29, vcc"]
def stamp_flush(a, half):
    if not opt.stamp: return
    a(f"s_lshl_b32 s90, s2, 2\n s_add_u32 s90, s90, s3\n s_lshl_b32 s90, s90, 9\n s_add_u32 s90, s90, {WS_TS + half*524288}")
    a(f"v_lshlrev_b32 v28, 3, v1\n buffer_store_dwordx2 v[30:31], v28, s[12:15], s90 offen")

def nonce(a):
    a("s_mul_i32 s98, s98, 0x9E3779B1\n s_add_u32 s98, s98, 0x7F4A7C15\n s_xor_b32 s99, s98, 0x5bd1e995")
def started(a, vt=2):
    L = lab(a, 'st0')
    a(f"s_cmp_lg_u32 s3, 0\n s_cbranch_scc1 {L}\n s_lshl_b32 s26, s2, 7\n s_add_u32 s26, s26, {WS_FL+393216}")
    flag_store(a, 's26', vt)
    a(f"{L}:")
def flag_store(a, soff, vt=2):
    a(f"""
    v_lshlrev_b32 v{vt}, 3, v1
    v_mov_b32 v{vt+2}, s98
    v_mov_b32 v{vt+3}, s99
    s_mov_b64 exec, {opt.fmask}
    buffer_store_dwordx2 v[{vt+2}:{vt+3}], v{vt}, s[12:15], {soff} offen sc1
    s_mov_b64 exec, -1
    """)
def publish(a, soff):
    a("s_waitcnt vmcnt(0)\n s_barrier")
    L = lab(a, 'pub')
    a(f"s_cmp_lg_u32 s3, 0\n s_cbranch_scc1 {L}")
    flag_store(a, soff)
    a(f"{L}:")
def poll(a, items, vb=48, gap=1, cnt=56):
    L = lab(a, 'poll'); n = len(items)
    def issue(k):
        for i, (so, mk) in enumerate(items): a(f"buffer_load_dwordx2 v[{vb+2*(k*n+i)}:{vb+2*(k*n+i)+1}], v6, s[12:15], {so} offen sc1")
    a(f"v_cmp_gt_u32 vcc, {cnt}, v1\n v_lshlrev_b32 v6, 7, v1\n v_mov_b32 v7, {OOB}\n v_cndmask_b32 v6, v7, v6, vcc\n s_mov_b32 s27, 0")
    issue(0); a(f"s_sleep {opt.psleep}"); issue(1); a(f"s_sleep {opt.psleep}");
    a(f"{L}:")
    for k in range(3):
        issue((k+2) % 3)
        a(f"s_waitcnt vmcnt({2*n})")
        for i, (so, mk) in enumerate(items):
            r = vb + 2*(k*n+i)
            a(f"v_cmp_ne_u32 vcc, s98, v{r}\n v_cmp_ne_u32 s[28:29], s99, v{r+1}\n s_or_b64 vcc, vcc, s[28:29]")
            a(f"s_and_b64 {'s[64:65]' if i == 0 else 'vcc'}, vcc, {mk}")
            if i: a("s_or_b64 s[64:65], s[64:65], vcc")
        a(f"s_cbranch_scc0 {L}_done\n s_sleep {gap}")
    a(f"""
    s_add_u32 s27, s27, 1
    s_cmp_lt_u32 s27, 0x20000
    s_cbranch_scc1 {L}
    {L}_done:
    """)
def reduce_lanes(a, regs, tmp, steps):
    for st in steps:
        if st.startswith('ror'):
            a("s_nop 1")
            for r in regs: a(f"v_add_f32_dpp v{r}, v{r}, v{r} row_ror:{st[3:]} row_mask:0xf bank_mask:0xf")
        else:
            for i, r in enumerate(regs): a(f"v_mov_b32 v{tmp+i}, v{r}")
            a("s_nop 1")
            for i, r in enumerate(regs): a(f"v_permlane{st[1:]}_swap_b32 v{r}, v{tmp+i}")
            a("s_nop 1")
            for i, r in enumerate(regs): a(f"v_add_f32 v{r}, v{r}, v{tmp+i}")
def unp(dst, src, j):
    return f"v_lshlrev_b32 v{dst}, 16, v{src+j//2}" if j % 2 == 0 else f"v_and_b32 v{dst}, 0xffff0000, v{src+j//2}"
def pk(op, d, x, y, neg=False):
    return f"v_pk_add_f32 v[{d}:{d+1}], v[{x}:{x+1}], v[{y}:{y+1}]" + (" neg_lo:[0,1] neg_hi:[0,1]" if neg else "")

def tlb_setup(a, vd):
    a(f"""
    s_mov_b32 s76, s48
    s_mov_b32 s77, s49
    s_mov_b32 s78, {26 << 20}
    s_cmp_eq_u32 s3, 1
    s_cselect_b32 s76, s42, s76
    s_cselect_b32 s77, s43, s77
    s_cselect_b32 s78, {4 << 20}, s78
    s_cmp_eq_u32 s3, 2
    s_cselect_b32 s76, s88, s76
    s_cselect_b32 s77, s89, s77
    s_cselect_b32 s78, {3584*2048}, s78
    s_cmp_eq_u32 s3, 3
    s_cselect_b32 s76, s52, s76
    s_cselect_b32 s77, s53, s77
    s_cselect_b32 s78, {5 << 20}, s78
    s_and_b32 s77, s77, 0xffff
    s_mov_b32 s79, 0x20000
    v_lshlrev_b32 v{vd}, 20, v1
    v_add_u32 v{vd}, {(1 << 20) - 128}, v{vd}
    v_cmp_eq_u32 vcc, 16, v1
    v_mov_b32 v2, {(16 << 20) + 128}
    s_nop 0
    v_cndmask_b32 v{vd}, v{vd}, v2, vcc
    v_cmp_le_u32 vcc, 17, v1
    v_mov_b32 v2, {(18 << 20) + 65536 + 128}
    s_nop 0
    v_cndmask_b32 v{vd}, v{vd}, v2, vcc
    v_cmp_le_u32 vcc, 18, v1
    v_lshlrev_b32 v2, 21, v1
    v_subrev_u32 v2, {(18 << 21) - ((22 << 20) - 128)}, v2
    v_cndmask_b32 v{vd}, v{vd}, v2, vcc
    """)

def g2_tile(a):
    a(f"""
    s_and_b32 s26, s2, 7
    s_lshr_b32 s27, s2, 3
    s_lshr_b32 s50, s26, 1
    s_lshl_b32 s50, s50, 2
    s_and_b32 s51, s27, 3
    s_add_u32 s50, s50, s51
    s_lshr_b32 s51, s27, 2
    s_and_b32 s96, s2, 1
    s_mul_i32 s96, s96, {1792*2048}
    """)
def g2_voff(a, vb, wshift, t=2):
    a(f"""
    v_lshrrev_b32 v{t+1}, 4, v1
    s_lshl_b32 s26, s3, {wshift}
    v_add_u32 v{t}, s26, v{t+1}
    v_lshlrev_b32 v{t}, 11, v{t}
    s_lshl_b32 s26, s51, 8
    s_add_u32 s26, s26, s96
    v_add_u32 v{t}, s26, v{t}
    v_lshlrev_b32 v{t+1}, 1, v{t+1}
    v_and_b32 v{vb}, 15, v1
    v_xor_b32 v{t+1}, v{t+1}, v{vb}
    v_lshl_add_u32 v{vb}, v{t+1}, 4, v{t}
    v_xor_b32 v{t+1}, 8, v{t+1}
    v_lshl_add_u32 v{vb+1}, v{t+1}, 4, v{t}
    v_add_u32 v{vb+2}, {2*(4*2048-1024)}, v{vb}
    v_add_u32 v{vb+3}, {3*(4*2048-1024)}, v{vb+1}
    v_add_u32 v{vb+1}, {1*(4*2048-1024)}, v{vb+1}
    """)
def g2_dma(): return [f"buffer_load_dwordx4 v{12+i}, s[4:7], s17 offen offset:{i*1024} lds" for i in range(4)]

def gemm2(a):
    a(f"s_mov_b32 s24, s50\n s_and_b32 s31, s2, 1\n s_lshl_b32 s25, s51, 1\n s_add_u32 s25, s25, s31\n s_mov_b32 s17, {R2*64*2048}\n s_lshl_b32 s21, s3, 12")
    srd(a, 4, 88, 3584*1024*2)
    g2_voff(a, 12, 4)
    srd(a, 8, 42, 2048*1024*2)
    a(f"s_lshl_b32 s16, s24, 2\n s_add_u32 s16, s16, s3\n s_mul_i32 s16, s16, {opt.HS}\n s_mul_i32 s26, s31, 114688\n s_add_u32 s16, s16, s26")
    srd_ws(a, 36, 16, 114688)
    a(f"s_mov_b32 s16, 0\n v_lshlrev_b32 v8, 4, v1\n v_mov_b32 v22, {OOB}\n s_mov_b32 s23, {28*64*2048}")
    a("""
    v_lshrrev_b32 v3, 4, v1
    v_lshrrev_b32 v4, 2, v1
    v_and_b32 v4, 3, v4
    v_lshl_add_u32 v5, v3, 2, v4
    v_and_b32 v6, 7, v5
    s_lshl_b32 s26, s31, 2
    v_xor_b32 v6, s26, v6
    v_lshlrev_b32 v5, 8, v5
    v_lshl_add_u32 v5, v6, 5, v5
    v_and_b32 v7, 3, v1
    v_lshl_add_u32 v16, v7, 3, v5
    """)
    AD = 96
    for mb in range(8): a(f"v_xor_b32 v{AD+mb}, {mb*32}, v16")
    for i in range(4): a(f"v_mov_b32 v{104+i}, 0")
    a("s_nop 1")
    for i in range(4): a(f"v_mfma_f32_32x32x16_bf16 a[{16*i}:{15+16*i}], v[104:107], v[104:107], 0")
    a(f"""
    s_lshl_b32 s26, s24, 13
    s_mul_i32 s22, s31, {28*128}
    s_add_u32 s22, s22, s26
    s_add_u32 s22, s22, {WS_FL+65536}
    s_mov_b32 s30, {WS_FL+32768}
    s_mov_b32 s60, -1
    s_mov_b32 s61, 0x00ffffff
    """)
    stamp(a, 5)
    a(f"s_cmp_lg_u32 s2, 0\n s_cbranch_scc1 L_g2_noep\n s_lshl_b32 s26, s3, 13\n s_add_u32 s26, s26, {WS_FL+393216}")
    poll(a, [('s26', '-1')], vb=120, gap=2, cnt=64)
    a("L_g2_noep:")
    a("s_cmp_lg_u32 s3, 0\n s_cbranch_scc1 L_g2_nopoll")
    poll(a, [('s22', '0x0fffffff')], vb=108, gap=opt.g2gap, cnt=28)
    a("s_branch L_g2_polled\n L_g2_nopoll:\n s_waitcnt vmcnt(0)\n L_g2_polled:\n s_barrier")
    a(f"s_or_b32 s26, s2, s3\n s_cmp_lg_u32 s26, 0\n s_cbranch_scc1 L_g2_noep2\n s_mov_b32 s26, {WS_FL}")
    flag_store(a, 's26')
    a("L_g2_noep2:")
    stamp(a, 6)
    HB = 128; WF = 32
    def hload(i, off): return f"buffer_load_dwordx4 v[{HB+4*i}:{HB+4*i+3}], v8, s[36:39], s16 offen offset:{off} sc1"
    for i in range(16):
        a(hload(i, (i % 4)*1024))
        if i % 4 == 3: a("s_add_u32 s16, s16, 4096")
        if i % 2 == 1 and i < 15:
            for k in range(2): a("buffer_load_dword v9, v22, s[36:39], 0 offen")
    def wreads(st, p):
        r = []
        for mb in range(8):
            b = WF + st*32 + mb*4
            r.append(f"ds_read_b64_tr_b16 v[{b}:{b+1}], v{AD+mb} offset:{p*8192}")
            r.append(f"ds_read_b64_tr_b16 v[{b+2}:{b+3}], v{AD+mb} offset:{p*8192+4096}")
        return r
    for x in wreads(0, 0): a(x)
    a(f"s_mov_b32 s19, 0\n s_mov_b32 s18, 0\n s_mov_b32 s30, s17\n s_mov_b32 s17, {OOB}\n s_add_u32 m0, s21, 147456")
    def y_loads():
        a(f"""
        s_lshl_b32 s26, s24, 7
        s_lshl_b32 s27, s3, 5
        s_add_u32 s26, s26, s27
        v_and_b32 v2, 15, v1
        v_add_u32 v10, s26, v2
        v_add_u32 v11, 16, v10
        s_mov_b32 s26, {WS_LP}
        v_lshlrev_b32 v2, 4, v10
        buffer_load_dwordx4 a[96:99], v2, s[12:15], s26 offen sc1
        buffer_load_dwordx4 a[100:103], v2, s[12:15], s26 offen offset:256 sc1
        s_cmp_ge_u32 s25, 8
        s_cselect_b64 s[62:63], -1, 0
        s_lshl_b32 s26, s25, 1
        s_sub_u32 s27, 30, s26
        s_cmp_ge_u32 s25, 8
        s_cselect_b32 s28, s27, s26
        s_mul_i32 s28, s28, {EGS}
        s_add_u32 s28, s28, {WS_Y}
        s_lshl_b32 s26, s24, 7
        s_lshl_b32 s27, s3, 5
        s_add_u32 s27, s26, s27
        s_mov_b32 s26, {TPS}
        """)
        for j in range(5):
            if j < 4: a(f"v_lshrrev_b32 v2, 2, v1\n v_lshl_add_u32 v2, v2, 1, {j&1}\n v_and_b32 v3, 3, v1\n v_lshlrev_b32 v3, 4, v3\n v_add_u32 v3, {(j>>1)*EGS}, v3")
            else: a(f"v_and_b32 v2, 31, v1\n v_mov_b32 v3, {2*EGS}")
            a(f"""
            v_add_u32 v2, s27, v2
            v_sub_u32 v4, 2048, v2
            v_min_u32 v4, v4, v2
            v_cmp_lt_u32 vcc, 1024, v2
            v_and_b32 v5, 1, v4
            v_mul_lo_u32 v5, v5, s26
            v_lshrrev_b32 v4, 1, v4
            v_lshl_add_u32 v4, v4, 6, v5
            s_xor_b64 vcc, vcc, s[62:63]
            v_add_u32 v4, v4, v3
            v_add_u32 v5, {YD}, v4
            v_cndmask_b32 v4, v4, v5, vcc
            """)
            if j < 4: a(f"buffer_load_dwordx4 a[{72+4*j}:{75+4*j}], v4, s[12:15], s28 offen sc1")
            else: a(f"buffer_load_dword a88, v4, s[12:15], s28 offen sc1")
    a(f"v_and_b32 v20, 31, v1\n v_lshlrev_b32 v20, 7, v20\n v_add_u32 v20, {WS_FL+32768}, v20")
    a(".p2align 6\nL_g2_loop:")
    a("s_cmp_lg_u32 s18, 5\n s_cbranch_scc1 L_g2_nos4\n buffer_load_dwordx2 v[18:19], v20, s[12:15], 0 offen sc1\n L_g2_nos4:")
    for t in range(8):
        p = t & 1; i = 2*t
        if t == 4:
            a("s_cmp_lg_u32 s18, 6\n s_cbranch_scc1 L_g2_nopq")
            a("v_cmp_ne_u32 vcc, s98, v18\n v_cmp_ne_u32 s[28:29], s99, v19\n s_or_b64 vcc, vcc, s[28:29]\n s_cbranch_scc0 L_g2_s4ok")
            a(f"s_mov_b32 s26, {WS_FL+32768}")
            poll(a, [('s26', '0xffffffff')], vb=108, gap=2, cnt=32)
            a("L_g2_s4ok:")
            y_loads()
            a("L_g2_nopq:")
        if opt.trace and p == 0:
            a(f"s_lshl_b32 s91, s18, 2\n s_add_u32 s91, s91, {t >> 1}")
            for x in trace_ops("s91"): a(x)
        a("s_waitcnt vmcnt(28) lgkmcnt(8)")
        ms = []
        for nb, mb in [(0, 0), (0, 1), (0, 2), (0, 3), (1, 3), (1, 2), (1, 1), (1, 0), (1, 4), (1, 5), (1, 6), (1, 7), (0, 7), (0, 6), (0, 5), (0, 4)]:
            b = WF + p*32 + mb*4; c = (nb*8+mb)*4
            ms.append(f"{MF} a[{c}:{c+3}], v[{b}:{b+3}], v[{HB+4*(i+nb)}:{HB+4*(i+nb)+3}], a[{c}:{c+3}]")
        f = {}
        rd = wreads(p ^ 1, p ^ 1)
        for k, x in enumerate(rd):
            f.setdefault(k, [])
            if not (opt.x2 & 1) and not ((opt.x2 & 16) and k % 2): f[k].append(x.replace('ds_read_b64_tr_b16', 'ds_read_b64') if opt.x2 & 8 else x)
        f[7].append("s_waitcnt lgkmcnt(8)")
        for k in range(2): f[opt.dmo[k]].append(g2_dma()[2*p + k])
        if p == 1:
            f[8] += ["s_barrier", "s_add_u32 m0, s21, s19", "s_mov_b32 s17, s30"]
            f[9] += [f"s_add_u32 s30, s30, {64*2048}", "s_cmp_eq_u32 s30, s23"]
            f[10] += [f"s_cselect_b32 s30, {OOB}, s30"]
            f[12] += [f"s_add_u32 s19, s19, {SLOT2}"]
            f[13] += [f"s_and_b32 s19, s19, {R2*SLOT2-1}"]
        else:
            f[1].append(f"s_add_u32 s20, s19, {SLOT2}")
            f[3].append(f"s_and_b32 s20, s20, {R2*SLOT2-1}")
            f[5].append(f"v_add_u32 v17, s20, v16")
            for mb in range(8): f[min(15, max(2*mb+1, 6+mb//2) if mb < 4 else 2*mb+1)].append(f"v_xor_b32 v{AD+mb}, {mb*32}, v17")
        f[11].append(hload(i+1, ((i+1) % 4)*1024))
        f[15].append(hload(i, (i % 4)*1024))
        if p == 1: f[15].append("s_add_u32 s16, s16, 4096")
        if opt.x2 & 32:
            ms2 = []; f2 = {}
            for k in range(8):
                b = WF + p*32 + (k if k < 4 else k)*4; c = (k & 3)*16
                ms2.append(f"v_mfma_f32_32x32x16_bf16 a[{c}:{c+15}], v[{b}:{b+3}], v[{HB+4*(i+(1 if k < 4 else 0))}:{HB+4*(i+(1 if k < 4 else 0))+3}], a[{c}:{c+15}]")
                f2[k] = f.get(2*k, []) + f.get(2*k+1, [])
            ms, f = ms2, f2
        interleave(a, ms, f)
    a("s_add_u32 s18, s18, 1\n s_cmp_lt_u32 s18, 7\n s_cbranch_scc1 L_g2_loop")
    stamp(a, 7)
    a(f"""
    s_lshl_b32 s26, s2, 2
    s_add_u32 s26, s26, s3
    s_mul_i32 s22, s26, {XBS}
    s_add_u32 s22, s22, {WS_XB}
    s_xor_b32 s27, s26, 4
    s_mul_i32 s30, s27, {XBS}
    s_add_u32 s30, s30, {WS_XB}
    s_lshl_b32 s23, s26, 7
    s_add_u32 s23, s23, {WS_FL+262144}
    s_nop 3
    """)
    for g in range(4):
        for i in range(8): a(f"v_accvgpr_read_b32 v{192+8*g+i}, a{(g>>1)*32+16+(g&1)*8+i}")
        for i in range(4): a(f"v_cvt_pk_bf16_f32 v{224+4*g+i}, v{192+8*g+2*i}, v{193+8*g+2*i}")
        a(f"buffer_store_dwordx4 v[{224+4*g}:{227+4*g}], v8, s[12:15], s22 offen offset:{g*1024} sc1")
    a("""
    s_mul_i32 s26, s3, 4608
    s_add_u32 s26, s26, 131072
    v_lshrrev_b32 v4, 2, v1
    v_mul_u32_u24 v4, 288, v4
    v_and_b32 v5, 3, v1
    v_lshl_add_u32 v4, v5, 4, v4
    v_add_u32 v4, s26, v4
    v_and_b32 v5, 31, v1
    v_mul_u32_u24 v5, 144, v5
    v_add_u32 v5, s26, v5
    s_waitcnt vmcnt(4)
    """)
    for j in range(4): a(f"ds_write_b128 v4, a[{72+4*j}:{75+4*j}] offset:{(j&1)*144 + (j>>1)*64}")
    a("ds_write_b32 v5, a88 offset:128")
    a("""
    v_and_b32 v4, 15, v1
    v_mul_u32_u24 v4, 144, v4
    v_lshrrev_b32 v5, 4, v1
    v_lshlrev_b32 v5, 3, v5
    v_sub_u32 v6, 24, v5
    v_cndmask_b32 v5, v5, v6, s[62:63]
    v_add3_u32 v4, v4, v5, s26
    s_waitcnt lgkmcnt(0)
    """)
    for k in range(8):
        a(f"ds_read_b64 v[{128+4*k}:{129+4*k}], v4 offset:{(k>>2)*16*144 + (k&3)*32}\n ds_read_b32 v{130+4*k}, v4 offset:{(k>>2)*16*144 + (k&3)*32 + 8}")
    a("s_waitcnt vmcnt(0)")
    flag_store(a, 's23')
    a("s_xor_b32 s23, s23, 512\n s_mov_b32 s22, s30")
    for nb in range(2):
        for i in range(4): a(f"v_accvgpr_read_b32 v{40+i}, a{96+4*nb+i}")
        a(f"""
        v_add_f32 v40, v40, v41
        v_add_f32 v42, v42, v43
        v_add_f32 v40, v40, v42
        v_cvt_pk_bf16_f32 v40, v40, v40
        v_lshlrev_b32 v40, 16, v40
        v_mul_f32 v40, {fbits(-math.log2(math.e))}, v40
        v_exp_f32 v40, v40
        s_nop 0
        v_add_f32 v40, 1.0, v40
        v_rcp_f32 v40, v40
        s_nop 0
        v_cvt_pk_bf16_f32 v40, v40, v40
        v_lshlrev_b32 v{32+nb}, 16, v40
        v_sub_f32 v40, 1.0, v{32+nb}
        v_cvt_pk_bf16_f32 v40, v40, v40
        v_lshlrev_b32 v{34+nb}, 16, v40
        """)
    for nb in range(2):
        for i in range(16): a(f"v_accvgpr_read_b32 v{64+nb*16+i}, a{nb*32+i}")
    for nb in range(2):
        for i in range(16): a(f"v_mul_f32 v{64+nb*16+i}, v{34+nb}, v{64+nb*16+i}")
    a("s_waitcnt lgkmcnt(0)\n s_cmp_ge_u32 s25, 8\n s_cbranch_scc1 L_g2_mir")
    for mir in range(2):
        if mir: a("L_g2_mir:")
        for nb in range(2):
            for mb in range(4):
                d = 128 + (nb*4 + (3-mb if mir else mb))*4; o = 64 + (nb*4+mb)*4
                els = [4, 3, 2, 1] if mir else [0, 1, 2, 3]
                for r in range(4): a(unp(40+r, d, els[r]))
                for r in range(4): a(f"v_fma_f32 v{o+r}, v{40+r}, v{32+nb}, v{o+r}")
        if not mir: a("s_branch L_g2_st")
    a("L_g2_st:")
    a("""
    v_lshlrev_b32 v2, 11, v10
    v_lshrrev_b32 v3, 4, v1
    v_and_b32 v4, 1, v3
    v_lshl_add_u32 v2, v4, 5, v2
    v_lshrrev_b32 v4, 1, v3
    v_lshl_add_u32 v2, v4, 4, v2
    s_lshl_b32 s26, s25, 7
    v_add_u32 v2, s26, v2
    v_add_u32 v3, 32768, v2
    """)
    stamp(a, 9)
    poll(a, [('s23', '1')], vb=44, gap=1, cnt=1)
    stamp(a, 10)
    for k in range(4): a(f"buffer_load_dwordx4 v[{160+4*k}:{163+4*k}], v8, s[12:15], s22 offen offset:{k*1024} sc1")
    for k in range(4):
        a(f"s_waitcnt vmcnt({3-k})")
        for r in range(8): a(unp(176+r, 160+4*k, r))
        for r in range(8): a(f"v_fma_f32 v{64+8*k+r}, v{176+r}, v{34+(k>>1)}, v{64+8*k+r}")
    for i in range(16): a(f"v_cvt_pk_bf16_f32 v{96+i}, v{64+2*i}, v{64+2*i+1}")
    a("s_nop 1")
    for p in range(4):
        a(f"v_permlane16_swap_b32 v{96+4*p}, v{96+4*p+2}\n v_permlane16_swap_b32 v{96+4*p+1}, v{96+4*p+3}")
    for p in range(4):
        a(f"buffer_store_dwordx4 v[{96+4*p}:{96+4*p+3}], v{2+(p>>1)}, s[8:11], 0 offen offset:{(p&1)*64} {opt.oflags}")

def ACCG(mb, nb): return 128 + (nb*4+mb)*4
def ACCU(mb, nb): return (nb*4+mb)*4
def FR(st, i): return 128 + st*64 + i*4

def gemm1(a):
    XS = 32768; WB = 98304; WSL = 16384
    a("s_cmp_ge_u32 s3, 2\n s_cselect_b32 s26, s46, s44\n s_cselect_b32 s27, s47, s45")
    srd(a, 8, 26, 1024*3584*2)
    a(f"""
    s_cmp_eq_u32 s3, 1
    s_cselect_b32 s80, s46, s44
    s_cselect_b32 s81, s47, s45
    s_mov_b32 s82, {1024*3584*2}
    s_cmp_eq_u32 s3, 2
    s_cselect_b32 s80, s40, s80
    s_cselect_b32 s81, s41, s81
    s_cselect_b32 s82, {2048*1024*2}, s82
    s_cmp_eq_u32 s3, 3
    s_cselect_b32 s80, s88, s80
    s_cselect_b32 s81, s89, s81
    s_and_b32 s81, s81, 0xffff
    s_mov_b32 s83, 0x20000
    v_mov_b32 v3, {OOB}
    s_add_u32 s86, s67, 28
    s_cmp_ge_u32 s3, 2
    s_cbranch_scc1 L_t_x
    v_lshrrev_b32 v2, 4, v1
    v_lshlrev_b32 v2, 5, v2
    v_bfe_u32 v4, v1, 1, 3
    v_add_u32 v2, v2, v4
    s_lshl_b32 s26, s68, 3
    v_add_u32 v2, s26, v2
    s_mov_b32 s27, 7168
    v_mul_lo_u32 v2, v2, s27
    v_and_b32 v4, 1, v1
    v_lshl_add_u32 v2, v4, 7, v2
    s_lshl_b32 s26, s25, 8
    v_add_u32 v26, s26, v2
    v_cmp_gt_u32 vcc, 32, v1
    s_mov_b32 s84, 0
    s_mov_b32 s85, {2*32*7168}
    v_cndmask_b32 v27, v3, v26, vcc
    s_mov_b32 s87, {4*32*7168}
    s_mov_b32 s75, s85
    v_mov_b32 v42, v27
    v_mov_b32 v35, v3
    s_branch L_t_done
    L_t_x:
    s_cmp_eq_u32 s3, 3
    s_cbranch_scc1 L_t_wd
    s_mul_i32 s26, s69, 37
    s_lshl_b32 s27, s24, 8
    s_add_u32 s26, s26, s27
    v_add_u32 v2, s26, v1
    v_lshlrev_b32 v2, 11, v2
    v_cmp_gt_u32 vcc, 37, v1
    s_mov_b32 s84, 0
    s_mov_b32 s85, 0
    v_cndmask_b32 v26, v3, v2, vcc
    s_mov_b32 s87, 128
    s_mov_b32 s75, 128
    v_mov_b32 v27, v3
    v_mov_b32 v42, v26
    v_mov_b32 v35, v3
    s_branch L_t_done
    L_t_wd:
    s_mul_i32 s27, s86, 49
    v_cmp_gt_u32 vcc, 49, v1
    s_lshl_b32 s28, s66, 6
    """)
    for k in range(3):
        a(f"""
        v_add_u32 v2, s27, v1
        v_add_u32 v2, {1372*k}, v2
        v_bfe_u32 v4, v2, 4, 3
        v_bfe_u32 v5, v2, 7, 2
        v_lshl_add_u32 v4, v5, 4, v4
        v_bfe_u32 v5, v2, 11, 1
        v_lshl_add_u32 v4, v5, 3, v4
        v_add_u32 v4, s28, v4
        v_bfe_u32 v5, v2, 9, 2
        v_and_b32 v6, 1, v5
        v_lshrrev_b32 v7, 1, v5
        v_xor_b32 v6, v6, v7
        v_sub_u32 v7, 0, v4
        v_cmp_eq_u32 s[62:63], 1, v6
        v_and_b32 v2, 15, v2
        v_lshlrev_b32 v2, 7, v2
        v_cndmask_b32 v4, v4, v7, s[62:63]
        v_lshlrev_b32 v6, 11, v5
        v_cmp_le_u32 s[62:63], 2, v5
        v_mov_b32 v7, 1024
        s_nop 0
        v_cndmask_b32 v6, v6, v7, s[62:63]
        v_add_u32 v4, v4, v6
        v_lshl_add_u32 v2, v4, 11, v2
        v_cndmask_b32 v35, v3, v2, vcc
        """)
        a(f"buffer_load_dword v127, v35, s[4:7], 0 offen {opt.nt_fold}")
    a(f"""
    v_lshlrev_b32 v2, 7, v1
    v_cmp_gt_u32 vcc, 32, v1
    s_mul_i32 s84, s66, 28
    s_add_u32 s84, s84, s86
    s_lshl_b32 s84, s84, 12
    v_cndmask_b32 v27, v3, v2, vcc
    s_mov_b32 s85, {224*4096}
    s_mov_b32 s87, 0
    s_mov_b32 s75, 0
    v_mov_b32 v26, v3
    v_mov_b32 v42, v3
    L_t_done:
    """)
    stamp(a, 19)
    a(f"buffer_load_dword v127, v42, s[80:83], s84 offen {opt.nt_w}\n s_add_u32 s84, s84, s75")
    stamp(a, 20)
    a(f"""
    s_cmp_lt_u32 s66, 4
    s_cselect_b32 s36, s56, s58
    s_cselect_b32 s37, s57, s59
    s_cmp_eq_u32 s3, 2
    s_cselect_b32 s36, s52, s36
    s_cselect_b32 s37, s53, s37
    s_cmp_eq_u32 s3, 3
    s_cselect_b32 s36, s54, s36
    s_cselect_b32 s37, s55, s37
    s_and_b32 s37, s37, 0xffff
    s_mov_b32 s39, 0x20000
    s_and_b32 s28, s66, 3
    s_lshl_b32 s26, s28, 18
    s_lshl_b32 s28, s28, 8
    s_lshr_b32 s27, s66, 2
    s_add_u32 s28, s28, s27
    s_lshl_b32 s28, s28, 12
    s_cmp_eq_u32 s3, 1
    s_cselect_b32 s28, s26, s28
    s_cselect_b32 s26, 11, 13
    s_cselect_b32 s38, {1024*1024*2}, s82
    s_mul_i32 s27, s86, 37
    v_add_u32 v2, s27, v1
    v_lshrrev_b32 v4, 3, v2
    v_lshlrev_b32 v4, s26, v4
    v_and_b32 v2, 7, v2
    v_lshl_add_u32 v2, v2, 7, v4
    s_cmp_eq_u32 s3, 0
    s_cselect_b32 s27, 0, 37
    v_cmp_gt_u32 vcc, s27, v1
    v_mov_b32 v3, {OOB}
    s_nop 0
    v_cndmask_b32 v2, v3, v2, vcc
    v_add_u32 v34, s28, v2
    s_cmp_lg_u32 s3, 1
    s_cbranch_scc1 L_t_nm
    buffer_load_dword v127, v34, s[36:39], 0 offen {opt.nt_c}
    v_mov_b32 v34, v3
    L_t_nm:
    """)
    a("s_lshl_b32 s29, s24, 19\n s_lshl_b32 s26, s3, 16\n s_add_u32 s29, s29, s26")
    sh_voff(a, 8, 11, 29)
    a("""
    v_lshrrev_b32 v2, 4, v1
    s_and_b32 s26, s3, 1
    s_lshl_b32 s26, s26, 4
    v_add_u32 v3, s26, v2
    s_mov_b32 s27, 7168
    v_mul_lo_u32 v3, v3, s27
    s_lshl_b32 s26, s25, 8
    v_add_u32 v3, s26, v3
    v_lshlrev_b32 v2, 1, v2
    v_and_b32 v4, 15, v1
    v_xor_b32 v2, v2, v4
    v_lshl_add_u32 v12, v2, 4, v3
    v_xor_b32 v2, 8, v2
    v_lshl_add_u32 v14, v2, 4, v3
    """)
    a(f"v_add_u32 v13, {1*(4*7168-1024)}, v12\n v_add_u32 v15, {3*(4*7168-1024)}, v14\n v_add_u32 v14, {2*(4*7168-1024)}, v14")
    a(f"s_mov_b32 s16, 0\n s_mov_b32 s22, 65536\n s_mov_b32 s17, 0\n s_lshl_b32 s21, s3, 12\n s_add_u32 s21, s21, {WB}\n s_lshl_b32 s23, s3, 13")
    def dma_x(h): return [f"buffer_load_dwordx4 v{8+i}, s[4:7], s{(16, 22)[h]} offen offset:{i*1024} lds" for i in range(4)]
    def dma_w(): return [f"buffer_load_dwordx4 v{12+i}, s[8:11], s17 offen offset:{i*1024} lds" for i in range(4)]
    def px(s):
        a(f"s_add_u32 m0, s23, {s*XS}\n s_nop 0")
        for x in dma_x(0): a(x)
        a(f"s_add_u32 m0, s23, {s*XS+4096}\n s_add_u32 s16, s16, 128")
        for x in dma_x(1): a(x)
        a("s_add_u32 s22, s22, 128")
    def pw(s):
        a(f"s_add_u32 m0, s21, {s*WSL}\n s_nop 0")
        for x in dma_w(): a(x)
        a(f"s_add_u32 s17, s17, {32*7168}")
    if opt.tlb:
        a("v_lshlrev_b32 v40, 21, v1\n v_add_u32 v40, 0x100000, v40")
    if opt.tlb2:
        a(f"""
        s_cmp_eq_u32 s3, 1
        s_cselect_b32 s76, s42, s48
        s_cselect_b32 s77, s43, s49
        s_cselect_b32 s78, {4 << 20}, {32 << 20}
        s_and_b32 s77, s77, 0xffff
        s_mov_b32 s79, 0x20000
        s_mov_b32 s26, {opt.HS}
        s_mov_b32 s27, {opt.HS - 128}
        s_cmp_eq_u32 s3, 1
        s_cselect_b32 s26, 65536, s26
        s_cselect_b32 s27, 0, s27
        s_cmp_eq_u32 s3, 2
        s_cselect_b32 s26, {16*XBS}, s26
        s_cselect_b32 s27, {WS_XB + 4096}, s27
        s_cmp_eq_u32 s3, 3
        s_cselect_b32 s26, {EGS}, s26
        s_cselect_b32 s27, {WS_Y + 520*64}, s27
        v_mul_lo_u32 v41, v1, s26
        v_add_u32 v41, s27, v41
        s_cbranch_scc0 L_tl_done
        v_cmp_lt_u32 vcc, 31, v1
        v_add_u32 v2, {YD - 32*EGS}, v41
        s_nop 0
        v_cndmask_b32 v41, v41, v2, vcc
        v_cmp_eq_u32 vcc, 63, v1
        v_mov_b32 v2, {WS_FL + 4096}
        s_nop 0
        v_cndmask_b32 v41, v41, v2, vcc
        L_tl_done:
        """.replace("s_cselect_b32 s78, 4194304, 33554432", "s_mov_b32 s78, 33554432\n s_cselect_b32 s78, 4194304, s78"))
    a(f"""
    s_lshr_b32 s26, s3, 1
    s_lshl_b32 s26, s26, 7
    v_and_b32 v2, 15, v1
    v_lshrrev_b32 v5, 1, v2
    v_add_u32 v2, s26, v2
    v_lshlrev_b32 v2, 7, v2
    v_lshrrev_b32 v3, 4, v1
    v_xor_b32 v5, v3, v5
    v_lshl_add_u32 v16, v5, 4, v2
    v_xor_b32 v5, 4, v5
    v_lshl_add_u32 v33, v5, 4, v2
    v_lshrrev_b32 v4, 2, v1
    v_and_b32 v4, 3, v4
    v_lshl_add_u32 v5, v3, 3, v4
    v_lshlrev_b32 v5, 8, v5
    v_add_u32 v5, {WB}, v5
    v_and_b32 v6, 3, v1
    v_lshl_add_u32 v5, v6, 3, v5
    v_and_b32 v6, 1, v3
    v_lshl_or_b32 v6, v6, 2, v4
    s_and_b32 s26, s3, 1
    s_lshl_b32 s26, s26, 2
    v_xor_b32 v6, s26, v6
    """)
    for mb in range(4):
        a(f"v_xor_b32 v7, {mb}, v6\n v_lshl_add_u32 v{17+mb}, v7, 5, v5")
    for i in range(5): a(f"v_mov_b32 v{21+i}, v{16+i}")
    def reads(st):
        def wr(mat, mb):
            b = FR(st, mat*4+mb)
            return [f"ds_read_b64_tr_b16 a[{b}:{b+1}], v{22+mb} offset:{mat*8192}",
                    f"ds_read_b64_tr_b16 a[{b+2}:{b+3}], v{22+mb} offset:{mat*8192+1024}"]
        def xr(nb):
            b = FR(st, 8+nb)
            return [f"ds_read_b128 a[{b}:{b+3}], v21 offset:{nb*2048}"]
        r = []
        for i in range(8): r += wr(i & 1, i >> 1) + xr(i)
        return r
    def mf(st):
        m = []
        od = [(nb if (mb*2+mat) % 2 == 0 else 7-nb, mb, mat) for mb in range(4) for mat in range(2) for nb in range(8)]
        for nb, mb, mat in od:
            c = f"v[{ACCG(mb,nb)}:{ACCG(mb,nb)+3}]" if mat == 0 else f"a[{ACCU(mb,nb)}:{ACCU(mb,nb)+3}]"
            fa = FR(st, mat*4+mb); fb_ = FR(st, 8+nb)
            m.append(f"{MF} {c}, a[{fa}:{fa+3}], a[{fb_}:{fb_+3}], {c}")
        return m
    for i in range(4): a(f"v_mov_b32 v{36+i}, 0")
    a("s_nop 1")
    for i in range(8): a(f"v_mfma_f32_32x32x16_bf16 v[{128+16*i}:{143+16*i}], v[36:39], v[36:39], 0\n v_mfma_f32_32x32x16_bf16 a[{16*i}:{15+16*i}], v[36:39], v[36:39], 0")
    stamp(a, 21)
    pw(0); px(0); pw(1)
    stamp(a, 22)
    stamp(a, 1)
    a(f"s_waitcnt vmcnt(4) lgkmcnt(0)\n s_barrier")
    for x in reads(0): a(x)
    nonce(a)
    a(f"s_lshl_b32 s26, s2, 7\n s_add_u32 s26, s26, {WS_FL+393216}\n s_cmp_eq_u32 s3, 0\n s_cselect_b32 s26, s26, {OOB}\n v_and_b32 v43, 15, v1\n v_lshl_add_u32 v43, v43, 3, s26\n v_mov_b32 v44, s98\n v_mov_b32 v45, s99")
    a(f"s_mov_b32 s19, 0\n s_mov_b32 s20, {XS}\n s_mov_b32 s18, 0\n s_mov_b32 s28, {WSL}\n s_mov_b32 s29, 0")
    a("v_mov_b32 v21, v33")
    for i in range(4): a(f"v_add_u32 v{22+i}, s28, v{17+i}")
    a(f"s_mov_b32 s72, {32*7168}\n s_mov_b32 s73, 128\n s_mov_b32 s74, 65536")
    stamp(a, 2)
    for st in (2, 0, 1):
        peel = st == 2
        if peel: st = 0
        if not peel and st == 0: a(".p2align 6\nL_g1_loop:")
        if st == 1: a("L_g1_mid:")
        f = {-1: ["s_waitcnt lgkmcnt(0)"]}
        if opt.trace: f[-1] = trace_ops("s18")
        f[0] = [f"s_waitcnt vmcnt({0 if peel else (24, 12)[st]})", "s_barrier"]
        if peel:
            A = Asm(); save = a
            def cap(fn, *args):
                n0 = len(a.l); fn(*args); out = [x.strip() for x in a.l[n0:]]; del a.l[n0:]; return out
            T2 = [f"buffer_load_dword v127, v26, s[80:83], s84 offen {opt.nt_w}", "s_add_u32 s84, s84, s87"]
            ops = T2 + cap(pw, 2) + cap(px, 1) + cap(pw, 3) + T2 + ["buffer_load_dword v127, v40, s[80:83], 0 offen"] + cap(px, 2) + ["buffer_store_dwordx2 v[44:45], v43, s[12:15], 0 offen sc1"]
            g = 2
            for x in ops:
                if x == 's_nop 0': continue
                f.setdefault(g-1 if 'm0' in x else g, []).append(x)
                if x.startswith('buffer'): g += 2
            assert g <= 63, g
            if opt.stamp and opt.dbgmax: f.setdefault(63, []).extend(["s_memrealtime s[92:93]", "s_waitcnt lgkmcnt(0)", "v_writelane_b32 v31, s92, 41"])
            f.setdefault(63, []).append("s_branch L_g1_mid")
        rd = reads(st ^ 1)
        for i, x in enumerate(rd): f.setdefault(1 + 2*i, []).append(x)
        f.setdefault(2, []).append(f"s_add_u32 s28, s28, {WSL}")
        f.setdefault(4, []).append(f"s_and_b32 s28, s28, {4*WSL-1}")
        f.setdefault(6, []).append("s_add_u32 s18, s18, 1")
        for i in range(4): f.setdefault(50+2*i, []).append(f"v_add_u32 v{22+i}, s28, v{17+i}")
        if st == 0:
            f.setdefault(58, []).append("v_add_u32 v21, s20, v16")
        else:
            f.setdefault(58, []).append("v_add_u32 v21, s19, v33")
            dq = dma_w() + dma_w() + dma_x(0) + dma_x(1)
            dp = opt.dp if hasattr(opt, 'dp') else [2 + 4*i - (i > 11)*(i-11) for i in range(16)]
            f[0].append("s_add_u32 m0, s21, s29")
            for i, x in enumerate(dq): f.setdefault(dp[i], []).append(x)
            f[dp[3]] += [f"s_add_u32 m0, m0, {WSL}", "s_add_u32 s17, s17, s72"]
            f[dp[7]] += ["s_add_u32 m0, s23, s19", "s_add_u32 s17, s17, s72"]
            f[dp[8]] += [f"s_xor_b32 s29, s29, {2*WSL}"]
            f[dp[9]] += ["s_mov_b32 s19, s20"]
            f[dp[10]] += [f"s_add_u32 s20, s20, {XS}", f"s_cmp_eq_u32 s20, {3*XS}"]
            f[dp[11]] += ["s_cselect_b32 s20, 0, s20", "s_add_u32 m0, m0, 4096"]
            f[dp[12]] += ["s_add_u32 s16, s16, s73"]
            f[dp[15]] += ["s_cmp_ge_u32 s18, 26", "s_cbranch_scc1 L_g1_sw", "L_g1_swd:", "s_add_u32 s22, s16, s74"]
            f.setdefault(62, []).extend([f"buffer_load_dword v127, v27, s[80:83], s84 offen {opt.tflags}", "s_add_u32 s84, s84, s85"])
            f[62] += ["s_cmp_lg_u32 s18, 4", "s_cbranch_scc1 L_g1_noseq", "buffer_load_dword v127, v34, s[36:39], 0 offen"] + (["buffer_load_dword v127, v41, s[76:79], 0 offen"] if opt.tlb2 else []) + ["L_g1_noseq:"]
            f.setdefault(63, []).extend(["s_cmp_lt_u32 s18, 32", "s_cbranch_scc1 L_g1_loop"])
        interleave(a, mf(st), f)
    a("s_branch L_g1_done")
    a("L_g1_sw:\n s_cmp_eq_u32 s18, 26\n s_cbranch_scc0 L_g1_sw2")
    srd(a, 4, 88, 3584*1024*2)
    g2_voff(a, 8, 5)
    a(f"s_mov_b32 s16, {128*2048}\n s_mov_b32 s73, {128*2048}\n s_mov_b32 s74, {16*2048}\n s_branch L_g1_swd")
    a("L_g1_sw2:\n s_cmp_eq_u32 s18, 28\n s_cbranch_scc0 L_g1_sw3")
    srd(a, 8, 88, 3584*1024*2)
    g2_voff(a, 12, 4)
    a(f"s_mov_b32 s17, {384*2048}\n s_mov_b32 s72, {64*2048}\n s_branch L_g1_swd")
    a(f"L_g1_sw3:\n s_mov_b32 s16, 0\n s_mov_b32 s17, {OOB}\n s_branch L_g1_swd")
    a("L_g1_done:")
    stamp(a, 3)
    a(f"""
    s_lshl_b32 s30, s24, 3
    s_lshr_b32 s31, s3, 1
    s_lshl_b32 s31, s31, 2
    s_add_u32 s30, s30, s31
    s_lshl_b32 s23, s30, 11
    s_mul_i32 s30, s30, {opt.HS}
    s_lshl_b32 s31, s25, 13
    s_add_u32 s30, s30, s31
    s_and_b32 s31, s3, 1
    s_lshl_b32 s31, s31, 12
    s_add_u32 s30, s30, s31
    s_lshl_b32 s31, s25, 1
    s_and_b32 s26, s3, 1
    s_add_u32 s31, s31, s26
    s_lshl_b32 s31, s31, 7
    s_add_u32 s23, s23, s31
    s_add_u32 s23, s23, {WS_FL+65536}
    s_waitcnt lgkmcnt(0)
    s_nop 7
    """)
    c0 = -2*math.sqrt(2/math.pi)*math.log2(math.e); c1 = c0*0.044715
    a(f"s_mov_b32 s26, {fbits(c0)}\n s_mov_b32 s28, {fbits(c1)}\n s_mov_b32 s29, {fbits(c1)}")
    a("v_mov_b32 v24, s26\n v_mov_b32 v25, s26\n v_lshlrev_b32 v26, 4, v1")
    T = 32
    for nb in range(8):
        g0 = ACCG(0, nb); u0 = ACCU(0, nb)
        t = T + (nb % 2)*48
        U = t; Z = t+16; O = t+32
        for i in range(16): a(f"v_accvgpr_read_b32 v{U+i}, a{u0+i}")
        for i in range(0, 16, 2): a(f"v_pk_mul_f32 v[{Z+i}:{Z+i+1}], v[{g0+i}:{g0+i+1}], v[{g0+i}:{g0+i+1}]")
        for i in range(0, 16, 2): a(f"v_pk_fma_f32 v[{Z+i}:{Z+i+1}], v[{Z+i}:{Z+i+1}], s[28:29], v[24:25]")
        for i in range(0, 16, 2): a(f"v_pk_mul_f32 v[{Z+i}:{Z+i+1}], v[{Z+i}:{Z+i+1}], v[{g0+i}:{g0+i+1}]")
        for i in range(16): a(f"v_exp_f32 v{Z+i}, v{Z+i}")
        for i in range(0, 16, 2): a(f"v_pk_mul_f32 v[{U+i}:{U+i+1}], v[{U+i}:{U+i+1}], v[{g0+i}:{g0+i+1}]")
        for i in range(0, 16, 2): a(f"v_pk_add_f32 v[{Z+i}:{Z+i+1}], v[{Z+i}:{Z+i+1}], 1.0 op_sel_hi:[1,0]")
        for i in range(16): a(f"v_rcp_f32 v{Z+i}, v{Z+i}")
        a("s_nop 0")
        for i in range(0, 16, 2): a(f"v_pk_mul_f32 v[{U+i}:{U+i+1}], v[{U+i}:{U+i+1}], v[{Z+i}:{Z+i+1}]")
        for i in range(0, 16, 2): a(f"v_cvt_pk_bf16_f32 v{O+i//2}, v{U+i}, v{U+i+1}")
        for p in range(2):
            off = (nb >> 1)*opt.HS + (p*2 + (nb & 1))*1024
            a(f"s_add_u32 s31, s30, {off}")
            a(f"buffer_store_dwordx4 v[{O+4*p}:{O+4*p+3}], v26, s[12:15], s31 offen {opt.hflags}")
    stamp(a, 4)
    a("s_waitcnt vmcnt(0)")
    flag_store(a, 's23')

class VM:
    def __init__(s): s.ops = []
    def add(s, tag, n=1): s.ops += [tag]*n
    def wait(s, a, tag, extra=""):
        last = max(i for i, t in enumerate(s.ops) if t == tag)
        a(f"s_waitcnt vmcnt({min(63, len(s.ops)-1-last)}) {extra}")
RAW = 64; GT = 192; EU = 208; SV = 216
def fold_loads(a, vm):
    a("""
    s_lshl_b32 s26, s66, 2
    s_add_u32 s26, s26, s67
    s_lshl_b32 s26, s26, 4
    v_lshrrev_b32 v40, 3, v1
    v_add_u32 v40, s26, v40
    v_cmp_eq_u32 s[62:63], 0, v40
    v_and_b32 v2, 7, v1
    v_cmp_eq_u32 s[70:71], 0, v2
    v_add_u32 v44, 8, v40
    v_lshlrev_b32 v2, 4, v2
    s_lshl_b32 s26, s3, 8
    v_add_u32 v2, s26, v2
    v_sub_u32 v3, 1904, v2
    v_sub_u32 v41, 2048, v40
    v_sub_u32 v42, 1024, v40
    v_add_u32 v43, 1024, v40
    v_sub_u32 v45, 2048, v44
    v_sub_u32 v46, 1024, v44
    v_add_u32 v47, 1024, v44
    v_mov_b32 v4, 512
    v_mov_b32 v5, 1536
    v_cndmask_b32 v41, v41, v4, s[62:63]
    v_cndmask_b32 v43, v43, v5, s[62:63]
    s_sub_u32 s74, 2048, s26
    """)
    for k in range(8): a(f"v_lshl_add_u32 v{224+8*(k>>2)+(k&3)}, v{40+k}, 11, v2\n v_lshl_add_u32 v{228+8*(k>>2)+(k&3)}, v{40+k}, 11, v3")
    for gi in range(2):
        a(f"buffer_load_dwordx4 v[{GT+8*gi}:{GT+8*gi+3}], v2, s[32:35], 0 offen offset:{gi*128}")
        a(f"buffer_load_dwordx4 v[{GT+8*gi+4}:{GT+8*gi+7}], v3, s[32:35], 0 offen offset:{(1-gi)*128}")
        vm.add('g', 2)
def fold_round_loads(a, vm, rnd):
    if True:
        hf, gi = rnd >> 1, rnd & 1
        b = RAW + 32*rnd
        for i in range(4):
            a(f"buffer_load_dwordx4 v[{b+8*i}:{b+8*i+3}], v{224+8*hf+i}, s[4:7], 0 offen offset:{gi*128}")
            a(f"buffer_load_dwordx4 v[{b+8*i+4}:{b+8*i+7}], v{228+8*hf+i}, s[4:7], 0 offen offset:{(1-gi)*128}")
        if gi == 0:
            for i in range(4):
                a(f"v_lshlrev_b32 v4, 11, v{40+4*hf+i}\n buffer_load_ushort v{EU+4*hf+i}, v4, s[4:7], s74 offen")
            vm.add(f'r{rnd}', 12)
        else: vm.add(f'r{rnd}', 8)
def fold_compute(a, vm, between):
    LP = 8; UU = 16
    a(f"v_mov_b32 v24, {ALT}")
    for r in range(8, 24): a(f"v_mov_b32 v{r}, 0")
    a(f"""
    s_lshl_b32 s26, s66, 2
    s_add_u32 s26, s26, s67
    s_lshr_b32 s27, s26, 2
    s_lshl_b32 s27, s27, 16
    s_and_b32 s26, s26, 3
    s_lshl_b32 s26, s26, 10
    s_add_u32 s26, s26, s27
    s_lshl_b32 s27, s3, 14
    s_add_u32 s26, s26, s27
    s_add_u32 s22, s26, {WS_Z}
    v_bfe_u32 v2, v1, 2, 1
    v_lshlrev_b32 v25, 12, v2
    v_and_b32 v2, 3, v1
    v_lshl_add_u32 v25, v2, 8, v25
    v_lshrrev_b32 v2, 3, v1
    v_lshl_add_u32 v25, v2, 4, v25
    s_cmp_eq_u32 s3, 0
    s_cselect_b64 s[72:73], s[70:71], 0
    """)
    T = 240
    for rnd in range(4):
        hf, gi = rnd >> 1, rnd & 1
        b = RAW + 32*rnd; g = GT + 8*gi
        S = [224, RAW+96 if rnd < 2 else RAW+8, 48, 56]
        vm.wait(a, f'r{rnd}')
        if rnd in (0, 1): stamp(a, 19+2*rnd)
        for j in range(4):
            for i in range(4):
                a(f"v_dot2_f32_bf16 v{LP+4*hf+i}, v{b+8*i+j}, v{g+j}, v{LP+4*hf+i}")
            for i in range(4):
                a(f"v_dot2_f32_bf16 v{LP+4*hf+i}, v{b+8*i+4+j}, v{g+4+j}, v{LP+4*hf+i}")
        if hf == 0:
            for i in (1, 3):
                for j in range(8): a(f"v_cndmask_b32 v{b+8*i+j}, v{b+8*i+j}, 0, s[62:63]")
                if gi == 0: a(f"v_cndmask_b32 v{EU+i}, v{EU+i}, 0, s[62:63]")
        if gi == 0:
            for i in range(4): a(f"v_cndmask_b32 v{EU+4*hf+i}, v{EU+4*hf+i}, 0, s[72:73]")
            for i in range(4): a(f"v_mov_b32 v{SV+i}, v{b+8*i+4}")
        else:
            for i in range(4): a(f"v_mov_b32_dpp v{EU+4*hf+i}, v{SV+i} row_shl:7 row_mask:0xf bank_mask:0xf")
            for i in range(4): a(f"v_lshlrev_b32 v{2+i}, 16, v{b+8*i+4}")
            a(f"v_add_f32 v2, v2, v3\n v_add_f32 v4, v4, v5\n v_add_f32 v{26+2*hf}, v2, v4\n v_sub_f32 v{27+2*hf}, v2, v4")
        for i in range(4): a(f"v_mov_b32_dpp v{SV+4+i}, v{b+8*i+4} row_shr:1 row_mask:0xf bank_mask:0xf")
        for i in range(4): a(f"v_cndmask_b32 v{SV+4+i}, v{SV+4+i}, v{EU+4*hf+i}, s[70:71]")
        for i in range(4):
            for j in range(8): a(unp(T+j, b+8*i, j))
            a(f"v_lshlrev_b32 v{T+8}, 16, v{SV+4+i}")
            for j in range(1, 8): a(unp(T+8+j, b+8*i+4, 8-j))
            for j in range(0, 8, 2):
                a(pk('', S[i]+j, T+j, T+8+j))
                a(pk('', b+8*i+j, T+j, T+8+j, neg=True))
        for j in range(0, 8, 2):
            a(pk('', S[0]+j, S[0]+j, S[1]+j)); a(pk('', S[2]+j, S[2]+j, S[3]+j))
            a(pk('', b+j, b+j, b+8+j, neg=True)); a(pk('', b+16+j, b+16+j, b+24+j, neg=True))
        for j in range(0, 8, 2):
            a(pk('', S[1]+j, S[0]+j, S[2]+j)); a(pk('', S[3]+j, S[0]+j, S[2]+j, neg=True))
            a(pk('', b+8+j, b+j, b+16+j, neg=True)); a(pk('', b+24+j, b+j, b+16+j))
        for j in range(0, 8, 2):
            a(pk('', UU+4*hf, UU+4*hf, S[1]+j)); a(pk('', UU+4*hf+2, UU+4*hf+2, S[3]+j))
        for cls, src in enumerate((S[1], S[3], b+8, b+24)):
            o = b + 4*(cls & 1) + 16*(cls >> 1)
            for j in range(4): a(f"v_cvt_pk_bf16_f32 v{o+j}, v{src+2*j}, v{src+2*j+1}")
            a(f"s_add_u32 s26, s22, {cls*524288 + gi*8192 + hf*128}")
            a(f"buffer_store_dwordx4 v[{o}:{o+3}], v25, s[12:15], s26 offen sc1")
            vm.add('st')
        if rnd in (0, 1): stamp(a, 20+2*rnd)
        between(rnd)
    a("""
    s_cmp_eq_u32 s3, 3
    s_cselect_b32 s26, 0x80808080, 0
    s_mov_b32 s27, s26
    v_sub_f32 v16, v16, v17
    v_sub_f32 v17, v18, v19
    v_sub_f32 v18, v20, v21
    v_sub_f32 v19, v22, v23
    """)
    for k in range(4): a(f"v_cndmask_b32 v{20+k}, 0, v{26+k}, s[26:27]")
    for k in range(4): a(f"v_add_f32 v{16+k}, v{16+k}, v{20+k}")
    a("s_nop 0")
    for ctl in ("quad_perm:[1,0,3,2]", "quad_perm:[2,3,0,1]", "row_half_mirror"):
        for r in range(8, 20): a(f"v_add_f32_dpp v{r}, v{r}, v{r} {ctl} row_mask:0xf bank_mask:0xf")
    a(f"""
    s_lshl_b32 s26, s3, 2
    s_lshl_b32 s27, s3, 11
    s_add_u32 s27, s27, {WS_UP}
    s_mov_b32 s28, {WS_CV}
    s_add_u32 s29, s27, 8192
    """)
    for k in range(8): a(f"v_lshl_add_u32 v{68+k}, v{40+k}, 4, s26")
    a(f"v_lshlrev_b32 v76, 2, v40\n s_mov_b32 s26, {WS_LP}\n s_mov_b64 exec, s[70:71]")
    for k in range(8): a(f"buffer_store_dword v{8+k}, v{68+k}, s[12:15], s26 offen sc1")
    for hf in range(2):
        a(f"buffer_store_dword v{16+2*hf}, v76, s[12:15], s27 offen offset:{32*hf} sc1\n buffer_store_dword v{17+2*hf}, v76, s[12:15], s29 offen offset:{32*hf} sc1")
    a(f"""
    s_mov_b64 exec, -1
    s_cmp_lg_u32 s3, 3
    s_cbranch_scc1 L_fc2
    s_mov_b32 exec_lo, 0x80808080
    s_mov_b32 exec_hi, 0x80808080
    buffer_store_dword v26, v76, s[12:15], s28 offen sc1
    buffer_store_dword v27, v76, s[12:15], s28 offen offset:2048 sc1
    buffer_store_dword v28, v76, s[12:15], s28 offen offset:32 sc1
    buffer_store_dword v29, v76, s[12:15], s28 offen offset:2080 sc1
    s_mov_b64 exec, -1
    L_fc2:
    """)

def sh_voff(a, vb, rs_shift, srow):
    a(f"""
    v_lshrrev_b32 v2, 3, v1
    s_lshl_b32 s26, s3, 5
    v_add_u32 v2, s26, v2
    v_lshlrev_b32 v2, {rs_shift}, v2
    v_add_u32 v2, s{srow}, v2
    v_lshrrev_b32 v3, 4, v1
    v_and_b32 v4, 7, v1
    v_xor_b32 v3, v3, v4
    v_lshl_add_u32 v{vb}, v3, 4, v2
    v_xor_b32 v3, 4, v3
    v_lshl_add_u32 v{vb+1}, v3, 4, v2
    v_add_u32 v{vb+2}, {2*((8<<rs_shift)-1024)}, v{vb}
    v_add_u32 v{vb+3}, {3*((8<<rs_shift)-1024)}, v{vb+1}
    v_add_u32 v{vb+1}, {((8<<rs_shift)-1024)}, v{vb+1}
    """)
def sh_touch(a, sr, rs_shift, srow):
    a(f"""
    s_lshl_b32 s26, s67, 5
    s_lshl_b32 s27, s3, 3
    s_add_u32 s26, s26, s27
    v_lshrrev_b32 v2, 3, v1
    v_add_u32 v2, s26, v2
    v_lshlrev_b32 v2, {rs_shift}, v2
    v_and_b32 v3, 7, v1
    v_lshl_add_u32 v2, v3, 7, v2
    buffer_load_dword a255, v2, s[{sr}:{sr+3}], s{srow} offen
    """)
def sh_dma(vb, sr): return [f"buffer_load_dwordx4 v{vb+i}, s[{sr}:{sr+3}], s17 offen offset:{i*1024} lds" for i in range(4)]

def dloop(a, name, nm, accb, dma, extra=False, first=True, init=None, D=8, inc=128, mid=None):
    PB = 128; SF = 64
    def pl(i, off): return f"buffer_load_dwordx4 v[{PB+4*i}:{PB+4*i+3}], v12, s[32:35], s16 offen offset:{off} sc1"
    def sreads(st, ks): return [f"ds_read_b128 v[{SF+st*32+4*nb}:{SF+st*32+4*nb+3}], v{18+ks} offset:{nb*2048}" for nb in range(8)]
    if first:
        a("s_mov_b32 s16, 0")
        for t in range(D):
            for i in range(nm): a(pl(t*nm+i, i*1024))
            a(f"s_add_u32 s16, s16, {nm*1024}")
        a("v_mov_b32 v18, v16\n v_mov_b32 v19, v17")
        for x in sreads(0, 0): a(x)
        a(f"s_mov_b32 s19, 0\n s_mov_b32 s20, {SLOT3}\n s_waitcnt vmcnt({D*nm})")
        init()
    a(f"s_mov_b32 s18, 0\n s_mov_b32 s17, 0")
    a(f".p2align 6\nL_{name}_loop:")
    NM = 8*nm
    if mid: mid()
    for t in range(8):
        ks = t & 1
        ms = []
        for mb in range(nm):
            for nb in range(8):
                c = accb + (nb*nm+mb)*4; pa = PB + ((t % D)*nm+mb)*4; sb = SF + ks*32 + nb*4
                ms.append(f"{MF} a[{c}:{c+3}], v[{pa}:{pa+3}], v[{sb}:{sb+3}], a[{c}:{c+3}]")
        f = {-1: [f"s_waitcnt vmcnt({(D-1)*nm}) lgkmcnt(0)"]}
        if extra:
            L = f"L_{name}_x{t}"
            f[-1] += ["s_cmp_eq_u32 s31, 0", f"s_cbranch_scc1 {L}"] + \
                     [f"{MF} a[{128+4*mb}:{131+4*mb}], v[{PB+(t*nm+mb)*4}:{PB+(t*nm+mb)*4+3}], v[24:27], a[{128+4*mb}:{131+4*mb}]" for mb in range(nm)] + [f"{L}:"]
        if ks == 1:
            f[0] = ["s_barrier", "v_add_u32 v18, s20, v16"]
            rd = sreads(0, 0)
        else:
            rd = sreads(1, 1)
        sp = NM // 16
        for k, x in enumerate(rd): f.setdefault(1+sp*k, []).append(x)
        for mb in range(nm): f.setdefault(8*mb+7, []).append(pl((t % D)*nm+mb, mb*1024))
        f[NM-1].append(f"s_add_u32 s16, s16, {nm*1024}")
        if ks == 1:
            if dma:
                f.setdefault(1, []).append("s_add_u32 m0, s21, s19")
                for k, x in enumerate(sh_dma(*dma)): f.setdefault(2+(NM//5)*k, []).append(x)
                f.setdefault(NM-3, []).append(f"s_add_u32 s17, s17, {inc}")
            f.setdefault(NM//2+1, []).append("v_add_u32 v19, s20, v17")
            f.setdefault(NM-3, []).extend(["s_mov_b32 s19, s20", f"s_add_u32 s20, s20, {SLOT3}"])
            f.setdefault(NM-2, []).append(f"s_and_b32 s20, s20, {R3*SLOT3-1}")
        interleave(a, ms, f)
    a(f"s_add_u32 s18, s18, 1\n s_cmp_lt_u32 s18, 2\n s_cbranch_scc1 L_{name}_loop")

def tile_vec(a, vec):
    a("""
    s_lshl_b32 s26, s67, 5
    s_lshl_b32 s27, s3, 3
    s_add_u32 s26, s26, s27
    s_lshl_b32 s27, s26, 7
    v_lshrrev_b32 v2, 3, v1
    v_lshlrev_b32 v2, 14, v2
    v_add_u32 v2, s27, v2
    s_lshr_b32 s26, s26, 1
    v_and_b32 v3, 7, v1
    v_xor_b32 v3, s26, v3
    v_and_b32 v3, 7, v3
    """)
    for i in range(8):
        a(f"v_xor_b32 v4, {i>>1}, v3\n v_lshl_add_u32 v4, v4, 4, v2\n ds_read_b128 v[{96+4*i}:{99+4*i}], v4 offset:{i*128}")
    for i in range(8): a(f"v_mov_b32 v{40+i}, 0")
    a("s_waitcnt lgkmcnt(0)")
    for j in range(4):
        for i in range(8): a(f"v_dot2_f32_bf16 v{40+i}, v{96+4*i+j}, v{vec+j}, v{40+i}")
    a("s_nop 2")
    reduce_lanes(a, list(range(40, 48)), 48, ['ror1', 'ror2', 'ror4', 'ror8', 'p16', 'p32'])
    for i in range(1, 8): a(f"v_cmp_eq_u32 vcc, {i}, v1\n s_nop 1\n v_cndmask_b32 v40, v40, v{40+i}, vcc")

def acc_load(a, nm, vb, svec, wshift, off=0):
    a(f"v_lshrrev_b32 v2, 4, v1\n v_lshlrev_b32 v2, 4, v2\n s_lshl_b32 s26, s3, {wshift}\n v_add_u32 v2, s26, v2")
    for mb in range(nm): a(f"buffer_load_dwordx4 v[{vb+4*mb}:{vb+3+4*mb}], v2, s[12:15], s{svec} offen offset:{off+mb*64} sc1")
def acc_init(a, nm, vb, accb, sscale, withx=False):
    a(f"v_lshlrev_b32 v3, 31, v1")
    for i in range(4*nm): a(f"v_mul_f32 v{vb+i}, s{sscale}, v{vb+i}")
    if withx:
        for i in range(4*nm): a(f"v_accvgpr_write_b32 a{128+i}, v{vb+i}")
    for i in range(4*nm): a(f"v_xor_b32 v{vb+i}, v3, v{vb+i}")
    for nb in range(8):
        for i in range(4*nm): a(f"v_accvgpr_write_b32 a{accb+nb*4*nm+i}, v{vb+i}")

def dft(a):
    vm = VM()
    srd(a, 32, 60, 2048)
    a("""
    v_lshlrev_b32 v2, 4, v1
    v_sub_u32 v3, 2032, v2
    s_mov_b32 s26, 0x100000
    s_mov_b32 s27, 0x300000
    buffer_load_dwordx4 v[128:131], v2, s[4:7], s26 offen
    buffer_load_dwordx4 v[132:135], v3, s[4:7], s26 offen
    buffer_load_dwordx4 v[140:143], v2, s[4:7], s27 offen
    buffer_load_dwordx4 v[144:147], v3, s[4:7], s27 offen
    """); vm.add('z', 4)
    fold_loads(a, vm)
    fold_round_loads(a, vm, 0); fold_round_loads(a, vm, 1)
    a("s_lshr_b32 s30, s66, 2\n s_cmp_eq_u32 s30, 0\n s_cselect_b32 s26, s56, s58\n s_cselect_b32 s27, s57, s59")
    srd(a, 8, 26, 1024*1024*2)
    a("s_and_b32 s25, s66, 3\n s_lshl_b32 s25, s25, 18\n s_lshl_b32 s21, s3, 12")
    sh_voff(a, 32, 11, 25)
    srd(a, 36, 52, 2048*2048*2)
    srd(a, 80, 54, 2048*2048*2)
    a("s_and_b32 s24, s66, 3\n s_lshl_b32 s24, s24, 8\n s_add_u32 s24, s24, s30\n s_lshl_b32 s24, s24, 12")
    a("s_waitcnt lgkmcnt(0)\n s_mov_b32 s17, 0")
    nonce(a)
    started(a)
    stamp(a, 9)
    vm.wait(a, 'z')
    a("v_mov_b32 v136, 0\n v_mov_b32 v148, 0\n s_cmp_eq_u32 s30, 0\n s_cselect_b32 s26, 1.0, -1.0")
    a("v_mov_b32_dpp v136, v132 wave_shr:1 row_mask:0xf bank_mask:0xf\n v_mov_b32_dpp v148, v144 wave_shr:1 row_mask:0xf bank_mask:0xf")
    for k, b in enumerate((128, 140)):
        for j in range(8): a(unp(160+16*k+j, b, j))
        a(f"v_lshlrev_b32 v{168+16*k}, 16, v{b+8}")
        for j in range(1, 8): a(unp(168+16*k+j, b+4, 8-j))
    for j in range(16): a(f"v_fma_f32 v{160+j}, v{176+j}, s26, v{160+j}")
    for j in range(8): a(f"v_fma_f32 v{160+j}, v{168+j}, s26, v{160+j}")
    for j in range(4): a(f"v_cvt_pk_bf16_f32 v{36+j}, v{160+2*j}, v{161+2*j}")
    a("v_lshlrev_b32 v2, 16, v132\n v_lshlrev_b32 v3, 16, v144\n v_add_f32 v2, v2, v3\n s_nop 0\n v_readlane_b32 s75, v2, 63\n s_cselect_b32 s75, s75, 0")
    a(pk('', 160, 160, 162)); a(pk('', 164, 164, 166)); a(pk('', 160, 160, 164)); a("v_sub_f32 v160, v160, v161")
    reduce_lanes(a, [160], 176, ['ror1', 'ror2', 'ror4', 'ror8', 'p16', 'p32'])
    a("v_add_f32 v160, s75, v160\n s_nop 0\n v_readfirstlane_b32 s97, v160")
    def between(rnd):
        if rnd < 2: fold_round_loads(a, vm, rnd+2)
        for s in ((0, 1, 2), (3, 4, 5), (6, 7), ())[rnd]:
            a(f"s_add_u32 m0, s21, {s*SLOT3}\n s_nop 0")
            for x in sh_dma(32, 8): a(x)
            a("s_add_u32 s17, s17, 128")
            vm.add('pf', 4)
    fold_compute(a, vm, between)
    stamp(a, 1)
    a("s_waitcnt vmcnt(16)\n s_barrier")
    tile_vec(a, 36)
    a(f"""
    v_lshlrev_b32 v2, 31, v1
    v_xor_b32 v2, s75, v2
    v_add_f32 v40, v40, v2
    s_lshl_b32 s26, s66, 7
    s_lshl_b32 s27, s67, 5
    s_add_u32 s26, s26, s27
    s_lshl_b32 s27, s3, 3
    s_add_u32 s26, s26, s27
    s_lshl_b32 s26, s26, 2
    s_add_u32 s26, s26, {WS_RV}
    v_lshlrev_b32 v2, 2, v1
    s_waitcnt vmcnt(0)
    s_barrier
    s_mov_b64 exec, 0xff
    buffer_store_dword v40, v2, s[12:15], s26 offen sc1
    s_mov_b64 exec, -1
    s_lshl_b32 s23, s66, 2
    s_add_u32 s23, s23, s67
    s_lshl_b32 s23, s23, 7
    s_add_u32 s23, s23, {WS_FL+16384}
    s_cmp_lg_u32 s3, 0
    s_cbranch_scc1 L_s1p
    """)
    flag_store(a, 's23')
    a("L_s1p:")
    stamp(a, 10)
    sh_voff(a, 20, 13, 24)
    a("v_lshlrev_b32 v12, 4, v1")
    a("""
    v_and_b32 v2, 15, v1
    v_lshrrev_b32 v3, 1, v2
    v_lshrrev_b32 v4, 4, v1
    v_xor_b32 v3, v3, v4
    v_lshlrev_b32 v2, 7, v2
    v_lshl_add_u32 v16, v3, 4, v2
    v_xor_b32 v3, 4, v3
    v_lshl_add_u32 v17, v3, 4, v2
    """)
    a(f"""
    s_lshl_b32 s26, s30, 1
    s_lshr_b32 s27, s67, 1
    s_add_u32 s26, s26, s27
    s_lshl_b32 s26, s26, 3
    s_and_b32 s27, s67, 1
    s_lshl_b32 s27, s27, 2
    s_add_u32 s26, s26, s27
    s_add_u32 s26, s26, s3
    s_lshl_b32 s26, s26, 16
    s_add_u32 s22, s26, {WS_Z}
    """)
    srd_ws(a, 32, 22, 65536)
    a(f"s_and_b32 s23, s67, 1\n s_lshl_b32 s23, s23, 2\n s_add_u32 s23, s23, s3\n s_lshl_b32 s23, s23, 9\n s_add_u32 s23, s23, {WS_FL+16384}")
    poll(a, [('s23', '0xf')], cnt=4)
    stamp(a, 2)
    a(f"s_lshl_b32 s22, s67, 10\n s_add_u32 s22, s22, {WS_CV}\n s_cmp_eq_u32 s30, 0\n s_cselect_b32 s23, 1.0, 0")
    acc_load(a, 4, 32, 22, 8)
    dloop(a, 'd1', 4, 0, (20, 36), D=4, mid=lambda: a(f"s_mov_b32 s31, {WS_FL+16384}\n v_and_b32 v6, 31, v1\n v_lshlrev_b32 v6, 7, v6\n buffer_load_dwordx2 v[48:49], v6, s[12:15], s31 offen sc1"), init=lambda: (acc_init(a, 4, 32, 0, 23), stamp(a, 11)))
    a("s_lshl_b32 s22, s30, 13\n" + f"s_add_u32 s22, s22, {WS_UP}\n v_lshlrev_b32 v2, 5, v1\n s_add_u32 s23, s22, 4096")
    a(f"s_waitcnt lgkmcnt(0)\n s_nop 7")
    stamp(a, 3)
    a("v_cmp_ne_u32 vcc, s98, v48\n v_cmp_ne_u32 s[28:29], s99, v49\n s_or_b64 vcc, vcc, s[28:29]\n s_and_b64 vcc, vcc, 0xffffffff\n s_cbranch_scc0 L_uok")
    poll(a, [('s31', '0xffffffff')], cnt=32)
    a("s_waitcnt vmcnt(0)\n L_uok:")
    for i in range(8): a(f"buffer_load_dwordx4 v[{128+4*i}:{131+4*i}], v2, s[12:15], s{22+(i>>2)} offen offset:{((i>>1)&1)*2048+(i&1)*16} sc1")
    a(f"""
    v_lshrrev_b32 v2, 4, v1
    v_and_b32 v3, 1, v2
    v_lshrrev_b32 v2, 1, v2
    v_lshl_add_u32 v2, v3, 1, v2
    v_and_b32 v3, 15, v1
    v_lshlrev_b32 v3, 4, v3
    v_lshl_add_u32 v14, v2, 8, v3
    s_lshr_b32 s26, s67, 1
    s_lshl_b32 s26, s26, 4
    s_and_b32 s27, s66, 3
    s_lshl_b32 s27, s27, 2
    s_add_u32 s26, s26, s27
    s_lshl_b32 s26, s26, 16
    s_lshl_b32 s27, s30, 15
    s_add_u32 s26, s26, s27
    s_and_b32 s27, s67, 1
    s_lshl_b32 s27, s27, 14
    s_add_u32 s26, s26, s27
    s_lshl_b32 s27, s3, 12
    s_add_u32 s26, s26, s27
    s_add_u32 s25, s26, {WS_AT}
    """)
    for nb in range(8):
        t = 32 + (nb & 1)*24
        for i in range(16): a(f"v_accvgpr_read_b32 v{t+i}, a{nb*16+i}")
        for i in range(8): a(f"v_cvt_pk_bf16_f32 v{t+16+i}, v{t+2*i}, v{t+2*i+1}")
        a("s_nop 1")
        for p in range(2):
            a(f"v_permlane16_swap_b32 v{t+16+4*p}, v{t+18+4*p}\n v_permlane16_swap_b32 v{t+17+4*p}, v{t+19+4*p}")
        for p in range(2):
            a(f"s_add_u32 s26, s25, {(nb >> 1)*65536 + p*2048 + (nb & 1)*1024}")
            a(f"buffer_store_dwordx4 v[{t+16+4*p}:{t+19+4*p}], v14, s[12:15], s26 offen sc1")
    a(f"s_and_b32 s26, s66, 3\n s_lshl_b32 s26, s26, 1\n s_add_u32 s26, s26, s30\n s_lshl_b32 s26, s26, 2\n s_add_u32 s26, s26, s67\n s_lshl_b32 s26, s26, 7\n s_add_u32 s23, s26, {WS_FL+24576}")
    stamp(a, 12)
    a("s_waitcnt vmcnt(16)\n s_barrier")
    for j in range(0, 8, 2): a(pk('', 128+j, 128+j, 136+j)); a(pk('', 144+j, 144+j, 152+j))
    for j in range(0, 8, 2): a(pk('', 128+j, 128+j, 144+j))
    for j in range(4): a(f"v_cvt_pk_bf16_f32 v{60+j}, v{128+2*j}, v{129+2*j}")
    tile_vec(a, 60)
    a(f"v_mov_b32 v41, 0\n v_mov_b32 v42, {ALT}")
    for j in range(4): a(f"v_dot2_f32_bf16 v41, v{60+j}, v42, v41")
    a("s_nop 2")
    reduce_lanes(a, [41], 48, ['ror1', 'ror2', 'ror4', 'ror8', 'p16', 'p32'])
    a(f"""
    v_cmp_eq_u32 vcc, 8, v1
    s_cmp_eq_u32 s30, 0
    s_cselect_b32 s26, 1.0, 0
    v_cndmask_b32 v40, v40, v41, vcc
    v_mov_b32 v160, s97
    v_mul_f32 v160, s26, v160
    v_lshlrev_b32 v2, 31, v1
    v_xor_b32 v2, v2, v160
    v_add_f32 v40, v40, v2
    v_cvt_pk_bf16_f32 v40, v40, v40
    s_and_b32 s26, s66, 3
    s_lshl_b32 s26, s26, 7
    s_lshl_b32 s27, s67, 5
    s_add_u32 s26, s26, s27
    s_lshl_b32 s27, s3, 3
    s_add_u32 s26, s26, s27
    v_add_u32 v3, s26, v1
    v_mov_b32 v4, 512
    v_cndmask_b32 v3, v3, v4, vcc
    v_lshlrev_b32 v3, 6, v3
    s_mul_i32 s26, s30, {TPS}
    s_add_u32 s26, s26, {WS_Y + 16*EGS}
    s_add_u32 s27, s26, {YD}
    s_cmp_eq_u32 s30, 0
    s_mov_b32 s28, 0xff
    s_cselect_b32 exec_lo, 0x1ff, s28
    s_mov_b32 exec_hi, 0
    v_mov_b32 v41, v3
    s_mov_b64 s[76:77], exec
    s_mov_b64 exec, -1
    """)
    publish(a, 's23')
    a("s_mov_b64 exec, s[76:77]\n buffer_store_dword v40, v41, s[12:15], s26 offen sc1\n buffer_store_dword v40, v41, s[12:15], s27 offen sc1\n s_mov_b64 exec, -1")
    stamp(a, 13)
    a(f"""
    s_lshl_b32 s26, s30, 4
    s_lshl_b32 s27, s67, 2
    s_add_u32 s26, s26, s27
    s_add_u32 s26, s26, s3
    s_lshl_b32 s26, s26, 16
    s_add_u32 s22, s26, {WS_AT}
    """)
    srd_ws(a, 32, 22, 65536)
    a(f"""
    s_lshl_b32 s23, s67, 10
    s_add_u32 s23, s23, {WS_FL+24576}
    s_cmp_eq_u32 s66, 0
    s_cselect_b32 s31, 1, 0
    v_mov_b32 v24, {ALT}
    v_mov_b32 v25, {ALT}
    v_mov_b32 v26, {ALT}
    v_mov_b32 v27, {ALT}
    """)
    srd(a, 4, 88, 3584*1024*2)
    g2_voff(a, 8, 4)
    a("s_cmp_lg_u32 s3, 0\n s_cbranch_scc1 L_s2_nopoll")
    poll(a, [('s23', '0xff')], gap=2, cnt=8)
    a("L_s2_nopoll:\n s_barrier")
    stamp(a, 4)
    a(f"s_lshl_b32 s22, s67, 9\n s_add_u32 s22, s22, {WS_RV}\n s_cmp_eq_u32 s30, 0\n s_cselect_b32 s23, 1.0, 0")
    a("s_cselect_b32 s25, 0, -1.0")
    acc_load(a, 2, 32, 22, 7)
    acc_load(a, 2, 40, 22, 7, 2048)
    dloop(a, 'd2a', 2, 0, (20, 80), extra=True, init=lambda: (acc_init(a, 2, 32, 0, 23, True), acc_init(a, 2, 40, 64, 25), stamp(a, 14)))
    stamp(a, 15)
    dloop(a, 'd2b', 2, 64, (8, 4), first=False, inc=64*2048)
    stamp(a, 16)
    a("s_waitcnt lgkmcnt(0)\n s_nop 7")
    a(f"""
    v_and_b32 v2, 15, v1
    v_lshlrev_b32 v20, 6, v2
    v_lshrrev_b32 v3, 4, v1
    v_and_b32 v4, 1, v3
    v_lshl_add_u32 v20, v4, 5, v20
    v_lshrrev_b32 v4, 1, v3
    v_lshl_add_u32 v20, v4, 4, v20
    v_lshlrev_b32 v21, 3, v3
    s_lshl_b32 s22, s67, 2
    s_add_u32 s22, s22, s3
    s_mul_i32 s22, s22, {EGS}
    s_mul_i32 s27, s30, {TPS}
    s_add_u32 s22, s22, s27
    s_add_u32 s22, s22, {WS_Y}
    s_and_b32 s26, s66, 3
    s_lshl_b32 s26, s26, 13
    s_add_u32 s25, s22, s26
    """)
    for nb in range(8):
        t = 32 + (nb & 1)*32
        for i in range(8): a(f"v_accvgpr_read_b32 v{t+i}, a{nb*8+i}\n v_accvgpr_read_b32 v{t+8+i}, a{64+nb*8+i}")
        for i in range(0, 8, 2): a(pk('', t+16+i, t+i, t+8+i, neg=True)); a(pk('', t+i, t+i, t+8+i))
        for i in range(4): a(f"v_cvt_pk_bf16_f32 v{t+24+i}, v{t+16+2*i}, v{t+17+2*i}\n v_cvt_pk_bf16_f32 v{t+28+i}, v{t+2*i}, v{t+2*i+1}")
        a("s_nop 1")
        for p in range(2):
            a(f"v_permlane16_swap_b32 v{t+24+4*p}, v{t+26+4*p}\n v_permlane16_swap_b32 v{t+25+4*p}, v{t+27+4*p}")
        for p in range(2):
            a(f"s_add_u32 s26, s25, {nb*1024 + p*YD}")
            a(f"buffer_store_dwordx4 v[{t+24+4*p}:{t+27+4*p}], v20, s[12:15], s26 offen sc1")
    a("s_cmp_eq_u32 s31, 0\n s_cbranch_scc1 L_dft_nox")
    for i in range(8): a(f"v_accvgpr_read_b32 v{32+i}, a{128+i}")
    for i in range(4): a(f"v_cvt_pk_bf16_f32 v{40+i}, v{32+2*i}, v{33+2*i}")
    a(f"s_add_u32 s26, s22, {512*64}\n s_add_u32 s27, s26, {YD}\n s_mov_b32 exec_lo, 0x00010001\n s_mov_b32 exec_hi, 0x00010001")
    for mb in range(2):
        a(f"buffer_store_dwordx2 v[{40+2*mb}:{41+2*mb}], v21, s[12:15], s26 offen offset:{mb*32} sc1\n buffer_store_dwordx2 v[{40+2*mb}:{41+2*mb}], v21, s[12:15], s27 offen offset:{mb*32} sc1")
    a("s_mov_b64 exec, -1\nL_dft_nox:")
    stamp(a, 17)
    a(f"s_lshl_b32 s23, s66, 2\n s_add_u32 s23, s23, s67\n s_lshl_b32 s23, s23, 7\n s_add_u32 s23, s23, {WS_FL+32768}")
    publish(a, 's23')
    stamp(a, 18)


def kern():
    a = Asm()
    a(f"""
    s_cmp_ge_u32 s2, 256
    s_cbranch_scc1 L_end
    s_load_dwordx2 s[40:41], s[0:1], 0
    s_load_dwordx4 s[44:47], s[0:1], 48
    s_load_dwordx2 s[48:49], s[0:1], 96
    s_load_dwordx2 s[88:89], s[0:1], 64
    s_load_dwordx2 s[42:43], s[0:1], 80
    s_load_dwordx8 s[52:59], s[0:1], 8
    s_load_dwordx2 s[60:61], s[0:1], 72
    s_getpc_b64 s[28:29]
    s_lshr_b32 s27, s2, 3
    s_mul_i32 s26, s27, {CODE_LINES*128}
    v_lshlrev_b32 v2, 7, v0
    v_add_u32 v2, s26, v2
    v_cmp_gt_u32 vcc, {CODE_LINES}, v0
    s_and_saveexec_b64 s[30:31], vcc
    s_cbranch_execz L_nocp
    global_load_dword a255, v2, s[28:29]
    L_nocp:
    s_mov_b64 exec, s[30:31]
    v_and_b32 v1, 63, v0
    v_lshrrev_b32 v2, 6, v0
    s_and_b32 s66, s2, 7
    v_readfirstlane_b32 s3, v2
    s_lshr_b32 s27, s2, 3
    s_sub_u32 s67, s27, 28
    s_and_b32 s24, s66, 1
    s_lshl_b32 s24, s24, 2
    s_and_b32 s68, s27, 3
    s_add_u32 s24, s24, s68
    s_lshr_b32 s25, s66, 1
    s_mul_i32 s25, s25, 7
    s_lshr_b32 s69, s27, 2
    s_add_u32 s25, s25, s69
    """)
    stamp(a, 0)
    if opt.spin: a("s_memrealtime s[100:101]")
    a(f"s_waitcnt lgkmcnt(0)\n s_add_u32 s28, s48, {WS_FL}\n s_addc_u32 s29, s49, 0\n s_load_dword s98, s[28:29], 0")
    if opt.stamp: stamp(a, 23)
    srd(a, 4, 40, 2048*1024*2)
    srd(a, 12, 48, WS_SZ)
    g2_tile(a)
    a("s_lshr_b32 s27, s2, 3\n s_cmp_ge_u32 s27, 28\n s_cbranch_scc1 L_dft")
    gemm1(a)
    a("s_branch L_g2")
    a("L_dft:")
    dft(a)
    a("L_g2:")
    if opt.trace: stamp_flush(a, 1)
    gemm2(a)
    a("L_end:")
    if opt.spin:
        a(f"s_cmp_lg_u32 s2, 0\n s_cbranch_scc1 L_end3\n L_spin:\n s_memrealtime s[92:93]\n s_waitcnt lgkmcnt(0)\n s_sub_u32 s92, s92, s100\n s_cmp_lt_u32 s92, {opt.spin}\n s_cbranch_scc1 L_spin\n L_end3:")
    if opt.stamp:
        a("s_cmp_ge_u32 s2, 256\n s_cbranch_scc1 L_end2\n s_mov_b64 exec, -1")
        srd(a, 12, 48, WS_SZ)
        stamp(a, 8)
        stamp_flush(a, 0)
        if opt.dbgmax:
            a("s_load_dwordx2 s[28:29], s[0:1], 88\n v_subrev_u32 v2, 40, v1\n v_lshlrev_b32 v2, 2, v2\n v_not_b32 v3, v31\n v_cmp_eq_u32 vcc, 40, v1\n s_nop 1\n v_cndmask_b32 v31, v31, v3, vcc")
            a("s_lshr_b32 s27, s2, 3\n s_cmp_ge_u32 s27, 28\n s_cbranch_scc1 L_dm_d\n s_mov_b32 exec_lo, 0\n s_mov_b32 exec_hi, 0x1ff00\n s_branch L_dm_go\n L_dm_d:")
            for k, w in ((1, 9), (2, 10), (3, 11), (4, 12), (16, 13), (18, 14), (0, 15)):
                a(f"v_mov_b32 v3, {4*w}\n v_cmp_eq_u32 vcc, {40+k}, v1\n s_nop 1\n v_cndmask_b32 v2, v2, v3, vcc")
            m = sum(1 << (8+k) for k in (0, 1, 2, 3, 4, 16, 18))
            a(f"s_mov_b32 exec_lo, 0\n s_mov_b32 exec_hi, {m}\n L_dm_go:\n s_waitcnt lgkmcnt(0)\n global_atomic_umax v2, v31, s[28:29] sc1\n s_waitcnt vmcnt(0)")
        a("L_end2:")
    return kernel(KN, a.text(), vgpr=256, agpr=256)

KN = 'gated_mix__spectral_fnet__geglu_ffn__prompt_kernel'
def main():
    fn = sys.argv[1]
    for o in sys.argv[2:]:
        k, v = o.split('=', 1)
        setattr(opt, k, eval(v))
    c, d = kern()
    hdr = open('gated_mix__spectral_fnet__geglu_ffn__prompt.s.ref').read().split('; Override launch')[0]
    src = hdr + f'; @launch grid=(256,1,1) block=(256,1,1) lds={R1*SLOT1}\n.amdgcn_target "amdgcn-amd-amdhsa--gfx950"\n' + c + '.text\n.fill 1024, 4, 0xbf800000\n' + d
    open(fn, 'w').write(src)
if __name__ == '__main__': main()
```

```python
import sys, math, struct
from ab import *

WS_H   = 0
HS     = 262144
WS_Z   = (16 << 20) + 65536
WS_AT  = (18 << 20) + 131072
WS_Y   = (20 << 20) + 196608
YD     = 2 << 20
EGS    = 528*64
TPS    = 17*EGS
WS_LP  = (24 << 20) + 131072
WS_UP  = WS_LP + 32768
WS_CV  = WS_UP + 32768
WS_RV  = WS_CV + 4096
WS_FL  = 25 << 20
WS_XB  = 26 << 20
XBS    = 4224
WS_TS  = 40 << 20
WS_SZ  = 256 << 20
OOB = 0x40000000
ALT = 0xBF803F80
R1 = 5; SLOT1 = 32768
R2 = 8; SLOT2 = 16384
R3 = 8; SLOT3 = 16384
MF = "v_mfma_f32_16x16x32_bf16"
class Opt: pass
opt = Opt()
opt.stamp = False; opt.trace = False; opt.hflags = 'sc1'; opt.psleep = 4; opt.order = 3; opt.tlb = True; opt.smem = True; opt.dbgmax = False; opt.r3 = 0; opt.r2 = 1; opt.r2b = False; opt.nox = False; opt.nt_fold = ''; opt.nt_w = ''; opt.nt_c = ''; opt.fmask = 0xffff; opt.x2 = 0; opt.rdo = [1,1,2,2,3,3,4,4,5,5,6,6,7,7,9,9]; opt.rde = [0,0,1,1,2,2,3,3,4,5,6,7,9,10,11,12]; opt.dmo = [3, 7]; opt.HS = 229376; opt.tlb2 = False; opt.g2gap = 2; opt.spin = 0; opt.oflags = ''; opt.g2touch = False; opt.tflags = ''; opt.killw = None
fbits = lambda x: struct.unpack('<I', struct.pack('<f', x))[0]
CODE_LINES = int(__import__("os").environ.get("CL", 13))

def srd(a, d, base, size):
    a(f"s_mov_b32 s{d}, s{base}\n s_and_b32 s{d+1}, s{base+1}, 0xffff\n s_mov_b32 s{d+2}, {size}\n s_mov_b32 s{d+3}, 0x20000")
def srd_ws(a, d, soff, size):
    a(f"s_add_u32 s{d}, s48, s{soff}\n s_addc_u32 s{d+1}, s49, 0\n s_and_b32 s{d+1}, s{d+1}, 0xffff\n s_mov_b32 s{d+2}, {size}\n s_mov_b32 s{d+3}, 0x20000")
def interleave(a, mfmas, fill):
    for s in fill.get(-1, []): a(s)
    for i, m in enumerate(mfmas):
        a(m)
        for s in fill.get(i, []): a(s)
def lab(a, p): return f"L_{p}_{len(a.l)}"

def stamp(a, idx):
    if not opt.stamp: return
    a(f"s_memrealtime s[92:93]\n s_memtime s[94:95]\n s_waitcnt lgkmcnt(0)\n v_writelane_b32 v31, s92, {40+idx}\n v_writelane_b32 v30, s94, {40+idx}")
def trace_ops(sidx):
    return ["s_memtime s[92:93]", "s_memrealtime s[94:95]", "s_waitcnt lgkmcnt(0)", f"v_cmp_eq_u32 vcc, {sidx}, v1", "v_mov_b32 v6, s92", "v_mov_b32 v7, s94",
            "v_cndmask_b32 v30, v30, v6, vcc", "v_cndmask_b32 v31, v31, v7, vcc"]
def stamp_flush(a, half):
    if not opt.stamp: return
    a(f"s_lshl_b32 s90, s2, 2\n s_add_u32 s90, s90, s3\n s_lshl_b32 s90, s90, 9\n s_add_u32 s90, s90, {WS_TS + half*524288}")
    a(f"v_lshlrev_b32 v29, 3, v1\n buffer_store_dwordx2 v[30:31], v29, s[12:15], s90 offen")

def nonce(a):
    a("s_mul_i32 s98, s98, 0x9E3779B1\n s_add_u32 s98, s98, 0x7F4A7C15\n s_xor_b32 s99, s98, 0x5bd1e995")
def started(a, vt=2):
    L = lab(a, 'st0')
    a(f"s_cmp_lg_u32 s3, 0\n s_cbranch_scc1 {L}\n s_lshl_b32 s26, s2, 7\n s_add_u32 s26, s26, {WS_FL+393216}")
    flag_store(a, 's26', vt)
    a(f"{L}:")
def flag_store(a, soff, vt=2):
    a(f"""
    v_lshlrev_b32 v{vt}, 3, v1
    v_mov_b32 v{vt+2}, s98
    v_mov_b32 v{vt+3}, s99
    s_mov_b64 exec, {opt.fmask}
    buffer_store_dwordx2 v[{vt+2}:{vt+3}], v{vt}, s[12:15], {soff} offen sc1
    s_mov_b64 exec, -1
    """)
def publish(a, soff):
    a("s_waitcnt vmcnt(0)\n s_barrier")
    L = lab(a, 'pub')
    a(f"s_cmp_lg_u32 s3, 0\n s_cbranch_scc1 {L}")
    flag_store(a, soff)
    a(f"{L}:")
def poll(a, items, vb=48, gap=1, cnt=56, voff=6):
    L = lab(a, 'poll'); n = len(items)
    def issue(k):
        for i, (so, mk) in enumerate(items): a(f"buffer_load_dwordx2 v[{vb+2*(k*n+i)}:{vb+2*(k*n+i)+1}], v{voff}, s[12:15], {so} offen sc1")
    if voff == 6: a(f"v_cmp_gt_u32 vcc, {cnt}, v1\n v_lshlrev_b32 v6, 7, v1\n v_mov_b32 v7, {OOB}\n v_cndmask_b32 v6, v7, v6, vcc")
    a("s_mov_b32 s27, 0")
    issue(0); a(f"s_sleep {opt.psleep}"); issue(1); a(f"s_sleep {opt.psleep}");
    a(f"{L}:")
    for k in range(3):
        issue((k+2) % 3)
        a(f"s_waitcnt vmcnt({2*n})")
        for i, (so, mk) in enumerate(items):
            r = vb + 2*(k*n+i)
            a(f"v_cmp_ne_u32 vcc, s98, v{r}\n v_cmp_ne_u32 s[28:29], s99, v{r+1}\n s_or_b64 vcc, vcc, s[28:29]")
            a(f"s_and_b64 {'s[64:65]' if i == 0 else 'vcc'}, vcc, {mk}")
            if i: a("s_or_b64 s[64:65], s[64:65], vcc")
        a(f"s_cbranch_scc0 {L}_done\n s_sleep {gap}")
    a(f"""
    s_add_u32 s27, s27, 1
    s_cmp_lt_u32 s27, 0x20000
    s_cbranch_scc1 {L}
    {L}_done:
    """)
def reduce_lanes(a, regs, tmp, steps):
    for st in steps:
        if st.startswith('ror'):
            a("s_nop 1")
            for r in regs: a(f"v_add_f32_dpp v{r}, v{r}, v{r} row_ror:{st[3:]} row_mask:0xf bank_mask:0xf")
        else:
            for i, r in enumerate(regs): a(f"v_mov_b32 v{tmp+i}, v{r}")
            a("s_nop 1")
            for i, r in enumerate(regs): a(f"v_permlane{st[1:]}_swap_b32 v{r}, v{tmp+i}")
            a("s_nop 1")
            for i, r in enumerate(regs): a(f"v_add_f32 v{r}, v{r}, v{tmp+i}")
def unp(dst, src, j):
    return f"v_lshlrev_b32 v{dst}, 16, v{src+j//2}" if j % 2 == 0 else f"v_and_b32 v{dst}, 0xffff0000, v{src+j//2}"
def pk(op, d, x, y, neg=False):
    return f"v_pk_add_f32 v[{d}:{d+1}], v[{x}:{x+1}], v[{y}:{y+1}]" + (" neg_lo:[0,1] neg_hi:[0,1]" if neg else "")

def tlb_setup(a, vd):
    a(f"""
    s_mov_b32 s76, s48
    s_mov_b32 s77, s49
    s_mov_b32 s78, {26 << 20}
    s_cmp_eq_u32 s3, 1
    s_cselect_b32 s76, s42, s76
    s_cselect_b32 s77, s43, s77
    s_cselect_b32 s78, {4 << 20}, s78
    s_cmp_eq_u32 s3, 2
    s_cselect_b32 s76, s88, s76
    s_cselect_b32 s77, s89, s77
    s_cselect_b32 s78, {3584*2048}, s78
    s_cmp_eq_u32 s3, 3
    s_cselect_b32 s76, s52, s76
    s_cselect_b32 s77, s53, s77
    s_cselect_b32 s78, {5 << 20}, s78
    s_and_b32 s77, s77, 0xffff
    s_mov_b32 s79, 0x20000
    v_lshlrev_b32 v{vd}, 20, v1
    v_add_u32 v{vd}, {(1 << 20) - 128}, v{vd}
    v_cmp_eq_u32 vcc, 16, v1
    v_mov_b32 v2, {(16 << 20) + 128}
    s_nop 0
    v_cndmask_b32 v{vd}, v{vd}, v2, vcc
    v_cmp_le_u32 vcc, 17, v1
    v_mov_b32 v2, {(18 << 20) + 65536 + 128}
    s_nop 0
    v_cndmask_b32 v{vd}, v{vd}, v2, vcc
    v_cmp_le_u32 vcc, 18, v1
    v_lshlrev_b32 v2, 21, v1
    v_subrev_u32 v2, {(18 << 21) - ((22 << 20) - 128)}, v2
    v_cndmask_b32 v{vd}, v{vd}, v2, vcc
    """)

V_WX, V_WD, V_L16, V_LDS, V_TMP, V_OOB, V_F64, V_FJ, V_S4, V_H1, V_OUT, V_Y, V_LP, AD = 96, 100, 104, 105, 106, 107, 108, 109, 110, 111, 112, 114, 119, 120
def w_voff(a, vb, wshift, t=2):
    a(f"""
    v_lshrrev_b32 v{t+1}, 4, v1
    s_lshl_b32 s26, s3, {wshift}
    v_add_u32 v{t}, s26, v{t+1}
    v_lshlrev_b32 v{t}, 11, v{t}
    v_add_u32 v{t}, s27, v{t}
    v_lshlrev_b32 v{t+1}, 1, v{t+1}
    v_and_b32 v{vb}, 15, v1
    v_xor_b32 v{t+1}, v{t+1}, v{vb}
    v_lshl_add_u32 v{vb}, v{t+1}, 4, v{t}
    v_xor_b32 v{t+1}, 8, v{t+1}
    v_lshl_add_u32 v{vb+1}, v{t+1}, 4, v{t}
    v_add_u32 v{vb+2}, {2*(4*2048-1024)}, v{vb}
    v_add_u32 v{vb+3}, {3*(4*2048-1024)}, v{vb+1}
    v_add_u32 v{vb+1}, {1*(4*2048-1024)}, v{vb+1}
    """)
def g2_ids(a):
    a("""
    s_lshr_b32 s27, s2, 3
    s_and_b32 s50, s2, 1
    s_lshl_b32 s50, s50, 2
    s_and_b32 s26, s27, 3
    s_add_u32 s50, s50, s26
    s_lshl_b32 s50, s50, 1
    s_lshr_b32 s26, s27, 4
    s_add_u32 s50, s50, s26
    s_bfe_u32 s51, s2, 0x10001
    s_lshl_b32 s51, s51, 2
    s_bfe_u32 s26, s27, 0x20002
    s_add_u32 s51, s51, s26
    s_bfe_u32 s96, s2, 0x10002
    """)
def g2_wpre(a, variants):
    a(f"s_mul_i32 s27, s96, {1792*2048}\n s_lshl_b32 s26, s51, 8\n s_add_u32 s27, s27, s26")
    for vb, sh in variants: w_voff(a, vb, sh)
def g2_pre(a, dft):
    srd(a, 52, 42, 2048*1024*2)
    srd(a, 32, 88, 3584*1024*2)
    g2_wpre(a, [(V_WD, 4)] if dft else [(V_WX, 5), (V_WD, 4)])
    a(f"s_lshl_b32 s27, s50, 2\n s_add_u32 s27, s27, s3\n s_mul_i32 s27, s27, {opt.HS}\n s_mul_i32 s26, s96, 114688\n s_add_u32 s27, s27, s26")
    srd_ws(a, 56, 27, 114688)
    if dft: a("s_mov_b32 s45, 0")
    else: a("s_mul_i32 s26, s96, 14\n s_sub_u32 s45, s25, s26")
    a(f"s_lshl_b32 s40, s45, 18")
    for p in range(1, 4): a(f"s_cmp_le_u32 s45, {p-1}\n s_cselect_b32 s{40+p}, {p << 18}, {(p-1) << 18}".replace(f"s_cselect_b32 s{40+p}, {p << 18}, {(p-1) << 18}", f"s_mov_b32 s{40+p}, {(p-1) << 18}\n s_cselect_b32 s{40+p}, {p << 18}, s{40+p}"))
    a(f"""
    v_lshlrev_b32 v{V_L16}, 4, v1
    v_mov_b32 v{V_OOB}, {OOB}
    v_lshrrev_b32 v3, 4, v1
    v_lshrrev_b32 v4, 2, v1
    v_and_b32 v4, 3, v4
    v_lshl_add_u32 v5, v3, 2, v4
    v_and_b32 v6, 7, v5
    s_lshl_b32 s26, s96, 2
    v_xor_b32 v6, s26, v6
    v_lshlrev_b32 v5, 8, v5
    v_lshl_add_u32 v5, v6, 5, v5
    v_and_b32 v7, 3, v1
    v_lshl_add_u32 v{V_LDS}, v7, 3, v5
    s_lshl_b32 s26, s50, 13
    s_mul_i32 s44, s96, {28*128}
    s_add_u32 s44, s44, s26
    s_add_u32 s44, s44, {WS_FL+65536}
    v_lshlrev_b32 v{V_F64}, 7, v1
    v_and_b32 v{V_S4}, 31, v1
    v_lshlrev_b32 v{V_S4}, 7, v{V_S4}
    v_add_u32 v{V_S4}, {WS_FL+32768}, v{V_S4}
    s_lshl_b32 s70, s3, 13
    s_add_u32 s70, s70, {WS_FL+393216}
    s_cmp_eq_u32 s2, 0
    s_cselect_b32 s70, s70, {OOB}
    s_cselect_b64 s[60:61], -1, 0
    s_lshl_b32 s26, s2, 2
    s_add_u32 s26, s26, s3
    s_mul_i32 s71, s26, {XBS}
    s_add_u32 s71, s71, {WS_XB}
    s_lshl_b32 s69, s26, 7
    s_add_u32 s69, s69, {WS_FL+262144}
    """)
    for mb in range(8): a(f"v_xor_b32 v{AD+mb}, {mb*32}, v{V_LDS}")
    a(f"""
    s_lshl_b32 s64, s51, 1
    s_add_u32 s64, s64, s96
    s_lshl_b32 s26, s50, 7
    s_lshl_b32 s27, s3, 5
    s_add_u32 s27, s26, s27
    v_and_b32 v2, 15, v1
    v_add_u32 v2, s27, v2
    v_lshlrev_b32 v{V_LP}, 4, v2
    v_add_u32 v{V_LP}, {WS_LP}, v{V_LP}
    v_lshlrev_b32 v2, 11, v2
    v_lshrrev_b32 v3, 4, v1
    v_and_b32 v4, 1, v3
    v_lshl_add_u32 v2, v4, 5, v2
    v_lshrrev_b32 v4, 1, v3
    v_lshl_add_u32 v2, v4, 4, v2
    s_lshl_b32 s26, s64, 7
    v_add_u32 v{V_OUT}, s26, v2
    v_add_u32 v{V_OUT+1}, 32768, v{V_OUT}
    s_lshl_b32 s26, s64, 1
    s_sub_u32 s65, 30, s26
    s_cmp_ge_u32 s64, 8
    s_cselect_b64 s[46:47], -1, 0
    s_cselect_b32 s65, s65, s26
    s_mul_i32 s65, s65, {EGS}
    s_add_u32 s65, s65, {WS_Y}
    s_mov_b32 s26, {TPS}
    """)
    for j in range(5):
        if j < 4: a(f"v_lshrrev_b32 v2, 2, v1\n v_lshl_add_u32 v2, v2, 1, {j&1}\n v_and_b32 v3, 3, v1\n v_lshlrev_b32 v3, 4, v3\n v_add_u32 v3, {(j>>1)*EGS}, v3")
        else: a(f"v_and_b32 v2, 31, v1\n v_mov_b32 v3, {2*EGS}")
        a(f"""
        v_add_u32 v2, s27, v2
        v_sub_u32 v4, 2048, v2
        v_min_u32 v4, v4, v2
        v_cmp_lt_u32 vcc, 1024, v2
        v_and_b32 v5, 1, v4
        v_mul_lo_u32 v5, v5, s26
        v_lshrrev_b32 v4, 1, v4
        v_lshl_add_u32 v4, v4, 6, v5
        s_xor_b64 vcc, vcc, s[46:47]
        v_add3_u32 v4, v4, v3, s65
        v_add_u32 v5, {YD}, v4
        v_cndmask_b32 v{V_Y+j}, v4, v5, vcc
        """)
def g2_zero(a, z):
    for i in range(4): a(f"v_mfma_f32_32x32x16_bf16 a[{16*i}:{15+16*i}], v[{z}:{z+3}], v[{z}:{z+3}], 0")
def flag_lanes(a, sp, n):
    a(f"""
    v_lshrrev_b32 v2, 1, v1
    v_add_u32 v2, s{sp}, v2
    v_cmp_lt_u32 vcc, s45, v2
    v_cmp_gt_u32 s[76:77], 14, v2
    v_subrev_u32 v3, 1, v2
    v_and_b32 v4, 1, v1
    v_cndmask_b32 v2, v3, v2, vcc
    s_and_b64 s[76:77], s[76:77], {(1 << n) - 1}
    v_lshl_add_u32 v2, v2, 1, v4
    v_lshlrev_b32 v2, 7, v2
    v_cndmask_b32 v{V_FJ}, v{V_OOB}, v2, s[76:77]
    """)
def fl_bad(a, r, mask):
    a(f"v_cmp_ne_u32 vcc, s98, v{r}\n v_cmp_ne_u32 s[28:29], s99, v{r+1}\n s_or_b64 vcc, vcc, s[28:29]\n s_and_b64 vcc, vcc, {mask}")

def gemm2(a):
    HB = 128; WF = 32; PV = 192
    def hload(i, v=V_L16): return f"buffer_load_dwordx4 v[{HB+4*i}:{HB+4*i+3}], v{v}, s[56:59], s16 offen offset:{(i % 4)*1024} sc1"
    def pad(): return f"buffer_load_dword v9, v{V_OOB}, s[56:59], 0 offen"
    def dma(): return [f"buffer_load_dwordx4 v{V_WD+i}, s[32:35], s17 offen offset:{i*1024} lds" for i in range(4)]
    def hnext(): return ["s_cmp_eq_u32 s22, s45", "s_addc_u32 s22, s22, 0", "s_lshl_b32 s16, s22, 13", "s_add_u32 s22, s22, 1"]
    def hchunk(half, v=V_L16, pads=False):
        for i in range(8):
            a(hload(half*8+i, v))
            if i == 3: a("s_add_u32 s16, s16, 4096")
            if pads and i % 2 == 1: a(pad()); a(pad())
    def wreads(st, off, mbs=range(8), base=None):
        r = []
        for k, mb in enumerate(mbs):
            b = (WF + st*32 + mb*4) if base is None else base + 4*k
            r.append(f"ds_read_b64_tr_b16 v[{b}:{b+1}], v{AD+mb} offset:{off}")
            r.append(f"ds_read_b64_tr_b16 v[{b+2}:{b+3}], v{AD+mb} offset:{off+4096}")
        return r
    a("L_g2:\n s_mov_b32 s22, 0\n s_mov_b32 s24, 1")
    flag_lanes(a, 24, 8)
    a(f"buffer_load_dwordx2 v[24:25], v{V_FJ}, s[12:15], s44 offen sc1\n buffer_load_dwordx2 v[18:19], v{V_F64}, s[12:15], s70 offen sc1")
    for x in wreads(0, 0): a(x)
    a(f"s_mov_b32 s19, 0\n s_mov_b32 s18, 0\n s_lshl_b32 s21, s3, 12")
    a(f"s_lshr_b32 s23, s43, 18\n s_add_u32 s23, s23, 1\n v_mov_b32 v26, s98\n v_mov_b32 v27, s99\n v_and_b32 v23, 15, v1\n v_lshlrev_b32 v23, 3, v23")
    stamp(a, 6)
    ORD = [(0, 0), (0, 1), (0, 2), (0, 3), (1, 3), (1, 2), (1, 1), (1, 0), (1, 4), (1, 5), (1, 6), (1, 7), (0, 7), (0, 6), (0, 5), (0, 4)]
    def step(t, ring, loads, vm, nodma=False):
        p = t & 1; i = 2*ring
        a(f"s_waitcnt lgkmcnt(8)" if vm is None else f"s_waitcnt vmcnt({vm}) lgkmcnt(8)")
        ms = []
        for nb, mb in ORD:
            b = WF + p*32 + mb*4; c = (nb*8+mb)*4
            ms.append(f"{MF} a[{c}:{c+3}], v[{b}:{b+3}], v[{HB+4*(i+nb)}:{HB+4*(i+nb)+3}], a[{c}:{c+3}]")
        f = {k: [x] for k, x in enumerate(wreads(p ^ 1, (p ^ 1)*8192))}
        f[7].append("s_waitcnt lgkmcnt(8)")
        if not nodma:
            for k in range(2): f[opt.dmo[k]].append(dma()[2*p + k])
        if p == 1:
            f[8] += ["s_barrier", "s_add_u32 m0, s21, s19"]
            if (t & 2) == 0:
                f[9] += ["s_cmp_eq_u32 s23, s45", "s_addc_u32 s23, s23, 0"]
                f[10] += ["s_lshl_b32 s17, s23, 18", "s_cmp_ge_u32 s23, 14"]
                f[12] += [f"s_cselect_b32 s17, {OOB}, s17", "s_add_u32 s23, s23, 1"]
            else:
                f[9] += [f"s_add_u32 s17, s17, {64*2048}"]
            f[13] += [f"s_add_u32 s19, s19, {SLOT2}"]
            f[14] += [f"s_and_b32 s19, s19, {R2*SLOT2-1}"]
        else:
            f[1].append(f"s_add_u32 s20, s19, {SLOT2}")
            f[2].append(f"s_and_b32 s20, s20, {R2*SLOT2-1}")
            f[5].append(f"v_add_u32 v{V_TMP}, s20, v{V_LDS}")
            for mb in range(8): f[min(15, max(2*mb+1, 6+mb//2) if mb < 4 else 2*mb+1)].append(f"v_xor_b32 v{AD+mb}, {mb*32}, v{V_TMP}")
        if loads:
            if (t & 3) == 0:
                hn = hnext(); f[4] += hn[:2]; f[6] += hn[2:]
            f[11].append(hload(i+1)); f[15].append(hload(i))
            if (t & 3) == 1: f[15].append("s_add_u32 s16, s16, 4096")
        interleave(a, ms, f)
    step(0, 0, False, None, True); step(1, 1, False, None, True)
    a("s_waitcnt vmcnt(0)\n buffer_store_dwordx2 v[26:27], v23, s[12:15], s68 offen sc1")
    fl_bad(a, 24, 3)
    a(f"s_cselect_b32 s31, 1, 0\n s_cselect_b32 s26, {OOB}, 0\n v_add_u32 v{V_H1}, s26, v{V_L16}")
    for x in hnext(): a(x)
    a("s_mov_b32 s25, s16")
    hchunk(1, V_H1)
    a(f"buffer_load_dwordx2 v[24:25], v{V_FJ}, s[12:15], s44 offen sc1")
    step(2, 2, False, None); step(3, 3, False, None)
    a("s_waitcnt vmcnt(4)")
    fl_bad(a, 24, "s[76:77]")
    a("s_cbranch_scc1 L_g2_late0\n s_cmp_lg_u32 s31, 0\n s_cbranch_scc1 L_g2_redo\n L_g2_cont0:")
    fl_bad(a, 18, "s[60:61]")
    a("s_cbranch_scc1 L_g2_ep\n L_g2_cont1:")
    for x in hnext(): a(x)
    hchunk(0, pads=True)
    a(f"s_or_b32 s26, s2, s3\n s_cmp_eq_u32 s26, 0\n s_cselect_b32 s68, {WS_FL}, {OOB}".replace(f"s_cselect_b32 s68, {WS_FL}, {OOB}", f"s_mov_b32 s68, {OOB}\n s_cselect_b32 s68, {WS_FL}, s68"))
    a("s_mov_b32 s24, 5\n s_mov_b64 s[76:77], 0")
    a(".p2align 6\nL_g2_loop:")
    fl_bad(a, 24, "s[76:77]")
    a("s_cbranch_scc1 L_g2_late\n L_g2_cont:")
    flag_lanes(a, 24, 4)
    a(f"buffer_load_dwordx2 v[24:25], v{V_FJ}, s[12:15], s44 offen sc1\n s_add_u32 s24, s24, 2")
    a("s_cmp_lg_u32 s18, 1\n s_cbranch_scc1 L_g2_noep\n buffer_store_dwordx2 v[26:27], v23, s[12:15], s68 offen sc1\n L_g2_noep:")
    a(f"s_cmp_lg_u32 s18, 4\n s_cbranch_scc1 L_g2_nos4\n buffer_load_dwordx2 v[18:19], v{V_S4}, s[12:15], 0 offen sc1\n L_g2_nos4:")
    for t in range(8):
        if t == 4:
            a("s_cmp_lg_u32 s18, 5\n s_cbranch_scc1 L_g2_nopq")
            fl_bad(a, 18, -1)
            a("s_cbranch_scc1 L_g2_s4\n L_g2_s4ok:")
            a(f"buffer_load_dwordx4 a[96:99], v{V_LP}, s[12:15], 0 offen sc1\n buffer_load_dwordx4 a[100:103], v{V_LP}, s[12:15], 0 offen offset:256 sc1")
            for j in range(4): a(f"buffer_load_dwordx4 a[{72+4*j}:{75+4*j}], v{V_Y+j}, s[12:15], 0 offen sc1")
            a(f"buffer_load_dword a88, v{V_Y+4}, s[12:15], 0 offen sc1")
            a("L_g2_nopq:")
        if opt.trace and t % 2 == 0:
            a(f"s_lshl_b32 s91, s18, 2\n s_add_u32 s91, s91, {t >> 1}")
            for x in trace_ops("s91"): a(x)
        step(t, (t + 4) % 8, True, 28)
    a("s_add_u32 s18, s18, 1\n s_cmp_lt_u32 s18, 6\n s_cbranch_scc1 L_g2_loop")
    Q = [32, 48, 64, 80]
    halves = [(0, 1, 1), (1, 1, 2), (2, 1, 3), (3, 1, 1), (0, 0, 0), (1, 0, 2), (2, 0, 3), (3, 0, 1)]
    def hrd(k):
        st, fo, q = halves[k]
        return wreads(0, (st >> 1)*16384 + (st & 1)*8192, range(4*fo, 4*fo+4), Q[q])
    send = []
    for g in range(4):
        send += [f"v_accvgpr_read_b32 v{PV+8*g+i}, a{(g>>1)*32+16+(g&1)*8+i}" for i in range(8)]
        send += [f"v_cvt_pk_bf16_f32 v{224+4*g+i}, v{PV+8*g+2*i}, v{PV+1+8*g+2*i}" for i in range(4)]
        send += [f"buffer_store_dwordx4 v[{224+4*g}:{227+4*g}], v{V_L16}, s[12:15], s71 offen offset:{g*1024} sc1"]
    pre = {0: hrd(1) + hrd(2), 1: hrd(3), 2: hrd(5), 3: hrd(6), 4: hrd(7)}
    for k, (st, fo, q) in enumerate(halves):
        a({0: "s_waitcnt vmcnt(16) lgkmcnt(0)", 4: "s_nop 0", 7: "s_waitcnt lgkmcnt(0)"}.get(k, "s_waitcnt lgkmcnt(8)"))
        ms = []
        for nb, m in [(0, 0), (0, 1), (0, 2), (0, 3), (1, 3), (1, 2), (1, 1), (1, 0)]:
            c = (nb*8 + 4*fo + m)*4; b = Q[q] + 4*m; h = HB + 4*(8 + 2*st + nb)
            ms.append(f"{MF} a[{c}:{c+3}], v[{b}:{b+3}], v[{h}:{h+3}], a[{c}:{c+3}]")
        f = {}
        rd = pre.get(k, [])
        for j, x in enumerate(rd): f.setdefault(j*8//len(rd), []).append(x)
        if k >= 4:
            lo = 4 if k == 4 else 0
            for g in range(lo, 8):
                for _ in range(2):
                    if send: f.setdefault(g, []).append(send.pop(0))
        interleave(a, ms, f)
    assert not send, len(send)
    stamp(a, 7)
    a("""
    s_mul_i32 s26, s3, 4608
    s_add_u32 s26, s26, 131072
    v_lshrrev_b32 v4, 2, v1
    v_mul_u32_u24 v4, 288, v4
    v_and_b32 v5, 3, v1
    v_lshl_add_u32 v4, v5, 4, v4
    v_add_u32 v4, s26, v4
    v_and_b32 v5, 31, v1
    v_mul_u32_u24 v5, 144, v5
    v_add_u32 v5, s26, v5
    """)
    for j in range(4): a(f"ds_write_b128 v4, a[{72+4*j}:{75+4*j}] offset:{(j&1)*144 + (j>>1)*64}")
    a("ds_write_b32 v5, a88 offset:128")
    a("""
    v_and_b32 v4, 15, v1
    v_mul_u32_u24 v4, 144, v4
    v_lshrrev_b32 v5, 4, v1
    v_lshlrev_b32 v5, 3, v5
    v_sub_u32 v6, 24, v5
    v_cndmask_b32 v5, v5, v6, s[46:47]
    v_add3_u32 v4, v4, v5, s26
    s_waitcnt vmcnt(0) lgkmcnt(0)
    buffer_store_dwordx2 v[26:27], v23, s[12:15], s69 offen sc1
    """)
    for k in range(8):
        a(f"ds_read_b64 v[{128+4*k}:{129+4*k}], v4 offset:{(k>>2)*16*144 + (k&3)*32}\n ds_read_b32 v{130+4*k}, v4 offset:{(k>>2)*16*144 + (k&3)*32 + 8}")
    a(f"s_xor_b32 s69, s69, 2048\n s_lshl_b32 s26, s2, 2\n s_add_u32 s26, s26, s3\n s_xor_b32 s26, s26, 16\n s_mul_i32 s71, s26, {XBS}\n s_add_u32 s71, s71, {WS_XB}")
    for nb in range(2):
        for i in range(4): a(f"v_accvgpr_read_b32 v{40+i}, a{96+4*nb+i}")
        a(f"""
        v_add_f32 v40, v40, v41
        v_add_f32 v42, v42, v43
        v_add_f32 v40, v40, v42
        v_cvt_pk_bf16_f32 v40, v40, v40
        v_lshlrev_b32 v40, 16, v40
        v_mul_f32 v40, {fbits(-math.log2(math.e))}, v40
        v_exp_f32 v40, v40
        s_nop 0
        v_add_f32 v40, 1.0, v40
        v_rcp_f32 v40, v40
        s_nop 0
        v_cvt_pk_bf16_f32 v40, v40, v40
        v_lshlrev_b32 v{32+nb}, 16, v40
        v_sub_f32 v40, 1.0, v{32+nb}
        v_cvt_pk_bf16_f32 v40, v40, v40
        v_lshlrev_b32 v{34+nb}, 16, v40
        """)
    for nb in range(2):
        for i in range(16): a(f"v_accvgpr_read_b32 v{64+nb*16+i}, a{nb*32+i}")
    for nb in range(2):
        for i in range(16): a(f"v_mul_f32 v{64+nb*16+i}, v{34+nb}, v{64+nb*16+i}")
    a("v_mov_b32 v6, 0\n buffer_load_dwordx2 v[24:25], v6, s[12:15], s69 offen sc1")
    a("s_waitcnt lgkmcnt(0)\n s_cmp_lg_u32 s46, 0\n s_cbranch_scc1 L_g2_mir")
    for mir in range(2):
        if mir: a("L_g2_mir:")
        for nb in range(2):
            for mb in range(4):
                d = 128 + (nb*4 + (3-mb if mir else mb))*4; o = 64 + (nb*4+mb)*4
                els = [4, 3, 2, 1] if mir else [0, 1, 2, 3]
                for r in range(4): a(unp(40+r, d, els[r]))
                for r in range(4): a(f"v_fma_f32 v{o+r}, v{40+r}, v{32+nb}, v{o+r}")
        if not mir: a("s_branch L_g2_st")
    a("L_g2_st:")
    stamp(a, 9)
    a("s_waitcnt vmcnt(0)")
    fl_bad(a, 24, 1)
    a("s_cbranch_scc0 L_g2_xok")
    poll(a, [('s69', '1')], vb=44, gap=1, cnt=1)
    a("L_g2_xok:")
    stamp(a, 10)
    for k in range(4): a(f"buffer_load_dwordx4 v[{160+4*k}:{163+4*k}], v{V_L16}, s[12:15], s71 offen offset:{k*1024} sc1")
    for k in range(4):
        a(f"s_waitcnt vmcnt({3-k})")
        for r in range(8): a(unp(176+r, 160+4*k, r))
        for r in range(8): a(f"v_fma_f32 v{64+8*k+r}, v{176+r}, v{34+(k>>1)}, v{64+8*k+r}")
        for i in range(4): a(f"v_cvt_pk_bf16_f32 v{PV+4*k+i}, v{64+8*k+2*i}, v{64+8*k+2*i+1}")
        a(f"s_nop 1\n v_permlane16_swap_b32 v{PV+4*k}, v{PV+4*k+2}\n v_permlane16_swap_b32 v{PV+4*k+1}, v{PV+4*k+3}")
        a(f"buffer_store_dwordx4 v[{PV+4*k}:{PV+4*k+3}], v{V_OUT+(k>>1)}, s[52:55], 0 offen offset:{(k&1)*64} {opt.oflags}")
    a("s_branch L_end")
    a("L_g2_late0:")
    poll(a, [('s44', 's[76:77]')], vb=PV, gap=opt.g2gap, voff=V_FJ)
    a("s_cmp_eq_u32 s31, 0\n s_cbranch_scc1 L_g2_cont0\n L_g2_redo:\n s_mov_b32 s16, s25")
    hchunk(1)
    a("s_waitcnt vmcnt(0)\n s_branch L_g2_cont0")
    a("L_g2_ep:")
    poll(a, [('s70', '-1')], vb=PV, gap=2, cnt=64)
    a("s_branch L_g2_cont1\n L_g2_late:")
    poll(a, [('s44', 's[76:77]')], vb=PV, gap=2, voff=V_FJ)
    a(f"s_branch L_g2_cont\n L_g2_s4:\n s_mov_b32 s26, {WS_FL+32768}")
    poll(a, [('s26', '0xffffffff')], vb=PV, gap=2, cnt=32)
    a("s_branch L_g2_s4ok")

def ACCG(mb, nb): return 128 + (nb*4+mb)*4
def ACCU(mb, nb): return (nb*4+mb)*4
def FR(st, i): return 128 + st*64 + i*4

def gemm1(a):
    XS = 32768; WB = 98304; WSL = 16384
    a("s_cmp_ge_u32 s3, 2\n s_cselect_b32 s26, s46, s44\n s_cselect_b32 s27, s47, s45")
    srd(a, 8, 26, 1024*3584*2)
    a(f"""
    s_cmp_eq_u32 s3, 1
    s_cselect_b32 s80, s46, s44
    s_cselect_b32 s81, s47, s45
    s_mov_b32 s82, {1024*3584*2}
    s_cmp_eq_u32 s3, 2
    s_cselect_b32 s80, s40, s80
    s_cselect_b32 s81, s41, s81
    s_cselect_b32 s82, {2048*1024*2}, s82
    s_cmp_eq_u32 s3, 3
    s_cselect_b32 s80, s88, s80
    s_cselect_b32 s81, s89, s81
    s_and_b32 s81, s81, 0xffff
    s_mov_b32 s83, 0x20000
    v_mov_b32 v3, {OOB}
    s_add_u32 s86, s67, 28
    s_cmp_ge_u32 s3, 2
    s_cbranch_scc1 L_t_x
    v_lshrrev_b32 v2, 4, v1
    v_lshlrev_b32 v2, 5, v2
    v_bfe_u32 v4, v1, 1, 3
    v_add_u32 v2, v2, v4
    s_lshl_b32 s26, s68, 3
    v_add_u32 v2, s26, v2
    s_mov_b32 s27, 7168
    v_mul_lo_u32 v2, v2, s27
    v_and_b32 v4, 1, v1
    v_lshl_add_u32 v2, v4, 7, v2
    s_lshl_b32 s26, s25, 8
    v_add_u32 v26, s26, v2
    v_cmp_gt_u32 vcc, 32, v1
    s_mov_b32 s84, 0
    s_mov_b32 s85, {2*32*7168}
    v_cndmask_b32 v27, v3, v26, vcc
    s_mov_b32 s87, {4*32*7168}
    s_mov_b32 s75, s85
    v_mov_b32 v42, v27
    v_mov_b32 v35, v3
    s_branch L_t_done
    L_t_x:
    s_cmp_eq_u32 s3, 3
    s_cbranch_scc1 L_t_wd
    s_mul_i32 s26, s69, 37
    s_lshl_b32 s27, s24, 8
    s_add_u32 s26, s26, s27
    v_add_u32 v2, s26, v1
    v_lshlrev_b32 v2, 11, v2
    v_cmp_gt_u32 vcc, {0 if opt.nox else 37}, v1
    s_mov_b32 s84, 0
    s_mov_b32 s85, 0
    v_cndmask_b32 v26, v3, v2, vcc
    s_mov_b32 s87, 128
    s_mov_b32 s75, 128
    v_mov_b32 v27, v3
    v_mov_b32 v42, v26
    v_mov_b32 v35, v3
    s_branch L_t_done
    L_t_wd:
    s_mul_i32 s27, s86, 49
    v_cmp_gt_u32 vcc, 49, v1
    s_lshl_b32 s28, s66, 6
    """)
    for k in range(3):
        a(f"""
        v_add_u32 v2, s27, v1
        v_add_u32 v2, {1372*k}, v2
        v_bfe_u32 v4, v2, 4, 3
        v_bfe_u32 v5, v2, 7, 2
        v_lshl_add_u32 v4, v5, 4, v4
        v_bfe_u32 v5, v2, 11, 1
        v_lshl_add_u32 v4, v5, 3, v4
        v_add_u32 v4, s28, v4
        v_bfe_u32 v5, v2, 9, 2
        v_and_b32 v6, 1, v5
        v_lshrrev_b32 v7, 1, v5
        v_xor_b32 v6, v6, v7
        v_sub_u32 v7, 0, v4
        v_cmp_eq_u32 s[62:63], 1, v6
        v_and_b32 v2, 15, v2
        v_lshlrev_b32 v2, 7, v2
        v_cndmask_b32 v4, v4, v7, s[62:63]
        v_lshlrev_b32 v6, 11, v5
        v_cmp_le_u32 s[62:63], 2, v5
        v_mov_b32 v7, 1024
        s_nop 0
        v_cndmask_b32 v6, v6, v7, s[62:63]
        v_add_u32 v4, v4, v6
        v_lshl_add_u32 v2, v4, 11, v2
        v_cndmask_b32 v35, v3, v2, vcc
        """)
        a(f"buffer_load_dword v28, v35, s[4:7], 0 offen {opt.nt_fold}")
    a(f"""
    v_lshlrev_b32 v2, 7, v1
    v_cmp_gt_u32 vcc, 32, v1
    s_mul_i32 s84, s66, 28
    s_add_u32 s84, s84, s86
    s_lshl_b32 s84, s84, 12
    v_cndmask_b32 v27, v3, v2, vcc
    s_mov_b32 s85, {224*4096}
    s_mov_b32 s87, 0
    s_mov_b32 s75, 0
    v_mov_b32 v26, v3
    v_mov_b32 v42, v3
    L_t_done:
    """)
    stamp(a, 19)
    a(f"buffer_load_dword v28, v42, s[80:83], s84 offen {opt.nt_w}\n s_add_u32 s84, s84, s75")
    stamp(a, 20)
    a(f"""
    s_cmp_lt_u32 s66, 4
    s_cselect_b32 s36, s56, s58
    s_cselect_b32 s37, s57, s59
    s_cmp_eq_u32 s3, 2
    s_cselect_b32 s36, s52, s36
    s_cselect_b32 s37, s53, s37
    s_cmp_eq_u32 s3, 3
    s_cselect_b32 s36, s54, s36
    s_cselect_b32 s37, s55, s37
    s_and_b32 s37, s37, 0xffff
    s_mov_b32 s39, 0x20000
    s_and_b32 s28, s66, 3
    s_lshl_b32 s26, s28, 18
    s_lshl_b32 s28, s28, 8
    s_lshr_b32 s27, s66, 2
    s_add_u32 s28, s28, s27
    s_lshl_b32 s28, s28, 12
    s_cmp_eq_u32 s3, 1
    s_cselect_b32 s28, s26, s28
    s_cselect_b32 s26, 11, 13
    s_cselect_b32 s38, {1024*1024*2}, s82
    s_mul_i32 s27, s86, 37
    v_add_u32 v2, s27, v1
    v_lshrrev_b32 v4, 3, v2
    v_lshlrev_b32 v4, s26, v4
    v_and_b32 v2, 7, v2
    v_lshl_add_u32 v2, v2, 7, v4
    s_cmp_eq_u32 s3, 0
    s_cselect_b32 s27, 0, 37
    v_cmp_gt_u32 vcc, s27, v1
    v_mov_b32 v3, {OOB}
    s_nop 0
    v_cndmask_b32 v2, v3, v2, vcc
    v_add_u32 v34, s28, v2
    s_cmp_lg_u32 s3, 1
    s_cbranch_scc1 L_t_nm
    buffer_load_dword v28, v34, s[36:39], 0 offen {opt.nt_c}
    v_mov_b32 v34, v3
    L_t_nm:
    """)
    a("s_lshl_b32 s29, s24, 19\n s_lshl_b32 s26, s3, 16\n s_add_u32 s29, s29, s26")
    sh_voff(a, 8, 11, 29)
    a("""
    v_lshrrev_b32 v2, 4, v1
    s_and_b32 s26, s3, 1
    s_lshl_b32 s26, s26, 4
    v_add_u32 v3, s26, v2
    s_mov_b32 s27, 7168
    v_mul_lo_u32 v3, v3, s27
    s_lshl_b32 s26, s25, 8
    v_add_u32 v3, s26, v3
    v_lshlrev_b32 v2, 1, v2
    v_and_b32 v4, 15, v1
    v_xor_b32 v2, v2, v4
    v_lshl_add_u32 v12, v2, 4, v3
    v_xor_b32 v2, 8, v2
    v_lshl_add_u32 v14, v2, 4, v3
    """)
    a(f"v_add_u32 v13, {1*(4*7168-1024)}, v12\n v_add_u32 v15, {3*(4*7168-1024)}, v14\n v_add_u32 v14, {2*(4*7168-1024)}, v14")
    a(f"s_mov_b32 s16, 0\n s_mov_b32 s22, 65536\n s_mov_b32 s17, 0\n s_lshl_b32 s21, s3, 12\n s_add_u32 s21, s21, {WB}\n s_lshl_b32 s23, s3, 13")
    def dma_x(h): return [f"buffer_load_dwordx4 v{8+i}, s[4:7], s{(16, 22)[h]} offen offset:{i*1024} lds" for i in range(4)]
    def dma_w(): return [f"buffer_load_dwordx4 v{12+i}, s[8:11], s17 offen offset:{i*1024} lds" for i in range(4)]
    def px(s):
        a(f"s_add_u32 m0, s23, {s*XS}\n s_nop 0")
        for x in dma_x(0): a(x)
        a(f"s_add_u32 m0, s23, {s*XS+4096}\n s_add_u32 s16, s16, 128")
        for x in dma_x(1): a(x)
        a("s_add_u32 s22, s22, 128")
    def pw(s):
        a(f"s_add_u32 m0, s21, {s*WSL}\n s_nop 0")
        for x in dma_w(): a(x)
        a(f"s_add_u32 s17, s17, {32*7168}")
    if opt.tlb:
        a("v_lshlrev_b32 v40, 21, v1\n v_add_u32 v40, 0x100000, v40")
    else: a(f"v_mov_b32 v40, {OOB}")
    if opt.tlb2:
        a(f"""
        s_cmp_eq_u32 s3, 1
        s_cselect_b32 s76, s42, s48
        s_cselect_b32 s77, s43, s49
        s_cselect_b32 s78, {4 << 20}, {32 << 20}
        s_and_b32 s77, s77, 0xffff
        s_mov_b32 s79, 0x20000
        s_mov_b32 s26, {opt.HS}
        s_mov_b32 s27, {opt.HS - 128}
        s_cmp_eq_u32 s3, 1
        s_cselect_b32 s26, 65536, s26
        s_cselect_b32 s27, 0, s27
        s_cmp_eq_u32 s3, 2
        s_cselect_b32 s26, {16*XBS}, s26
        s_cselect_b32 s27, {WS_XB + 4096}, s27
        s_cmp_eq_u32 s3, 3
        s_cselect_b32 s26, {EGS}, s26
        s_cselect_b32 s27, {WS_Y + 520*64}, s27
        v_mul_lo_u32 v41, v1, s26
        v_add_u32 v41, s27, v41
        s_cbranch_scc0 L_tl_done
        v_cmp_lt_u32 vcc, 31, v1
        v_add_u32 v2, {YD - 32*EGS}, v41
        s_nop 0
        v_cndmask_b32 v41, v41, v2, vcc
        v_cmp_eq_u32 vcc, 63, v1
        v_mov_b32 v2, {WS_FL + 4096}
        s_nop 0
        v_cndmask_b32 v41, v41, v2, vcc
        L_tl_done:
        """.replace("s_cselect_b32 s78, 4194304, 33554432", "s_mov_b32 s78, 33554432\n s_cselect_b32 s78, 4194304, s78"))
    a(f"""
    s_lshr_b32 s26, s3, 1
    s_lshl_b32 s26, s26, 7
    v_and_b32 v2, 15, v1
    v_lshrrev_b32 v5, 1, v2
    v_add_u32 v2, s26, v2
    v_lshlrev_b32 v2, 7, v2
    v_lshrrev_b32 v3, 4, v1
    v_xor_b32 v5, v3, v5
    v_lshl_add_u32 v16, v5, 4, v2
    v_xor_b32 v5, 4, v5
    v_lshl_add_u32 v33, v5, 4, v2
    v_lshrrev_b32 v4, 2, v1
    v_and_b32 v4, 3, v4
    v_lshl_add_u32 v5, v3, 3, v4
    v_lshlrev_b32 v5, 8, v5
    v_add_u32 v5, {WB}, v5
    v_and_b32 v6, 3, v1
    v_lshl_add_u32 v5, v6, 3, v5
    v_and_b32 v6, 1, v3
    v_lshl_or_b32 v6, v6, 2, v4
    s_and_b32 s26, s3, 1
    s_lshl_b32 s26, s26, 2
    v_xor_b32 v6, s26, v6
    """)
    for mb in range(4):
        a(f"v_xor_b32 v7, {mb}, v6\n v_lshl_add_u32 v{17+mb}, v7, 5, v5")
    for i in range(5): a(f"v_mov_b32 v{21+i}, v{16+i}")
    def reads(st):
        def wr(mat, mb):
            b = FR(st, mat*4+mb)
            return [f"ds_read_b64_tr_b16 a[{b}:{b+1}], v{22+mb} offset:{mat*8192}",
                    f"ds_read_b64_tr_b16 a[{b+2}:{b+3}], v{22+mb} offset:{mat*8192+1024}"]
        def xr(nb):
            b = FR(st, 8+nb)
            return [f"ds_read_b128 a[{b}:{b+3}], v21 offset:{nb*2048}"]
        r = []
        for i in range(8): r += wr(i & 1, i >> 1) + xr(i)
        return r
    def mf(st):
        m = []
        od = [(nb if (mb*2+mat) % 2 == 0 else 7-nb, mb, mat) for mb in range(4) for mat in range(2) for nb in range(8)]
        for nb, mb, mat in od:
            c = f"v[{ACCG(mb,nb)}:{ACCG(mb,nb)+3}]" if mat == 0 else f"a[{ACCU(mb,nb)}:{ACCU(mb,nb)+3}]"
            fa = FR(st, mat*4+mb); fb_ = FR(st, 8+nb)
            m.append(f"{MF} {c}, a[{fa}:{fa+3}], a[{fb_}:{fb_+3}], {c}")
        return m
    for i in range(4): a(f"v_mov_b32 v{36+i}, 0")
    a("s_nop 1")
    for i in range(8): a(f"v_mfma_f32_32x32x16_bf16 v[{128+16*i}:{143+16*i}], v[36:39], v[36:39], 0\n v_mfma_f32_32x32x16_bf16 a[{16*i}:{15+16*i}], v[36:39], v[36:39], 0")
    a(f"""
    s_lshl_b32 s86, s24, 3
    s_lshr_b32 s31, s3, 1
    s_lshl_b32 s31, s31, 2
    s_add_u32 s86, s86, s31
    s_lshl_b32 s68, s86, 11
    s_mul_i32 s86, s86, {opt.HS}
    s_lshl_b32 s31, s25, 13
    s_add_u32 s86, s86, s31
    s_and_b32 s31, s3, 1
    s_lshl_b32 s31, s31, 12
    s_add_u32 s86, s86, s31
    s_lshl_b32 s31, s25, 1
    s_and_b32 s26, s3, 1
    s_add_u32 s31, s31, s26
    s_lshl_b32 s31, s31, 7
    s_add_u32 s68, s68, s31
    s_add_u32 s68, s68, {WS_FL+65536}
    """)
    g2_pre(a, False)
    stamp(a, 21)
    pw(0); px(0); pw(1)
    stamp(a, 22)
    stamp(a, 1)
    a(f"s_waitcnt vmcnt(4) lgkmcnt(0)\n s_barrier")
    for x in reads(0): a(x)
    nonce(a)
    a(f"s_lshl_b32 s26, s2, 7\n s_add_u32 s26, s26, {WS_FL+393216}\n s_cmp_eq_u32 s3, 0\n s_cselect_b32 s26, s26, {OOB}\n v_and_b32 v43, 15, v1\n v_lshl_add_u32 v43, v43, 3, s26\n v_mov_b32 v44, s98\n v_mov_b32 v45, s99")
    a(f"s_mov_b32 s19, 0\n s_mov_b32 s20, {XS}\n s_mov_b32 s18, 0\n s_mov_b32 s28, {WSL}\n s_mov_b32 s29, 0")
    a("v_mov_b32 v21, v33")
    for i in range(4): a(f"v_add_u32 v{22+i}, s28, v{17+i}")
    a(f"s_mov_b32 s72, {32*7168}\n s_mov_b32 s73, 128\n s_mov_b32 s74, 65536")
    stamp(a, 2)
    for st in (2, 0, 1):
        peel = st == 2
        if peel: st = 0
        if not peel and st == 0: a(".p2align 6\nL_g1_loop:")
        if st == 1: a("L_g1_mid:")
        f = {-1: ["s_waitcnt lgkmcnt(0)"]}
        if opt.trace: f[-1] = trace_ops("s18")
        f[0] = [f"s_waitcnt vmcnt({0 if peel else (24, 12)[st]})", "s_barrier"]
        if peel:
            A = Asm(); save = a
            def cap(fn, *args):
                n0 = len(a.l); fn(*args); out = [x.strip() for x in a.l[n0:]]; del a.l[n0:]; return out
            T2 = [f"buffer_load_dword v28, v26, s[80:83], s84 offen {opt.nt_w}", "s_add_u32 s84, s84, s87"]
            T1 = ["buffer_load_dword v28, v42, s[80:83], s84 offen", "s_add_u32 s84, s84, s75"]
            ops = (T2 if opt.r2 == 1 else T1 if opt.r2 == 2 else []) + cap(pw, 2) + (T1 if opt.r2 == 2 and opt.r2b else []) + cap(px, 1) + cap(pw, 3) + (T2 if opt.r3 == 1 else ["buffer_load_dword v28, v42, s[80:83], s84 offen", "s_add_u32 s84, s84, s75"] if opt.r3 == 2 else []) + ["buffer_load_dword v28, v40, s[80:83], 0 offen"] + cap(px, 2) + ["buffer_store_dwordx2 v[44:45], v43, s[12:15], 0 offen sc1"]
            g = 2
            for x in ops:
                if x == 's_nop 0': continue
                f.setdefault(g-1 if 'm0' in x else g, []).append(x)
                if x.startswith('buffer'): g += 2
            assert g <= 63, g
            if opt.stamp and opt.dbgmax: f.setdefault(63, []).extend(["s_memrealtime s[92:93]", "s_waitcnt lgkmcnt(0)", "v_writelane_b32 v31, s92, 41"])
            f.setdefault(63, []).append("s_branch L_g1_mid")
        rd = reads(st ^ 1)
        for i, x in enumerate(rd): f.setdefault(1 + 2*i, []).append(x)
        f.setdefault(2, []).append(f"s_add_u32 s28, s28, {WSL}")
        f.setdefault(4, []).append(f"s_and_b32 s28, s28, {4*WSL-1}")
        f.setdefault(6, []).append("s_add_u32 s18, s18, 1")
        for i in range(4): f.setdefault(50+2*i, []).append(f"v_add_u32 v{22+i}, s28, v{17+i}")
        if st == 0:
            f.setdefault(58, []).append("v_add_u32 v21, s20, v16")
        else:
            f.setdefault(58, []).append("v_add_u32 v21, s19, v33")
            dq = dma_w() + dma_w() + dma_x(0) + dma_x(1)
            dp = opt.dp if hasattr(opt, 'dp') else [2 + 4*i - (i > 11)*(i-11) for i in range(16)]
            f[0].append("s_add_u32 m0, s21, s29")
            for i, x in enumerate(dq): f.setdefault(dp[i], []).append(x)
            f[dp[3]] += [f"s_add_u32 m0, m0, {WSL}", "s_add_u32 s17, s17, s72"]
            f[dp[7]] += ["s_add_u32 m0, s23, s19", "s_add_u32 s17, s17, s72"]
            f[dp[8]] += [f"s_xor_b32 s29, s29, {2*WSL}"]
            f[dp[9]] += ["s_mov_b32 s19, s20"]
            f[dp[10]] += [f"s_add_u32 s20, s20, {XS}", f"s_cmp_eq_u32 s20, {3*XS}"]
            f[dp[11]] += ["s_cselect_b32 s20, 0, s20", "s_add_u32 m0, m0, 4096"]
            f[dp[12]] += ["s_add_u32 s16, s16, s73"]
            f[dp[15]] += ["s_cmp_ge_u32 s18, 26", "s_cbranch_scc1 L_g1_sw", "L_g1_swd:", "s_add_u32 s22, s16, s74"]
            f.setdefault(62, []).extend([f"buffer_load_dword v28, v27, s[80:83], s84 offen {opt.tflags}", "s_add_u32 s84, s84, s85"])
            f[62] += ["s_cmp_lg_u32 s18, 4", "s_cbranch_scc1 L_g1_noseq", "buffer_load_dword v28, v34, s[36:39], 0 offen"] + (["buffer_load_dword v28, v41, s[76:79], 0 offen"] if opt.tlb2 else []) + ["L_g1_noseq:"]
            f.setdefault(63, []).extend(["s_cmp_lt_u32 s18, 32", "s_cbranch_scc1 L_g1_loop"])
        interleave(a, mf(st), f)
    a("s_branch L_g1_done")
    a("L_g1_sw:\n s_cmp_eq_u32 s18, 26\n s_cbranch_scc0 L_g1_sw2\n s_mov_b64 s[4:5], s[32:33]\n s_mov_b32 s6, s34")
    for i in range(4): a(f"v_mov_b32 v{8+i}, v{V_WX+i}")
    a(f"s_mov_b32 s16, s41\n s_mov_b32 s74, {16*2048}\n s_branch L_g1_swd")
    a("L_g1_sw2:\n s_cmp_eq_u32 s18, 28\n s_cbranch_scc0 L_g1_sw3\n s_mov_b64 s[8:9], s[32:33]")
    for i in range(4): a(f"v_mov_b32 v{12+i}, v{V_WD+i}")
    a(f"s_mov_b32 s16, s42\n s_mov_b32 s17, s43\n s_mov_b32 s72, {64*2048}\n s_branch L_g1_swd")
    a(f"L_g1_sw3:\n s_mov_b32 s16, s40\n s_mov_b32 s17, {OOB}\n s_branch L_g1_swd")
    a("L_g1_done:")
    stamp(a, 3)
    c0 = -2*math.sqrt(2/math.pi)*math.log2(math.e); c1 = c0*0.044715
    a(f"s_mov_b32 s26, {fbits(c0)}\n s_mov_b32 s28, {fbits(c1)}\n s_mov_b32 s29, {fbits(c1)}")
    a("v_mov_b32 v24, s26\n v_mov_b32 v25, s26\n v_mov_b32 v2, 0\n v_mov_b32 v3, 0\n v_mov_b32 v4, 0\n v_mov_b32 v5, 0\n s_waitcnt lgkmcnt(0)")
    a(f"s_lshr_b32 s87, s3, 1\n s_and_b32 s26, s50, 1\n s_xor_b32 s87, s87, s26\n s_and_b32 s26, s3, 1\n s_lshl_b32 s26, s26, 12\n s_add_u32 s26, s26, 131072\n v_add_u32 v29, s26, v{V_L16}")
    for nb in range(8):
        g0 = ACCG(0, nb); u0 = ACCU(0, nb)
        U = 32 + (nb % 2)*32; Z = U+16; O = g0
        for i in range(16): a(f"v_accvgpr_read_b32 v{U+i}, a{u0+i}")
        for i in range(0, 16, 2): a(f"v_pk_mul_f32 v[{Z+i}:{Z+i+1}], v[{g0+i}:{g0+i+1}], v[{g0+i}:{g0+i+1}]")
        for i in range(0, 16, 2): a(f"v_pk_fma_f32 v[{Z+i}:{Z+i+1}], v[{Z+i}:{Z+i+1}], s[28:29], v[24:25]")
        for i in range(0, 16, 2): a(f"v_pk_mul_f32 v[{Z+i}:{Z+i+1}], v[{Z+i}:{Z+i+1}], v[{g0+i}:{g0+i+1}]")
        for i in range(16): a(f"v_exp_f32 v{Z+i}, v{Z+i}")
        for i in range(0, 16, 2): a(f"v_pk_mul_f32 v[{U+i}:{U+i+1}], v[{U+i}:{U+i+1}], v[{g0+i}:{g0+i+1}]")
        for i in range(0, 16, 2): a(f"v_pk_add_f32 v[{Z+i}:{Z+i+1}], v[{Z+i}:{Z+i+1}], 1.0 op_sel_hi:[1,0]")
        for i in range(16): a(f"v_rcp_f32 v{Z+i}, v{Z+i}")
        a("s_nop 0")
        for i in range(0, 16, 2): a(f"v_pk_mul_f32 v[{U+i}:{U+i+1}], v[{U+i}:{U+i+1}], v[{Z+i}:{Z+i+1}]")
        for i in range(0, 16, 2): a(f"v_cvt_pk_bf16_f32 v{O+i//2}, v{U+i}, v{U+i+1}")
        for p in range(2):
            off = (nb >> 1)*opt.HS + (p*2 + (nb & 1))*1024
            a(f"s_add_u32 s31, s86, {off}")
            if p == 1: a("s_cmp_eq_u32 s87, 0")
            a(f"buffer_store_dwordx4 v[{O+4*p}:{O+4*p+3}], v{V_L16}, s[12:15], s31 offen {opt.hflags}")
        if nb == 0: a("s_waitcnt vmcnt(2)\n s_barrier")
        a(f"s_cbranch_scc0 L_gl{nb}\n ds_write_b128 v29, v[{O}:{O+3}] offset:{(nb >> 1)*8192 + (nb & 1)*1024}\n ds_write_b128 v29, v[{O+4}:{O+7}] offset:{(nb >> 1)*8192 + (nb & 1)*1024 + 2048}\n L_gl{nb}:")
        if nb == 3: g2_zero(a, 2)
    stamp(a, 4)
    a(f"s_lshl_b32 s26, s3, 13\n s_add_u32 s26, s26, 131072\n v_add_u32 v29, s26, v{V_L16}\n s_waitcnt lgkmcnt(0)\n s_barrier")
    for i in range(8): a(f"ds_read_b128 v[{128+4*i}:{131+4*i}], v29 offset:{i*1024}")
    stamp(a, 5)

class VM:
    def __init__(s): s.ops = []
    def add(s, tag, n=1): s.ops += [tag]*n
    def wait(s, a, tag, extra=""):
        last = max(i for i, t in enumerate(s.ops) if t == tag)
        a(f"s_waitcnt vmcnt({min(63, len(s.ops)-1-last)}) {extra}")
RAW = 64; GT = 192; EU = 208; SV = 216
def fold_loads(a, vm):
    a("""
    s_lshl_b32 s26, s66, 2
    s_add_u32 s26, s26, s67
    s_lshl_b32 s26, s26, 4
    v_lshrrev_b32 v40, 3, v1
    v_add_u32 v40, s26, v40
    v_cmp_eq_u32 s[62:63], 0, v40
    v_and_b32 v2, 7, v1
    v_cmp_eq_u32 s[70:71], 0, v2
    v_add_u32 v44, 8, v40
    v_lshlrev_b32 v2, 4, v2
    s_lshl_b32 s26, s3, 8
    v_add_u32 v2, s26, v2
    v_sub_u32 v3, 1904, v2
    v_sub_u32 v41, 2048, v40
    v_sub_u32 v42, 1024, v40
    v_add_u32 v43, 1024, v40
    v_sub_u32 v45, 2048, v44
    v_sub_u32 v46, 1024, v44
    v_add_u32 v47, 1024, v44
    v_mov_b32 v4, 512
    v_mov_b32 v5, 1536
    v_cndmask_b32 v41, v41, v4, s[62:63]
    v_cndmask_b32 v43, v43, v5, s[62:63]
    s_sub_u32 s74, 2048, s26
    """)
    for k in range(8): a(f"v_lshl_add_u32 v{224+8*(k>>2)+(k&3)}, v{40+k}, 11, v2\n v_lshl_add_u32 v{228+8*(k>>2)+(k&3)}, v{40+k}, 11, v3")
    for gi in range(2):
        a(f"buffer_load_dwordx4 v[{GT+8*gi}:{GT+8*gi+3}], v2, s[32:35], 0 offen offset:{gi*128}")
        a(f"buffer_load_dwordx4 v[{GT+8*gi+4}:{GT+8*gi+7}], v3, s[32:35], 0 offen offset:{(1-gi)*128}")
        vm.add('g', 2)
def fold_round_loads(a, vm, rnd):
    if True:
        hf, gi = rnd >> 1, rnd & 1
        b = RAW + 32*rnd
        for i in range(4):
            a(f"buffer_load_dwordx4 v[{b+8*i}:{b+8*i+3}], v{224+8*hf+i}, s[4:7], 0 offen offset:{gi*128}")
            a(f"buffer_load_dwordx4 v[{b+8*i+4}:{b+8*i+7}], v{228+8*hf+i}, s[4:7], 0 offen offset:{(1-gi)*128}")
        if gi == 0:
            for i in range(4):
                a(f"v_lshlrev_b32 v4, 11, v{40+4*hf+i}\n buffer_load_ushort v{EU+4*hf+i}, v4, s[4:7], s74 offen")
            vm.add(f'r{rnd}', 12)
        else: vm.add(f'r{rnd}', 8)
def fold_compute(a, vm, between):
    LP = 8; UU = 16
    a(f"v_mov_b32 v24, {ALT}")
    for r in range(8, 24): a(f"v_mov_b32 v{r}, 0")
    a(f"""
    s_lshl_b32 s26, s66, 2
    s_add_u32 s26, s26, s67
    s_lshr_b32 s27, s26, 2
    s_lshl_b32 s27, s27, 16
    s_and_b32 s26, s26, 3
    s_lshl_b32 s26, s26, 10
    s_add_u32 s26, s26, s27
    s_lshl_b32 s27, s3, 14
    s_add_u32 s26, s26, s27
    s_add_u32 s22, s26, {WS_Z}
    v_bfe_u32 v2, v1, 2, 1
    v_lshlrev_b32 v25, 12, v2
    v_and_b32 v2, 3, v1
    v_lshl_add_u32 v25, v2, 8, v25
    v_lshrrev_b32 v2, 3, v1
    v_lshl_add_u32 v25, v2, 4, v25
    s_cmp_eq_u32 s3, 0
    s_cselect_b64 s[72:73], s[70:71], 0
    """)
    T = 240
    for rnd in range(4):
        hf, gi = rnd >> 1, rnd & 1
        b = RAW + 32*rnd; g = GT + 8*gi
        S = [224, RAW+96 if rnd < 2 else RAW+8, 48, 56]
        vm.wait(a, f'r{rnd}')
        if rnd in (0, 1): stamp(a, 19+2*rnd)
        for j in range(4):
            for i in range(4):
                a(f"v_dot2_f32_bf16 v{LP+4*hf+i}, v{b+8*i+j}, v{g+j}, v{LP+4*hf+i}")
            for i in range(4):
                a(f"v_dot2_f32_bf16 v{LP+4*hf+i}, v{b+8*i+4+j}, v{g+4+j}, v{LP+4*hf+i}")
        if hf == 0:
            for i in (1, 3):
                for j in range(8): a(f"v_cndmask_b32 v{b+8*i+j}, v{b+8*i+j}, 0, s[62:63]")
                if gi == 0: a(f"v_cndmask_b32 v{EU+i}, v{EU+i}, 0, s[62:63]")
        if gi == 0:
            for i in range(4): a(f"v_cndmask_b32 v{EU+4*hf+i}, v{EU+4*hf+i}, 0, s[72:73]")
            for i in range(4): a(f"v_mov_b32 v{SV+i}, v{b+8*i+4}")
        else:
            for i in range(4): a(f"v_mov_b32_dpp v{EU+4*hf+i}, v{SV+i} row_shl:7 row_mask:0xf bank_mask:0xf")
            for i in range(4): a(f"v_lshlrev_b32 v{2+i}, 16, v{b+8*i+4}")
            a(f"v_add_f32 v2, v2, v3\n v_add_f32 v4, v4, v5\n v_add_f32 v{26+2*hf}, v2, v4\n v_sub_f32 v{27+2*hf}, v2, v4")
        for i in range(4): a(f"v_mov_b32_dpp v{SV+4+i}, v{b+8*i+4} row_shr:1 row_mask:0xf bank_mask:0xf")
        for i in range(4): a(f"v_cndmask_b32 v{SV+4+i}, v{SV+4+i}, v{EU+4*hf+i}, s[70:71]")
        for i in range(4):
            for j in range(8): a(unp(T+j, b+8*i, j))
            a(f"v_lshlrev_b32 v{T+8}, 16, v{SV+4+i}")
            for j in range(1, 8): a(unp(T+8+j, b+8*i+4, 8-j))
            for j in range(0, 8, 2):
                a(pk('', S[i]+j, T+j, T+8+j))
                a(pk('', b+8*i+j, T+j, T+8+j, neg=True))
        for j in range(0, 8, 2):
            a(pk('', S[0]+j, S[0]+j, S[1]+j)); a(pk('', S[2]+j, S[2]+j, S[3]+j))
            a(pk('', b+j, b+j, b+8+j, neg=True)); a(pk('', b+16+j, b+16+j, b+24+j, neg=True))
        for j in range(0, 8, 2):
            a(pk('', S[1]+j, S[0]+j, S[2]+j)); a(pk('', S[3]+j, S[0]+j, S[2]+j, neg=True))
            a(pk('', b+8+j, b+j, b+16+j, neg=True)); a(pk('', b+24+j, b+j, b+16+j))
        for j in range(0, 8, 2):
            a(pk('', UU+4*hf, UU+4*hf, S[1]+j)); a(pk('', UU+4*hf+2, UU+4*hf+2, S[3]+j))
        for cls, src in enumerate((S[1], S[3], b+8, b+24)):
            o = b + 4*(cls & 1) + 16*(cls >> 1)
            for j in range(4): a(f"v_cvt_pk_bf16_f32 v{o+j}, v{src+2*j}, v{src+2*j+1}")
            a(f"s_add_u32 s26, s22, {cls*524288 + gi*8192 + hf*128}")
            a(f"buffer_store_dwordx4 v[{o}:{o+3}], v25, s[12:15], s26 offen sc1")
            vm.add('st')
        if rnd in (0, 1): stamp(a, 20+2*rnd)
        between(rnd)
    a("""
    s_cmp_eq_u32 s3, 3
    s_cselect_b32 s26, 0x80808080, 0
    s_mov_b32 s27, s26
    v_sub_f32 v16, v16, v17
    v_sub_f32 v17, v18, v19
    v_sub_f32 v18, v20, v21
    v_sub_f32 v19, v22, v23
    """)
    for k in range(4): a(f"v_cndmask_b32 v{20+k}, 0, v{26+k}, s[26:27]")
    for k in range(4): a(f"v_add_f32 v{16+k}, v{16+k}, v{20+k}")
    a("s_nop 0")
    for ctl in ("quad_perm:[1,0,3,2]", "quad_perm:[2,3,0,1]", "row_half_mirror"):
        for r in range(8, 20): a(f"v_add_f32_dpp v{r}, v{r}, v{r} {ctl} row_mask:0xf bank_mask:0xf")
    a(f"""
    s_lshl_b32 s26, s3, 2
    s_lshl_b32 s27, s3, 11
    s_add_u32 s27, s27, {WS_UP}
    s_mov_b32 s28, {WS_CV}
    s_add_u32 s29, s27, 8192
    """)
    for k in range(8): a(f"v_lshl_add_u32 v{68+k}, v{40+k}, 4, s26")
    a(f"v_lshlrev_b32 v76, 2, v40\n s_mov_b32 s26, {WS_LP}\n s_mov_b64 exec, s[70:71]")
    for k in range(8): a(f"buffer_store_dword v{8+k}, v{68+k}, s[12:15], s26 offen sc1")
    for hf in range(2):
        a(f"buffer_store_dword v{16+2*hf}, v76, s[12:15], s27 offen offset:{32*hf} sc1\n buffer_store_dword v{17+2*hf}, v76, s[12:15], s29 offen offset:{32*hf} sc1")
    a(f"""
    s_mov_b64 exec, -1
    s_cmp_lg_u32 s3, 3
    s_cbranch_scc1 L_fc2
    s_mov_b32 exec_lo, 0x80808080
    s_mov_b32 exec_hi, 0x80808080
    buffer_store_dword v26, v76, s[12:15], s28 offen sc1
    buffer_store_dword v27, v76, s[12:15], s28 offen offset:2048 sc1
    buffer_store_dword v28, v76, s[12:15], s28 offen offset:32 sc1
    buffer_store_dword v29, v76, s[12:15], s28 offen offset:2080 sc1
    s_mov_b64 exec, -1
    L_fc2:
    """)

def sh_voff(a, vb, rs_shift, srow):
    a(f"""
    v_lshrrev_b32 v2, 3, v1
    s_lshl_b32 s26, s3, 5
    v_add_u32 v2, s26, v2
    v_lshlrev_b32 v2, {rs_shift}, v2
    v_add_u32 v2, s{srow}, v2
    v_lshrrev_b32 v3, 4, v1
    v_and_b32 v4, 7, v1
    v_xor_b32 v3, v3, v4
    v_lshl_add_u32 v{vb}, v3, 4, v2
    v_xor_b32 v3, 4, v3
    v_lshl_add_u32 v{vb+1}, v3, 4, v2
    v_add_u32 v{vb+2}, {2*((8<<rs_shift)-1024)}, v{vb}
    v_add_u32 v{vb+3}, {3*((8<<rs_shift)-1024)}, v{vb+1}
    v_add_u32 v{vb+1}, {((8<<rs_shift)-1024)}, v{vb+1}
    """)
def sh_touch(a, sr, rs_shift, srow):
    a(f"""
    s_lshl_b32 s26, s67, 5
    s_lshl_b32 s27, s3, 3
    s_add_u32 s26, s26, s27
    v_lshrrev_b32 v2, 3, v1
    v_add_u32 v2, s26, v2
    v_lshlrev_b32 v2, {rs_shift}, v2
    v_and_b32 v3, 7, v1
    v_lshl_add_u32 v2, v3, 7, v2
    buffer_load_dword a255, v2, s[{sr}:{sr+3}], s{srow} offen
    """)
def sh_dma(vb, sr): return [f"buffer_load_dwordx4 v{vb+i}, s[{sr}:{sr+3}], s17 offen offset:{i*1024} lds" for i in range(4)]

def dloop(a, name, nm, accb, dma, extra=False, first=True, init=None, D=8, inc=128, mid=None):
    PB = 128; SF = 64
    def pl(i, off): return f"buffer_load_dwordx4 v[{PB+4*i}:{PB+4*i+3}], v12, s[32:35], s16 offen offset:{off} sc1"
    def sreads(st, ks): return [f"ds_read_b128 v[{SF+st*32+4*nb}:{SF+st*32+4*nb+3}], v{18+ks} offset:{nb*2048}" for nb in range(8)]
    if first:
        a("s_mov_b32 s16, 0")
        for t in range(D):
            for i in range(nm): a(pl(t*nm+i, i*1024))
            a(f"s_add_u32 s16, s16, {nm*1024}")
        a("v_mov_b32 v18, v16\n v_mov_b32 v19, v17")
        for x in sreads(0, 0): a(x)
        a(f"s_mov_b32 s19, 0\n s_mov_b32 s20, {SLOT3}\n ")
        init()
    a(f"s_mov_b32 s18, 0\n s_mov_b32 s17, 0")
    a(f".p2align 6\nL_{name}_loop:")
    NM = 8*nm
    if mid: mid()
    for t in range(8):
        ks = t & 1
        ms = []
        for mb in range(nm):
            for nb in range(8):
                c = accb + (nb*nm+mb)*4; pa = PB + ((t % D)*nm+mb)*4; sb = SF + ks*32 + nb*4
                ms.append(f"{MF} a[{c}:{c+3}], v[{pa}:{pa+3}], v[{sb}:{sb+3}], a[{c}:{c+3}]")
        f = {-1: [f"s_waitcnt vmcnt({(D-1)*nm}) lgkmcnt(0)"]}
        if extra:
            L = f"L_{name}_x{t}"
            f[-1] += ["s_cmp_eq_u32 s31, 0", f"s_cbranch_scc1 {L}"] + \
                     [f"{MF} a[{128+4*mb}:{131+4*mb}], v[{PB+(t*nm+mb)*4}:{PB+(t*nm+mb)*4+3}], v[24:27], a[{128+4*mb}:{131+4*mb}]" for mb in range(nm)] + [f"{L}:"]
        if ks == 1:
            f[0] = ["s_barrier", "v_add_u32 v18, s20, v16"]
            rd = sreads(0, 0)
        else:
            rd = sreads(1, 1)
        sp = NM // 16
        for k, x in enumerate(rd): f.setdefault(1+sp*k, []).append(x)
        for mb in range(nm): f.setdefault(8*mb+7, []).append(pl((t % D)*nm+mb, mb*1024))
        f[NM-1].append(f"s_add_u32 s16, s16, {nm*1024}")
        if ks == 1:
            if dma:
                f.setdefault(1, []).append("s_add_u32 m0, s21, s19")
                for k, x in enumerate(sh_dma(*dma)): f.setdefault(2+(NM//5)*k, []).append(x)
                f.setdefault(NM-3, []).append(f"s_add_u32 s17, s17, {inc}")
            f.setdefault(NM//2+1, []).append("v_add_u32 v19, s20, v17")
            f.setdefault(NM-3, []).extend(["s_mov_b32 s19, s20", f"s_add_u32 s20, s20, {SLOT3}"])
            f.setdefault(NM-2, []).append(f"s_and_b32 s20, s20, {R3*SLOT3-1}")
        interleave(a, ms, f)
    a(f"s_add_u32 s18, s18, 1\n s_cmp_lt_u32 s18, 2\n s_cbranch_scc1 L_{name}_loop")

def tile_vec(a, vec):
    a("""
    s_lshl_b32 s26, s67, 5
    s_lshl_b32 s27, s3, 3
    s_add_u32 s26, s26, s27
    s_lshl_b32 s27, s26, 7
    v_lshrrev_b32 v2, 3, v1
    v_lshlrev_b32 v2, 14, v2
    v_add_u32 v2, s27, v2
    s_lshr_b32 s26, s26, 1
    v_and_b32 v3, 7, v1
    v_xor_b32 v3, s26, v3
    v_and_b32 v3, 7, v3
    """)
    for i in range(8):
        a(f"v_xor_b32 v4, {i>>1}, v3\n v_lshl_add_u32 v4, v4, 4, v2\n ds_read_b128 v[{96+4*i}:{99+4*i}], v4 offset:{i*128}")
    for i in range(8): a(f"v_mov_b32 v{40+i}, 0")
    a("s_waitcnt lgkmcnt(0)")
    for j in range(4):
        for i in range(8): a(f"v_dot2_f32_bf16 v{40+i}, v{96+4*i+j}, v{vec+j}, v{40+i}")
    a("s_nop 2")
    reduce_lanes(a, list(range(40, 48)), 48, ['ror1', 'ror2', 'ror4', 'ror8', 'p16', 'p32'])
    for i in range(1, 8): a(f"v_cmp_eq_u32 vcc, {i}, v1\n s_nop 1\n v_cndmask_b32 v40, v40, v{40+i}, vcc")

def acc_load(a, nm, vb, svec, wshift, off=0):
    a(f"v_lshrrev_b32 v2, 4, v1\n v_lshlrev_b32 v2, 4, v2\n s_lshl_b32 s26, s3, {wshift}\n v_add_u32 v2, s26, v2")
    for mb in range(nm): a(f"buffer_load_dwordx4 v[{vb+4*mb}:{vb+3+4*mb}], v2, s[12:15], s{svec} offen offset:{off+mb*64} sc1")
def acc_init(a, nm, vb, accb, sscale, withx=False):
    a(f"v_lshlrev_b32 v3, 31, v1")
    for i in range(4*nm): a(f"v_mul_f32 v{vb+i}, s{sscale}, v{vb+i}")
    if withx:
        for i in range(4*nm): a(f"v_accvgpr_write_b32 a{128+i}, v{vb+i}")
    for i in range(4*nm): a(f"v_xor_b32 v{vb+i}, v3, v{vb+i}")
    for nb in range(8):
        for i in range(4*nm): a(f"v_accvgpr_write_b32 a{accb+nb*4*nm+i}, v{vb+i}")

def dft(a):
    vm = VM()
    srd(a, 32, 60, 2048)
    a("""
    v_lshlrev_b32 v2, 4, v1
    v_sub_u32 v3, 2032, v2
    s_mov_b32 s26, 0x100000
    s_mov_b32 s27, 0x300000
    buffer_load_dwordx4 v[128:131], v2, s[4:7], s26 offen
    buffer_load_dwordx4 v[132:135], v3, s[4:7], s26 offen
    buffer_load_dwordx4 v[140:143], v2, s[4:7], s27 offen
    buffer_load_dwordx4 v[144:147], v3, s[4:7], s27 offen
    """); vm.add('z', 4)
    fold_loads(a, vm)
    fold_round_loads(a, vm, 0); fold_round_loads(a, vm, 1)
    a("s_lshr_b32 s30, s66, 2\n s_cmp_eq_u32 s30, 0\n s_cselect_b32 s26, s56, s58\n s_cselect_b32 s27, s57, s59")
    srd(a, 8, 26, 1024*1024*2)
    a("s_and_b32 s25, s66, 3\n s_lshl_b32 s25, s25, 18\n s_lshl_b32 s21, s3, 12")
    sh_voff(a, 32, 11, 25)
    srd(a, 36, 52, 2048*2048*2)
    srd(a, 80, 54, 2048*2048*2)
    a("s_and_b32 s24, s66, 3\n s_lshl_b32 s24, s24, 8\n s_add_u32 s24, s24, s30\n s_lshl_b32 s24, s24, 12")
    a("s_waitcnt lgkmcnt(0)\n s_mov_b32 s17, 0")
    nonce(a)
    started(a)
    stamp(a, 9)
    vm.wait(a, 'z')
    a("v_mov_b32 v136, 0\n v_mov_b32 v148, 0\n s_cmp_eq_u32 s30, 0\n s_cselect_b32 s26, 1.0, -1.0")
    a("v_mov_b32_dpp v136, v132 wave_shr:1 row_mask:0xf bank_mask:0xf\n v_mov_b32_dpp v148, v144 wave_shr:1 row_mask:0xf bank_mask:0xf")
    for k, b in enumerate((128, 140)):
        for j in range(8): a(unp(160+16*k+j, b, j))
        a(f"v_lshlrev_b32 v{168+16*k}, 16, v{b+8}")
        for j in range(1, 8): a(unp(168+16*k+j, b+4, 8-j))
    for j in range(16): a(f"v_fma_f32 v{160+j}, v{176+j}, s26, v{160+j}")
    for j in range(8): a(f"v_fma_f32 v{160+j}, v{168+j}, s26, v{160+j}")
    for j in range(4): a(f"v_cvt_pk_bf16_f32 v{36+j}, v{160+2*j}, v{161+2*j}")
    a("v_lshlrev_b32 v2, 16, v132\n v_lshlrev_b32 v3, 16, v144\n v_add_f32 v2, v2, v3\n s_nop 0\n v_readlane_b32 s75, v2, 63\n s_cselect_b32 s75, s75, 0")
    a(pk('', 160, 160, 162)); a(pk('', 164, 164, 166)); a(pk('', 160, 160, 164)); a("v_sub_f32 v160, v160, v161")
    reduce_lanes(a, [160], 176, ['ror1', 'ror2', 'ror4', 'ror8', 'p16', 'p32'])
    a("v_add_f32 v160, s75, v160\n s_nop 0\n v_readfirstlane_b32 s97, v160")
    def between(rnd):
        if rnd < 2: fold_round_loads(a, vm, rnd+2)
        for s in ((0, 1, 2), (3, 4, 5), (6, 7), ())[rnd]:
            a(f"s_add_u32 m0, s21, {s*SLOT3}\n s_nop 0")
            for x in sh_dma(32, 8): a(x)
            a("s_add_u32 s17, s17, 128")
            vm.add('pf', 4)
    fold_compute(a, vm, between)
    stamp(a, 1)
    a(f"s_lshl_b32 s23, s66, 2\n s_add_u32 s23, s23, s67\n s_lshl_b32 s23, s23, 7\n s_add_u32 s23, s23, {WS_FL+16384}")
    publish(a, 's23')
    for i in range(4): a(f"v_mov_b32 v{56+i}, 0")
    tile_vec(a, 36)
    for i in range(8): a(f"v_mfma_f32_32x32x16_bf16 a[{16*i}:{15+16*i}], v[56:59], v[56:59], 0")
    a(f"""
    v_lshlrev_b32 v2, 31, v1
    v_xor_b32 v2, s75, v2
    v_add_f32 v40, v40, v2
    s_lshl_b32 s26, s66, 7
    s_lshl_b32 s27, s67, 5
    s_add_u32 s26, s26, s27
    s_lshl_b32 s27, s3, 3
    s_add_u32 s26, s26, s27
    s_lshl_b32 s26, s26, 2
    s_add_u32 s26, s26, {WS_RV}
    v_lshlrev_b32 v2, 2, v1
    s_mov_b64 exec, 0xff
    buffer_store_dword v40, v2, s[12:15], s26 offen sc1
    s_mov_b64 exec, -1
    """)
    stamp(a, 10)
    sh_voff(a, 20, 13, 24)
    a("v_lshlrev_b32 v12, 4, v1")
    a("""
    v_and_b32 v2, 15, v1
    v_lshrrev_b32 v3, 1, v2
    v_lshrrev_b32 v4, 4, v1
    v_xor_b32 v3, v3, v4
    v_lshlrev_b32 v2, 7, v2
    v_lshl_add_u32 v16, v3, 4, v2
    v_xor_b32 v3, 4, v3
    v_lshl_add_u32 v17, v3, 4, v2
    """)
    a(f"""
    s_lshl_b32 s26, s30, 1
    s_lshr_b32 s27, s67, 1
    s_add_u32 s26, s26, s27
    s_lshl_b32 s26, s26, 3
    s_and_b32 s27, s67, 1
    s_lshl_b32 s27, s27, 2
    s_add_u32 s26, s26, s27
    s_add_u32 s26, s26, s3
    s_lshl_b32 s26, s26, 16
    s_add_u32 s22, s26, {WS_Z}
    """)
    srd_ws(a, 32, 22, 65536)
    a(f"s_and_b32 s23, s67, 1\n s_lshl_b32 s23, s23, 2\n s_add_u32 s23, s23, s3\n s_lshl_b32 s23, s23, 9\n s_add_u32 s23, s23, {WS_FL+16384}")
    poll(a, [('s23', '0xf')], cnt=4)
    stamp(a, 2)
    a(f"s_lshl_b32 s22, s67, 10\n s_add_u32 s22, s22, {WS_CV}\n s_cmp_eq_u32 s30, 0\n s_cselect_b32 s23, 1.0, 0")
    acc_load(a, 4, 192, 22, 8)
    a("s_mov_b32 s74, s23")
    dloop(a, 'd1', 4, 0, (20, 36), D=4, mid=lambda: a(f"s_mov_b32 s31, {WS_FL+16384}\n v_and_b32 v6, 31, v1\n v_lshlrev_b32 v6, 7, v6\n buffer_load_dwordx2 v[48:49], v6, s[12:15], s31 offen sc1"), init=lambda: stamp(a, 11))
    a("s_lshl_b32 s22, s30, 13\n" + f"s_add_u32 s22, s22, {WS_UP}\n v_lshlrev_b32 v2, 5, v1\n s_add_u32 s23, s22, 4096")
    a(f"s_waitcnt lgkmcnt(0)\n s_nop 7")
    stamp(a, 3)
    a("v_cmp_ne_u32 vcc, s98, v48\n v_cmp_ne_u32 s[28:29], s99, v49\n s_or_b64 vcc, vcc, s[28:29]\n s_and_b64 vcc, vcc, 0xffffffff\n s_cbranch_scc0 L_uok")
    poll(a, [('s31', '0xffffffff')], cnt=32)
    a("s_waitcnt vmcnt(0)\n L_uok:")
    for i in range(8): a(f"buffer_load_dwordx4 v[{128+4*i}:{131+4*i}], v2, s[12:15], s{22+(i>>2)} offen offset:{((i>>1)&1)*2048+(i&1)*16} sc1")
    a(f"""
    v_lshrrev_b32 v2, 4, v1
    v_and_b32 v3, 1, v2
    v_lshrrev_b32 v2, 1, v2
    v_lshl_add_u32 v2, v3, 1, v2
    v_and_b32 v3, 15, v1
    v_lshlrev_b32 v3, 4, v3
    v_lshl_add_u32 v14, v2, 8, v3
    s_lshr_b32 s26, s67, 1
    s_lshl_b32 s26, s26, 4
    s_and_b32 s27, s66, 3
    s_lshl_b32 s27, s27, 2
    s_add_u32 s26, s26, s27
    s_lshl_b32 s26, s26, 16
    s_lshl_b32 s27, s30, 15
    s_add_u32 s26, s26, s27
    s_and_b32 s27, s67, 1
    s_lshl_b32 s27, s27, 14
    s_add_u32 s26, s26, s27
    s_lshl_b32 s27, s3, 12
    s_add_u32 s26, s26, s27
    s_add_u32 s25, s26, {WS_AT}
    """)
    a("v_lshlrev_b32 v3, 31, v1")
    for i in range(16): a(f"v_mul_f32 v{192+i}, s74, v{192+i}\n v_xor_b32 v{192+i}, v3, v{192+i}")
    for nb in range(8):
        t = 32 + (nb & 1)*24
        for i in range(16): a(f"v_accvgpr_read_b32 v{t+i}, a{nb*16+i}")
        for i in range(0, 16, 2): a(pk('', t+i, t+i, 192+i))
        for i in range(8): a(f"v_cvt_pk_bf16_f32 v{t+16+i}, v{t+2*i}, v{t+2*i+1}")
        a("s_nop 1")
        for p in range(2):
            a(f"v_permlane16_swap_b32 v{t+16+4*p}, v{t+18+4*p}\n v_permlane16_swap_b32 v{t+17+4*p}, v{t+19+4*p}")
        for p in range(2):
            a(f"s_add_u32 s26, s25, {(nb >> 1)*65536 + p*2048 + (nb & 1)*1024}")
            a(f"buffer_store_dwordx4 v[{t+16+4*p}:{t+19+4*p}], v14, s[12:15], s26 offen sc1")
    a(f"s_and_b32 s26, s66, 3\n s_lshl_b32 s26, s26, 1\n s_add_u32 s26, s26, s30\n s_lshl_b32 s26, s26, 2\n s_add_u32 s26, s26, s67\n s_lshl_b32 s26, s26, 7\n s_add_u32 s23, s26, {WS_FL+24576}")
    stamp(a, 12)
    publish(a, 's23')
    stamp(a, 13)
    for i in range(4): a(f"v_mov_b32 v{56+i}, 0")
    a("s_nop 1")
    for i in range(9): a(f"v_mfma_f32_32x32x16_bf16 a[{16*i}:{15+16*i}], v[56:59], v[56:59], 0")
    for j in range(0, 8, 2): a(pk('', 128+j, 128+j, 136+j)); a(pk('', 144+j, 144+j, 152+j))
    for j in range(0, 8, 2): a(pk('', 128+j, 128+j, 144+j))
    for j in range(4): a(f"v_cvt_pk_bf16_f32 v{60+j}, v{128+2*j}, v{129+2*j}")
    tile_vec(a, 60)
    a(f"s_lshl_b32 s23, s67, 10\n s_add_u32 s23, s23, {WS_FL+24576}\n v_and_b32 v6, 7, v1\n v_lshlrev_b32 v6, 7, v6\n buffer_load_dwordx2 v[56:57], v6, s[12:15], s23 offen sc1")
    a(f"v_mov_b32 v41, 0\n v_mov_b32 v42, {ALT}")
    for j in range(4): a(f"v_dot2_f32_bf16 v41, v{60+j}, v42, v41")
    a("s_nop 2")
    reduce_lanes(a, [41], 48, ['ror1', 'ror2', 'ror4', 'ror8', 'p16', 'p32'])
    a(f"""
    v_cmp_eq_u32 vcc, 8, v1
    s_cmp_eq_u32 s30, 0
    s_cselect_b32 s26, 1.0, 0
    v_cndmask_b32 v40, v40, v41, vcc
    v_mov_b32 v160, s97
    v_mul_f32 v160, s26, v160
    v_lshlrev_b32 v2, 31, v1
    v_xor_b32 v2, v2, v160
    v_add_f32 v40, v40, v2
    v_cvt_pk_bf16_f32 v40, v40, v40
    s_and_b32 s26, s66, 3
    s_lshl_b32 s26, s26, 7
    s_lshl_b32 s27, s67, 5
    s_add_u32 s26, s26, s27
    s_lshl_b32 s27, s3, 3
    s_add_u32 s26, s26, s27
    v_add_u32 v3, s26, v1
    v_mov_b32 v4, 512
    v_cndmask_b32 v3, v3, v4, vcc
    v_lshlrev_b32 v3, 6, v3
    s_mul_i32 s26, s30, {TPS}
    s_add_u32 s26, s26, {WS_Y + 16*EGS}
    s_add_u32 s27, s26, {YD}
    s_cmp_eq_u32 s30, 0
    s_mov_b32 s28, 0xff
    s_cselect_b32 exec_lo, 0x1ff, s28
    s_mov_b32 exec_hi, 0
    buffer_store_dword v40, v3, s[12:15], s26 offen sc1
    buffer_store_dword v40, v3, s[12:15], s27 offen sc1
    s_mov_b64 exec, -1
    """)
    a(f"""
    s_lshl_b32 s26, s30, 4
    s_lshl_b32 s27, s67, 2
    s_add_u32 s26, s26, s27
    s_add_u32 s26, s26, s3
    s_lshl_b32 s26, s26, 16
    s_add_u32 s22, s26, {WS_AT}
    """)
    srd_ws(a, 32, 22, 65536)
    a(f"""
    s_cmp_eq_u32 s66, 0
    s_cselect_b32 s31, 1, 0
    v_mov_b32 v24, {ALT}
    v_mov_b32 v25, {ALT}
    v_mov_b32 v26, {ALT}
    v_mov_b32 v27, {ALT}
    """)
    srd(a, 4, 88, 3584*1024*2)
    g2_wpre(a, [(8, 4)])
    a("s_waitcnt vmcnt(2)\n v_cmp_ne_u32 vcc, s98, v56\n v_cmp_ne_u32 s[28:29], s99, v57\n s_or_b64 vcc, vcc, s[28:29]\n s_cbranch_scc0 L_s2_ok")
    poll(a, [('s23', '0xff')], gap=2, cnt=8)
    a("L_s2_ok:")
    stamp(a, 4)
    a(f"s_lshl_b32 s22, s67, 9\n s_add_u32 s22, s22, {WS_RV}\n s_cmp_eq_u32 s30, 0\n s_cselect_b32 s23, 1.0, 0")
    a("s_cselect_b32 s75, 0, -1.0\n s_mov_b32 s74, s23")
    acc_load(a, 2, 192, 22, 7)
    acc_load(a, 2, 200, 22, 7, 2048)
    dloop(a, 'd2a', 2, 0, (20, 80), extra=True, init=lambda: stamp(a, 14))
    stamp(a, 15)
    dloop(a, 'd2b', 2, 64, (8, 4), first=False, inc=64*2048)
    stamp(a, 16)
    a("s_waitcnt lgkmcnt(0)\n s_nop 7")
    a(f"""
    v_and_b32 v2, 15, v1
    v_lshlrev_b32 v20, 6, v2
    v_lshrrev_b32 v3, 4, v1
    v_and_b32 v4, 1, v3
    v_lshl_add_u32 v20, v4, 5, v20
    v_lshrrev_b32 v4, 1, v3
    v_lshl_add_u32 v20, v4, 4, v20
    v_lshlrev_b32 v21, 3, v3
    s_lshl_b32 s22, s67, 2
    s_add_u32 s22, s22, s3
    s_mul_i32 s22, s22, {EGS}
    s_mul_i32 s27, s30, {TPS}
    s_add_u32 s22, s22, s27
    s_add_u32 s22, s22, {WS_Y}
    s_and_b32 s26, s66, 3
    s_lshl_b32 s26, s26, 13
    s_add_u32 s25, s22, s26
    """)
    a("v_lshlrev_b32 v3, 31, v1")
    for i in range(8): a(f"v_mul_f32 v{192+i}, s74, v{192+i}\n v_mul_f32 v{200+i}, s75, v{200+i}")
    for i in range(8): a(f"v_sub_f32 v{208+i}, v{192+i}, v{200+i}\n v_add_f32 v{216+i}, v{192+i}, v{200+i}")
    for i in range(16): a(f"v_xor_b32 v{208+i}, v3, v{208+i}")
    for nb in range(8):
        t = 32 + (nb & 1)*32
        for i in range(8): a(f"v_accvgpr_read_b32 v{t+i}, a{nb*8+i}\n v_accvgpr_read_b32 v{t+8+i}, a{64+nb*8+i}")
        for i in range(0, 8, 2): a(pk('', t+16+i, t+i, t+8+i, neg=True)); a(pk('', t+i, t+i, t+8+i))
        for i in range(0, 8, 2): a(pk('', t+16+i, t+16+i, 208+i)); a(pk('', t+i, t+i, 216+i))
        for i in range(4): a(f"v_cvt_pk_bf16_f32 v{t+24+i}, v{t+16+2*i}, v{t+17+2*i}\n v_cvt_pk_bf16_f32 v{t+28+i}, v{t+2*i}, v{t+2*i+1}")
        a("s_nop 1")
        for p in range(2):
            a(f"v_permlane16_swap_b32 v{t+24+4*p}, v{t+26+4*p}\n v_permlane16_swap_b32 v{t+25+4*p}, v{t+27+4*p}")
        for p in range(2):
            a(f"s_add_u32 s26, s25, {nb*1024 + p*YD}")
            a(f"buffer_store_dwordx4 v[{t+24+4*p}:{t+27+4*p}], v20, s[12:15], s26 offen sc1")
    a("s_cmp_eq_u32 s31, 0\n s_cbranch_scc1 L_dft_nox")
    for i in range(8): a(f"v_accvgpr_read_b32 v{32+i}, a{128+i}")
    for i in range(0, 8, 2): a(pk('', 32+i, 32+i, 192+i))
    for i in range(4): a(f"v_cvt_pk_bf16_f32 v{40+i}, v{32+2*i}, v{33+2*i}")
    a(f"s_add_u32 s26, s22, {512*64}\n s_add_u32 s27, s26, {YD}\n s_mov_b32 exec_lo, 0x00010001\n s_mov_b32 exec_hi, 0x00010001")
    for mb in range(2):
        a(f"buffer_store_dwordx2 v[{40+2*mb}:{41+2*mb}], v21, s[12:15], s26 offen offset:{mb*32} sc1\n buffer_store_dwordx2 v[{40+2*mb}:{41+2*mb}], v21, s[12:15], s27 offen offset:{mb*32} sc1")
    a("s_mov_b64 exec, -1\nL_dft_nox:")
    stamp(a, 17)
    a(f"s_lshl_b32 s23, s66, 2\n s_add_u32 s23, s23, s67\n s_lshl_b32 s23, s23, 7\n s_add_u32 s23, s23, {WS_FL+32768}")
    g2_pre(a, True)
    a(f"v_mov_b32 v2, 0\n v_mov_b32 v3, 0\n v_mov_b32 v4, 0\n v_mov_b32 v5, 0\n s_mov_b32 s68, {OOB}\n s_nop 0")
    g2_zero(a, 2)
    publish(a, 's23')
    stamp(a, 18)
    poll(a, [('s44', '3')], vb=192, gap=2, cnt=2)
    a("s_mov_b32 s16, 0\n s_mov_b32 s26, 4096")
    for i in range(8): a(f"buffer_load_dwordx4 v[{128+4*i}:{131+4*i}], v{V_L16}, s[56:59], s{(16, 26)[i >> 2]} offen offset:{(i % 4)*1024} sc1")
    a("s_waitcnt vmcnt(0)")
    stamp(a, 5)


def kern():
    a = Asm()
    a(f"""
    s_cmp_ge_u32 s2, 256
    s_cbranch_scc1 L_end
    s_load_dwordx2 s[40:41], s[0:1], 0
    s_load_dwordx4 s[44:47], s[0:1], 48
    s_load_dwordx2 s[48:49], s[0:1], 96
    s_load_dwordx2 s[88:89], s[0:1], 64
    s_load_dwordx2 s[42:43], s[0:1], 80
    s_load_dwordx8 s[52:59], s[0:1], 8
    s_load_dwordx2 s[60:61], s[0:1], 72
    s_getpc_b64 s[28:29]
    s_lshr_b32 s27, s2, 3
    s_mul_i32 s26, s27, {CODE_LINES*128}
    v_lshlrev_b32 v2, 7, v0
    v_add_u32 v2, s26, v2
    v_cmp_gt_u32 vcc, {CODE_LINES}, v0
    s_and_saveexec_b64 s[30:31], vcc
    s_cbranch_execz L_nocp
    global_load_dword a255, v2, s[28:29]
    L_nocp:
    s_mov_b64 exec, s[30:31]
    v_and_b32 v1, 63, v0
    v_lshrrev_b32 v2, 6, v0
    s_and_b32 s66, s2, 7
    v_readfirstlane_b32 s3, v2
    s_lshr_b32 s27, s2, 3
    s_sub_u32 s67, s27, 28
    s_and_b32 s24, s66, 1
    s_lshl_b32 s24, s24, 2
    s_and_b32 s68, s27, 3
    s_add_u32 s24, s24, s68
    s_lshr_b32 s25, s66, 1
    s_mul_i32 s25, s25, 7
    s_lshr_b32 s69, s27, 2
    s_add_u32 s25, s25, s69
    """)
    stamp(a, 0)
    if opt.spin: a("s_memrealtime s[100:101]")
    a(f"s_waitcnt lgkmcnt(0)\n s_add_u32 s28, s48, {WS_FL}\n s_addc_u32 s29, s49, 0\n s_load_dword s98, s[28:29], 0")
    if opt.stamp: stamp(a, 23)
    srd(a, 4, 40, 2048*1024*2)
    srd(a, 12, 48, WS_SZ)
    g2_ids(a)
    a("s_lshr_b32 s27, s2, 3\n s_cmp_ge_u32 s27, 28\n s_cbranch_scc1 L_dft")
    gemm1(a)
    a("s_branch L_g2")
    a("L_dft:")
    dft(a)
    gemm2(a)
    a("L_end:")
    if opt.spin:
        a(f"s_cmp_lg_u32 s2, 0\n s_cbranch_scc1 L_end3\n L_spin:\n s_memrealtime s[92:93]\n s_waitcnt lgkmcnt(0)\n s_sub_u32 s92, s92, s100\n s_cmp_lt_u32 s92, {opt.spin}\n s_cbranch_scc1 L_spin\n L_end3:")
    if opt.stamp:
        a("s_cmp_ge_u32 s2, 256\n s_cbranch_scc1 L_end2\n s_mov_b64 exec, -1")
        srd(a, 12, 48, WS_SZ)
        stamp(a, 8)
        stamp_flush(a, 0)
        if opt.dbgmax:
            a("s_load_dwordx2 s[28:29], s[0:1], 88\n v_subrev_u32 v2, 40, v1\n v_lshlrev_b32 v2, 2, v2\n v_not_b32 v3, v31\n v_cmp_eq_u32 vcc, 40, v1\n s_nop 1\n v_cndmask_b32 v31, v31, v3, vcc")
            a("s_lshr_b32 s27, s2, 3\n s_cmp_ge_u32 s27, 28\n s_cbranch_scc1 L_dm_d\n s_mov_b32 exec_lo, 0\n s_mov_b32 exec_hi, 0x1ff00\n s_branch L_dm_go\n L_dm_d:")
            for k, w in ((1, 9), (2, 10), (3, 11), (4, 12), (16, 13), (18, 14), (0, 15)):
                a(f"v_mov_b32 v3, {4*w}\n v_cmp_eq_u32 vcc, {40+k}, v1\n s_nop 1\n v_cndmask_b32 v2, v2, v3, vcc")
            m = sum(1 << (8+k) for k in (0, 1, 2, 3, 4, 16, 18))
            a(f"s_mov_b32 exec_lo, 0\n s_mov_b32 exec_hi, {m}\n L_dm_go:\n s_waitcnt lgkmcnt(0)\n global_atomic_umax v2, v31, s[28:29] sc1\n s_waitcnt vmcnt(0)")
        a("L_end2:")
    return kernel(KN, a.text(), vgpr=256, agpr=256)

KN = 'gated_mix__spectral_fnet__geglu_ffn__prompt_kernel'
def main():
    fn = sys.argv[1]
    for o in sys.argv[2:]:
        k, v = o.split('=', 1)
        setattr(opt, k, eval(v))
    c, d = kern()
    hdr = open('gated_mix__spectral_fnet__geglu_ffn__prompt.s.ref').read().split('; Override launch')[0]
    src = hdr + f'; @launch grid=(256,1,1) block=(256,1,1) lds={R1*SLOT1}\n.amdgcn_target "amdgcn-amd-amdhsa--gfx950"\n' + c + '.text\n.fill 1024, 4, 0xbf800000\n' + d
    open(fn, 'w').write(src)
if __name__ == '__main__': main()
```

```python
import sys, math, struct
from ab import *

WS_H   = 0
HS     = 262144
WS_Z   = (16 << 20) + 65536
WS_AT  = (18 << 20) + 131072
WS_Y   = (20 << 20) + 196608
YD     = 2 << 20
EGS    = 528*64
TPS    = 17*EGS
WS_LP  = (24 << 20) + 131072
WS_UP  = WS_LP + 32768
WS_CV  = WS_UP + 32768
WS_RV  = WS_CV + 4096
WS_FL  = 25 << 20
WS_XB  = 26 << 20
XBS    = 4224
WS_TS  = 40 << 20
WS_SZ  = 256 << 20
OOB = 0x40000000
ALT = 0xBF803F80
R1 = 5; SLOT1 = 32768
R2 = 8; SLOT2 = 16384
R3 = 8; SLOT3 = 16384
MF = "v_mfma_f32_16x16x32_bf16"
class Opt: pass
opt = Opt()
opt.stamp = False; opt.trace = False; opt.hflags = 'sc1'; opt.psleep = 4; opt.order = 3; opt.tlb = True; opt.smem = True; opt.dbgmax = False; opt.pw = 0; opt.prepos = 1; opt.xdft = 0; opt.nf = 3; opt.pub = 1; opt.r3 = 0; opt.r2 = 1; opt.r2b = False; opt.nox = False; opt.nt_fold = ''; opt.nt_w = ''; opt.nt_c = ''; opt.fmask = 0xffff; opt.x2 = 0; opt.rdo = [1,1,2,2,3,3,4,4,5,5,6,6,7,7,9,9]; opt.rde = [0,0,1,1,2,2,3,3,4,5,6,7,9,10,11,12]; opt.dmo = [3, 7]; opt.HS = 229376; opt.tlb2 = False; opt.g2gap = 2; opt.spin = 0; opt.oflags = ''; opt.g2touch = False; opt.tflags = ''; opt.killw = None
fbits = lambda x: struct.unpack('<I', struct.pack('<f', x))[0]
CODE_LINES = int(__import__("os").environ.get("CL", 16))

def srd(a, d, base, size):
    a(f"s_mov_b32 s{d}, s{base}\n s_and_b32 s{d+1}, s{base+1}, 0xffff\n s_mov_b32 s{d+2}, {size}\n s_mov_b32 s{d+3}, 0x20000")
def srd_ws(a, d, soff, size):
    a(f"s_add_u32 s{d}, s48, s{soff}\n s_addc_u32 s{d+1}, s49, 0\n s_and_b32 s{d+1}, s{d+1}, 0xffff\n s_mov_b32 s{d+2}, {size}\n s_mov_b32 s{d+3}, 0x20000")
def interleave(a, mfmas, fill):
    for s in fill.get(-1, []): a(s)
    for i, m in enumerate(mfmas):
        a(m)
        for s in fill.get(i, []): a(s)
def lab(a, p): return f"L_{p}_{len(a.l)}"

def stamp(a, idx):
    if not opt.stamp: return
    a(f"s_memrealtime s[92:93]\n s_memtime s[94:95]\n s_waitcnt lgkmcnt(0)\n v_writelane_b32 v31, s92, {40+idx}\n v_writelane_b32 v30, s94, {40+idx}")
def trace_ops(sidx):
    return ["s_memtime s[92:93]", "s_memrealtime s[94:95]", "s_waitcnt lgkmcnt(0)", f"v_cmp_eq_u32 vcc, {sidx}, v1", "v_mov_b32 v6, s92", "v_mov_b32 v7, s94",
            "v_cndmask_b32 v30, v30, v6, vcc", "v_cndmask_b32 v31, v31, v7, vcc"]
def stamp_flush(a, half):
    if not opt.stamp: return
    a(f"s_lshl_b32 s90, s2, 2\n s_add_u32 s90, s90, s3\n s_lshl_b32 s90, s90, 9\n s_add_u32 s90, s90, {WS_TS + half*524288}")
    a(f"v_lshlrev_b32 v29, 3, v1\n buffer_store_dwordx2 v[30:31], v29, s[12:15], s90 offen")

def nonce(a):
    a("s_mul_i32 s98, s98, 0x9E3779B1\n s_add_u32 s98, s98, 0x7F4A7C15\n s_xor_b32 s99, s98, 0x5bd1e995")
def started(a, vt=2):
    L = lab(a, 'st0')
    a(f"s_cmp_lg_u32 s3, 0\n s_cbranch_scc1 {L}\n s_lshl_b32 s26, s2, 7\n s_add_u32 s26, s26, {WS_FL+393216}")
    flag_store(a, 's26', vt)
    a(f"{L}:")
def flag_store(a, soff, vt=2):
    a(f"""
    v_lshlrev_b32 v{vt}, 3, v1
    v_mov_b32 v{vt+2}, s98
    v_mov_b32 v{vt+3}, s99
    s_mov_b64 exec, {opt.fmask}
    buffer_store_dwordx2 v[{vt+2}:{vt+3}], v{vt}, s[12:15], {soff} offen sc1
    s_mov_b64 exec, -1
    """)
def publish(a, soff):
    a("s_waitcnt vmcnt(0)\n s_barrier")
    L = lab(a, 'pub')
    a(f"s_cmp_lg_u32 s3, 0\n s_cbranch_scc1 {L}")
    flag_store(a, soff)
    a(f"{L}:")
def poll(a, items, vb=48, gap=1, cnt=56, voff=6):
    L = lab(a, 'poll'); n = len(items)
    def issue(k):
        for i, (so, mk) in enumerate(items): a(f"buffer_load_dwordx2 v[{vb+2*(k*n+i)}:{vb+2*(k*n+i)+1}], v{voff}, s[12:15], {so} offen sc1")
    if voff == 6: a(f"v_cmp_gt_u32 vcc, {cnt}, v1\n v_lshlrev_b32 v6, 7, v1\n v_mov_b32 v7, {OOB}\n v_cndmask_b32 v6, v7, v6, vcc")
    a("s_mov_b32 s27, 0")
    issue(0); a(f"s_sleep {opt.psleep}"); issue(1); a(f"s_sleep {opt.psleep}");
    a(f"{L}:")
    for k in range(3):
        issue((k+2) % 3)
        a(f"s_waitcnt vmcnt({2*n})")
        for i, (so, mk) in enumerate(items):
            r = vb + 2*(k*n+i)
            a(f"v_cmp_ne_u32 vcc, s98, v{r}\n v_cmp_ne_u32 s[28:29], s99, v{r+1}\n s_or_b64 vcc, vcc, s[28:29]")
            a(f"s_and_b64 {'s[64:65]' if i == 0 else 'vcc'}, vcc, {mk}")
            if i: a("s_or_b64 s[64:65], s[64:65], vcc")
        a(f"s_cbranch_scc0 {L}_done\n s_sleep {gap}")
    a(f"""
    s_add_u32 s27, s27, 1
    s_cmp_lt_u32 s27, 0x20000
    s_cbranch_scc1 {L}
    {L}_done:
    """)
def reduce_lanes(a, regs, tmp, steps):
    for st in steps:
        if st.startswith('ror'):
            a("s_nop 1")
            for r in regs: a(f"v_add_f32_dpp v{r}, v{r}, v{r} row_ror:{st[3:]} row_mask:0xf bank_mask:0xf")
        else:
            for i, r in enumerate(regs): a(f"v_mov_b32 v{tmp+i}, v{r}")
            a("s_nop 1")
            for i, r in enumerate(regs): a(f"v_permlane{st[1:]}_swap_b32 v{r}, v{tmp+i}")
            a("s_nop 1")
            for i, r in enumerate(regs): a(f"v_add_f32 v{r}, v{r}, v{tmp+i}")
def unp(dst, src, j):
    return f"v_lshlrev_b32 v{dst}, 16, v{src+j//2}" if j % 2 == 0 else f"v_and_b32 v{dst}, 0xffff0000, v{src+j//2}"
def pk(op, d, x, y, neg=False):
    return f"v_pk_add_f32 v[{d}:{d+1}], v[{x}:{x+1}], v[{y}:{y+1}]" + (" neg_lo:[0,1] neg_hi:[0,1]" if neg else "")

def tlb_setup(a, vd):
    a(f"""
    s_mov_b32 s76, s48
    s_mov_b32 s77, s49
    s_mov_b32 s78, {26 << 20}
    s_cmp_eq_u32 s3, 1
    s_cselect_b32 s76, s42, s76
    s_cselect_b32 s77, s43, s77
    s_cselect_b32 s78, {4 << 20}, s78
    s_cmp_eq_u32 s3, 2
    s_cselect_b32 s76, s88, s76
    s_cselect_b32 s77, s89, s77
    s_cselect_b32 s78, {3584*2048}, s78
    s_cmp_eq_u32 s3, 3
    s_cselect_b32 s76, s52, s76
    s_cselect_b32 s77, s53, s77
    s_cselect_b32 s78, {5 << 20}, s78
    s_and_b32 s77, s77, 0xffff
    s_mov_b32 s79, 0x20000
    v_lshlrev_b32 v{vd}, 20, v1
    v_add_u32 v{vd}, {(1 << 20) - 128}, v{vd}
    v_cmp_eq_u32 vcc, 16, v1
    v_mov_b32 v2, {(16 << 20) + 128}
    s_nop 0
    v_cndmask_b32 v{vd}, v{vd}, v2, vcc
    v_cmp_le_u32 vcc, 17, v1
    v_mov_b32 v2, {(18 << 20) + 65536 + 128}
    s_nop 0
    v_cndmask_b32 v{vd}, v{vd}, v2, vcc
    v_cmp_le_u32 vcc, 18, v1
    v_lshlrev_b32 v2, 21, v1
    v_subrev_u32 v2, {(18 << 21) - ((22 << 20) - 128)}, v2
    v_cndmask_b32 v{vd}, v{vd}, v2, vcc
    """)

class VM:
    def __init__(s): s.ops = []
    def add(s, tag, n=1): s.ops += [tag]*n
    def wait(s, a, tag, extra=""):
        last = max(i for i, t in enumerate(s.ops) if t == tag)
        a(f"s_waitcnt vmcnt({min(63, len(s.ops)-1-last)}) {extra}")
V_WX, V_WD, V_L16, V_LDS, V_TMP, V_OOB, V_F64, V_FJ, V_S4, V_H1, V_OUT, V_Y, V_LP, AD = 96, 100, 104, 105, 106, 107, 108, 109, 110, 111, 112, 114, 119, 120
def w_voff(a, vb, wshift, t=2):
    a(f"""
    v_lshrrev_b32 v{t+1}, 4, v1
    s_lshl_b32 s26, s3, {wshift}
    v_add_u32 v{t}, s26, v{t+1}
    v_lshlrev_b32 v{t}, 11, v{t}
    v_add_u32 v{t}, s27, v{t}
    v_lshlrev_b32 v{t+1}, 1, v{t+1}
    v_and_b32 v{vb}, 15, v1
    v_xor_b32 v{t+1}, v{t+1}, v{vb}
    v_lshl_add_u32 v{vb}, v{t+1}, 4, v{t}
    v_xor_b32 v{t+1}, 8, v{t+1}
    v_lshl_add_u32 v{vb+1}, v{t+1}, 4, v{t}
    v_add_u32 v{vb+2}, {2*(4*2048-1024)}, v{vb}
    v_add_u32 v{vb+3}, {3*(4*2048-1024)}, v{vb+1}
    v_add_u32 v{vb+1}, {1*(4*2048-1024)}, v{vb+1}
    """)
def g2_ids(a):
    a("""
    s_lshr_b32 s27, s2, 3
    s_and_b32 s50, s2, 1
    s_lshl_b32 s50, s50, 2
    s_and_b32 s26, s27, 3
    s_add_u32 s50, s50, s26
    s_lshr_b32 s51, s27, 2
    s_bfe_u32 s96, s2, 0x20001
    """)
def g2_wpre(a, variants):
    a(f"s_mul_i32 s27, s96, {896*2048}\n s_lshl_b32 s26, s51, 8\n s_add_u32 s27, s27, s26")
    for vb, sh in variants: w_voff(a, vb, sh)
SPOS = [40, 41, 42, 43, 76, 77, 78]
OWNL = 98304
def g2_pre(a, dft):
    srd(a, 52, 42, 2048*1024*2)
    srd(a, 32, 88, 3584*1024*2)
    g2_wpre(a, [(V_WD, 4)] if dft else [(V_WX, 5), (V_WD, 4)])
    a(f"s_lshl_b32 s27, s50, 2\n s_add_u32 s27, s27, s3\n s_lshl_b32 s27, s27, 1\n s_mul_i32 s27, s27, {opt.HS}\n s_mul_i32 s26, s96, 57344\n s_add_u32 s27, s27, s26")
    srd_ws(a, 56, 27, opt.HS + 57344)
    a("s_mov_b32 s45, 0" if dft else "s_mov_b32 s45, s51")
    a(f"s_lshl_b32 s40, s45, 18\n s_lshr_b32 s79, s96, 1\n s_mul_i32 s79, s79, {opt.HS}")
    for p in range(1, 7): a(f"s_cmp_le_u32 s45, {p-1}\n s_mov_b32 s{SPOS[p]}, {(p-1) << 18}\n s_cselect_b32 s{SPOS[p]}, {p << 18}, s{SPOS[p]}")
    a(f"""
    v_lshlrev_b32 v{V_L16}, 4, v1
    v_mov_b32 v{V_OOB}, {OOB}
    v_lshrrev_b32 v3, 4, v1
    v_lshrrev_b32 v4, 2, v1
    v_and_b32 v4, 3, v4
    v_lshl_add_u32 v5, v3, 2, v4
    v_and_b32 v6, 7, v5
    s_and_b32 s26, s96, 1
    s_lshl_b32 s26, s26, 2
    v_xor_b32 v6, s26, v6
    v_lshlrev_b32 v5, 8, v5
    v_lshl_add_u32 v5, v6, 5, v5
    v_and_b32 v7, 3, v1
    v_lshl_add_u32 v{V_LDS}, v7, 3, v5
    s_lshl_b32 s26, s50, 1
    s_lshr_b32 s27, s3, 1
    s_add_u32 s26, s26, s27
    s_lshl_b32 s26, s26, 13
    s_mul_i32 s44, s96, {14*128}
    s_add_u32 s44, s44, s26
    s_add_u32 s44, s44, {WS_FL+65536}
    v_lshlrev_b32 v{V_F64}, 7, v1
    v_and_b32 v{V_S4}, 31, v1
    v_lshlrev_b32 v{V_S4}, 7, v{V_S4}
    v_add_u32 v{V_S4}, {WS_FL+32768}, v{V_S4}
    v_lshrrev_b32 v2, 1, v1
    v_cmp_le_u32 vcc, s45, v2
    v_add_u32 v3, 1, v2
    v_and_b32 v4, 1, v1
    v_cndmask_b32 v2, v2, v3, vcc
    v_cmp_gt_u32 vcc, 12, v1
    v_lshl_add_u32 v2, v2, 1, v4
    v_lshlrev_b32 v2, 7, v2
    v_cndmask_b32 v{V_FJ}, v{V_OOB}, v2, vcc
    s_lshl_b32 s70, s3, 13
    s_add_u32 s70, s70, {WS_FL+393216}
    s_cmp_eq_u32 s2, 0
    s_cselect_b32 s70, s70, {OOB}
    s_cselect_b64 s[60:61], -1, 0
    s_lshl_b32 s26, s2, 2
    s_add_u32 s26, s26, s3
    s_mul_i32 s71, s26, 12288
    s_add_u32 s71, s71, {WS_XB}
    s_lshl_b32 s69, s26, 7
    s_add_u32 s69, s69, {WS_FL+262144}
    """)
    for mb in range(8): a(f"v_xor_b32 v{AD+mb}, {mb*32}, v{V_LDS}")
    a(f"""
    s_lshl_b32 s64, s51, 1
    s_and_b32 s26, s96, 1
    s_add_u32 s64, s64, s26
    s_lshl_b32 s26, s50, 8
    s_lshl_b32 s27, s3, 6
    s_add_u32 s27, s26, s27
    s_lshr_b32 s26, s96, 1
    s_lshl_b32 s26, s26, 5
    s_add_u32 s27, s27, s26
    v_and_b32 v2, 15, v1
    v_add_u32 v2, s27, v2
    v_lshlrev_b32 v{V_LP}, 4, v2
    v_add_u32 v{V_LP}, {WS_LP}, v{V_LP}
    v_lshlrev_b32 v2, 11, v2
    v_lshrrev_b32 v3, 4, v1
    v_and_b32 v4, 1, v3
    v_lshl_add_u32 v2, v4, 5, v2
    v_lshrrev_b32 v4, 1, v3
    v_lshl_add_u32 v2, v4, 4, v2
    s_lshl_b32 s26, s64, 7
    v_add_u32 v{V_OUT}, s26, v2
    v_add_u32 v{V_OUT+1}, 32768, v{V_OUT}
    s_lshl_b32 s26, s64, 1
    s_sub_u32 s65, 30, s26
    s_cmp_ge_u32 s64, 8
    s_cselect_b64 s[46:47], -1, 0
    s_cselect_b32 s65, s65, s26
    s_mul_i32 s65, s65, {EGS}
    s_add_u32 s65, s65, {WS_Y}
    s_mov_b32 s26, {TPS}
    """)
    for j in range(5):
        if j < 4: a(f"v_lshrrev_b32 v2, 2, v1\n v_lshl_add_u32 v2, v2, 1, {j&1}\n v_and_b32 v3, 3, v1\n v_lshlrev_b32 v3, 4, v3\n v_add_u32 v3, {(j>>1)*EGS}, v3")
        else: a(f"v_and_b32 v2, 31, v1\n v_mov_b32 v3, {2*EGS}")
        a(f"""
        v_add_u32 v2, s27, v2
        v_sub_u32 v4, 2048, v2
        v_min_u32 v4, v4, v2
        v_cmp_lt_u32 vcc, 1024, v2
        v_and_b32 v5, 1, v4
        v_mul_lo_u32 v5, v5, s26
        v_lshrrev_b32 v4, 1, v4
        v_lshl_add_u32 v4, v4, 6, v5
        s_xor_b64 vcc, vcc, s[46:47]
        v_add3_u32 v4, v4, v3, s65
        v_add_u32 v5, {YD}, v4
        v_cndmask_b32 v{V_Y+j}, v4, v5, vcc
        """)
def g2_zero(a, z, lo, hi):
    for i in range(lo, hi): a(f"v_mfma_f32_32x32x16_bf16 a[{16*i}:{15+16*i}], v[{z}:{z+3}], v[{z}:{z+3}], 0")
def fl_bad(a, r, mask):
    a(f"v_cmp_ne_u32 vcc, s98, v{r}\n v_cmp_ne_u32 s[28:29], s99, v{r+1}\n s_or_b64 vcc, vcc, s[28:29]\n s_and_b64 vcc, vcc, {mask}")
HB = 128
def h_base(p): return [f"s_lshr_b32 s16, s{SPOS[p]}, 5", f"s_sub_u32 s25, s16, s79", "s_add_u32 s16, s16, s79", f"s_add_u32 s25, s25, {opt.HS}"]
def h_load(half, st, nb, v=V_L16):
    r = HB + 64*half + 16*st + 4*nb
    return f"buffer_load_dwordx4 v[{r}:{r+3}], v{v}, s[56:59], s{(16, 25)[nb >> 1]} offen offset:{(st & 1)*2048 + (nb & 1)*1024} sc1"
def h_chunk(a, p, v=V_L16):
    for x in h_base(p): a(x)
    for st in range(4):
        for nb in range(4): a(h_load(p & 1, st, nb, v))
        if st == 1: a("s_add_u32 s16, s16, 4096\n s_add_u32 s25, s25, 4096")

def gemm2(a):
    WF = 32; PV = 192
    vm = VM()
    def dma(): return [f"buffer_load_dwordx4 v{V_WD+i}, s[32:35], s17 offen offset:{i*1024} lds" for i in range(4)]
    def wreads(st, off, mbs=range(8), base=None):
        r = []
        for k, mb in enumerate(mbs):
            b = (WF + st*32 + mb*4) if base is None else base + 4*k
            r.append(f"ds_read_b64_tr_b16 v[{b}:{b+1}], v{AD+mb} offset:{off}")
            r.append(f"ds_read_b64_tr_b16 v[{b+2}:{b+3}], v{AD+mb} offset:{off+4096}")
        return r
    def sample(): a(f"buffer_load_dwordx2 v[24:25], v{V_FJ}, s[12:15], s44 offen sc1"); vm.add('smp')
    def pmask(p): return 3 << (2*(p-1))
    rare = []
    a("L_g2:"); vm.add('own')
    sample()
    a(f"buffer_load_dwordx2 v[18:19], v{V_F64}, s[12:15], s70 offen sc1"); vm.add('ep')
    for x in wreads(0, 0): a(x)
    a(f"s_lshl_b32 s21, s3, 12\n v_mov_b32 v26, s98\n v_mov_b32 v27, s99\n v_and_b32 v23, 15, v1\n v_lshlrev_b32 v23, 3, v23")
    stamp(a, 6)
    OD = [(nb, mb) for nb in range(4) for mb in (range(4) if nb % 2 == 0 else range(3, -1, -1))] + [(nb, 4+mb) for nb in range(3, -1, -1) for mb in (range(4) if nb % 2 else range(3, -1, -1))]
    def step(T, loads):
        p = T & 1; pos = T >> 2; st = T & 3; slot = T >> 1
        if pos >= 2: vm.wait(a, f'h{T}', "lgkmcnt(8)")
        else: a("s_waitcnt lgkmcnt(8)")
        ms = []
        for nb, mb in OD:
            b = WF + p*32 + mb*4; c = (nb*8+mb)*4; h = HB + 64*(pos & 1) + 16*st + 4*nb
            ms.append(f"{MF} a[{c}:{c+3}], v[{b}:{b+3}], v[{h}:{h+3}], a[{c}:{c+3}]")
        f = {k: [] for k in range(32)}
        for k, x in enumerate(wreads(p ^ 1, (p ^ 1)*8192)): f[2*k].append(x)
        f[15].append("s_waitcnt lgkmcnt(8)")
        g = slot + 5
        ops = []
        if 6 <= g <= 13: ops += [(5, dma()[2*p], f'w{g}'), (11, dma()[2*p+1], f'w{g}')]
        if loads:
            if st == 0:
                hb = h_base(pos+2); f[1] += hb[:2]; f[3] += hb[2:]
            ops += [(19+4*k, h_load(pos & 1, st, nb), f'h{T+8}') for k, nb in enumerate((3, 2, 1, 0))]
            if st == 1: f[31].append("PLACEHOLDER")
        if p == 1:
            need = slot + 2
            f[16].append("BARRIER")
            if 6 <= g+1 <= 13:
                f[17] += [f"s_add_u32 m0, s21, {((g+1) % 8)*SLOT2}", f"s_add_u32 s17, s{SPOS[(g+1) >> 1]}, {((g+1) & 1)*64*2048}"]
        else:
            f[7].append(f"v_add_u32 v{V_TMP}, {((slot+1) % 8)*SLOT2}, v{V_LDS}")
            for mb in range(8): f[max(4*mb+3, 9+mb)].append(f"v_xor_b32 v{AD+mb}, {mb*32}, v{V_TMP}")
        ops.sort()
        for i, m in enumerate(ms):
            a(m)
            for x in f[i]:
                if x == "BARRIER":
                    if f'w{slot+2}' in vm.ops: vm.wait(a, f'w{slot+2}')
                    a("s_barrier")
                elif x != "PLACEHOLDER": a(x)
            for gp, x, tag in ops:
                if gp == i: a(x); vm.add(tag)
            if "PLACEHOLDER" in f[i]: a("s_add_u32 s16, s16, 4096\n s_add_u32 s25, s25, 4096")
    step(0, False)
    vm.wait(a, 'own'); a("buffer_store_dwordx2 v[26:27], v23, s[12:15], s68 offen sc1"); vm.add('fl')
    step(1, False)
    vm.wait(a, 'ep')
    fl_bad(a, 24, pmask(1))
    a(f"s_cselect_b32 s31, 1, 0\n s_cselect_b32 s26, {OOB}, 0\n v_add_u32 v{V_H1}, s26, v{V_L16}")
    h_chunk(a, 1, V_H1); vm.add('p1', 16)
    sample()
    step(2, False); step(3, False)
    vm.wait(a, 'smp')
    fl_bad(a, 24, pmask(1) | pmask(2) | pmask(3))
    a("s_cbranch_scc1 L_g2_late0\n s_cmp_lg_u32 s31, 0\n s_cbranch_scc1 L_g2_redo\n L_g2_cont0:")
    fl_bad(a, 18, "s[60:61]")
    a("s_cbranch_scc1 L_g2_ep\n L_g2_cont1:")
    for x in h_base(2): a(x)
    for st in range(4):
        for nb in range(4): a(h_load(0, st, nb)); vm.add(f'h{8+st}')
        if st == 1: a("s_add_u32 s16, s16, 4096\n s_add_u32 s25, s25, 4096")
    sample()
    for pos in range(1, 6):
        if 2 <= pos <= 4:
            vm.wait(a, 'smp')
            fl_bad(a, 24, pmask(pos+2))
            a(f"s_cbranch_scc1 L_g2_late{pos}\n L_g2_cont{pos}x:")
            rare.append(pos)
            if pos < 4: sample()
        if pos == 2:
            a(f"s_or_b32 s26, s2, s3\n s_cmp_eq_u32 s26, 0\n s_mov_b32 s68, {OOB}\n s_cselect_b32 s68, {WS_FL}, s68\n buffer_store_dwordx2 v[26:27], v23, s[12:15], s68 offen sc1"); vm.add('eps')
        if pos == 4:
            a(f"buffer_load_dwordx2 v[18:19], v{V_S4}, s[12:15], 0 offen sc1"); vm.add('s4')
        if pos == 5:
            vm.wait(a, 's4')
            fl_bad(a, 18, -1)
            a("s_cbranch_scc1 L_g2_s4\n L_g2_s4ok:")
            a(f"buffer_load_dwordx4 a[160:163], v{V_LP}, s[12:15], 0 offen sc1\n buffer_load_dwordx4 a[164:167], v{V_LP}, s[12:15], 0 offen offset:256 sc1")
            for j in range(4): a(f"buffer_load_dwordx4 a[{136+4*j}:{139+4*j}], v{V_Y+j}, s[12:15], 0 offen sc1")
            a(f"buffer_load_dword a152, v{V_Y+4}, s[12:15], 0 offen sc1"); vm.add('y', 7)
        for st in range(4): step(4*pos + st, pos <= 4)
    Q = [32, 48, 64, 80]
    def hrd(st, fo, q): return wreads(0, (st >> 1)*16384 + (st & 1)*8192, range(4*fo, 4*fo+4), Q[q])
    def sendl(g):
        o = []
        for k in range(4):
            nb = 2*(g >> 1) + (k >> 1); c = (nb*8 + 4*(g & 1) + 2*(k & 1))*4; t = PV + 8*(k & 1); d = 224 + 4*((g*4+k) % 8)
            o += [f"v_accvgpr_read_b32 v{t+i}, a{c+i}" for i in range(8)]
            o += [f"v_cvt_pk_bf16_f32 v{d+i}, v{t+2*i}, v{t+1+2*i}" for i in range(4)]
            o += [f"buffer_store_dwordx4 v[{d}:{d+3}], v{V_L16}, s[12:15], s{(0, 71, 16, 25)[g]} offen offset:{k*1024} sc1"]
        return o
    a("s_add_u32 s16, s71, 4096\n s_add_u32 s25, s71, 8192")
    phases = [(0, 1, 1, range(4)), (1, 1, 2, range(4)), (2, 1, 3, range(4)), (3, 1, 1, range(4))] + \
             [(st, 0, (0, 2, 3, 1)[st], (2, 3)) for st in range(4)] + [(st, 0, (0, 2, 3, 1)[st], (0, 1)) for st in range(4)]
    pre = {0: hrd(1, 1, 2) + hrd(2, 1, 3), 1: hrd(3, 1, 1), 2: hrd(1, 0, 2), 3: hrd(2, 0, 3), 4: hrd(3, 0, 1)}
    send = []
    for k, (st, fo, q, nbs) in enumerate(phases):
        if k == 0: vm.wait(a, 'h27', "lgkmcnt(0)")
        elif k in (1, 2, 3, 5, 6): a("s_waitcnt lgkmcnt(8)")
        elif k == 7: a("s_waitcnt lgkmcnt(0)")
        if k == 4: send += [None]*8 + sendl(3) + sendl(1)
        if k == 8: send += [None]*max(0, 12 - len(send)) + sendl(2)
        ms = []
        for i, nb in enumerate(nbs):
            for m in (range(4) if i % 2 == 0 else range(3, -1, -1)):
                c = (nb*8 + 4*fo + m)*4; b = Q[q] + 4*m; h = HB + 16*st + 4*nb
                ms.append(f"{MF} a[{c}:{c+3}], v[{b}:{b+3}], v[{h}:{h+3}], a[{c}:{c+3}]")
        f = {}
        rd = pre.get(k, [])
        for j, x in enumerate(rd): f.setdefault(j*len(ms)//len(rd), []).append(x)
        for g in range(len(ms)):
            for _ in range(3):
                if send:
                    x = send.pop(0)
                    if x: f.setdefault(g, []).append(x)
        interleave(a, ms, f)
    assert not send, len(send)
    stamp(a, 7)
    a("""
    s_mul_i32 s26, s3, 4608
    s_add_u32 s26, s26, 131072
    v_lshrrev_b32 v4, 2, v1
    v_mul_u32_u24 v4, 288, v4
    v_and_b32 v5, 3, v1
    v_lshl_add_u32 v4, v5, 4, v4
    v_add_u32 v4, s26, v4
    v_and_b32 v5, 31, v1
    v_mul_u32_u24 v5, 144, v5
    v_add_u32 v5, s26, v5
    """)
    for j in range(4): a(f"ds_write_b128 v4, a[{136+4*j}:{139+4*j}] offset:{(j&1)*144 + (j>>1)*64}")
    a("ds_write_b32 v5, a152 offset:128")
    a("""
    v_and_b32 v4, 15, v1
    v_mul_u32_u24 v4, 144, v4
    v_lshrrev_b32 v5, 4, v1
    v_lshlrev_b32 v5, 3, v5
    v_sub_u32 v6, 24, v5
    v_cndmask_b32 v5, v5, v6, s[46:47]
    v_add3_u32 v4, v4, v5, s26
    s_waitcnt vmcnt(0) lgkmcnt(0)
    buffer_store_dwordx2 v[26:27], v23, s[12:15], s69 offen sc1
    """)
    for k in range(8):
        a(f"ds_read_b64 v[{128+4*k}:{129+4*k}], v4 offset:{(k>>2)*16*144 + (k&3)*32}\n ds_read_b32 v{130+4*k}, v4 offset:{(k>>2)*16*144 + (k&3)*32 + 8}")
    a(f"""
    v_add_u32 v6, 1, v1
    v_lshlrev_b32 v6, 10, v6
    v_xor_b32 v6, s69, v6
    v_cmp_gt_u32 vcc, 3, v1
    s_lshl_b32 s26, s2, 2
    s_add_u32 s26, s26, s3
    v_cndmask_b32 v{V_FJ}, v{V_OOB}, v6, vcc
    """)
    for g in range(1, 4): a(f"s_xor_b32 s27, s26, {8*g}\n s_mul_i32 s{40+g}, s27, 12288\n s_add_u32 s{40+g}, s{40+g}, {WS_XB + (g-1)*4096}")
    for nb in range(2):
        for i in range(4): a(f"v_accvgpr_read_b32 v{40+i}, a{160+4*nb+i}")
        a(f"""
        v_add_f32 v40, v40, v41
        v_add_f32 v42, v42, v43
        v_add_f32 v40, v40, v42
        v_cvt_pk_bf16_f32 v40, v40, v40
        v_lshlrev_b32 v40, 16, v40
        v_mul_f32 v40, {fbits(-math.log2(math.e))}, v40
        v_exp_f32 v40, v40
        s_nop 0
        v_add_f32 v40, 1.0, v40
        v_rcp_f32 v40, v40
        s_nop 0
        v_cvt_pk_bf16_f32 v40, v40, v40
        v_lshlrev_b32 v{32+nb}, 16, v40
        v_sub_f32 v40, 1.0, v{32+nb}
        v_cvt_pk_bf16_f32 v40, v40, v40
        v_lshlrev_b32 v{34+nb}, 16, v40
        v_and_b32 v{36+nb}, 0xffff, v40
        """)
    for nb in range(2):
        for i in range(16): a(f"v_accvgpr_read_b32 v{64+nb*16+i}, a{nb*32+i}")
    for nb in range(2):
        for i in range(16): a(f"v_mul_f32 v{64+nb*16+i}, v{34+nb}, v{64+nb*16+i}")
    a(f"buffer_load_dwordx2 v[24:25], v{V_FJ}, s[12:15], 0 offen sc1")
    a("s_waitcnt lgkmcnt(0)\n s_cmp_lg_u32 s46, 0\n s_cbranch_scc1 L_g2_mir")
    for mir in range(2):
        if mir: a("L_g2_mir:")
        for nb in range(2):
            for mb in range(4):
                d = 128 + (nb*4 + (3-mb if mir else mb))*4; o = 64 + (nb*4+mb)*4
                els = [4, 3, 2, 1] if mir else [0, 1, 2, 3]
                for r in range(4): a(unp(40+r, d, els[r]))
                for r in range(4): a(f"v_fma_f32 v{o+r}, v{40+r}, v{32+nb}, v{o+r}")
        if not mir: a("s_branch L_g2_st")
    a("L_g2_st:")
    stamp(a, 9)
    a("s_waitcnt vmcnt(0)")
    fl_bad(a, 24, 7)
    a("s_cbranch_scc0 L_g2_xok\n s_mov_b32 s26, 0")
    poll(a, [('s26', '7')], vb=44, gap=1, voff=V_FJ)
    a("L_g2_xok:")
    stamp(a, 10)
    for k in range(4):
        for g in range(1, 4): a(f"buffer_load_dwordx4 v[{128+16*k+4*g}:{131+16*k+4*g}], v{V_L16}, s[12:15], s{40+g} offen offset:{k*1024} sc1")
    for k in range(4):
        a(f"s_waitcnt vmcnt({3*(3-k) + k})")
        for g in range(1, 4):
            for r in range(8): a(f"v_dot2_f32_bf16 v{64+8*k+r}, v{128+16*k+4*g+r//2}, v{(36, 34)[r & 1]+(k>>1)}, v{64+8*k+r}")
        a("s_nop 2")
        for i in range(4): a(f"v_cvt_pk_bf16_f32 v{PV+4*k+i}, v{64+8*k+2*i}, v{64+8*k+2*i+1}")
        a(f"s_nop 1\n v_permlane16_swap_b32 v{PV+4*k}, v{PV+4*k+2}\n v_permlane16_swap_b32 v{PV+4*k+1}, v{PV+4*k+3}")
        a(f"buffer_store_dwordx4 v[{PV+4*k}:{PV+4*k+3}], v{V_OUT+(k>>1)}, s[52:55], 0 offen offset:{(k&1)*64} {opt.oflags}")
    a("s_branch L_end")
    a("L_g2_late0:")
    poll(a, [('s44', pmask(1) | pmask(2) | pmask(3))], vb=10, gap=opt.g2gap, voff=V_FJ)
    a("s_waitcnt vmcnt(0)\n s_cmp_eq_u32 s31, 0\n s_cbranch_scc1 L_g2_cont0\n L_g2_redo:")
    h_chunk(a, 1)
    a("s_waitcnt vmcnt(0)\n s_branch L_g2_cont0")
    a("L_g2_ep:")
    poll(a, [('s70', '-1')], vb=10, gap=2, cnt=64)
    a("s_waitcnt vmcnt(0)\n s_branch L_g2_cont1")
    for pos in rare:
        a(f"L_g2_late{pos}:")
        poll(a, [('s44', pmask(pos+2))], vb=10, gap=2, voff=V_FJ)
        a(f"s_waitcnt vmcnt(0)\n s_branch L_g2_cont{pos}x")
    a(f"L_g2_s4:\n s_mov_b32 s26, {WS_FL+32768}")
    poll(a, [('s26', '0xffffffff')], vb=10, gap=2, cnt=32)
    a("s_waitcnt vmcnt(0)\n s_branch L_g2_s4ok")

def ACCG(mb, nb): return 128 + (nb*4+mb)*4
def ACCU(mb, nb): return (nb*4+mb)*4
def FR(st, i): return 128 + st*64 + i*4

def gemm1(a):
    XS = 32768; WB = 98304; WSL = 16384
    a("s_cmp_ge_u32 s3, 2\n s_cselect_b32 s26, s46, s44\n s_cselect_b32 s27, s47, s45")
    srd(a, 8, 26, 1024*3584*2)
    a(f"""
    s_cmp_eq_u32 s3, 1
    s_cselect_b32 s80, s46, s44
    s_cselect_b32 s81, s47, s45
    s_mov_b32 s82, {1024*3584*2}
    s_cmp_eq_u32 s3, 2
    s_cselect_b32 s80, s40, s80
    s_cselect_b32 s81, s41, s81
    s_cselect_b32 s82, {2048*1024*2}, s82
    s_cmp_eq_u32 s3, 3
    s_cselect_b32 s80, s88, s80
    s_cselect_b32 s81, s89, s81
    s_and_b32 s81, s81, 0xffff
    s_mov_b32 s83, 0x20000
    v_mov_b32 v3, {OOB}
    s_add_u32 s86, s67, 28
    s_cmp_ge_u32 s3, 2
    s_cbranch_scc1 L_t_x
    v_lshrrev_b32 v2, 4, v1
    v_lshlrev_b32 v2, 5, v2
    v_bfe_u32 v4, v1, 1, 3
    v_add_u32 v2, v2, v4
    s_lshl_b32 s26, s68, 3
    v_add_u32 v2, s26, v2
    s_mov_b32 s27, 7168
    v_mul_lo_u32 v2, v2, s27
    v_and_b32 v4, 1, v1
    v_lshl_add_u32 v2, v4, 7, v2
    s_lshl_b32 s26, s25, 8
    v_add_u32 v26, s26, v2
    v_cmp_gt_u32 vcc, 32, v1
    s_mov_b32 s84, 0
    s_mov_b32 s85, {2*32*7168}
    v_cndmask_b32 v27, v3, v26, vcc
    s_mov_b32 s87, {4*32*7168}
    s_mov_b32 s75, s85
    v_mov_b32 v42, v27
    v_mov_b32 v35, v3
    s_branch L_t_done
    L_t_x:
    s_cmp_eq_u32 s3, 3
    s_cbranch_scc1 L_t_wd
    s_mul_i32 s26, s69, 37
    s_lshl_b32 s27, s24, 8
    s_add_u32 s26, s26, s27
    v_add_u32 v2, s26, v1
    v_lshlrev_b32 v2, 11, v2
    v_cmp_gt_u32 vcc, {0 if opt.nox else 37}, v1
    s_mov_b32 s84, 0
    s_mov_b32 s85, 0
    v_cndmask_b32 v26, v3, v2, vcc
    s_mov_b32 s87, 128
    s_mov_b32 s75, 128
    v_mov_b32 v27, v3
    v_mov_b32 v42, v26
    v_mov_b32 v35, v3
    s_branch L_t_done
    L_t_wd:
    s_mul_i32 s27, s86, 49
    v_cmp_gt_u32 vcc, {0 if opt.xdft & 2 else 49}, v1
    s_lshl_b32 s28, s66, 6
    """)
    for k in range(3):
        a(f"""
        v_add_u32 v2, s27, v1
        v_add_u32 v2, {1372*k}, v2
        v_bfe_u32 v4, v2, 4, 3
        v_bfe_u32 v5, v2, 7, 2
        v_lshl_add_u32 v4, v5, 4, v4
        v_bfe_u32 v5, v2, 11, 1
        v_lshl_add_u32 v4, v5, 3, v4
        v_add_u32 v4, s28, v4
        v_bfe_u32 v5, v2, 9, 2
        v_and_b32 v6, 1, v5
        v_lshrrev_b32 v7, 1, v5
        v_xor_b32 v6, v6, v7
        v_sub_u32 v7, 0, v4
        v_cmp_eq_u32 s[62:63], 1, v6
        v_and_b32 v2, 15, v2
        v_lshlrev_b32 v2, 7, v2
        v_cndmask_b32 v4, v4, v7, s[62:63]
        v_lshlrev_b32 v6, 11, v5
        v_cmp_le_u32 s[62:63], 2, v5
        v_mov_b32 v7, 1024
        s_nop 0
        v_cndmask_b32 v6, v6, v7, s[62:63]
        v_add_u32 v4, v4, v6
        v_lshl_add_u32 v2, v4, 11, v2
        v_cndmask_b32 v{46+k}, v3, v2, vcc
        """)
        if k < opt.nf: a(f"buffer_load_dword v28, v{46+k}, s[4:7], 0 offen {opt.nt_fold}")
    a(f"""
    v_lshlrev_b32 v2, 7, v1
    v_cmp_gt_u32 vcc, 32, v1
    s_mul_i32 s84, s66, 28
    s_add_u32 s84, s84, s86
    s_lshl_b32 s84, s84, 12
    v_cndmask_b32 v27, v3, v2, vcc
    s_mov_b32 s85, {224*4096}
    s_mov_b32 s87, 0
    s_mov_b32 s75, 0
    v_mov_b32 v26, v3
    v_mov_b32 v42, v3
    L_t_done:
    """)
    stamp(a, 19)
    a(f"buffer_load_dword v28, v42, s[80:83], s84 offen {opt.nt_w}\n s_add_u32 s84, s84, s75")
    stamp(a, 20)
    a(f"""
    s_cmp_lt_u32 s66, 4
    s_cselect_b32 s36, s56, s58
    s_cselect_b32 s37, s57, s59
    s_cmp_eq_u32 s3, 2
    s_cselect_b32 s36, s52, s36
    s_cselect_b32 s37, s53, s37
    s_cmp_eq_u32 s3, 3
    s_cselect_b32 s36, s54, s36
    s_cselect_b32 s37, s55, s37
    s_and_b32 s37, s37, 0xffff
    s_mov_b32 s39, 0x20000
    s_and_b32 s28, s66, 3
    s_lshl_b32 s26, s28, 18
    s_lshl_b32 s28, s28, 8
    s_lshr_b32 s27, s66, 2
    s_add_u32 s28, s28, s27
    s_lshl_b32 s28, s28, 12
    s_cmp_eq_u32 s3, 1
    s_cselect_b32 s28, s26, s28
    s_cselect_b32 s26, 11, 13
    s_cselect_b32 s38, {1024*1024*2}, s82
    s_mul_i32 s27, s86, 37
    v_add_u32 v2, s27, v1
    v_lshrrev_b32 v4, 3, v2
    v_lshlrev_b32 v4, s26, v4
    v_and_b32 v2, 7, v2
    v_lshl_add_u32 v2, v2, 7, v4
    s_cmp_eq_u32 s3, 0
    s_cselect_b32 s27, 0, 37
    v_cmp_gt_u32 vcc, s27, v1
    v_mov_b32 v3, {OOB}
    s_nop 0
    v_cndmask_b32 v2, v3, v2, vcc
    v_add_u32 v34, s28, v2
    s_cmp_lg_u32 s3, 1
    s_cbranch_scc1 L_t_nm
    buffer_load_dword v28, v34, s[36:39], 0 offen {opt.nt_c}
    v_mov_b32 v34, v3
    L_t_nm:
    """)
    a("s_lshl_b32 s29, s24, 19\n s_lshl_b32 s26, s3, 16\n s_add_u32 s29, s29, s26")
    sh_voff(a, 8, 11, 29)
    a("""
    v_lshrrev_b32 v2, 4, v1
    s_and_b32 s26, s3, 1
    s_lshl_b32 s26, s26, 4
    v_add_u32 v3, s26, v2
    s_mov_b32 s27, 7168
    v_mul_lo_u32 v3, v3, s27
    s_lshl_b32 s26, s25, 8
    v_add_u32 v3, s26, v3
    v_lshlrev_b32 v2, 1, v2
    v_and_b32 v4, 15, v1
    v_xor_b32 v2, v2, v4
    v_lshl_add_u32 v12, v2, 4, v3
    v_xor_b32 v2, 8, v2
    v_lshl_add_u32 v14, v2, 4, v3
    """)
    a(f"v_add_u32 v13, {1*(4*7168-1024)}, v12\n v_add_u32 v15, {3*(4*7168-1024)}, v14\n v_add_u32 v14, {2*(4*7168-1024)}, v14")
    a(f"s_mov_b32 s16, 0\n s_mov_b32 s22, 65536\n s_mov_b32 s17, 0\n s_lshl_b32 s21, s3, 12\n s_add_u32 s21, s21, {WB}\n s_lshl_b32 s23, s3, 13")
    def dma_x(h): return [f"buffer_load_dwordx4 v{8+i}, s[4:7], s{(16, 22)[h]} offen offset:{i*1024} lds" for i in range(4)]
    def dma_w(): return [f"buffer_load_dwordx4 v{12+i}, s[8:11], s17 offen offset:{i*1024} lds" for i in range(4)]
    def px(s):
        a(f"s_add_u32 m0, s23, {s*XS}\n s_nop 0")
        for x in dma_x(0): a(x)
        a(f"s_add_u32 m0, s23, {s*XS+4096}\n s_add_u32 s16, s16, 128")
        for x in dma_x(1): a(x)
        a("s_add_u32 s22, s22, 128")
    def pw(s):
        a(f"s_add_u32 m0, s21, {s*WSL}\n s_nop 0")
        for x in dma_w(): a(x)
        a(f"s_add_u32 s17, s17, {32*7168}")
    if opt.tlb:
        a("v_lshlrev_b32 v40, 21, v1\n v_add_u32 v40, 0x100000, v40")
    else: a(f"v_mov_b32 v40, {OOB}")
    if opt.tlb2:
        a(f"""
        s_cmp_eq_u32 s3, 1
        s_cselect_b32 s76, s42, s48
        s_cselect_b32 s77, s43, s49
        s_cselect_b32 s78, {4 << 20}, {32 << 20}
        s_and_b32 s77, s77, 0xffff
        s_mov_b32 s79, 0x20000
        s_mov_b32 s26, {opt.HS}
        s_mov_b32 s27, {opt.HS - 128}
        s_cmp_eq_u32 s3, 1
        s_cselect_b32 s26, 65536, s26
        s_cselect_b32 s27, 0, s27
        s_cmp_eq_u32 s3, 2
        s_cselect_b32 s26, {16*XBS}, s26
        s_cselect_b32 s27, {WS_XB + 4096}, s27
        s_cmp_eq_u32 s3, 3
        s_cselect_b32 s26, {EGS}, s26
        s_cselect_b32 s27, {WS_Y + 520*64}, s27
        v_mul_lo_u32 v41, v1, s26
        v_add_u32 v41, s27, v41
        s_cbranch_scc0 L_tl_done
        v_cmp_lt_u32 vcc, 31, v1
        v_add_u32 v2, {YD - 32*EGS}, v41
        s_nop 0
        v_cndmask_b32 v41, v41, v2, vcc
        v_cmp_eq_u32 vcc, 63, v1
        v_mov_b32 v2, {WS_FL + 4096}
        s_nop 0
        v_cndmask_b32 v41, v41, v2, vcc
        L_tl_done:
        """.replace("s_cselect_b32 s78, 4194304, 33554432", "s_mov_b32 s78, 33554432\n s_cselect_b32 s78, 4194304, s78"))
    a(f"""
    s_lshr_b32 s26, s3, 1
    s_lshl_b32 s26, s26, 7
    v_and_b32 v2, 15, v1
    v_lshrrev_b32 v5, 1, v2
    v_add_u32 v2, s26, v2
    v_lshlrev_b32 v2, 7, v2
    v_lshrrev_b32 v3, 4, v1
    v_xor_b32 v5, v3, v5
    v_lshl_add_u32 v16, v5, 4, v2
    v_xor_b32 v5, 4, v5
    v_lshl_add_u32 v33, v5, 4, v2
    v_lshrrev_b32 v4, 2, v1
    v_and_b32 v4, 3, v4
    v_lshl_add_u32 v5, v3, 3, v4
    v_lshlrev_b32 v5, 8, v5
    v_add_u32 v5, {WB}, v5
    v_and_b32 v6, 3, v1
    v_lshl_add_u32 v5, v6, 3, v5
    v_and_b32 v6, 1, v3
    v_lshl_or_b32 v6, v6, 2, v4
    s_and_b32 s26, s3, 1
    s_lshl_b32 s26, s26, 2
    v_xor_b32 v6, s26, v6
    """)
    for mb in range(4):
        a(f"v_xor_b32 v7, {mb}, v6\n v_lshl_add_u32 v{17+mb}, v7, 5, v5")
    for i in range(5): a(f"v_mov_b32 v{21+i}, v{16+i}")
    def reads(st):
        def wr(mat, mb):
            b = FR(st, mat*4+mb)
            return [f"ds_read_b64_tr_b16 a[{b}:{b+1}], v{22+mb} offset:{mat*8192}",
                    f"ds_read_b64_tr_b16 a[{b+2}:{b+3}], v{22+mb} offset:{mat*8192+1024}"]
        def xr(nb):
            b = FR(st, 8+nb)
            return [f"ds_read_b128 a[{b}:{b+3}], v21 offset:{nb*2048}"]
        r = []
        for i in range(8): r += wr(i & 1, i >> 1) + xr(i)
        return r
    def mf(st):
        m = []
        od = [(nb if (mb*2+mat) % 2 == 0 else 7-nb, mb, mat) for mb in range(4) for mat in range(2) for nb in range(8)]
        for nb, mb, mat in od:
            c = f"v[{ACCG(mb,nb)}:{ACCG(mb,nb)+3}]" if mat == 0 else f"a[{ACCU(mb,nb)}:{ACCU(mb,nb)+3}]"
            fa = FR(st, mat*4+mb); fb_ = FR(st, 8+nb)
            if opt.pw & 1: fa, fb_ = fb_, fa
            x = f"{MF} {c}, a[{fa}:{fa+3}], a[{fb_}:{fb_+3}], {c}"
            if opt.pw & 2:
                c2 = c.replace('v[', 'a[')
                x = f"{MF} {c2}, v[{fa}:{fa+3}], v[{fb_}:{fb_+3}], {c2}"
            m.append(x)
        return m
    if opt.pw & 2:
        reads0 = reads
        reads = lambda st: [x.replace(' a[', ' v[') for x in reads0(st)]
    for i in range(4): a(f"v_mov_b32 v{36+i}, 0")
    a("s_nop 1")
    for i in range(8): a(f"v_mfma_f32_32x32x16_bf16 v[{128+16*i}:{143+16*i}], v[36:39], v[36:39], 0\n v_mfma_f32_32x32x16_bf16 a[{16*i}:{15+16*i}], v[36:39], v[36:39], 0")
    def preblk():
        a(f"""
    s_lshl_b32 s86, s24, 3
    s_lshr_b32 s31, s3, 1
    s_lshl_b32 s31, s31, 2
    s_add_u32 s86, s86, s31
    s_lshl_b32 s68, s86, 11
    s_mul_i32 s86, s86, {opt.HS}
    s_lshl_b32 s31, s25, 13
    s_add_u32 s86, s86, s31
    s_and_b32 s31, s3, 1
    s_lshl_b32 s31, s31, 12
    s_add_u32 s86, s86, s31
    s_lshl_b32 s31, s25, 1
    s_and_b32 s26, s3, 1
    s_add_u32 s31, s31, s26
    s_lshl_b32 s31, s31, 7
    s_add_u32 s68, s68, s31
    s_add_u32 s68, s68, {WS_FL+65536}
    """)
        g2_pre(a, False)
    if opt.prepos == 0: preblk()
    stamp(a, 21)
    pw(0)
    if opt.prepos == 3: preblk()
    a("s_add_u32 m0, s23, 0\n s_nop 0")
    for x in dma_x(0): a(x)
    if opt.prepos == 1: preblk()
    a("s_add_u32 m0, s23, 4096\n s_add_u32 s16, s16, 128")
    for x in dma_x(1): a(x)
    a("s_add_u32 s22, s22, 128")
    pw(1)
    if opt.nf < 3:
        a("s_cmp_lg_u32 s3, 3\n s_cbranch_scc1 L_nf")
        for k in range(opt.nf, 3): a(f"buffer_load_dword v28, v{46+k}, s[4:7], 0 offen")
        a("L_nf:")
    stamp(a, 22)
    if opt.prepos == 2: preblk()
    stamp(a, 1)
    a(f"s_waitcnt vmcnt(4) lgkmcnt(0)\n s_barrier")
    for x in reads(0): a(x)
    nonce(a)
    a(f"s_lshl_b32 s26, s2, 7\n s_add_u32 s26, s26, {WS_FL+393216}\n s_cmp_eq_u32 s3, 0\n s_cselect_b32 s26, s26, {OOB}\n v_and_b32 v43, 15, v1\n v_lshl_add_u32 v43, v43, 3, s26\n v_mov_b32 v44, s98\n v_mov_b32 v45, s99")
    a(f"s_mov_b32 s19, 0\n s_mov_b32 s20, {XS}\n s_mov_b32 s18, 0\n s_mov_b32 s28, {WSL}\n s_mov_b32 s29, 0")
    a("v_mov_b32 v21, v33")
    for i in range(4): a(f"v_add_u32 v{22+i}, s28, v{17+i}")
    a(f"s_mov_b32 s72, {32*7168}\n s_mov_b32 s73, 128\n s_mov_b32 s74, 65536")
    stamp(a, 2)
    for st in (2, 0, 1):
        peel = st == 2
        if peel: st = 0
        if not peel and st == 0: a(".p2align 6\nL_g1_loop:")
        if st == 1: a("L_g1_mid:")
        f = {-1: ["s_waitcnt lgkmcnt(0)"]}
        if opt.trace: f[-1] = trace_ops("s18")
        f[0] = [f"s_waitcnt vmcnt({0 if peel else (24, 12)[st]})", "s_barrier"]
        if peel:
            A = Asm(); save = a
            def cap(fn, *args):
                n0 = len(a.l); fn(*args); out = [x.strip() for x in a.l[n0:]]; del a.l[n0:]; return out
            T2 = [f"buffer_load_dword v28, v26, s[80:83], s84 offen {opt.nt_w}", "s_add_u32 s84, s84, s87"]
            T1 = ["buffer_load_dword v28, v42, s[80:83], s84 offen", "s_add_u32 s84, s84, s75"]
            ops = (T2 if opt.r2 == 1 else T1 if opt.r2 == 2 else []) + cap(pw, 2) + (T1 if opt.r2 == 2 and opt.r2b else []) + cap(px, 1) + cap(pw, 3) + (T2 if opt.r3 == 1 else ["buffer_load_dword v28, v42, s[80:83], s84 offen", "s_add_u32 s84, s84, s75"] if opt.r3 == 2 else []) + ["buffer_load_dword v28, v40, s[80:83], 0 offen"] + cap(px, 2) + ["buffer_store_dwordx2 v[44:45], v43, s[12:15], 0 offen sc1"]
            g = 2
            for x in ops:
                if x == 's_nop 0': continue
                f.setdefault(g-1 if 'm0' in x else g, []).append(x)
                if x.startswith('buffer'): g += 2
            assert g <= 63, g
            if opt.stamp: f.setdefault(63, []).extend(["s_memrealtime s[92:93]", "s_waitcnt lgkmcnt(0)", "v_writelane_b32 v31, s92, 41"])
            f.setdefault(63, []).append("s_branch L_g1_mid")
        rd = reads(st ^ 1)
        for i, x in enumerate(rd): f.setdefault(1 + 2*i, []).append(x)
        f.setdefault(2, []).append(f"s_add_u32 s28, s28, {WSL}")
        f.setdefault(4, []).append(f"s_and_b32 s28, s28, {4*WSL-1}")
        f.setdefault(6, []).append("s_add_u32 s18, s18, 1")
        for i in range(4): f.setdefault(50+2*i, []).append(f"v_add_u32 v{22+i}, s28, v{17+i}")
        if st == 0:
            f.setdefault(58, []).append("v_add_u32 v21, s20, v16")
        else:
            f.setdefault(58, []).append("v_add_u32 v21, s19, v33")
            dq = dma_w() + dma_w() + dma_x(0) + dma_x(1)
            dp = opt.dp if hasattr(opt, 'dp') else [2 + 4*i - (i > 11)*(i-11) for i in range(16)]
            f[0].append("s_add_u32 m0, s21, s29")
            for i, x in enumerate(dq): f.setdefault(dp[i], []).append(x)
            f[dp[3]] += [f"s_add_u32 m0, m0, {WSL}", "s_add_u32 s17, s17, s72"]
            f[dp[7]] += ["s_add_u32 m0, s23, s19", "s_add_u32 s17, s17, s72"]
            f[dp[8]] += [f"s_xor_b32 s29, s29, {2*WSL}"]
            f[dp[9]] += ["s_mov_b32 s19, s20"]
            f[dp[10]] += [f"s_add_u32 s20, s20, {XS}", f"s_cmp_eq_u32 s20, {3*XS}"]
            f[dp[11]] += ["s_cselect_b32 s20, 0, s20", "s_add_u32 m0, m0, 4096"]
            f[dp[12]] += ["s_add_u32 s16, s16, s73"]
            f[dp[15]] += ["s_cmp_ge_u32 s18, 26", "s_cbranch_scc1 L_g1_sw", "L_g1_swd:", "s_add_u32 s22, s16, s74"]
            f.setdefault(62, []).extend([f"buffer_load_dword v28, v27, s[80:83], s84 offen {opt.tflags}", "s_add_u32 s84, s84, s85"])
            f[62] += ["s_cmp_lg_u32 s18, 4", "s_cbranch_scc1 L_g1_noseq", "buffer_load_dword v28, v34, s[36:39], 0 offen"] + (["buffer_load_dword v28, v41, s[76:79], 0 offen"] if opt.tlb2 else []) + ["L_g1_noseq:"]
            f.setdefault(63, []).extend(["s_cmp_lt_u32 s18, 32", "s_cbranch_scc1 L_g1_loop"])
        interleave(a, mf(st), f)
    a("s_branch L_g1_done")
    a("L_g1_sw:\n s_cmp_eq_u32 s18, 26\n s_cbranch_scc0 L_g1_sw2\n s_mov_b64 s[4:5], s[32:33]\n s_mov_b32 s6, s34")
    for i in range(4): a(f"v_mov_b32 v{8+i}, v{V_WX+i}")
    a(f"s_mov_b32 s16, s41\n s_mov_b32 s74, {16*2048}\n s_branch L_g1_swd")
    a("L_g1_sw2:\n s_cmp_eq_u32 s18, 28\n s_cselect_b32 s16, s42, s40\n s_branch L_g1_swd")
    a("L_g1_done:")
    stamp(a, 3)
    if opt.xdft: a("s_branch L_end")
    c0 = -2*math.sqrt(2/math.pi)*math.log2(math.e); c1 = c0*0.044715
    a(f"s_mov_b32 s26, {fbits(c0)}\n s_mov_b32 s28, {fbits(c1)}\n s_mov_b32 s29, {fbits(c1)}")
    a("v_mov_b32 v24, s26\n v_mov_b32 v25, s26\n v_mov_b32 v2, 0\n v_mov_b32 v3, 0\n v_mov_b32 v4, 0\n v_mov_b32 v5, 0\n s_waitcnt lgkmcnt(0)")
    a(f"s_lshr_b32 s27, s3, 1\n s_lshl_b32 s27, s27, 15\n s_and_b32 s26, s3, 1\n s_lshl_b32 s26, s26, 12\n s_add_u32 s26, s26, s27\n s_add_u32 s26, s26, {OWNL}\n v_add_u32 v29, s26, v{V_L16}")
    for nb in range(8):
        g0 = ACCG(0, nb); u0 = ACCU(0, nb)
        U = 32 + (nb % 2)*32; Z = U+16; O = g0
        for i in range(16): a(f"v_accvgpr_read_b32 v{U+i}, a{u0+i}")
        for i in range(0, 16, 2): a(f"v_pk_mul_f32 v[{Z+i}:{Z+i+1}], v[{g0+i}:{g0+i+1}], v[{g0+i}:{g0+i+1}]")
        for i in range(0, 16, 2): a(f"v_pk_fma_f32 v[{Z+i}:{Z+i+1}], v[{Z+i}:{Z+i+1}], s[28:29], v[24:25]")
        for i in range(0, 16, 2): a(f"v_pk_mul_f32 v[{Z+i}:{Z+i+1}], v[{Z+i}:{Z+i+1}], v[{g0+i}:{g0+i+1}]")
        for i in range(16): a(f"v_exp_f32 v{Z+i}, v{Z+i}")
        for i in range(0, 16, 2): a(f"v_pk_mul_f32 v[{U+i}:{U+i+1}], v[{U+i}:{U+i+1}], v[{g0+i}:{g0+i+1}]")
        for i in range(0, 16, 2): a(f"v_pk_add_f32 v[{Z+i}:{Z+i+1}], v[{Z+i}:{Z+i+1}], 1.0 op_sel_hi:[1,0]")
        for i in range(16): a(f"v_rcp_f32 v{Z+i}, v{Z+i}")
        a("s_nop 0")
        for i in range(0, 16, 2): a(f"v_pk_mul_f32 v[{U+i}:{U+i+1}], v[{U+i}:{U+i+1}], v[{Z+i}:{Z+i+1}]")
        for i in range(0, 16, 2): a(f"v_cvt_pk_bf16_f32 v{O+i//2}, v{U+i}, v{U+i+1}")
        for p in range(2):
            off = (nb >> 1)*opt.HS + (p*2 + (nb & 1))*1024
            a(f"s_add_u32 s31, s86, {off}")
            a(f"buffer_store_dwordx4 v[{O+4*p}:{O+4*p+3}], v{V_L16}, s[12:15], s31 offen {opt.hflags}")
        if nb == 0: a("s_waitcnt vmcnt(2)\n s_barrier")
        a(f"ds_write_b128 v29, v[{O}:{O+3}] offset:{(nb >> 1)*8192 + (nb & 1)*1024}\n ds_write_b128 v29, v[{O+4}:{O+7}] offset:{(nb >> 1)*8192 + (nb & 1)*1024 + 2048}")
        if nb == 3: g2_zero(a, 2, 0, 4)
        if nb == 6: g2_zero(a, 2, 4, 7)
    stamp(a, 4)
    g2_zero(a, 2, 7, 8)
    a(f"s_lshl_b32 s26, s3, 14\n s_lshr_b32 s27, s96, 1\n s_lshl_b32 s27, s27, 13\n s_add_u32 s26, s26, {OWNL}\n s_add_u32 s27, s27, s26\n v_add_u32 v29, s27, v{V_L16}\n v_xor_b32 v10, 8192, v29\n s_waitcnt lgkmcnt(0)\n s_barrier")
    for st in range(4):
        for nb in range(4): a(f"ds_read_b128 v[{128+16*st+4*nb}:{131+16*st+4*nb}], v{(29, 10)[nb >> 1]} offset:{st*2048 + (nb & 1)*1024}")
    stamp(a, 5)

RAW = 64; GT = 192; EU = 208; SV = 216
def fold_loads(a, vm):
    a("""
    s_lshl_b32 s26, s66, 2
    s_add_u32 s26, s26, s67
    s_lshl_b32 s26, s26, 4
    v_lshrrev_b32 v40, 3, v1
    v_add_u32 v40, s26, v40
    v_cmp_eq_u32 s[62:63], 0, v40
    v_and_b32 v2, 7, v1
    v_cmp_eq_u32 s[70:71], 0, v2
    v_add_u32 v44, 8, v40
    v_lshlrev_b32 v2, 4, v2
    s_lshl_b32 s26, s3, 8
    v_add_u32 v2, s26, v2
    v_sub_u32 v3, 1904, v2
    v_sub_u32 v41, 2048, v40
    v_sub_u32 v42, 1024, v40
    v_add_u32 v43, 1024, v40
    v_sub_u32 v45, 2048, v44
    v_sub_u32 v46, 1024, v44
    v_add_u32 v47, 1024, v44
    v_mov_b32 v4, 512
    v_mov_b32 v5, 1536
    v_cndmask_b32 v41, v41, v4, s[62:63]
    v_cndmask_b32 v43, v43, v5, s[62:63]
    s_sub_u32 s74, 2048, s26
    """)
    for k in range(8): a(f"v_lshl_add_u32 v{224+8*(k>>2)+(k&3)}, v{40+k}, 11, v2\n v_lshl_add_u32 v{228+8*(k>>2)+(k&3)}, v{40+k}, 11, v3")
    for gi in range(2):
        a(f"buffer_load_dwordx4 v[{GT+8*gi}:{GT+8*gi+3}], v2, s[32:35], 0 offen offset:{gi*128}")
        a(f"buffer_load_dwordx4 v[{GT+8*gi+4}:{GT+8*gi+7}], v3, s[32:35], 0 offen offset:{(1-gi)*128}")
        vm.add('g', 2)
def fold_round_loads(a, vm, rnd):
    if True:
        hf, gi = rnd >> 1, rnd & 1
        b = RAW + 32*rnd
        for i in range(4):
            a(f"buffer_load_dwordx4 v[{b+8*i}:{b+8*i+3}], v{224+8*hf+i}, s[4:7], 0 offen offset:{gi*128}")
            a(f"buffer_load_dwordx4 v[{b+8*i+4}:{b+8*i+7}], v{228+8*hf+i}, s[4:7], 0 offen offset:{(1-gi)*128}")
        if gi == 0:
            for i in range(4):
                a(f"v_lshlrev_b32 v4, 11, v{40+4*hf+i}\n buffer_load_ushort v{EU+4*hf+i}, v4, s[4:7], s74 offen")
            vm.add(f'r{rnd}', 12)
        else: vm.add(f'r{rnd}', 8)
def fold_compute(a, vm, between):
    LP = 8; UU = 16
    a(f"v_mov_b32 v24, {ALT}")
    for r in range(8, 24): a(f"v_mov_b32 v{r}, 0")
    a(f"""
    s_lshl_b32 s26, s66, 2
    s_add_u32 s26, s26, s67
    s_lshr_b32 s27, s26, 2
    s_lshl_b32 s27, s27, 16
    s_and_b32 s26, s26, 3
    s_lshl_b32 s26, s26, 10
    s_add_u32 s26, s26, s27
    s_lshl_b32 s27, s3, 14
    s_add_u32 s26, s26, s27
    s_add_u32 s22, s26, {WS_Z}
    v_bfe_u32 v2, v1, 2, 1
    v_lshlrev_b32 v25, 12, v2
    v_and_b32 v2, 3, v1
    v_lshl_add_u32 v25, v2, 8, v25
    v_lshrrev_b32 v2, 3, v1
    v_lshl_add_u32 v25, v2, 4, v25
    s_cmp_eq_u32 s3, 0
    s_cselect_b64 s[72:73], s[70:71], 0
    """)
    T = 240
    for rnd in range(4):
        hf, gi = rnd >> 1, rnd & 1
        b = RAW + 32*rnd; g = GT + 8*gi
        S = [224, RAW+96 if rnd < 2 else RAW+8, 48, 56]
        vm.wait(a, f'r{rnd}')
        if rnd in (0, 1): stamp(a, 19+2*rnd)
        for j in range(4):
            for i in range(4):
                a(f"v_dot2_f32_bf16 v{LP+4*hf+i}, v{b+8*i+j}, v{g+j}, v{LP+4*hf+i}")
            for i in range(4):
                a(f"v_dot2_f32_bf16 v{LP+4*hf+i}, v{b+8*i+4+j}, v{g+4+j}, v{LP+4*hf+i}")
        if hf == 0:
            for i in (1, 3):
                for j in range(8): a(f"v_cndmask_b32 v{b+8*i+j}, v{b+8*i+j}, 0, s[62:63]")
                if gi == 0: a(f"v_cndmask_b32 v{EU+i}, v{EU+i}, 0, s[62:63]")
        if gi == 0:
            for i in range(4): a(f"v_cndmask_b32 v{EU+4*hf+i}, v{EU+4*hf+i}, 0, s[72:73]")
            for i in range(4): a(f"v_mov_b32 v{SV+i}, v{b+8*i+4}")
        else:
            for i in range(4): a(f"v_mov_b32_dpp v{EU+4*hf+i}, v{SV+i} row_shl:7 row_mask:0xf bank_mask:0xf")
            for i in range(4): a(f"v_lshlrev_b32 v{2+i}, 16, v{b+8*i+4}")
            a(f"v_add_f32 v2, v2, v3\n v_add_f32 v4, v4, v5\n v_add_f32 v{26+2*hf}, v2, v4\n v_sub_f32 v{27+2*hf}, v2, v4")
        for i in range(4): a(f"v_mov_b32_dpp v{SV+4+i}, v{b+8*i+4} row_shr:1 row_mask:0xf bank_mask:0xf")
        for i in range(4): a(f"v_cndmask_b32 v{SV+4+i}, v{SV+4+i}, v{EU+4*hf+i}, s[70:71]")
        for i in range(4):
            for j in range(8): a(unp(T+j, b+8*i, j))
            a(f"v_lshlrev_b32 v{T+8}, 16, v{SV+4+i}")
            for j in range(1, 8): a(unp(T+8+j, b+8*i+4, 8-j))
            for j in range(0, 8, 2):
                a(pk('', S[i]+j, T+j, T+8+j))
                a(pk('', b+8*i+j, T+j, T+8+j, neg=True))
        for j in range(0, 8, 2):
            a(pk('', S[0]+j, S[0]+j, S[1]+j)); a(pk('', S[2]+j, S[2]+j, S[3]+j))
            a(pk('', b+j, b+j, b+8+j, neg=True)); a(pk('', b+16+j, b+16+j, b+24+j, neg=True))
        for j in range(0, 8, 2):
            a(pk('', S[1]+j, S[0]+j, S[2]+j)); a(pk('', S[3]+j, S[0]+j, S[2]+j, neg=True))
            a(pk('', b+8+j, b+j, b+16+j, neg=True)); a(pk('', b+24+j, b+j, b+16+j))
        for j in range(0, 8, 2):
            a(pk('', UU+4*hf, UU+4*hf, S[1]+j)); a(pk('', UU+4*hf+2, UU+4*hf+2, S[3]+j))
        for cls, src in enumerate((S[1], S[3], b+8, b+24)):
            o = b + 4*(cls & 1) + 16*(cls >> 1)
            for j in range(4): a(f"v_cvt_pk_bf16_f32 v{o+j}, v{src+2*j}, v{src+2*j+1}")
            a(f"s_add_u32 s26, s22, {cls*524288 + gi*8192 + hf*128}")
            a(f"buffer_store_dwordx4 v[{o}:{o+3}], v25, s[12:15], s26 offen sc1")
            vm.add('st')
        if rnd in (0, 1): stamp(a, 20+2*rnd)
        between(rnd)
    a("""
    s_cmp_eq_u32 s3, 3
    s_cselect_b32 s26, 0x80808080, 0
    s_mov_b32 s27, s26
    v_sub_f32 v16, v16, v17
    v_sub_f32 v17, v18, v19
    v_sub_f32 v18, v20, v21
    v_sub_f32 v19, v22, v23
    """)
    for k in range(4): a(f"v_cndmask_b32 v{20+k}, 0, v{26+k}, s[26:27]")
    for k in range(4): a(f"v_add_f32 v{16+k}, v{16+k}, v{20+k}")
    a("s_nop 0")
    for ctl in ("quad_perm:[1,0,3,2]", "quad_perm:[2,3,0,1]", "row_half_mirror"):
        for r in range(8, 20): a(f"v_add_f32_dpp v{r}, v{r}, v{r} {ctl} row_mask:0xf bank_mask:0xf")
    a(f"""
    s_lshl_b32 s26, s3, 2
    s_lshl_b32 s27, s3, 11
    s_add_u32 s27, s27, {WS_UP}
    s_mov_b32 s28, {WS_CV}
    s_add_u32 s29, s27, 8192
    """)
    for k in range(8): a(f"v_lshl_add_u32 v{68+k}, v{40+k}, 4, s26")
    a(f"v_lshlrev_b32 v76, 2, v40\n s_mov_b32 s26, {WS_LP}\n s_mov_b64 exec, s[70:71]")
    for k in range(8): a(f"buffer_store_dword v{8+k}, v{68+k}, s[12:15], s26 offen sc1")
    for hf in range(2):
        a(f"buffer_store_dword v{16+2*hf}, v76, s[12:15], s27 offen offset:{32*hf} sc1\n buffer_store_dword v{17+2*hf}, v76, s[12:15], s29 offen offset:{32*hf} sc1")
    a(f"""
    s_mov_b64 exec, -1
    s_cmp_lg_u32 s3, 3
    s_cbranch_scc1 L_fc2
    s_mov_b32 exec_lo, 0x80808080
    s_mov_b32 exec_hi, 0x80808080
    buffer_store_dword v26, v76, s[12:15], s28 offen sc1
    buffer_store_dword v27, v76, s[12:15], s28 offen offset:2048 sc1
    buffer_store_dword v28, v76, s[12:15], s28 offen offset:32 sc1
    buffer_store_dword v29, v76, s[12:15], s28 offen offset:2080 sc1
    s_mov_b64 exec, -1
    L_fc2:
    """)

def sh_voff(a, vb, rs_shift, srow):
    a(f"""
    v_lshrrev_b32 v2, 3, v1
    s_lshl_b32 s26, s3, 5
    v_add_u32 v2, s26, v2
    v_lshlrev_b32 v2, {rs_shift}, v2
    v_add_u32 v2, s{srow}, v2
    v_lshrrev_b32 v3, 4, v1
    v_and_b32 v4, 7, v1
    v_xor_b32 v3, v3, v4
    v_lshl_add_u32 v{vb}, v3, 4, v2
    v_xor_b32 v3, 4, v3
    v_lshl_add_u32 v{vb+1}, v3, 4, v2
    v_add_u32 v{vb+2}, {2*((8<<rs_shift)-1024)}, v{vb}
    v_add_u32 v{vb+3}, {3*((8<<rs_shift)-1024)}, v{vb+1}
    v_add_u32 v{vb+1}, {((8<<rs_shift)-1024)}, v{vb+1}
    """)
def sh_touch(a, sr, rs_shift, srow):
    a(f"""
    s_lshl_b32 s26, s67, 5
    s_lshl_b32 s27, s3, 3
    s_add_u32 s26, s26, s27
    v_lshrrev_b32 v2, 3, v1
    v_add_u32 v2, s26, v2
    v_lshlrev_b32 v2, {rs_shift}, v2
    v_and_b32 v3, 7, v1
    v_lshl_add_u32 v2, v3, 7, v2
    buffer_load_dword a255, v2, s[{sr}:{sr+3}], s{srow} offen
    """)
def sh_dma(vb, sr): return [f"buffer_load_dwordx4 v{vb+i}, s[{sr}:{sr+3}], s17 offen offset:{i*1024} lds" for i in range(4)]

def dloop(a, name, nm, accb, dma, extra=False, first=True, init=None, D=8, inc=128, mid=None):
    PB = 128; SF = 64
    def pl(i, off): return f"buffer_load_dwordx4 v[{PB+4*i}:{PB+4*i+3}], v12, s[32:35], s16 offen offset:{off} sc1"
    def sreads(st, ks): return [f"ds_read_b128 v[{SF+st*32+4*nb}:{SF+st*32+4*nb+3}], v{18+ks} offset:{nb*2048}" for nb in range(8)]
    if first:
        a("s_mov_b32 s16, 0")
        for t in range(D):
            for i in range(nm): a(pl(t*nm+i, i*1024))
            a(f"s_add_u32 s16, s16, {nm*1024}")
        a("v_mov_b32 v18, v16\n v_mov_b32 v19, v17")
        for x in sreads(0, 0): a(x)
        a(f"s_mov_b32 s19, 0\n s_mov_b32 s20, {SLOT3}\n ")
        init()
    a(f"s_mov_b32 s18, 0\n s_mov_b32 s17, 0")
    a(f".p2align 6\nL_{name}_loop:")
    NM = 8*nm
    if mid: mid()
    for t in range(8):
        ks = t & 1
        ms = []
        for mb in range(nm):
            for nb in range(8):
                c = accb + (nb*nm+mb)*4; pa = PB + ((t % D)*nm+mb)*4; sb = SF + ks*32 + nb*4
                ms.append(f"{MF} a[{c}:{c+3}], v[{pa}:{pa+3}], v[{sb}:{sb+3}], a[{c}:{c+3}]")
        f = {-1: [f"s_waitcnt vmcnt({(D-1)*nm}) lgkmcnt(0)"]}
        if extra:
            L = f"L_{name}_x{t}"
            f[-1] += ["s_cmp_eq_u32 s31, 0", f"s_cbranch_scc1 {L}"] + \
                     [f"{MF} a[{128+4*mb}:{131+4*mb}], v[{PB+(t*nm+mb)*4}:{PB+(t*nm+mb)*4+3}], v[24:27], a[{128+4*mb}:{131+4*mb}]" for mb in range(nm)] + [f"{L}:"]
        if ks == 1:
            f[0] = ["s_barrier", "v_add_u32 v18, s20, v16"]
            rd = sreads(0, 0)
        else:
            rd = sreads(1, 1)
        sp = NM // 16
        for k, x in enumerate(rd): f.setdefault(1+sp*k, []).append(x)
        for mb in range(nm): f.setdefault(8*mb+7, []).append(pl((t % D)*nm+mb, mb*1024))
        f[NM-1].append(f"s_add_u32 s16, s16, {nm*1024}")
        if ks == 1:
            if dma:
                f.setdefault(1, []).append("s_add_u32 m0, s21, s19")
                for k, x in enumerate(sh_dma(*dma)): f.setdefault(2+(NM//5)*k, []).append(x)
                f.setdefault(NM-3, []).append(f"s_add_u32 s17, s17, {inc}")
            f.setdefault(NM//2+1, []).append("v_add_u32 v19, s20, v17")
            f.setdefault(NM-3, []).extend(["s_mov_b32 s19, s20", f"s_add_u32 s20, s20, {SLOT3}"])
            f.setdefault(NM-2, []).append(f"s_and_b32 s20, s20, {R3*SLOT3-1}")
        interleave(a, ms, f)
    a(f"s_add_u32 s18, s18, 1\n s_cmp_lt_u32 s18, 2\n s_cbranch_scc1 L_{name}_loop")

def tile_vec(a, vec):
    a("""
    s_lshl_b32 s26, s67, 5
    s_lshl_b32 s27, s3, 3
    s_add_u32 s26, s26, s27
    s_lshl_b32 s27, s26, 7
    v_lshrrev_b32 v2, 3, v1
    v_lshlrev_b32 v2, 14, v2
    v_add_u32 v2, s27, v2
    s_lshr_b32 s26, s26, 1
    v_and_b32 v3, 7, v1
    v_xor_b32 v3, s26, v3
    v_and_b32 v3, 7, v3
    """)
    for i in range(8):
        a(f"v_xor_b32 v4, {i>>1}, v3\n v_lshl_add_u32 v4, v4, 4, v2\n ds_read_b128 v[{96+4*i}:{99+4*i}], v4 offset:{i*128}")
    for i in range(8): a(f"v_mov_b32 v{40+i}, 0")
    a("s_waitcnt lgkmcnt(0)")
    for j in range(4):
        for i in range(8): a(f"v_dot2_f32_bf16 v{40+i}, v{96+4*i+j}, v{vec+j}, v{40+i}")
    a("s_nop 2")
    reduce_lanes(a, list(range(40, 48)), 48, ['ror1', 'ror2', 'ror4', 'ror8', 'p16', 'p32'])
    for i in range(1, 8): a(f"v_cmp_eq_u32 vcc, {i}, v1\n s_nop 1\n v_cndmask_b32 v40, v40, v{40+i}, vcc")

def acc_load(a, nm, vb, svec, wshift, off=0):
    a(f"v_lshrrev_b32 v2, 4, v1\n v_lshlrev_b32 v2, 4, v2\n s_lshl_b32 s26, s3, {wshift}\n v_add_u32 v2, s26, v2")
    for mb in range(nm): a(f"buffer_load_dwordx4 v[{vb+4*mb}:{vb+3+4*mb}], v2, s[12:15], s{svec} offen offset:{off+mb*64} sc1")
def acc_init(a, nm, vb, accb, sscale, withx=False):
    a(f"v_lshlrev_b32 v3, 31, v1")
    for i in range(4*nm): a(f"v_mul_f32 v{vb+i}, s{sscale}, v{vb+i}")
    if withx:
        for i in range(4*nm): a(f"v_accvgpr_write_b32 a{128+i}, v{vb+i}")
    for i in range(4*nm): a(f"v_xor_b32 v{vb+i}, v3, v{vb+i}")
    for nb in range(8):
        for i in range(4*nm): a(f"v_accvgpr_write_b32 a{accb+nb*4*nm+i}, v{vb+i}")

def dft(a):
    vm = VM()
    srd(a, 32, 60, 2048)
    a("""
    v_lshlrev_b32 v2, 4, v1
    v_sub_u32 v3, 2032, v2
    s_mov_b32 s26, 0x100000
    s_mov_b32 s27, 0x300000
    buffer_load_dwordx4 v[128:131], v2, s[4:7], s26 offen
    buffer_load_dwordx4 v[132:135], v3, s[4:7], s26 offen
    buffer_load_dwordx4 v[140:143], v2, s[4:7], s27 offen
    buffer_load_dwordx4 v[144:147], v3, s[4:7], s27 offen
    """); vm.add('z', 4)
    fold_loads(a, vm)
    fold_round_loads(a, vm, 0); fold_round_loads(a, vm, 1)
    a("s_lshr_b32 s30, s66, 2\n s_cmp_eq_u32 s30, 0\n s_cselect_b32 s26, s56, s58\n s_cselect_b32 s27, s57, s59")
    srd(a, 8, 26, 1024*1024*2)
    a("s_and_b32 s25, s66, 3\n s_lshl_b32 s25, s25, 18\n s_lshl_b32 s21, s3, 12")
    sh_voff(a, 32, 11, 25)
    srd(a, 36, 52, 2048*2048*2)
    srd(a, 80, 54, 2048*2048*2)
    a("s_and_b32 s24, s66, 3\n s_lshl_b32 s24, s24, 8\n s_add_u32 s24, s24, s30\n s_lshl_b32 s24, s24, 12")
    a("s_waitcnt lgkmcnt(0)\n s_mov_b32 s17, 0")
    nonce(a)
    started(a)
    stamp(a, 9)
    vm.wait(a, 'z')
    a("v_mov_b32 v136, 0\n v_mov_b32 v148, 0\n s_cmp_eq_u32 s30, 0\n s_cselect_b32 s26, 1.0, -1.0")
    a("v_mov_b32_dpp v136, v132 wave_shr:1 row_mask:0xf bank_mask:0xf\n v_mov_b32_dpp v148, v144 wave_shr:1 row_mask:0xf bank_mask:0xf")
    for k, b in enumerate((128, 140)):
        for j in range(8): a(unp(160+16*k+j, b, j))
        a(f"v_lshlrev_b32 v{168+16*k}, 16, v{b+8}")
        for j in range(1, 8): a(unp(168+16*k+j, b+4, 8-j))
    for j in range(16): a(f"v_fma_f32 v{160+j}, v{176+j}, s26, v{160+j}")
    for j in range(8): a(f"v_fma_f32 v{160+j}, v{168+j}, s26, v{160+j}")
    for j in range(4): a(f"v_cvt_pk_bf16_f32 v{36+j}, v{160+2*j}, v{161+2*j}")
    a("v_lshlrev_b32 v2, 16, v132\n v_lshlrev_b32 v3, 16, v144\n v_add_f32 v2, v2, v3\n s_nop 0\n v_readlane_b32 s75, v2, 63\n s_cselect_b32 s75, s75, 0")
    a(pk('', 160, 160, 162)); a(pk('', 164, 164, 166)); a(pk('', 160, 160, 164)); a("v_sub_f32 v160, v160, v161")
    reduce_lanes(a, [160], 176, ['ror1', 'ror2', 'ror4', 'ror8', 'p16', 'p32'])
    a("v_add_f32 v160, s75, v160\n s_nop 0\n v_readfirstlane_b32 s97, v160")
    def between(rnd):
        if rnd < 2: fold_round_loads(a, vm, rnd+2)
        for s in ((0, 1, 2), (3, 4, 5), (6, 7), ())[rnd]:
            a(f"s_add_u32 m0, s21, {s*SLOT3}\n s_nop 0")
            for x in sh_dma(32, 8): a(x)
            a("s_add_u32 s17, s17, 128")
            vm.add('pf', 4)
    fold_compute(a, vm, between)
    stamp(a, 1)
    a(f"s_lshl_b32 s23, s66, 2\n s_add_u32 s23, s23, s67\n s_lshl_b32 s23, s23, 7\n s_add_u32 s23, s23, {WS_FL+16384}")
    publish(a, 's23')
    for i in range(4): a(f"v_mov_b32 v{56+i}, 0")
    tile_vec(a, 36)
    for i in range(8): a(f"v_mfma_f32_32x32x16_bf16 a[{16*i}:{15+16*i}], v[56:59], v[56:59], 0")
    a(f"""
    v_lshlrev_b32 v2, 31, v1
    v_xor_b32 v2, s75, v2
    v_add_f32 v40, v40, v2
    s_lshl_b32 s26, s66, 7
    s_lshl_b32 s27, s67, 5
    s_add_u32 s26, s26, s27
    s_lshl_b32 s27, s3, 3
    s_add_u32 s26, s26, s27
    s_lshl_b32 s26, s26, 2
    s_add_u32 s26, s26, {WS_RV}
    v_lshlrev_b32 v2, 2, v1
    s_mov_b64 exec, 0xff
    buffer_store_dword v40, v2, s[12:15], s26 offen sc1
    s_mov_b64 exec, -1
    """)
    stamp(a, 10)
    sh_voff(a, 20, 13, 24)
    a("v_lshlrev_b32 v12, 4, v1")
    a("""
    v_and_b32 v2, 15, v1
    v_lshrrev_b32 v3, 1, v2
    v_lshrrev_b32 v4, 4, v1
    v_xor_b32 v3, v3, v4
    v_lshlrev_b32 v2, 7, v2
    v_lshl_add_u32 v16, v3, 4, v2
    v_xor_b32 v3, 4, v3
    v_lshl_add_u32 v17, v3, 4, v2
    """)
    a(f"""
    s_lshl_b32 s26, s30, 1
    s_lshr_b32 s27, s67, 1
    s_add_u32 s26, s26, s27
    s_lshl_b32 s26, s26, 3
    s_and_b32 s27, s67, 1
    s_lshl_b32 s27, s27, 2
    s_add_u32 s26, s26, s27
    s_add_u32 s26, s26, s3
    s_lshl_b32 s26, s26, 16
    s_add_u32 s22, s26, {WS_Z}
    """)
    srd_ws(a, 32, 22, 65536)
    a(f"s_and_b32 s23, s67, 1\n s_lshl_b32 s23, s23, 2\n s_add_u32 s23, s23, s3\n s_lshl_b32 s23, s23, 9\n s_add_u32 s23, s23, {WS_FL+16384}")
    poll(a, [('s23', '0xf')], cnt=4)
    stamp(a, 2)
    a(f"s_lshl_b32 s22, s67, 10\n s_add_u32 s22, s22, {WS_CV}\n s_cmp_eq_u32 s30, 0\n s_cselect_b32 s23, 1.0, 0")
    acc_load(a, 4, 192, 22, 8)
    a("s_mov_b32 s74, s23")
    dloop(a, 'd1', 4, 0, (20, 36), D=4, mid=lambda: a(f"s_mov_b32 s31, {WS_FL+16384}\n v_and_b32 v6, 31, v1\n v_lshlrev_b32 v6, 7, v6\n buffer_load_dwordx2 v[48:49], v6, s[12:15], s31 offen sc1"), init=lambda: stamp(a, 11))
    a("s_lshl_b32 s22, s30, 13\n" + f"s_add_u32 s22, s22, {WS_UP}\n v_lshlrev_b32 v2, 5, v1\n s_add_u32 s23, s22, 4096")
    a(f"s_waitcnt lgkmcnt(0)\n s_nop 7")
    stamp(a, 3)
    a("v_cmp_ne_u32 vcc, s98, v48\n v_cmp_ne_u32 s[28:29], s99, v49\n s_or_b64 vcc, vcc, s[28:29]\n s_and_b64 vcc, vcc, 0xffffffff\n s_cbranch_scc0 L_uok")
    poll(a, [('s31', '0xffffffff')], cnt=32)
    a("s_waitcnt vmcnt(0)\n L_uok:")
    for i in range(8): a(f"buffer_load_dwordx4 v[{128+4*i}:{131+4*i}], v2, s[12:15], s{22+(i>>2)} offen offset:{((i>>1)&1)*2048+(i&1)*16} sc1")
    a(f"""
    v_lshrrev_b32 v2, 4, v1
    v_and_b32 v3, 1, v2
    v_lshrrev_b32 v2, 1, v2
    v_lshl_add_u32 v2, v3, 1, v2
    v_and_b32 v3, 15, v1
    v_lshlrev_b32 v3, 4, v3
    v_lshl_add_u32 v14, v2, 8, v3
    s_lshr_b32 s26, s67, 1
    s_lshl_b32 s26, s26, 4
    s_and_b32 s27, s66, 3
    s_lshl_b32 s27, s27, 2
    s_add_u32 s26, s26, s27
    s_lshl_b32 s26, s26, 16
    s_lshl_b32 s27, s30, 15
    s_add_u32 s26, s26, s27
    s_and_b32 s27, s67, 1
    s_lshl_b32 s27, s27, 14
    s_add_u32 s26, s26, s27
    s_lshl_b32 s27, s3, 12
    s_add_u32 s26, s26, s27
    s_add_u32 s25, s26, {WS_AT}
    """)
    a("v_lshlrev_b32 v3, 31, v1")
    for i in range(16): a(f"v_mul_f32 v{192+i}, s74, v{192+i}\n v_xor_b32 v{192+i}, v3, v{192+i}")
    for nb in range(8):
        t = 32 + (nb & 1)*24
        for i in range(16): a(f"v_accvgpr_read_b32 v{t+i}, a{nb*16+i}")
        for i in range(0, 16, 2): a(pk('', t+i, t+i, 192+i))
        for i in range(8): a(f"v_cvt_pk_bf16_f32 v{t+16+i}, v{t+2*i}, v{t+2*i+1}")
        a("s_nop 1")
        for p in range(2):
            a(f"v_permlane16_swap_b32 v{t+16+4*p}, v{t+18+4*p}\n v_permlane16_swap_b32 v{t+17+4*p}, v{t+19+4*p}")
        for p in range(2):
            a(f"s_add_u32 s26, s25, {(nb >> 1)*65536 + p*2048 + (nb & 1)*1024}")
            a(f"buffer_store_dwordx4 v[{t+16+4*p}:{t+19+4*p}], v14, s[12:15], s26 offen sc1")
    a(f"s_and_b32 s26, s66, 3\n s_lshl_b32 s26, s26, 1\n s_add_u32 s26, s26, s30\n s_lshl_b32 s26, s26, 2\n s_add_u32 s26, s26, s67\n s_lshl_b32 s26, s26, 7\n s_add_u32 s23, s26, {WS_FL+24576}")
    stamp(a, 12)
    publish(a, 's23')
    stamp(a, 13)
    for i in range(4): a(f"v_mov_b32 v{56+i}, 0")
    a("s_nop 1")
    for i in range(9): a(f"v_mfma_f32_32x32x16_bf16 a[{16*i}:{15+16*i}], v[56:59], v[56:59], 0")
    for j in range(0, 8, 2): a(pk('', 128+j, 128+j, 136+j)); a(pk('', 144+j, 144+j, 152+j))
    for j in range(0, 8, 2): a(pk('', 128+j, 128+j, 144+j))
    for j in range(4): a(f"v_cvt_pk_bf16_f32 v{60+j}, v{128+2*j}, v{129+2*j}")
    tile_vec(a, 60)
    a(f"s_lshl_b32 s23, s67, 10\n s_add_u32 s23, s23, {WS_FL+24576}\n v_and_b32 v6, 7, v1\n v_lshlrev_b32 v6, 7, v6\n buffer_load_dwordx2 v[56:57], v6, s[12:15], s23 offen sc1")
    a(f"v_mov_b32 v41, 0\n v_mov_b32 v42, {ALT}")
    for j in range(4): a(f"v_dot2_f32_bf16 v41, v{60+j}, v42, v41")
    a("s_nop 2")
    reduce_lanes(a, [41], 48, ['ror1', 'ror2', 'ror4', 'ror8', 'p16', 'p32'])
    a(f"""
    v_cmp_eq_u32 vcc, 8, v1
    s_cmp_eq_u32 s30, 0
    s_cselect_b32 s26, 1.0, 0
    v_cndmask_b32 v40, v40, v41, vcc
    v_mov_b32 v160, s97
    v_mul_f32 v160, s26, v160
    v_lshlrev_b32 v2, 31, v1
    v_xor_b32 v2, v2, v160
    v_add_f32 v40, v40, v2
    v_cvt_pk_bf16_f32 v40, v40, v40
    s_and_b32 s26, s66, 3
    s_lshl_b32 s26, s26, 7
    s_lshl_b32 s27, s67, 5
    s_add_u32 s26, s26, s27
    s_lshl_b32 s27, s3, 3
    s_add_u32 s26, s26, s27
    v_add_u32 v3, s26, v1
    v_mov_b32 v4, 512
    v_cndmask_b32 v3, v3, v4, vcc
    v_lshlrev_b32 v3, 6, v3
    s_mul_i32 s26, s30, {TPS}
    s_add_u32 s26, s26, {WS_Y + 16*EGS}
    s_add_u32 s27, s26, {YD}
    s_cmp_eq_u32 s30, 0
    s_mov_b32 s28, 0xff
    s_cselect_b32 exec_lo, 0x1ff, s28
    s_mov_b32 exec_hi, 0
    buffer_store_dword v40, v3, s[12:15], s26 offen sc1
    buffer_store_dword v40, v3, s[12:15], s27 offen sc1
    s_mov_b64 exec, -1
    """)
    a(f"""
    s_lshl_b32 s26, s30, 4
    s_lshl_b32 s27, s67, 2
    s_add_u32 s26, s26, s27
    s_add_u32 s26, s26, s3
    s_lshl_b32 s26, s26, 16
    s_add_u32 s22, s26, {WS_AT}
    """)
    srd_ws(a, 32, 22, 65536)
    a(f"""
    s_cmp_eq_u32 s66, 0
    s_cselect_b32 s31, 1, 0
    v_mov_b32 v24, {ALT}
    v_mov_b32 v25, {ALT}
    v_mov_b32 v26, {ALT}
    v_mov_b32 v27, {ALT}
    """)
    srd(a, 4, 88, 3584*1024*2)
    g2_wpre(a, [(8, 4)])
    a("s_waitcnt vmcnt(2)\n v_cmp_ne_u32 vcc, s98, v56\n v_cmp_ne_u32 s[28:29], s99, v57\n s_or_b64 vcc, vcc, s[28:29]\n s_cbranch_scc0 L_s2_ok")
    poll(a, [('s23', '0xff')], gap=2, cnt=8)
    a("L_s2_ok:")
    stamp(a, 4)
    a(f"s_lshl_b32 s22, s67, 9\n s_add_u32 s22, s22, {WS_RV}\n s_cmp_eq_u32 s30, 0\n s_cselect_b32 s23, 1.0, 0")
    a("s_cselect_b32 s75, 0, -1.0\n s_mov_b32 s74, s23")
    acc_load(a, 2, 192, 22, 7)
    acc_load(a, 2, 200, 22, 7, 2048)
    dloop(a, 'd2a', 2, 0, (20, 80), extra=True, init=lambda: stamp(a, 14))
    stamp(a, 15)
    dloop(a, 'd2b', 2, 64, (8, 4), first=False, inc=64*2048)
    stamp(a, 16)
    a("s_waitcnt lgkmcnt(0)\n s_nop 7")
    a(f"""
    v_and_b32 v2, 15, v1
    v_lshlrev_b32 v20, 6, v2
    v_lshrrev_b32 v3, 4, v1
    v_and_b32 v4, 1, v3
    v_lshl_add_u32 v20, v4, 5, v20
    v_lshrrev_b32 v4, 1, v3
    v_lshl_add_u32 v20, v4, 4, v20
    v_lshlrev_b32 v21, 3, v3
    s_lshl_b32 s22, s67, 2
    s_add_u32 s22, s22, s3
    s_mul_i32 s22, s22, {EGS}
    s_mul_i32 s27, s30, {TPS}
    s_add_u32 s22, s22, s27
    s_add_u32 s22, s22, {WS_Y}
    s_and_b32 s26, s66, 3
    s_lshl_b32 s26, s26, 13
    s_add_u32 s25, s22, s26
    """)
    a("v_lshlrev_b32 v3, 31, v1")
    for i in range(8): a(f"v_mul_f32 v{192+i}, s74, v{192+i}\n v_mul_f32 v{200+i}, s75, v{200+i}")
    for i in range(8): a(f"v_sub_f32 v{208+i}, v{192+i}, v{200+i}\n v_add_f32 v{216+i}, v{192+i}, v{200+i}")
    for i in range(16): a(f"v_xor_b32 v{208+i}, v3, v{208+i}")
    for nb in range(8):
        t = 32 + (nb & 1)*32
        for i in range(8): a(f"v_accvgpr_read_b32 v{t+i}, a{nb*8+i}\n v_accvgpr_read_b32 v{t+8+i}, a{64+nb*8+i}")
        for i in range(0, 8, 2): a(pk('', t+16+i, t+i, t+8+i, neg=True)); a(pk('', t+i, t+i, t+8+i))
        for i in range(0, 8, 2): a(pk('', t+16+i, t+16+i, 208+i)); a(pk('', t+i, t+i, 216+i))
        for i in range(4): a(f"v_cvt_pk_bf16_f32 v{t+24+i}, v{t+16+2*i}, v{t+17+2*i}\n v_cvt_pk_bf16_f32 v{t+28+i}, v{t+2*i}, v{t+2*i+1}")
        a("s_nop 1")
        for p in range(2):
            a(f"v_permlane16_swap_b32 v{t+24+4*p}, v{t+26+4*p}\n v_permlane16_swap_b32 v{t+25+4*p}, v{t+27+4*p}")
        for p in range(2):
            a(f"s_add_u32 s26, s25, {nb*1024 + p*YD}")
            a(f"buffer_store_dwordx4 v[{t+24+4*p}:{t+27+4*p}], v20, s[12:15], s26 offen sc1")
    a("s_cmp_eq_u32 s31, 0\n s_cbranch_scc1 L_dft_nox")
    for i in range(8): a(f"v_accvgpr_read_b32 v{32+i}, a{128+i}")
    for i in range(0, 8, 2): a(pk('', 32+i, 32+i, 192+i))
    for i in range(4): a(f"v_cvt_pk_bf16_f32 v{40+i}, v{32+2*i}, v{33+2*i}")
    a(f"s_add_u32 s26, s22, {512*64}\n s_add_u32 s27, s26, {YD}\n s_mov_b32 exec_lo, 0x00010001\n s_mov_b32 exec_hi, 0x00010001")
    for mb in range(2):
        a(f"buffer_store_dwordx2 v[{40+2*mb}:{41+2*mb}], v21, s[12:15], s26 offen offset:{mb*32} sc1\n buffer_store_dwordx2 v[{40+2*mb}:{41+2*mb}], v21, s[12:15], s27 offen offset:{mb*32} sc1")
    a("s_mov_b64 exec, -1\nL_dft_nox:")
    stamp(a, 17)
    a(f"s_lshl_b32 s23, s66, 2\n s_add_u32 s23, s23, s67\n s_lshl_b32 s23, s23, 7\n s_add_u32 s23, s23, {WS_FL+32768}")
    g2_pre(a, True)
    a(f"v_mov_b32 v2, 0\n v_mov_b32 v3, 0\n v_mov_b32 v4, 0\n v_mov_b32 v5, 0\n s_mov_b32 s68, {OOB}\n s_nop 0")
    g2_zero(a, 2, 0, 8)
    publish(a, 's23')
    stamp(a, 18)
    poll(a, [('s44', '3')], vb=192, gap=2, cnt=2)
    h_chunk(a, 0)
    a("s_waitcnt vmcnt(0)")
    stamp(a, 5)


def kern():
    a = Asm()
    a(f"""
    s_cmp_ge_u32 s2, 256
    s_cbranch_scc1 L_end
    s_load_dwordx2 s[40:41], s[0:1], 0
    s_load_dwordx4 s[44:47], s[0:1], 48
    s_load_dwordx2 s[48:49], s[0:1], 96
    s_load_dwordx2 s[88:89], s[0:1], 64
    s_load_dwordx2 s[42:43], s[0:1], 80
    s_load_dwordx8 s[52:59], s[0:1], 8
    s_load_dwordx2 s[60:61], s[0:1], 72
    s_getpc_b64 s[28:29]
    s_lshr_b32 s27, s2, 3
    s_mul_i32 s26, s27, {CODE_LINES*128}
    v_lshlrev_b32 v2, 7, v0
    v_add_u32 v2, s26, v2
    v_cmp_gt_u32 vcc, {CODE_LINES}, v0
    s_and_saveexec_b64 s[30:31], vcc
    s_cbranch_execz L_nocp
    global_load_dword a255, v2, s[28:29]
    L_nocp:
    s_mov_b64 exec, s[30:31]
    v_and_b32 v1, 63, v0
    v_lshrrev_b32 v2, 6, v0
    s_and_b32 s66, s2, 7
    v_readfirstlane_b32 s3, v2
    s_lshr_b32 s27, s2, 3
    s_sub_u32 s67, s27, 28
    s_and_b32 s24, s66, 1
    s_lshl_b32 s24, s24, 2
    s_and_b32 s68, s27, 3
    s_add_u32 s24, s24, s68
    s_lshr_b32 s25, s66, 1
    s_mul_i32 s25, s25, 7
    s_lshr_b32 s69, s27, 2
    s_add_u32 s25, s25, s69
    """)
    stamp(a, 0)
    if opt.spin: a("s_memrealtime s[100:101]")
    a(f"s_waitcnt lgkmcnt(0)\n s_add_u32 s28, s48, {WS_FL}\n s_addc_u32 s29, s49, 0\n s_load_dword s98, s[28:29], 0")
    if opt.stamp: stamp(a, 23)
    srd(a, 4, 40, 2048*1024*2)
    srd(a, 12, 48, WS_SZ)
    g2_ids(a)
    a("s_lshr_b32 s27, s2, 3\n s_cmp_ge_u32 s27, 28\n s_cbranch_scc1 L_dft")
    gemm1(a)
    a("s_branch L_g2")
    a("L_dft:")
    if opt.xdft: a("s_branch L_end")
    dft(a)
    gemm2(a)
    a("L_end:")
    if opt.spin:
        a(f"s_cmp_lg_u32 s2, 0\n s_cbranch_scc1 L_end3\n L_spin:\n s_memrealtime s[92:93]\n s_waitcnt lgkmcnt(0)\n s_sub_u32 s92, s92, s100\n s_cmp_lt_u32 s92, {opt.spin}\n s_cbranch_scc1 L_spin\n L_end3:")
    if opt.stamp:
        a("s_cmp_ge_u32 s2, 256\n s_cbranch_scc1 L_end2\n s_mov_b64 exec, -1")
        srd(a, 12, 48, WS_SZ)
        stamp(a, 8)
        stamp_flush(a, 0)
        if opt.dbgmax:
            a("s_load_dwordx2 s[28:29], s[0:1], 88\n v_subrev_u32 v2, 40, v1\n v_lshlrev_b32 v2, 2, v2\n v_not_b32 v3, v31\n v_cmp_eq_u32 vcc, 40, v1\n s_nop 1\n v_cndmask_b32 v31, v31, v3, vcc")
            a("s_lshr_b32 s27, s2, 3\n s_cmp_ge_u32 s27, 28\n s_cbranch_scc1 L_dm_d\n s_mov_b32 exec_lo, 0\n s_mov_b32 exec_hi, 0x1ff00\n s_branch L_dm_go\n L_dm_d:")
            for k, w in ((1, 9), (2, 10), (3, 11), (4, 12), (16, 13), (18, 14), (0, 15)):
                a(f"v_mov_b32 v3, {4*w}\n v_cmp_eq_u32 vcc, {40+k}, v1\n s_nop 1\n v_cndmask_b32 v2, v2, v3, vcc")
            m = sum(1 << (8+k) for k in (0, 1, 2, 3, 4, 16, 18))
            a(f"s_mov_b32 exec_lo, 0\n s_mov_b32 exec_hi, {m}\n L_dm_go:\n s_waitcnt lgkmcnt(0)\n global_atomic_umax v2, v31, s[28:29] sc1\n s_waitcnt vmcnt(0)")
        a("L_end2:")
    return kernel(KN, a.text(), vgpr=256, agpr=256)

KN = 'gated_mix__spectral_fnet__geglu_ffn__prompt_kernel'
def main():
    fn = sys.argv[1]
    for o in sys.argv[2:]:
        k, v = o.split('=', 1)
        setattr(opt, k, eval(v))
    c, d = kern()
    hdr = open('gated_mix__spectral_fnet__geglu_ffn__prompt.s.ref').read().split('; Override launch')[0]
    src = hdr + f'; @launch grid=(256,1,1) block=(256,1,1) lds={R1*SLOT1}\n.amdgcn_target "amdgcn-amd-amdhsa--gfx950"\n' + c + '.text\n.fill 2048, 4, 0xbf800000\n' + d
    open(fn, 'w').write(src)
if __name__ == '__main__': main()
```

```python
import sys, math, struct
from ab import *

WS_H   = 0
HS     = 262144
WS_Z   = (16 << 20) + 65536
WS_AT  = (18 << 20) + 131072
WS_Y   = (20 << 20) + 196608
YD     = 2 << 20
EGS    = 528*64
TPS    = 17*EGS
WS_LP  = (24 << 20) + 131072
WS_UP  = WS_LP + 32768
WS_CV  = WS_UP + 32768
WS_RV  = WS_CV + 4096
WS_FL  = 25 << 20
WS_XB  = 26 << 20
XBS    = 4224
WS_TS  = 40 << 20
WS_SZ  = 256 << 20
OOB = 0x40000000
ALT = 0xBF803F80
R1 = 5; SLOT1 = 32768
R2 = 8; SLOT2 = 16384
R3 = 8; SLOT3 = 16384
MF = "v_mfma_f32_16x16x32_bf16"
class Opt: pass
opt = Opt()
opt.stamp = False; opt.trace = False; opt.hflags = 'sc1'; opt.psleep = 4; opt.order = 3; opt.tlb = True; opt.smem = True; opt.dbgmax = False; opt.notw = 0; opt.nofold = 0; opt.shift = 0; opt.dm2 = (5, 11); opt.pw = 0; opt.prepos = 1; opt.xdft = 0; opt.nf = 3; opt.pub = 1; opt.r3 = 0; opt.r2 = 1; opt.r2b = False; opt.nox = False; opt.nt_fold = ''; opt.nt_w = ''; opt.nt_c = ''; opt.fmask = 0xffff; opt.x2 = 0; opt.rdo = [1,1,2,2,3,3,4,4,5,5,6,6,7,7,9,9]; opt.rde = [0,0,1,1,2,2,3,3,4,5,6,7,9,10,11,12]; opt.dmo = [3, 7]; opt.HS = 229376; opt.tlb2 = False; opt.g2gap = 2; opt.spin = 0; opt.oflags = ''; opt.g2touch = False; opt.tflags = ''; opt.killw = None
fbits = lambda x: struct.unpack('<I', struct.pack('<f', x))[0]
CODE_LINES = int(__import__("os").environ.get("CL", 16))

def srd(a, d, base, size):
    a(f"s_mov_b32 s{d}, s{base}\n s_and_b32 s{d+1}, s{base+1}, 0xffff\n s_mov_b32 s{d+2}, {size}\n s_mov_b32 s{d+3}, 0x20000")
def srd_ws(a, d, soff, size):
    a(f"s_add_u32 s{d}, s48, s{soff}\n s_addc_u32 s{d+1}, s49, 0\n s_and_b32 s{d+1}, s{d+1}, 0xffff\n s_mov_b32 s{d+2}, {size}\n s_mov_b32 s{d+3}, 0x20000")
def interleave(a, mfmas, fill):
    for s in fill.get(-1, []): a(s)
    for i, m in enumerate(mfmas):
        a(m)
        for s in fill.get(i, []): a(s)
def lab(a, p): return f"L_{p}_{len(a.l)}"

def stamp(a, idx):
    if not opt.stamp: return
    a(f"s_memrealtime s[92:93]\n s_memtime s[94:95]\n s_waitcnt lgkmcnt(0)\n v_writelane_b32 v31, s92, {40+idx}\n v_writelane_b32 v30, s94, {40+idx}")
def trace_ops(sidx):
    return ["s_memtime s[92:93]", "s_memrealtime s[94:95]", "s_waitcnt lgkmcnt(0)", f"v_cmp_eq_u32 vcc, {sidx}, v1", "v_mov_b32 v6, s92", "v_mov_b32 v7, s94",
            "v_cndmask_b32 v30, v30, v6, vcc", "v_cndmask_b32 v31, v31, v7, vcc"]
def stamp_flush(a, half):
    if not opt.stamp: return
    a(f"s_lshl_b32 s90, s2, 2\n s_add_u32 s90, s90, s3\n s_lshl_b32 s90, s90, 9\n s_add_u32 s90, s90, {WS_TS + half*524288}")
    a(f"v_lshlrev_b32 v29, 3, v1\n buffer_store_dwordx2 v[30:31], v29, s[12:15], s90 offen")

def nonce(a):
    a("s_mul_i32 s98, s98, 0x9E3779B1\n s_add_u32 s98, s98, 0x7F4A7C15\n s_xor_b32 s99, s98, 0x5bd1e995")
def started(a, vt=2):
    L = lab(a, 'st0')
    a(f"s_cmp_lg_u32 s3, 0\n s_cbranch_scc1 {L}\n s_lshl_b32 s26, s2, 7\n s_add_u32 s26, s26, {WS_FL+393216}")
    flag_store(a, 's26', vt)
    a(f"{L}:")
def flag_store(a, soff, vt=2):
    a(f"""
    v_lshlrev_b32 v{vt}, 3, v1
    v_mov_b32 v{vt+2}, s98
    v_mov_b32 v{vt+3}, s99
    s_mov_b64 exec, {opt.fmask}
    buffer_store_dwordx2 v[{vt+2}:{vt+3}], v{vt}, s[12:15], {soff} offen sc1
    s_mov_b64 exec, -1
    """)
def publish(a, soff):
    a("s_waitcnt vmcnt(0)\n s_barrier")
    L = lab(a, 'pub')
    a(f"s_cmp_lg_u32 s3, 0\n s_cbranch_scc1 {L}")
    flag_store(a, soff)
    a(f"{L}:")
def poll(a, items, vb=48, gap=1, cnt=56, voff=6):
    L = lab(a, 'poll'); n = len(items)
    def issue(k):
        for i, (so, mk) in enumerate(items): a(f"buffer_load_dwordx2 v[{vb+2*(k*n+i)}:{vb+2*(k*n+i)+1}], v{voff}, s[12:15], {so} offen sc1")
    if voff == 6: a(f"v_cmp_gt_u32 vcc, {cnt}, v1\n v_lshlrev_b32 v6, 7, v1\n v_mov_b32 v7, {OOB}\n v_cndmask_b32 v6, v7, v6, vcc")
    a("s_mov_b32 s27, 0")
    issue(0); a(f"s_sleep {opt.psleep}"); issue(1); a(f"s_sleep {opt.psleep}");
    a(f"{L}:")
    for k in range(3):
        issue((k+2) % 3)
        a(f"s_waitcnt vmcnt({2*n})")
        for i, (so, mk) in enumerate(items):
            r = vb + 2*(k*n+i)
            a(f"v_cmp_ne_u32 vcc, s98, v{r}\n v_cmp_ne_u32 s[28:29], s99, v{r+1}\n s_or_b64 vcc, vcc, s[28:29]")
            a(f"s_and_b64 {'s[64:65]' if i == 0 else 'vcc'}, vcc, {mk}")
            if i: a("s_or_b64 s[64:65], s[64:65], vcc")
        a(f"s_cbranch_scc0 {L}_done\n s_sleep {gap}")
    a(f"""
    s_add_u32 s27, s27, 1
    s_cmp_lt_u32 s27, 0x20000
    s_cbranch_scc1 {L}
    {L}_done:
    """)
def reduce_lanes(a, regs, tmp, steps):
    for st in steps:
        if st.startswith('ror'):
            a("s_nop 1")
            for r in regs: a(f"v_add_f32_dpp v{r}, v{r}, v{r} row_ror:{st[3:]} row_mask:0xf bank_mask:0xf")
        else:
            for i, r in enumerate(regs): a(f"v_mov_b32 v{tmp+i}, v{r}")
            a("s_nop 1")
            for i, r in enumerate(regs): a(f"v_permlane{st[1:]}_swap_b32 v{r}, v{tmp+i}")
            a("s_nop 1")
            for i, r in enumerate(regs): a(f"v_add_f32 v{r}, v{r}, v{tmp+i}")
def unp(dst, src, j):
    return f"v_lshlrev_b32 v{dst}, 16, v{src+j//2}" if j % 2 == 0 else f"v_and_b32 v{dst}, 0xffff0000, v{src+j//2}"
def pk(op, d, x, y, neg=False):
    return f"v_pk_add_f32 v[{d}:{d+1}], v[{x}:{x+1}], v[{y}:{y+1}]" + (" neg_lo:[0,1] neg_hi:[0,1]" if neg else "")

def tlb_setup(a, vd):
    a(f"""
    s_mov_b32 s76, s48
    s_mov_b32 s77, s49
    s_mov_b32 s78, {26 << 20}
    s_cmp_eq_u32 s3, 1
    s_cselect_b32 s76, s42, s76
    s_cselect_b32 s77, s43, s77
    s_cselect_b32 s78, {4 << 20}, s78
    s_cmp_eq_u32 s3, 2
    s_cselect_b32 s76, s88, s76
    s_cselect_b32 s77, s89, s77
    s_cselect_b32 s78, {3584*2048}, s78
    s_cmp_eq_u32 s3, 3
    s_cselect_b32 s76, s52, s76
    s_cselect_b32 s77, s53, s77
    s_cselect_b32 s78, {5 << 20}, s78
    s_and_b32 s77, s77, 0xffff
    s_mov_b32 s79, 0x20000
    v_lshlrev_b32 v{vd}, 20, v1
    v_add_u32 v{vd}, {(1 << 20) - 128}, v{vd}
    v_cmp_eq_u32 vcc, 16, v1
    v_mov_b32 v2, {(16 << 20) + 128}
    s_nop 0
    v_cndmask_b32 v{vd}, v{vd}, v2, vcc
    v_cmp_le_u32 vcc, 17, v1
    v_mov_b32 v2, {(18 << 20) + 65536 + 128}
    s_nop 0
    v_cndmask_b32 v{vd}, v{vd}, v2, vcc
    v_cmp_le_u32 vcc, 18, v1
    v_lshlrev_b32 v2, 21, v1
    v_subrev_u32 v2, {(18 << 21) - ((22 << 20) - 128)}, v2
    v_cndmask_b32 v{vd}, v{vd}, v2, vcc
    """)

class VM:
    def __init__(s): s.ops = []
    def add(s, tag, n=1): s.ops += [tag]*n
    def wait(s, a, tag, extra=""):
        last = max(i for i, t in enumerate(s.ops) if t == tag)
        a(f"s_waitcnt vmcnt({min(63, len(s.ops)-1-last)}) {extra}")
V_WX, V_WD, V_L16, V_LDS, V_TMP, V_OOB, V_F64, V_FJ, V_S4, V_H1, V_OUT, V_Y, V_LP, AD = 96, 100, 104, 105, 106, 107, 108, 109, 110, 111, 112, 114, 119, 120
def w_voff(a, vb, wshift, t=2):
    a(f"""
    v_lshrrev_b32 v{t+1}, 4, v1
    s_lshl_b32 s26, s3, {wshift}
    v_add_u32 v{t}, s26, v{t+1}
    v_lshlrev_b32 v{t}, 11, v{t}
    v_add_u32 v{t}, s27, v{t}
    v_lshlrev_b32 v{t+1}, 1, v{t+1}
    v_and_b32 v{vb}, 15, v1
    v_xor_b32 v{t+1}, v{t+1}, v{vb}
    v_lshl_add_u32 v{vb}, v{t+1}, 4, v{t}
    v_xor_b32 v{t+1}, 8, v{t+1}
    v_lshl_add_u32 v{vb+1}, v{t+1}, 4, v{t}
    v_add_u32 v{vb+2}, {2*(4*2048-1024)}, v{vb}
    v_add_u32 v{vb+3}, {3*(4*2048-1024)}, v{vb+1}
    v_add_u32 v{vb+1}, {1*(4*2048-1024)}, v{vb+1}
    """)
def g2_ids(a):
    a("""
    s_lshr_b32 s27, s2, 3
    s_and_b32 s50, s2, 1
    s_lshl_b32 s50, s50, 2
    s_and_b32 s26, s27, 3
    s_add_u32 s50, s50, s26
    s_lshr_b32 s51, s27, 2
    s_bfe_u32 s96, s2, 0x20001
    """)
def g2_wpre(a, variants):
    a(f"s_mul_i32 s27, s96, {896*2048}\n s_lshl_b32 s26, s51, 8\n s_add_u32 s27, s27, s26")
    for vb, sh in variants: w_voff(a, vb, sh)
SPOS = [40, 41, 42, 43, 76, 77, 78]
OWNL = 98304
def g2_pre(a, dft):
    srd(a, 52, 42, 2048*1024*2)
    srd(a, 32, 88, 3584*1024*2)
    g2_wpre(a, [(V_WD, 4)] if dft else [(V_WX, 5), (V_WD, 4)])
    a(f"s_lshl_b32 s27, s50, 2\n s_add_u32 s27, s27, s3\n s_lshl_b32 s27, s27, 1\n s_mul_i32 s27, s27, {opt.HS}\n s_mul_i32 s26, s96, 57344\n s_add_u32 s27, s27, s26")
    srd_ws(a, 56, 27, opt.HS + 57344)
    a("s_mov_b32 s45, 0" if dft else "s_mov_b32 s45, s51")
    a(f"s_lshl_b32 s40, s45, 18\n s_lshr_b32 s79, s96, 1\n s_mul_i32 s79, s79, {opt.HS}")
    for p in range(1, 7): a(f"s_cmp_le_u32 s45, {p-1}\n s_mov_b32 s{SPOS[p]}, {(p-1) << 18}\n s_cselect_b32 s{SPOS[p]}, {p << 18}, s{SPOS[p]}")
    a(f"""
    v_lshlrev_b32 v{V_L16}, 4, v1
    v_mov_b32 v{V_OOB}, {OOB}
    v_lshrrev_b32 v3, 4, v1
    v_lshrrev_b32 v4, 2, v1
    v_and_b32 v4, 3, v4
    v_lshl_add_u32 v5, v3, 2, v4
    v_and_b32 v6, 7, v5
    s_and_b32 s26, s96, 1
    s_lshl_b32 s26, s26, 2
    v_xor_b32 v6, s26, v6
    v_lshlrev_b32 v5, 8, v5
    v_lshl_add_u32 v5, v6, 5, v5
    v_and_b32 v7, 3, v1
    v_lshl_add_u32 v{V_LDS}, v7, 3, v5
    s_lshl_b32 s26, s50, 1
    s_lshr_b32 s27, s3, 1
    s_add_u32 s26, s26, s27
    s_lshl_b32 s26, s26, 13
    s_mul_i32 s44, s96, {14*128}
    s_add_u32 s44, s44, s26
    s_add_u32 s44, s44, {WS_FL+65536}
    v_lshlrev_b32 v{V_F64}, 7, v1
    v_and_b32 v{V_S4}, 31, v1
    v_lshlrev_b32 v{V_S4}, 7, v{V_S4}
    v_add_u32 v{V_S4}, {WS_FL+32768}, v{V_S4}
    v_lshrrev_b32 v2, 1, v1
    v_cmp_le_u32 vcc, s45, v2
    v_add_u32 v3, 1, v2
    v_and_b32 v4, 1, v1
    v_cndmask_b32 v2, v2, v3, vcc
    v_cmp_gt_u32 vcc, 12, v1
    v_lshl_add_u32 v2, v2, 1, v4
    v_lshlrev_b32 v2, 7, v2
    v_cndmask_b32 v{V_FJ}, v{V_OOB}, v2, vcc
    s_lshl_b32 s70, s3, 13
    s_add_u32 s70, s70, {WS_FL+393216}
    s_cmp_eq_u32 s2, 0
    s_cselect_b32 s70, s70, {OOB}
    s_cselect_b64 s[60:61], -1, 0
    s_lshl_b32 s26, s2, 2
    s_add_u32 s26, s26, s3
    s_mul_i32 s71, s26, 12288
    s_add_u32 s71, s71, {WS_XB}
    s_lshl_b32 s69, s26, 7
    s_add_u32 s69, s69, {WS_FL+262144}
    """)
    for mb in range(8): a(f"v_xor_b32 v{AD+mb}, {mb*32}, v{V_LDS}")
    a(f"""
    s_lshl_b32 s64, s51, 1
    s_and_b32 s26, s96, 1
    s_add_u32 s64, s64, s26
    s_lshl_b32 s26, s50, 8
    s_lshl_b32 s27, s3, 6
    s_add_u32 s27, s26, s27
    s_lshr_b32 s26, s96, 1
    s_lshl_b32 s26, s26, 5
    s_add_u32 s27, s27, s26
    v_and_b32 v2, 15, v1
    v_add_u32 v2, s27, v2
    v_lshlrev_b32 v{V_LP}, 4, v2
    v_add_u32 v{V_LP}, {WS_LP}, v{V_LP}
    v_lshlrev_b32 v2, 11, v2
    v_lshrrev_b32 v3, 4, v1
    v_and_b32 v4, 1, v3
    v_lshl_add_u32 v2, v4, 5, v2
    v_lshrrev_b32 v4, 1, v3
    v_lshl_add_u32 v2, v4, 4, v2
    s_lshl_b32 s26, s64, 7
    v_add_u32 v{V_OUT}, s26, v2
    v_add_u32 v{V_OUT+1}, 32768, v{V_OUT}
    s_lshl_b32 s26, s64, 1
    s_sub_u32 s65, 30, s26
    s_cmp_ge_u32 s64, 8
    s_cselect_b64 s[46:47], -1, 0
    s_cselect_b32 s65, s65, s26
    s_mul_i32 s65, s65, {EGS}
    s_add_u32 s65, s65, {WS_Y}
    s_mov_b32 s26, {TPS}
    """)
    for j in range(5):
        if j < 4: a(f"v_lshrrev_b32 v2, 2, v1\n v_lshl_add_u32 v2, v2, 1, {j&1}\n v_and_b32 v3, 3, v1\n v_lshlrev_b32 v3, 4, v3\n v_add_u32 v3, {(j>>1)*EGS}, v3")
        else: a(f"v_and_b32 v2, 31, v1\n v_mov_b32 v3, {2*EGS}")
        a(f"""
        v_add_u32 v2, s27, v2
        v_sub_u32 v4, 2048, v2
        v_min_u32 v4, v4, v2
        v_cmp_lt_u32 vcc, 1024, v2
        v_and_b32 v5, 1, v4
        v_mul_lo_u32 v5, v5, s26
        v_lshrrev_b32 v4, 1, v4
        v_lshl_add_u32 v4, v4, 6, v5
        s_xor_b64 vcc, vcc, s[46:47]
        v_add3_u32 v4, v4, v3, s65
        v_add_u32 v5, {YD}, v4
        v_cndmask_b32 v{V_Y+j}, v4, v5, vcc
        """)
def g2_zero(a, z, lo, hi):
    for i in range(lo, hi): a(f"v_mfma_f32_32x32x16_bf16 a[{16*i}:{15+16*i}], v[{z}:{z+3}], v[{z}:{z+3}], 0")
def fl_bad(a, r, mask):
    a(f"v_cmp_ne_u32 vcc, s98, v{r}\n v_cmp_ne_u32 s[28:29], s99, v{r+1}\n s_or_b64 vcc, vcc, s[28:29]\n s_and_b64 vcc, vcc, {mask}")
HB = 128
def h_base(p): return [f"s_lshr_b32 s16, s{SPOS[p]}, 5", f"s_sub_u32 s25, s16, s79", "s_add_u32 s16, s16, s79", f"s_add_u32 s25, s25, {opt.HS}"]
def h_load(half, st, nb, v=V_L16):
    r = HB + 64*half + 16*st + 4*nb
    return f"buffer_load_dwordx4 v[{r}:{r+3}], v{v}, s[56:59], s{(16, 25)[nb >> 1]} offen offset:{(st & 1)*2048 + (nb & 1)*1024} sc1"
def h_chunk(a, p, v=V_L16):
    for x in h_base(p): a(x)
    for st in range(4):
        for nb in range(4): a(h_load(p & 1, st, nb, v))
        if st == 1: a("s_add_u32 s16, s16, 4096\n s_add_u32 s25, s25, 4096")

def gemm2(a):
    WF = 32; PV = 192
    vm = VM()
    def dma(): return [f"buffer_load_dwordx4 v{V_WD+i}, s[32:35], s17 offen offset:{i*1024} lds" for i in range(4)]
    def wreads(st, off, mbs=range(8), base=None):
        r = []
        for k, mb in enumerate(mbs):
            b = (WF + st*32 + mb*4) if base is None else base + 4*k
            r.append(f"ds_read_b64_tr_b16 v[{b}:{b+1}], v{AD+mb} offset:{off}")
            r.append(f"ds_read_b64_tr_b16 v[{b+2}:{b+3}], v{AD+mb} offset:{off+4096}")
        return r
    def sample(): a(f"buffer_load_dwordx2 v[24:25], v{V_FJ}, s[12:15], s44 offen sc1"); vm.add('smp')
    def pmask(p): return 3 << (2*(p-1))
    rare = []
    a("L_g2:"); vm.add('own')
    sample()
    a(f"buffer_load_dwordx2 v[18:19], v{V_F64}, s[12:15], s70 offen sc1"); vm.add('ep')
    for x in wreads(0, 0): a(x)
    a(f"s_lshl_b32 s21, s3, 12\n v_mov_b32 v26, s98\n v_mov_b32 v27, s99\n v_and_b32 v23, 15, v1\n v_lshlrev_b32 v23, 3, v23")
    stamp(a, 6)
    OD = [(nb, mb) for nb in range(4) for mb in (range(4) if nb % 2 == 0 else range(3, -1, -1))] + [(nb, 4+mb) for nb in range(3, -1, -1) for mb in (range(4) if nb % 2 else range(3, -1, -1))]
    def step(T, loads):
        p = T & 1; pos = T >> 2; st = T & 3; slot = T >> 1
        if pos >= 2: vm.wait(a, f'h{T}', "lgkmcnt(8)")
        else: a("s_waitcnt lgkmcnt(8)")
        ms = []
        for nb, mb in OD:
            b = WF + p*32 + mb*4; c = (nb*8+mb)*4; h = HB + 64*(pos & 1) + 16*st + 4*nb
            ms.append(f"{MF} a[{c}:{c+3}], v[{b}:{b+3}], v[{h}:{h+3}], a[{c}:{c+3}]")
        f = {k: [] for k in range(32)}
        for k, x in enumerate(wreads(p ^ 1, (p ^ 1)*8192)): f[2*k].append(x)
        f[15].append("s_waitcnt lgkmcnt(8)")
        g = slot + 5
        ops = []
        if 6 <= g <= 13: ops += [(opt.dm2[0], dma()[2*p], f'w{g}'), (opt.dm2[1], dma()[2*p+1], f'w{g}')]
        if loads:
            if st == 0:
                hb = h_base(pos+2); f[1] += hb[:2]; f[3] += hb[2:]
            ops += [(19+4*k, h_load(pos & 1, st, nb), f'h{T+8}') for k, nb in enumerate((3, 2, 1, 0))]
            if st == 1: f[31].append("PLACEHOLDER")
        if p == 1:
            need = slot + 2
            f[16].append("BARRIER")
            if 6 <= g+1 <= 13:
                f[17] += [f"s_add_u32 m0, s21, {((g+1) % 8)*SLOT2}", f"s_add_u32 s17, s{SPOS[(g+1) >> 1]}, {((g+1) & 1)*64*2048}"]
        else:
            f[7].append(f"v_add_u32 v{V_TMP}, {((slot+1) % 8)*SLOT2}, v{V_LDS}")
            for mb in range(8): f[max(4*mb+3, 9+mb)].append(f"v_xor_b32 v{AD+mb}, {mb*32}, v{V_TMP}")
        ops.sort()
        for i, m in enumerate(ms):
            a(m)
            for x in f[i]:
                if x == "BARRIER":
                    if f'w{slot+2}' in vm.ops: vm.wait(a, f'w{slot+2}')
                    a("s_barrier")
                elif x != "PLACEHOLDER": a(x)
            for gp, x, tag in ops:
                if gp == i: a(x); vm.add(tag)
            if "PLACEHOLDER" in f[i]: a("s_add_u32 s16, s16, 4096\n s_add_u32 s25, s25, 4096")
    step(0, False)
    vm.wait(a, 'own'); a("buffer_store_dwordx2 v[26:27], v23, s[12:15], s68 offen sc1"); vm.add('fl')
    step(1, False)
    vm.wait(a, 'ep')
    fl_bad(a, 24, pmask(1))
    a(f"s_cselect_b32 s31, 1, 0\n s_cselect_b32 s26, {OOB}, 0\n v_add_u32 v{V_H1}, s26, v{V_L16}")
    h_chunk(a, 1, V_H1); vm.add('p1', 16)
    sample()
    step(2, False); step(3, False)
    stamp(a, 19)
    vm.wait(a, 'smp')
    fl_bad(a, 24, pmask(1) | pmask(2) | pmask(3))
    a("s_cbranch_scc1 L_g2_late0\n s_cmp_lg_u32 s31, 0\n s_cbranch_scc1 L_g2_redo\n L_g2_cont0:")
    fl_bad(a, 18, "s[60:61]")
    a("s_cbranch_scc1 L_g2_ep\n L_g2_cont1:")
    stamp(a, 20)
    for x in h_base(2): a(x)
    for st in range(4):
        for nb in range(4): a(h_load(0, st, nb)); vm.add(f'h{8+st}')
        if st == 1: a("s_add_u32 s16, s16, 4096\n s_add_u32 s25, s25, 4096")
    sample()
    for pos in range(1, 6):
        if 2 <= pos <= 4:
            vm.wait(a, 'smp')
            fl_bad(a, 24, pmask(pos+2))
            a(f"s_cbranch_scc1 L_g2_late{pos}\n L_g2_cont{pos}x:")
            rare.append(pos)
            if pos < 4: sample()
        if pos == 2:
            a(f"s_or_b32 s26, s2, s3\n s_cmp_eq_u32 s26, 0\n s_mov_b32 s68, {OOB}\n s_cselect_b32 s68, {WS_FL}, s68\n buffer_store_dwordx2 v[26:27], v23, s[12:15], s68 offen sc1"); vm.add('eps')
        if pos == 4:
            a(f"buffer_load_dwordx2 v[18:19], v{V_S4}, s[12:15], 0 offen sc1"); vm.add('s4')
        if pos == 5:
            vm.wait(a, 's4')
            fl_bad(a, 18, -1)
            a("s_cbranch_scc1 L_g2_s4\n L_g2_s4ok:")
            a(f"buffer_load_dwordx4 a[160:163], v{V_LP}, s[12:15], 0 offen sc1\n buffer_load_dwordx4 a[164:167], v{V_LP}, s[12:15], 0 offen offset:256 sc1")
            for j in range(4): a(f"buffer_load_dwordx4 a[{136+4*j}:{139+4*j}], v{V_Y+j}, s[12:15], 0 offen sc1")
            a(f"buffer_load_dword a152, v{V_Y+4}, s[12:15], 0 offen sc1"); vm.add('y', 7)
        if pos in (2, 5): stamp(a, 21 if pos == 2 else 22)
        for st in range(4): step(4*pos + st, pos <= 4)
    Q = [32, 48, 64, 80]
    def hrd(st, fo, q): return wreads(0, (st >> 1)*16384 + (st & 1)*8192, range(4*fo, 4*fo+4), Q[q])
    def sendl(g):
        o = []
        for k in range(4):
            nb = 2*(g >> 1) + (k >> 1); c = (nb*8 + 4*(g & 1) + 2*(k & 1))*4; t = PV + 8*(k & 1); d = 224 + 4*((g*4+k) % 8)
            o += [f"v_accvgpr_read_b32 v{t+i}, a{c+i}" for i in range(8)]
            o += [f"v_cvt_pk_bf16_f32 v{d+i}, v{t+2*i}, v{t+1+2*i}" for i in range(4)]
            o += [f"buffer_store_dwordx4 v[{d}:{d+3}], v{V_L16}, s[12:15], s{(0, 71, 16, 25)[g]} offen offset:{k*1024} sc1"]
        return o
    a("s_add_u32 s16, s71, 4096\n s_add_u32 s25, s71, 8192")
    phases = [(0, 1, 1, range(4)), (1, 1, 2, range(4)), (2, 1, 3, range(4)), (3, 1, 1, range(4))] + \
             [(st, 0, (0, 2, 3, 1)[st], (2, 3)) for st in range(4)] + [(st, 0, (0, 2, 3, 1)[st], (0, 1)) for st in range(4)]
    pre = {0: hrd(1, 1, 2) + hrd(2, 1, 3), 1: hrd(3, 1, 1), 2: hrd(1, 0, 2), 3: hrd(2, 0, 3), 4: hrd(3, 0, 1)}
    send = []
    for k, (st, fo, q, nbs) in enumerate(phases):
        if k == 0: vm.wait(a, 'h27', "lgkmcnt(0)")
        elif k in (1, 2, 3, 5, 6): a("s_waitcnt lgkmcnt(8)")
        elif k == 7: a("s_waitcnt lgkmcnt(0)")
        if k == 4: send += [None]*8 + sendl(3) + sendl(1)
        if k == 8: send += [None]*max(0, 12 - len(send)) + sendl(2)
        ms = []
        for i, nb in enumerate(nbs):
            for m in (range(4) if i % 2 == 0 else range(3, -1, -1)):
                c = (nb*8 + 4*fo + m)*4; b = Q[q] + 4*m; h = HB + 16*st + 4*nb
                ms.append(f"{MF} a[{c}:{c+3}], v[{b}:{b+3}], v[{h}:{h+3}], a[{c}:{c+3}]")
        f = {}
        rd = pre.get(k, [])
        for j, x in enumerate(rd): f.setdefault(j*len(ms)//len(rd), []).append(x)
        for g in range(len(ms)):
            for _ in range(3):
                if send:
                    x = send.pop(0)
                    if x: f.setdefault(g, []).append(x)
        interleave(a, ms, f)
    assert not send, len(send)
    stamp(a, 7)
    a("""
    s_mul_i32 s26, s3, 4608
    s_add_u32 s26, s26, 131072
    v_lshrrev_b32 v4, 2, v1
    v_mul_u32_u24 v4, 288, v4
    v_and_b32 v5, 3, v1
    v_lshl_add_u32 v4, v5, 4, v4
    v_add_u32 v4, s26, v4
    v_and_b32 v5, 31, v1
    v_mul_u32_u24 v5, 144, v5
    v_add_u32 v5, s26, v5
    """)
    for j in range(4): a(f"ds_write_b128 v4, a[{136+4*j}:{139+4*j}] offset:{(j&1)*144 + (j>>1)*64}")
    a("ds_write_b32 v5, a152 offset:128")
    a("""
    v_and_b32 v4, 15, v1
    v_mul_u32_u24 v4, 144, v4
    v_lshrrev_b32 v5, 4, v1
    v_lshlrev_b32 v5, 3, v5
    v_sub_u32 v6, 24, v5
    v_cndmask_b32 v5, v5, v6, s[46:47]
    v_add3_u32 v4, v4, v5, s26
    s_waitcnt vmcnt(0) lgkmcnt(0)
    buffer_store_dwordx2 v[26:27], v23, s[12:15], s69 offen sc1
    """)
    for k in range(8):
        a(f"ds_read_b64 v[{128+4*k}:{129+4*k}], v4 offset:{(k>>2)*16*144 + (k&3)*32}\n ds_read_b32 v{130+4*k}, v4 offset:{(k>>2)*16*144 + (k&3)*32 + 8}")
    a(f"""
    v_add_u32 v6, 1, v1
    v_lshlrev_b32 v6, 10, v6
    v_xor_b32 v6, s69, v6
    v_cmp_gt_u32 vcc, 3, v1
    s_lshl_b32 s26, s2, 2
    s_add_u32 s26, s26, s3
    v_cndmask_b32 v{V_FJ}, v{V_OOB}, v6, vcc
    """)
    for g in range(1, 4): a(f"s_xor_b32 s27, s26, {8*g}\n s_mul_i32 s{40+g}, s27, 12288\n s_add_u32 s{40+g}, s{40+g}, {WS_XB + (g-1)*4096}")
    for nb in range(2):
        for i in range(4): a(f"v_accvgpr_read_b32 v{40+i}, a{160+4*nb+i}")
        a(f"""
        v_add_f32 v40, v40, v41
        v_add_f32 v42, v42, v43
        v_add_f32 v40, v40, v42
        v_cvt_pk_bf16_f32 v40, v40, v40
        v_lshlrev_b32 v40, 16, v40
        v_mul_f32 v40, {fbits(-math.log2(math.e))}, v40
        v_exp_f32 v40, v40
        s_nop 0
        v_add_f32 v40, 1.0, v40
        v_rcp_f32 v40, v40
        s_nop 0
        v_cvt_pk_bf16_f32 v40, v40, v40
        v_lshlrev_b32 v{32+nb}, 16, v40
        v_sub_f32 v40, 1.0, v{32+nb}
        v_cvt_pk_bf16_f32 v40, v40, v40
        v_lshlrev_b32 v{34+nb}, 16, v40
        v_and_b32 v{36+nb}, 0xffff, v40
        """)
    for nb in range(2):
        for i in range(16): a(f"v_accvgpr_read_b32 v{64+nb*16+i}, a{nb*32+i}")
    for nb in range(2):
        for i in range(16): a(f"v_mul_f32 v{64+nb*16+i}, v{34+nb}, v{64+nb*16+i}")
    a(f"buffer_load_dwordx2 v[24:25], v{V_FJ}, s[12:15], 0 offen sc1")
    a("s_waitcnt lgkmcnt(0)\n s_cmp_lg_u32 s46, 0\n s_cbranch_scc1 L_g2_mir")
    for mir in range(2):
        if mir: a("L_g2_mir:")
        for nb in range(2):
            for mb in range(4):
                d = 128 + (nb*4 + (3-mb if mir else mb))*4; o = 64 + (nb*4+mb)*4
                els = [4, 3, 2, 1] if mir else [0, 1, 2, 3]
                for r in range(4): a(unp(40+r, d, els[r]))
                for r in range(4): a(f"v_fma_f32 v{o+r}, v{40+r}, v{32+nb}, v{o+r}")
        if not mir: a("s_branch L_g2_st")
    a("L_g2_st:")
    stamp(a, 9)
    a("s_waitcnt vmcnt(0)")
    fl_bad(a, 24, 7)
    a("s_cbranch_scc0 L_g2_xok\n s_mov_b32 s26, 0")
    poll(a, [('s26', '7')], vb=44, gap=1, voff=V_FJ)
    a("L_g2_xok:")
    stamp(a, 10)
    for k in range(4):
        for g in range(1, 4): a(f"buffer_load_dwordx4 v[{128+16*k+4*g}:{131+16*k+4*g}], v{V_L16}, s[12:15], s{40+g} offen offset:{k*1024} sc1")
    for k in range(4):
        a(f"s_waitcnt vmcnt({3*(3-k) + k})")
        for g in range(1, 4):
            for r in range(8): a(f"v_dot2_f32_bf16 v{64+8*k+r}, v{128+16*k+4*g+r//2}, v{(36, 34)[r & 1]+(k>>1)}, v{64+8*k+r}")
        a("s_nop 2")
        for i in range(4): a(f"v_cvt_pk_bf16_f32 v{PV+4*k+i}, v{64+8*k+2*i}, v{64+8*k+2*i+1}")
        a(f"s_nop 1\n v_permlane16_swap_b32 v{PV+4*k}, v{PV+4*k+2}\n v_permlane16_swap_b32 v{PV+4*k+1}, v{PV+4*k+3}")
        a(f"buffer_store_dwordx4 v[{PV+4*k}:{PV+4*k+3}], v{V_OUT+(k>>1)}, s[52:55], 0 offen offset:{(k&1)*64} {opt.oflags}")
    a("s_branch L_end")
    a("L_g2_late0:")
    poll(a, [('s44', pmask(1) | pmask(2) | pmask(3))], vb=10, gap=opt.g2gap, voff=V_FJ)
    a("s_waitcnt vmcnt(0)\n s_cmp_eq_u32 s31, 0\n s_cbranch_scc1 L_g2_cont0\n L_g2_redo:")
    h_chunk(a, 1)
    a("s_waitcnt vmcnt(0)\n s_branch L_g2_cont0")
    a("L_g2_ep:")
    poll(a, [('s70', '-1')], vb=10, gap=2, cnt=64)
    a("s_waitcnt vmcnt(0)\n s_branch L_g2_cont1")
    for pos in rare:
        a(f"L_g2_late{pos}:")
        poll(a, [('s44', pmask(pos+2))], vb=10, gap=2, voff=V_FJ)
        a(f"s_waitcnt vmcnt(0)\n s_branch L_g2_cont{pos}x")
    a(f"L_g2_s4:\n s_mov_b32 s26, {WS_FL+32768}")
    poll(a, [('s26', '0xffffffff')], vb=10, gap=2, cnt=32)
    a("s_waitcnt vmcnt(0)\n s_branch L_g2_s4ok")

def ACCG(mb, nb): return 128 + (nb*4+mb)*4
def ACCU(mb, nb): return (nb*4+mb)*4
def FR(st, i): return 128 + st*64 + i*4

def gemm1(a):
    XS = 32768; WB = 98304; WSL = 16384
    a("s_cmp_ge_u32 s3, 2\n s_cselect_b32 s26, s46, s44\n s_cselect_b32 s27, s47, s45")
    srd(a, 8, 26, 1024*3584*2)
    a(f"""
    s_cmp_eq_u32 s3, 1
    s_cselect_b32 s80, s46, s44
    s_cselect_b32 s81, s47, s45
    s_mov_b32 s82, {1024*3584*2}
    s_cmp_eq_u32 s3, 2
    s_cselect_b32 s80, s40, s80
    s_cselect_b32 s81, s41, s81
    s_cselect_b32 s82, {2048*1024*2}, s82
    s_cmp_eq_u32 s3, 3
    s_cselect_b32 s80, s88, s80
    s_cselect_b32 s81, s89, s81
    s_and_b32 s81, s81, 0xffff
    s_mov_b32 s83, 0x20000
    v_mov_b32 v3, {OOB}
    s_add_u32 s86, s67, 28
    s_cmp_ge_u32 s3, 2
    s_cbranch_scc1 L_t_x
    v_lshrrev_b32 v2, 4, v1
    v_lshlrev_b32 v2, 5, v2
    v_bfe_u32 v4, v1, 1, 3
    v_add_u32 v2, v2, v4
    s_lshl_b32 s26, s68, 3
    v_add_u32 v2, s26, v2
    s_mov_b32 s27, 7168
    v_mul_lo_u32 v2, v2, s27
    v_and_b32 v4, 1, v1
    v_lshl_add_u32 v2, v4, 7, v2
    s_lshl_b32 s26, s25, 8
    v_add_u32 v26, s26, v2
    v_cmp_gt_u32 vcc, 32, v1
    s_mov_b32 s84, 0
    s_mov_b32 s85, {2*32*7168}
    v_cndmask_b32 v27, v3, v26, vcc
    s_mov_b32 s87, {4*32*7168}
    s_mov_b32 s75, s85
    v_mov_b32 v42, {'v3' if opt.notw & 1 else 'v27'}
    v_mov_b32 v26, {'v3' if opt.notw & 2 else 'v26'}
    v_mov_b32 v35, v3
    s_branch L_t_done
    L_t_x:
    s_cmp_eq_u32 s3, 3
    s_cbranch_scc1 L_t_wd
    s_mul_i32 s26, s69, 37
    s_lshl_b32 s27, s24, 8
    s_add_u32 s26, s26, s27
    v_add_u32 v2, s26, v1
    v_lshlrev_b32 v2, 11, v2
    v_cmp_gt_u32 vcc, {0 if opt.nox else 37}, v1
    s_mov_b32 s84, 0
    s_mov_b32 s85, 0
    v_cndmask_b32 v26, v3, v2, vcc
    s_mov_b32 s87, 128
    s_mov_b32 s75, 128
    v_mov_b32 v27, v3
    v_mov_b32 v42, v26
    v_mov_b32 v35, v3
    s_branch L_t_done
    L_t_wd:
    s_mul_i32 s27, s86, 49
    v_cmp_gt_u32 vcc, {0 if (opt.xdft & 2) or opt.nofold else 49}, v1
    s_lshl_b32 s28, s66, 6
    """)
    for k in range(3):
        a(f"""
        v_add_u32 v2, s27, v1
        v_add_u32 v2, {1372*k}, v2
        v_bfe_u32 v4, v2, 4, 3
        v_bfe_u32 v5, v2, 7, 2
        v_lshl_add_u32 v4, v5, 4, v4
        v_bfe_u32 v5, v2, 11, 1
        v_lshl_add_u32 v4, v5, 3, v4
        v_add_u32 v4, s28, v4
        v_bfe_u32 v5, v2, 9, 2
        v_and_b32 v6, 1, v5
        v_lshrrev_b32 v7, 1, v5
        v_xor_b32 v6, v6, v7
        v_sub_u32 v7, 0, v4
        v_cmp_eq_u32 s[62:63], 1, v6
        v_and_b32 v2, 15, v2
        v_lshlrev_b32 v2, 7, v2
        v_cndmask_b32 v4, v4, v7, s[62:63]
        v_lshlrev_b32 v6, 11, v5
        v_cmp_le_u32 s[62:63], 2, v5
        v_mov_b32 v7, 1024
        s_nop 0
        v_cndmask_b32 v6, v6, v7, s[62:63]
        v_add_u32 v4, v4, v6
        v_lshl_add_u32 v2, v4, 11, v2
        v_cndmask_b32 v{46+k}, v3, v2, vcc
        """)
        if k < opt.nf: a(f"buffer_load_dword v28, v{46+k}, s[4:7], 0 offen {opt.nt_fold}")
    a(f"""
    v_lshlrev_b32 v2, 7, v1
    v_cmp_gt_u32 vcc, 32, v1
    s_mul_i32 s84, s66, 28
    s_add_u32 s84, s84, s86
    s_lshl_b32 s84, s84, 12
    v_cndmask_b32 v27, v3, v2, vcc
    s_mov_b32 s85, {224*4096}
    s_mov_b32 s87, 0
    s_mov_b32 s75, 0
    v_mov_b32 v26, v3
    v_mov_b32 v42, v3
    L_t_done:
    """)
    stamp(a, 19)
    a(f"buffer_load_dword v28, v42, s[80:83], s84 offen {opt.nt_w}\n s_add_u32 s84, s84, s75")
    stamp(a, 20)
    a(f"""
    s_cmp_lt_u32 s66, 4
    s_cselect_b32 s36, s56, s58
    s_cselect_b32 s37, s57, s59
    s_cmp_eq_u32 s3, 2
    s_cselect_b32 s36, s52, s36
    s_cselect_b32 s37, s53, s37
    s_cmp_eq_u32 s3, 3
    s_cselect_b32 s36, s54, s36
    s_cselect_b32 s37, s55, s37
    s_and_b32 s37, s37, 0xffff
    s_mov_b32 s39, 0x20000
    s_and_b32 s28, s66, 3
    s_lshl_b32 s26, s28, 18
    s_lshl_b32 s28, s28, 8
    s_lshr_b32 s27, s66, 2
    s_add_u32 s28, s28, s27
    s_lshl_b32 s28, s28, 12
    s_cmp_eq_u32 s3, 1
    s_cselect_b32 s28, s26, s28
    s_cselect_b32 s26, 11, 13
    s_cselect_b32 s38, {1024*1024*2}, s82
    s_mul_i32 s27, s86, 37
    v_add_u32 v2, s27, v1
    v_lshrrev_b32 v4, 3, v2
    v_lshlrev_b32 v4, s26, v4
    v_and_b32 v2, 7, v2
    v_lshl_add_u32 v2, v2, 7, v4
    s_cmp_eq_u32 s3, 0
    s_cselect_b32 s27, 0, 37
    v_cmp_gt_u32 vcc, s27, v1
    v_mov_b32 v3, {OOB}
    s_nop 0
    v_cndmask_b32 v2, v3, v2, vcc
    v_add_u32 v34, s28, v2
    s_cmp_lg_u32 s3, 1
    s_cbranch_scc1 L_t_nm
    buffer_load_dword v28, v34, s[36:39], 0 offen {opt.nt_c}
    v_mov_b32 v34, v3
    L_t_nm:
    """)
    a("s_lshl_b32 s29, s24, 19\n s_lshl_b32 s26, s3, 16\n s_add_u32 s29, s29, s26")
    sh_voff(a, 8, 11, 29)
    a("""
    v_lshrrev_b32 v2, 4, v1
    s_and_b32 s26, s3, 1
    s_lshl_b32 s26, s26, 4
    v_add_u32 v3, s26, v2
    s_mov_b32 s27, 7168
    v_mul_lo_u32 v3, v3, s27
    s_lshl_b32 s26, s25, 8
    v_add_u32 v3, s26, v3
    v_lshlrev_b32 v2, 1, v2
    v_and_b32 v4, 15, v1
    v_xor_b32 v2, v2, v4
    v_lshl_add_u32 v12, v2, 4, v3
    v_xor_b32 v2, 8, v2
    v_lshl_add_u32 v14, v2, 4, v3
    """)
    a(f"v_add_u32 v13, {1*(4*7168-1024)}, v12\n v_add_u32 v15, {3*(4*7168-1024)}, v14\n v_add_u32 v14, {2*(4*7168-1024)}, v14")
    a(f"s_mov_b32 s16, 0\n s_mov_b32 s22, 65536\n s_mov_b32 s17, 0\n s_lshl_b32 s21, s3, 12\n s_add_u32 s21, s21, {WB}\n s_lshl_b32 s23, s3, 13")
    def dma_x(h): return [f"buffer_load_dwordx4 v{8+i}, s[4:7], s{(16, 22)[h]} offen offset:{i*1024} lds" for i in range(4)]
    def dma_w(): return [f"buffer_load_dwordx4 v{12+i}, s[8:11], s17 offen offset:{i*1024} lds" for i in range(4)]
    def px(s):
        a(f"s_add_u32 m0, s23, {s*XS}\n s_nop 0")
        for x in dma_x(0): a(x)
        a(f"s_add_u32 m0, s23, {s*XS+4096}\n s_add_u32 s16, s16, 128")
        for x in dma_x(1): a(x)
        a("s_add_u32 s22, s22, 128")
    def pw(s):
        a(f"s_add_u32 m0, s21, {s*WSL}\n s_nop 0")
        for x in dma_w(): a(x)
        a(f"s_add_u32 s17, s17, {32*7168}")
    if opt.tlb:
        a("v_lshlrev_b32 v40, 21, v1\n v_add_u32 v40, 0x100000, v40")
    else: a(f"v_mov_b32 v40, {OOB}")
    if opt.tlb2:
        a(f"""
        s_cmp_eq_u32 s3, 1
        s_cselect_b32 s76, s42, s48
        s_cselect_b32 s77, s43, s49
        s_cselect_b32 s78, {4 << 20}, {32 << 20}
        s_and_b32 s77, s77, 0xffff
        s_mov_b32 s79, 0x20000
        s_mov_b32 s26, {opt.HS}
        s_mov_b32 s27, {opt.HS - 128}
        s_cmp_eq_u32 s3, 1
        s_cselect_b32 s26, 65536, s26
        s_cselect_b32 s27, 0, s27
        s_cmp_eq_u32 s3, 2
        s_cselect_b32 s26, {16*XBS}, s26
        s_cselect_b32 s27, {WS_XB + 4096}, s27
        s_cmp_eq_u32 s3, 3
        s_cselect_b32 s26, {EGS}, s26
        s_cselect_b32 s27, {WS_Y + 520*64}, s27
        v_mul_lo_u32 v41, v1, s26
        v_add_u32 v41, s27, v41
        s_cbranch_scc0 L_tl_done
        v_cmp_lt_u32 vcc, 31, v1
        v_add_u32 v2, {YD - 32*EGS}, v41
        s_nop 0
        v_cndmask_b32 v41, v41, v2, vcc
        v_cmp_eq_u32 vcc, 63, v1
        v_mov_b32 v2, {WS_FL + 4096}
        s_nop 0
        v_cndmask_b32 v41, v41, v2, vcc
        L_tl_done:
        """.replace("s_cselect_b32 s78, 4194304, 33554432", "s_mov_b32 s78, 33554432\n s_cselect_b32 s78, 4194304, s78"))
    a(f"""
    s_lshr_b32 s26, s3, 1
    s_lshl_b32 s26, s26, 7
    v_and_b32 v2, 15, v1
    v_lshrrev_b32 v5, 1, v2
    v_add_u32 v2, s26, v2
    v_lshlrev_b32 v2, 7, v2
    v_lshrrev_b32 v3, 4, v1
    v_xor_b32 v5, v3, v5
    v_lshl_add_u32 v16, v5, 4, v2
    v_xor_b32 v5, 4, v5
    v_lshl_add_u32 v33, v5, 4, v2
    v_lshrrev_b32 v4, 2, v1
    v_and_b32 v4, 3, v4
    v_lshl_add_u32 v5, v3, 3, v4
    v_lshlrev_b32 v5, 8, v5
    v_add_u32 v5, {WB}, v5
    v_and_b32 v6, 3, v1
    v_lshl_add_u32 v5, v6, 3, v5
    v_and_b32 v6, 1, v3
    v_lshl_or_b32 v6, v6, 2, v4
    s_and_b32 s26, s3, 1
    s_lshl_b32 s26, s26, 2
    v_xor_b32 v6, s26, v6
    """)
    for mb in range(4):
        a(f"v_xor_b32 v7, {mb}, v6\n v_lshl_add_u32 v{17+mb}, v7, 5, v5")
    for i in range(5): a(f"v_mov_b32 v{21+i}, v{16+i}")
    def reads(st):
        def wr(mat, mb):
            b = FR(st, mat*4+mb)
            return [f"ds_read_b64_tr_b16 a[{b}:{b+1}], v{22+mb} offset:{mat*8192}",
                    f"ds_read_b64_tr_b16 a[{b+2}:{b+3}], v{22+mb} offset:{mat*8192+1024}"]
        def xr(nb):
            b = FR(st, 8+nb)
            return [f"ds_read_b128 a[{b}:{b+3}], v21 offset:{nb*2048}"]
        r = []
        for i in range(8): r += wr(i & 1, i >> 1) + xr(i)
        return r
    def mf(st):
        m = []
        od = [(nb if (mb*2+mat) % 2 == 0 else 7-nb, mb, mat) for mb in range(4) for mat in range(2) for nb in range(8)]
        for nb, mb, mat in od:
            c = f"v[{ACCG(mb,nb)}:{ACCG(mb,nb)+3}]" if mat == 0 else f"a[{ACCU(mb,nb)}:{ACCU(mb,nb)+3}]"
            fa = FR(st, mat*4+mb); fb_ = FR(st, 8+nb)
            if opt.pw & 1: fa, fb_ = fb_, fa
            x = f"{MF} {c}, a[{fa}:{fa+3}], a[{fb_}:{fb_+3}], {c}"
            if opt.pw & 2:
                c2 = c.replace('v[', 'a[')
                x = f"{MF} {c2}, v[{fa}:{fa+3}], v[{fb_}:{fb_+3}], {c2}"
            m.append(x)
        return m
    if opt.pw & 2:
        reads0 = reads
        reads = lambda st: [x.replace(' a[', ' v[') for x in reads0(st)]
    for i in range(4): a(f"v_mov_b32 v{36+i}, 0")
    a("s_nop 1")
    for i in range(8): a(f"v_mfma_f32_32x32x16_bf16 v[{128+16*i}:{143+16*i}], v[36:39], v[36:39], 0\n v_mfma_f32_32x32x16_bf16 a[{16*i}:{15+16*i}], v[36:39], v[36:39], 0")
    def preblk():
        a(f"""
    s_lshl_b32 s86, s24, 3
    s_lshr_b32 s31, s3, 1
    s_lshl_b32 s31, s31, 2
    s_add_u32 s86, s86, s31
    s_lshl_b32 s68, s86, 11
    s_mul_i32 s86, s86, {opt.HS}
    s_lshl_b32 s31, s25, 13
    s_add_u32 s86, s86, s31
    s_and_b32 s31, s3, 1
    s_lshl_b32 s31, s31, 12
    s_add_u32 s86, s86, s31
    s_lshl_b32 s31, s25, 1
    s_and_b32 s26, s3, 1
    s_add_u32 s31, s31, s26
    s_lshl_b32 s31, s31, 7
    s_add_u32 s68, s68, s31
    s_add_u32 s68, s68, {WS_FL+65536}
    """)
        g2_pre(a, False)
    if opt.prepos == 0: preblk()
    stamp(a, 21)
    pw(0)
    if opt.prepos == 3: preblk()
    a("s_add_u32 m0, s23, 0\n s_nop 0")
    for x in dma_x(0): a(x)
    if opt.prepos == 1: preblk()
    a("s_add_u32 m0, s23, 4096\n s_add_u32 s16, s16, 128")
    for x in dma_x(1): a(x)
    a("s_add_u32 s22, s22, 128")
    pw(1)
    if opt.nf < 3:
        a("s_cmp_lg_u32 s3, 3\n s_cbranch_scc1 L_nf")
        for k in range(opt.nf, 3): a(f"buffer_load_dword v28, v{46+k}, s[4:7], 0 offen")
        a("L_nf:")
    stamp(a, 22)
    if opt.prepos == 2: preblk()
    stamp(a, 1)
    a(f"s_waitcnt vmcnt(4) lgkmcnt(0)\n s_barrier")
    for x in reads(0): a(x)
    nonce(a)
    a(f"s_lshl_b32 s26, s2, 7\n s_add_u32 s26, s26, {WS_FL+393216}\n s_cmp_eq_u32 s3, 0\n s_cselect_b32 s26, s26, {OOB}\n v_and_b32 v43, 15, v1\n v_lshl_add_u32 v43, v43, 3, s26\n v_mov_b32 v44, s98\n v_mov_b32 v45, s99")
    a(f"s_mov_b32 s19, 0\n s_mov_b32 s20, {XS}\n s_mov_b32 s18, 0\n s_mov_b32 s28, {WSL}\n s_mov_b32 s29, 0")
    a("v_mov_b32 v21, v33")
    for i in range(4): a(f"v_add_u32 v{22+i}, s28, v{17+i}")
    a(f"s_mov_b32 s72, {32*7168}\n s_mov_b32 s73, 128\n s_mov_b32 s74, 65536")
    stamp(a, 2)
    for st in (2, 0, 1):
        peel = st == 2
        if peel: st = 0
        if not peel and st == 0: a(".p2align 6\n" + "s_nop 0\n"*opt.shift + "L_g1_loop:")
        if st == 1: a("L_g1_mid:")
        f = {-1: ["s_waitcnt lgkmcnt(0)"]}
        if opt.trace: f[-1] = trace_ops("s18")
        f[0] = [f"s_waitcnt vmcnt({0 if peel else (24, 12)[st]})", "s_barrier"]
        if peel:
            A = Asm(); save = a
            def cap(fn, *args):
                n0 = len(a.l); fn(*args); out = [x.strip() for x in a.l[n0:]]; del a.l[n0:]; return out
            T2 = [f"buffer_load_dword v28, v26, s[80:83], s84 offen {opt.nt_w}", "s_add_u32 s84, s84, s87"]
            T1 = ["buffer_load_dword v28, v42, s[80:83], s84 offen", "s_add_u32 s84, s84, s75"]
            ops = (T2 if opt.r2 == 1 else T1 if opt.r2 == 2 else []) + cap(pw, 2) + (T1 if opt.r2 == 2 and opt.r2b else []) + cap(px, 1) + cap(pw, 3) + (T2 if opt.r3 == 1 else ["buffer_load_dword v28, v42, s[80:83], s84 offen", "s_add_u32 s84, s84, s75"] if opt.r3 == 2 else []) + ["buffer_load_dword v28, v40, s[80:83], 0 offen"] + cap(px, 2) + ["buffer_store_dwordx2 v[44:45], v43, s[12:15], 0 offen sc1"]
            g = 2
            for x in ops:
                if x == 's_nop 0': continue
                f.setdefault(g-1 if 'm0' in x else g, []).append(x)
                if x.startswith('buffer'): g += 2
            assert g <= 63, g
            if opt.stamp: f.setdefault(63, []).extend(["s_memrealtime s[92:93]", "s_waitcnt lgkmcnt(0)", "v_writelane_b32 v31, s92, 41"])
            f.setdefault(63, []).append("s_branch L_g1_mid")
        rd = reads(st ^ 1)
        for i, x in enumerate(rd): f.setdefault(1 + 2*i, []).append(x)
        f.setdefault(2, []).append(f"s_add_u32 s28, s28, {WSL}")
        f.setdefault(4, []).append(f"s_and_b32 s28, s28, {4*WSL-1}")
        f.setdefault(6, []).append("s_add_u32 s18, s18, 1")
        for i in range(4): f.setdefault(50+2*i, []).append(f"v_add_u32 v{22+i}, s28, v{17+i}")
        if st == 0:
            f.setdefault(58, []).append("v_add_u32 v21, s20, v16")
        else:
            f.setdefault(58, []).append("v_add_u32 v21, s19, v33")
            dq = dma_w() + dma_w() + dma_x(0) + dma_x(1)
            dp = opt.dp if hasattr(opt, 'dp') else [2 + 4*i - (i > 11)*(i-11) for i in range(16)]
            f[0].append("s_add_u32 m0, s21, s29")
            for i, x in enumerate(dq): f.setdefault(dp[i], []).append(x)
            f[dp[3]] += [f"s_add_u32 m0, m0, {WSL}", "s_add_u32 s17, s17, s72"]
            f[dp[7]] += ["s_add_u32 m0, s23, s19", "s_add_u32 s17, s17, s72"]
            f[dp[8]] += [f"s_xor_b32 s29, s29, {2*WSL}"]
            f[dp[9]] += ["s_mov_b32 s19, s20"]
            f[dp[10]] += [f"s_add_u32 s20, s20, {XS}", f"s_cmp_eq_u32 s20, {3*XS}"]
            f[dp[11]] += ["s_cselect_b32 s20, 0, s20", "s_add_u32 m0, m0, 4096"]
            f[dp[12]] += ["s_add_u32 s16, s16, s73"]
            f[dp[15]] += ["s_cmp_ge_u32 s18, 26", "s_cbranch_scc1 L_g1_sw", "L_g1_swd:", "s_add_u32 s22, s16, s74"]
            f.setdefault(62, []).extend([f"buffer_load_dword v28, v27, s[80:83], s84 offen {opt.tflags}", "s_add_u32 s84, s84, s85"])
            f[62] += ["s_cmp_lg_u32 s18, 4", "s_cbranch_scc1 L_g1_noseq", "buffer_load_dword v28, v34, s[36:39], 0 offen"] + (["buffer_load_dword v28, v41, s[76:79], 0 offen"] if opt.tlb2 else []) + ["L_g1_noseq:"]
            f.setdefault(63, []).extend(["s_cmp_lt_u32 s18, 32", "s_cbranch_scc1 L_g1_loop"])
        interleave(a, mf(st), f)
    a("s_branch L_g1_done")
    a("L_g1_sw:\n s_cmp_eq_u32 s18, 26\n s_cbranch_scc0 L_g1_sw2\n s_mov_b64 s[4:5], s[32:33]\n s_mov_b32 s6, s34")
    for i in range(4): a(f"v_mov_b32 v{8+i}, v{V_WX+i}")
    a(f"s_mov_b32 s16, s41\n s_mov_b32 s74, {16*2048}\n s_branch L_g1_swd")
    a("L_g1_sw2:\n s_cmp_eq_u32 s18, 28\n s_cselect_b32 s16, s42, s40\n s_branch L_g1_swd")
    a("L_g1_done:")
    stamp(a, 3)
    if opt.xdft: a("s_branch L_end")
    c0 = -2*math.sqrt(2/math.pi)*math.log2(math.e); c1 = c0*0.044715
    a(f"s_mov_b32 s26, {fbits(c0)}\n s_mov_b32 s28, {fbits(c1)}\n s_mov_b32 s29, {fbits(c1)}")
    a("v_mov_b32 v24, s26\n v_mov_b32 v25, s26\n v_mov_b32 v2, 0\n v_mov_b32 v3, 0\n v_mov_b32 v4, 0\n v_mov_b32 v5, 0\n s_waitcnt lgkmcnt(0)")
    a(f"s_lshr_b32 s27, s3, 1\n s_lshl_b32 s27, s27, 15\n s_and_b32 s26, s3, 1\n s_lshl_b32 s26, s26, 12\n s_add_u32 s26, s26, s27\n s_add_u32 s26, s26, {OWNL}\n v_add_u32 v29, s26, v{V_L16}")
    for nb in range(8):
        g0 = ACCG(0, nb); u0 = ACCU(0, nb)
        U = 32 + (nb % 2)*32; Z = U+16; O = g0
        for i in range(16): a(f"v_accvgpr_read_b32 v{U+i}, a{u0+i}")
        for i in range(0, 16, 2): a(f"v_pk_mul_f32 v[{Z+i}:{Z+i+1}], v[{g0+i}:{g0+i+1}], v[{g0+i}:{g0+i+1}]")
        for i in range(0, 16, 2): a(f"v_pk_fma_f32 v[{Z+i}:{Z+i+1}], v[{Z+i}:{Z+i+1}], s[28:29], v[24:25]")
        for i in range(0, 16, 2): a(f"v_pk_mul_f32 v[{Z+i}:{Z+i+1}], v[{Z+i}:{Z+i+1}], v[{g0+i}:{g0+i+1}]")
        for i in range(16): a(f"v_exp_f32 v{Z+i}, v{Z+i}")
        for i in range(0, 16, 2): a(f"v_pk_mul_f32 v[{U+i}:{U+i+1}], v[{U+i}:{U+i+1}], v[{g0+i}:{g0+i+1}]")
        for i in range(0, 16, 2): a(f"v_pk_add_f32 v[{Z+i}:{Z+i+1}], v[{Z+i}:{Z+i+1}], 1.0 op_sel_hi:[1,0]")
        for i in range(16): a(f"v_rcp_f32 v{Z+i}, v{Z+i}")
        a("s_nop 0")
        for i in range(0, 16, 2): a(f"v_pk_mul_f32 v[{U+i}:{U+i+1}], v[{U+i}:{U+i+1}], v[{Z+i}:{Z+i+1}]")
        for i in range(0, 16, 2): a(f"v_cvt_pk_bf16_f32 v{O+i//2}, v{U+i}, v{U+i+1}")
        for p in range(2):
            off = (nb >> 1)*opt.HS + (p*2 + (nb & 1))*1024
            a(f"s_add_u32 s31, s86, {off}")
            a(f"buffer_store_dwordx4 v[{O+4*p}:{O+4*p+3}], v{V_L16}, s[12:15], s31 offen {opt.hflags}")
        if nb == 0: a("s_waitcnt vmcnt(2)\n s_barrier")
        a(f"ds_write_b128 v29, v[{O}:{O+3}] offset:{(nb >> 1)*8192 + (nb & 1)*1024}\n ds_write_b128 v29, v[{O+4}:{O+7}] offset:{(nb >> 1)*8192 + (nb & 1)*1024 + 2048}")
        if nb == 3: g2_zero(a, 2, 0, 4)
        if nb == 6: g2_zero(a, 2, 4, 7)
    stamp(a, 4)
    g2_zero(a, 2, 7, 8)
    a(f"s_lshl_b32 s26, s3, 14\n s_lshr_b32 s27, s96, 1\n s_lshl_b32 s27, s27, 13\n s_add_u32 s26, s26, {OWNL}\n s_add_u32 s27, s27, s26\n v_add_u32 v29, s27, v{V_L16}\n v_xor_b32 v10, 8192, v29\n s_waitcnt lgkmcnt(0)\n s_barrier")
    for st in range(4):
        for nb in range(4): a(f"ds_read_b128 v[{128+16*st+4*nb}:{131+16*st+4*nb}], v{(29, 10)[nb >> 1]} offset:{st*2048 + (nb & 1)*1024}")
    stamp(a, 5)

RAW = 64; GT = 192; EU = 208; SV = 216
def fold_loads(a, vm):
    a("""
    s_lshl_b32 s26, s66, 2
    s_add_u32 s26, s26, s67
    s_lshl_b32 s26, s26, 4
    v_lshrrev_b32 v40, 3, v1
    v_add_u32 v40, s26, v40
    v_cmp_eq_u32 s[62:63], 0, v40
    v_and_b32 v2, 7, v1
    v_cmp_eq_u32 s[70:71], 0, v2
    v_add_u32 v44, 8, v40
    v_lshlrev_b32 v2, 4, v2
    s_lshl_b32 s26, s3, 8
    v_add_u32 v2, s26, v2
    v_sub_u32 v3, 1904, v2
    v_sub_u32 v41, 2048, v40
    v_sub_u32 v42, 1024, v40
    v_add_u32 v43, 1024, v40
    v_sub_u32 v45, 2048, v44
    v_sub_u32 v46, 1024, v44
    v_add_u32 v47, 1024, v44
    v_mov_b32 v4, 512
    v_mov_b32 v5, 1536
    v_cndmask_b32 v41, v41, v4, s[62:63]
    v_cndmask_b32 v43, v43, v5, s[62:63]
    s_sub_u32 s74, 2048, s26
    """)
    for k in range(8): a(f"v_lshl_add_u32 v{224+8*(k>>2)+(k&3)}, v{40+k}, 11, v2\n v_lshl_add_u32 v{228+8*(k>>2)+(k&3)}, v{40+k}, 11, v3")
    for gi in range(2):
        a(f"buffer_load_dwordx4 v[{GT+8*gi}:{GT+8*gi+3}], v2, s[32:35], 0 offen offset:{gi*128}")
        a(f"buffer_load_dwordx4 v[{GT+8*gi+4}:{GT+8*gi+7}], v3, s[32:35], 0 offen offset:{(1-gi)*128}")
        vm.add('g', 2)
def fold_round_loads(a, vm, rnd):
    if True:
        hf, gi = rnd >> 1, rnd & 1
        b = RAW + 32*rnd
        for i in range(4):
            a(f"buffer_load_dwordx4 v[{b+8*i}:{b+8*i+3}], v{224+8*hf+i}, s[4:7], 0 offen offset:{gi*128}")
            a(f"buffer_load_dwordx4 v[{b+8*i+4}:{b+8*i+7}], v{228+8*hf+i}, s[4:7], 0 offen offset:{(1-gi)*128}")
        if gi == 0:
            for i in range(4):
                a(f"v_lshlrev_b32 v4, 11, v{40+4*hf+i}\n buffer_load_ushort v{EU+4*hf+i}, v4, s[4:7], s74 offen")
            vm.add(f'r{rnd}', 12)
        else: vm.add(f'r{rnd}', 8)
def fold_compute(a, vm, between):
    LP = 8; UU = 16
    a(f"v_mov_b32 v24, {ALT}")
    for r in range(8, 24): a(f"v_mov_b32 v{r}, 0")
    a(f"""
    s_lshl_b32 s26, s66, 2
    s_add_u32 s26, s26, s67
    s_lshr_b32 s27, s26, 2
    s_lshl_b32 s27, s27, 16
    s_and_b32 s26, s26, 3
    s_lshl_b32 s26, s26, 10
    s_add_u32 s26, s26, s27
    s_lshl_b32 s27, s3, 14
    s_add_u32 s26, s26, s27
    s_add_u32 s22, s26, {WS_Z}
    v_bfe_u32 v2, v1, 2, 1
    v_lshlrev_b32 v25, 12, v2
    v_and_b32 v2, 3, v1
    v_lshl_add_u32 v25, v2, 8, v25
    v_lshrrev_b32 v2, 3, v1
    v_lshl_add_u32 v25, v2, 4, v25
    s_cmp_eq_u32 s3, 0
    s_cselect_b64 s[72:73], s[70:71], 0
    """)
    T = 240
    for rnd in range(4):
        hf, gi = rnd >> 1, rnd & 1
        b = RAW + 32*rnd; g = GT + 8*gi
        S = [224, RAW+96 if rnd < 2 else RAW+8, 48, 56]
        vm.wait(a, f'r{rnd}')
        if rnd in (0, 1): stamp(a, 19+2*rnd)
        for j in range(4):
            for i in range(4):
                a(f"v_dot2_f32_bf16 v{LP+4*hf+i}, v{b+8*i+j}, v{g+j}, v{LP+4*hf+i}")
            for i in range(4):
                a(f"v_dot2_f32_bf16 v{LP+4*hf+i}, v{b+8*i+4+j}, v{g+4+j}, v{LP+4*hf+i}")
        if hf == 0:
            for i in (1, 3):
                for j in range(8): a(f"v_cndmask_b32 v{b+8*i+j}, v{b+8*i+j}, 0, s[62:63]")
                if gi == 0: a(f"v_cndmask_b32 v{EU+i}, v{EU+i}, 0, s[62:63]")
        if gi == 0:
            for i in range(4): a(f"v_cndmask_b32 v{EU+4*hf+i}, v{EU+4*hf+i}, 0, s[72:73]")
            for i in range(4): a(f"v_mov_b32 v{SV+i}, v{b+8*i+4}")
        else:
            for i in range(4): a(f"v_mov_b32_dpp v{EU+4*hf+i}, v{SV+i} row_shl:7 row_mask:0xf bank_mask:0xf")
            for i in range(4): a(f"v_lshlrev_b32 v{2+i}, 16, v{b+8*i+4}")
            a(f"v_add_f32 v2, v2, v3\n v_add_f32 v4, v4, v5\n v_add_f32 v{26+2*hf}, v2, v4\n v_sub_f32 v{27+2*hf}, v2, v4")
        for i in range(4): a(f"v_mov_b32_dpp v{SV+4+i}, v{b+8*i+4} row_shr:1 row_mask:0xf bank_mask:0xf")
        for i in range(4): a(f"v_cndmask_b32 v{SV+4+i}, v{SV+4+i}, v{EU+4*hf+i}, s[70:71]")
        for i in range(4):
            for j in range(8): a(unp(T+j, b+8*i, j))
            a(f"v_lshlrev_b32 v{T+8}, 16, v{SV+4+i}")
            for j in range(1, 8): a(unp(T+8+j, b+8*i+4, 8-j))
            for j in range(0, 8, 2):
                a(pk('', S[i]+j, T+j, T+8+j))
                a(pk('', b+8*i+j, T+j, T+8+j, neg=True))
        for j in range(0, 8, 2):
            a(pk('', S[0]+j, S[0]+j, S[1]+j)); a(pk('', S[2]+j, S[2]+j, S[3]+j))
            a(pk('', b+j, b+j, b+8+j, neg=True)); a(pk('', b+16+j, b+16+j, b+24+j, neg=True))
        for j in range(0, 8, 2):
            a(pk('', S[1]+j, S[0]+j, S[2]+j)); a(pk('', S[3]+j, S[0]+j, S[2]+j, neg=True))
            a(pk('', b+8+j, b+j, b+16+j, neg=True)); a(pk('', b+24+j, b+j, b+16+j))
        for j in range(0, 8, 2):
            a(pk('', UU+4*hf, UU+4*hf, S[1]+j)); a(pk('', UU+4*hf+2, UU+4*hf+2, S[3]+j))
        for cls, src in enumerate((S[1], S[3], b+8, b+24)):
            o = b + 4*(cls & 1) + 16*(cls >> 1)
            for j in range(4): a(f"v_cvt_pk_bf16_f32 v{o+j}, v{src+2*j}, v{src+2*j+1}")
            a(f"s_add_u32 s26, s22, {cls*524288 + gi*8192 + hf*128}")
            a(f"buffer_store_dwordx4 v[{o}:{o+3}], v25, s[12:15], s26 offen sc1")
            vm.add('st')
        if rnd in (0, 1): stamp(a, 20+2*rnd)
        between(rnd)
    a("""
    s_cmp_eq_u32 s3, 3
    s_cselect_b32 s26, 0x80808080, 0
    s_mov_b32 s27, s26
    v_sub_f32 v16, v16, v17
    v_sub_f32 v17, v18, v19
    v_sub_f32 v18, v20, v21
    v_sub_f32 v19, v22, v23
    """)
    for k in range(4): a(f"v_cndmask_b32 v{20+k}, 0, v{26+k}, s[26:27]")
    for k in range(4): a(f"v_add_f32 v{16+k}, v{16+k}, v{20+k}")
    a("s_nop 0")
    for ctl in ("quad_perm:[1,0,3,2]", "quad_perm:[2,3,0,1]", "row_half_mirror"):
        for r in range(8, 20): a(f"v_add_f32_dpp v{r}, v{r}, v{r} {ctl} row_mask:0xf bank_mask:0xf")
    a(f"""
    s_lshl_b32 s26, s3, 2
    s_lshl_b32 s27, s3, 11
    s_add_u32 s27, s27, {WS_UP}
    s_mov_b32 s28, {WS_CV}
    s_add_u32 s29, s27, 8192
    """)
    for k in range(8): a(f"v_lshl_add_u32 v{68+k}, v{40+k}, 4, s26")
    a(f"v_lshlrev_b32 v76, 2, v40\n s_mov_b32 s26, {WS_LP}\n s_mov_b64 exec, s[70:71]")
    for k in range(8): a(f"buffer_store_dword v{8+k}, v{68+k}, s[12:15], s26 offen sc1")
    for hf in range(2):
        a(f"buffer_store_dword v{16+2*hf}, v76, s[12:15], s27 offen offset:{32*hf} sc1\n buffer_store_dword v{17+2*hf}, v76, s[12:15], s29 offen offset:{32*hf} sc1")
    a(f"""
    s_mov_b64 exec, -1
    s_cmp_lg_u32 s3, 3
    s_cbranch_scc1 L_fc2
    s_mov_b32 exec_lo, 0x80808080
    s_mov_b32 exec_hi, 0x80808080
    buffer_store_dword v26, v76, s[12:15], s28 offen sc1
    buffer_store_dword v27, v76, s[12:15], s28 offen offset:2048 sc1
    buffer_store_dword v28, v76, s[12:15], s28 offen offset:32 sc1
    buffer_store_dword v29, v76, s[12:15], s28 offen offset:2080 sc1
    s_mov_b64 exec, -1
    L_fc2:
    """)

def sh_voff(a, vb, rs_shift, srow):
    a(f"""
    v_lshrrev_b32 v2, 3, v1
    s_lshl_b32 s26, s3, 5
    v_add_u32 v2, s26, v2
    v_lshlrev_b32 v2, {rs_shift}, v2
    v_add_u32 v2, s{srow}, v2
    v_lshrrev_b32 v3, 4, v1
    v_and_b32 v4, 7, v1
    v_xor_b32 v3, v3, v4
    v_lshl_add_u32 v{vb}, v3, 4, v2
    v_xor_b32 v3, 4, v3
    v_lshl_add_u32 v{vb+1}, v3, 4, v2
    v_add_u32 v{vb+2}, {2*((8<<rs_shift)-1024)}, v{vb}
    v_add_u32 v{vb+3}, {3*((8<<rs_shift)-1024)}, v{vb+1}
    v_add_u32 v{vb+1}, {((8<<rs_shift)-1024)}, v{vb+1}
    """)
def sh_touch(a, sr, rs_shift, srow):
    a(f"""
    s_lshl_b32 s26, s67, 5
    s_lshl_b32 s27, s3, 3
    s_add_u32 s26, s26, s27
    v_lshrrev_b32 v2, 3, v1
    v_add_u32 v2, s26, v2
    v_lshlrev_b32 v2, {rs_shift}, v2
    v_and_b32 v3, 7, v1
    v_lshl_add_u32 v2, v3, 7, v2
    buffer_load_dword a255, v2, s[{sr}:{sr+3}], s{srow} offen
    """)
def sh_dma(vb, sr): return [f"buffer_load_dwordx4 v{vb+i}, s[{sr}:{sr+3}], s17 offen offset:{i*1024} lds" for i in range(4)]

def dloop(a, name, nm, accb, dma, extra=False, first=True, init=None, D=8, inc=128, mid=None):
    PB = 128; SF = 64
    def pl(i, off): return f"buffer_load_dwordx4 v[{PB+4*i}:{PB+4*i+3}], v12, s[32:35], s16 offen offset:{off} sc1"
    def sreads(st, ks): return [f"ds_read_b128 v[{SF+st*32+4*nb}:{SF+st*32+4*nb+3}], v{18+ks} offset:{nb*2048}" for nb in range(8)]
    if first:
        a("s_mov_b32 s16, 0")
        for t in range(D):
            for i in range(nm): a(pl(t*nm+i, i*1024))
            a(f"s_add_u32 s16, s16, {nm*1024}")
        a("v_mov_b32 v18, v16\n v_mov_b32 v19, v17")
        for x in sreads(0, 0): a(x)
        a(f"s_mov_b32 s19, 0\n s_mov_b32 s20, {SLOT3}\n ")
        init()
    a(f"s_mov_b32 s18, 0\n s_mov_b32 s17, 0")
    a(f".p2align 6\nL_{name}_loop:")
    NM = 8*nm
    if mid: mid()
    for t in range(8):
        ks = t & 1
        ms = []
        for mb in range(nm):
            for nb in range(8):
                c = accb + (nb*nm+mb)*4; pa = PB + ((t % D)*nm+mb)*4; sb = SF + ks*32 + nb*4
                ms.append(f"{MF} a[{c}:{c+3}], v[{pa}:{pa+3}], v[{sb}:{sb+3}], a[{c}:{c+3}]")
        f = {-1: [f"s_waitcnt vmcnt({(D-1)*nm}) lgkmcnt(0)"]}
        if extra:
            L = f"L_{name}_x{t}"
            f[-1] += ["s_cmp_eq_u32 s31, 0", f"s_cbranch_scc1 {L}"] + \
                     [f"{MF} a[{128+4*mb}:{131+4*mb}], v[{PB+(t*nm+mb)*4}:{PB+(t*nm+mb)*4+3}], v[24:27], a[{128+4*mb}:{131+4*mb}]" for mb in range(nm)] + [f"{L}:"]
        if ks == 1:
            f[0] = ["s_barrier", "v_add_u32 v18, s20, v16"]
            rd = sreads(0, 0)
        else:
            rd = sreads(1, 1)
        sp = NM // 16
        for k, x in enumerate(rd): f.setdefault(1+sp*k, []).append(x)
        for mb in range(nm): f.setdefault(8*mb+7, []).append(pl((t % D)*nm+mb, mb*1024))
        f[NM-1].append(f"s_add_u32 s16, s16, {nm*1024}")
        if ks == 1:
            if dma:
                f.setdefault(1, []).append("s_add_u32 m0, s21, s19")
                for k, x in enumerate(sh_dma(*dma)): f.setdefault(2+(NM//5)*k, []).append(x)
                f.setdefault(NM-3, []).append(f"s_add_u32 s17, s17, {inc}")
            f.setdefault(NM//2+1, []).append("v_add_u32 v19, s20, v17")
            f.setdefault(NM-3, []).extend(["s_mov_b32 s19, s20", f"s_add_u32 s20, s20, {SLOT3}"])
            f.setdefault(NM-2, []).append(f"s_and_b32 s20, s20, {R3*SLOT3-1}")
        interleave(a, ms, f)
    a(f"s_add_u32 s18, s18, 1\n s_cmp_lt_u32 s18, 2\n s_cbranch_scc1 L_{name}_loop")

def tile_vec(a, vec):
    a("""
    s_lshl_b32 s26, s67, 5
    s_lshl_b32 s27, s3, 3
    s_add_u32 s26, s26, s27
    s_lshl_b32 s27, s26, 7
    v_lshrrev_b32 v2, 3, v1
    v_lshlrev_b32 v2, 14, v2
    v_add_u32 v2, s27, v2
    s_lshr_b32 s26, s26, 1
    v_and_b32 v3, 7, v1
    v_xor_b32 v3, s26, v3
    v_and_b32 v3, 7, v3
    """)
    for i in range(8):
        a(f"v_xor_b32 v4, {i>>1}, v3\n v_lshl_add_u32 v4, v4, 4, v2\n ds_read_b128 v[{96+4*i}:{99+4*i}], v4 offset:{i*128}")
    for i in range(8): a(f"v_mov_b32 v{40+i}, 0")
    a("s_waitcnt lgkmcnt(0)")
    for j in range(4):
        for i in range(8): a(f"v_dot2_f32_bf16 v{40+i}, v{96+4*i+j}, v{vec+j}, v{40+i}")
    a("s_nop 2")
    reduce_lanes(a, list(range(40, 48)), 48, ['ror1', 'ror2', 'ror4', 'ror8', 'p16', 'p32'])
    for i in range(1, 8): a(f"v_cmp_eq_u32 vcc, {i}, v1\n s_nop 1\n v_cndmask_b32 v40, v40, v{40+i}, vcc")

def acc_load(a, nm, vb, svec, wshift, off=0):
    a(f"v_lshrrev_b32 v2, 4, v1\n v_lshlrev_b32 v2, 4, v2\n s_lshl_b32 s26, s3, {wshift}\n v_add_u32 v2, s26, v2")
    for mb in range(nm): a(f"buffer_load_dwordx4 v[{vb+4*mb}:{vb+3+4*mb}], v2, s[12:15], s{svec} offen offset:{off+mb*64} sc1")
def acc_init(a, nm, vb, accb, sscale, withx=False):
    a(f"v_lshlrev_b32 v3, 31, v1")
    for i in range(4*nm): a(f"v_mul_f32 v{vb+i}, s{sscale}, v{vb+i}")
    if withx:
        for i in range(4*nm): a(f"v_accvgpr_write_b32 a{128+i}, v{vb+i}")
    for i in range(4*nm): a(f"v_xor_b32 v{vb+i}, v3, v{vb+i}")
    for nb in range(8):
        for i in range(4*nm): a(f"v_accvgpr_write_b32 a{accb+nb*4*nm+i}, v{vb+i}")

def dft(a):
    vm = VM()
    srd(a, 32, 60, 2048)
    a("""
    v_lshlrev_b32 v2, 4, v1
    v_sub_u32 v3, 2032, v2
    s_mov_b32 s26, 0x100000
    s_mov_b32 s27, 0x300000
    buffer_load_dwordx4 v[128:131], v2, s[4:7], s26 offen
    buffer_load_dwordx4 v[132:135], v3, s[4:7], s26 offen
    buffer_load_dwordx4 v[140:143], v2, s[4:7], s27 offen
    buffer_load_dwordx4 v[144:147], v3, s[4:7], s27 offen
    """); vm.add('z', 4)
    fold_loads(a, vm)
    fold_round_loads(a, vm, 0); fold_round_loads(a, vm, 1)
    a("s_lshr_b32 s30, s66, 2\n s_cmp_eq_u32 s30, 0\n s_cselect_b32 s26, s56, s58\n s_cselect_b32 s27, s57, s59")
    srd(a, 8, 26, 1024*1024*2)
    a("s_and_b32 s25, s66, 3\n s_lshl_b32 s25, s25, 18\n s_lshl_b32 s21, s3, 12")
    sh_voff(a, 32, 11, 25)
    srd(a, 36, 52, 2048*2048*2)
    srd(a, 80, 54, 2048*2048*2)
    a("s_and_b32 s24, s66, 3\n s_lshl_b32 s24, s24, 8\n s_add_u32 s24, s24, s30\n s_lshl_b32 s24, s24, 12")
    a("s_waitcnt lgkmcnt(0)\n s_mov_b32 s17, 0")
    nonce(a)
    started(a)
    stamp(a, 9)
    vm.wait(a, 'z')
    a("v_mov_b32 v136, 0\n v_mov_b32 v148, 0\n s_cmp_eq_u32 s30, 0\n s_cselect_b32 s26, 1.0, -1.0")
    a("v_mov_b32_dpp v136, v132 wave_shr:1 row_mask:0xf bank_mask:0xf\n v_mov_b32_dpp v148, v144 wave_shr:1 row_mask:0xf bank_mask:0xf")
    for k, b in enumerate((128, 140)):
        for j in range(8): a(unp(160+16*k+j, b, j))
        a(f"v_lshlrev_b32 v{168+16*k}, 16, v{b+8}")
        for j in range(1, 8): a(unp(168+16*k+j, b+4, 8-j))
    for j in range(16): a(f"v_fma_f32 v{160+j}, v{176+j}, s26, v{160+j}")
    for j in range(8): a(f"v_fma_f32 v{160+j}, v{168+j}, s26, v{160+j}")
    for j in range(4): a(f"v_cvt_pk_bf16_f32 v{36+j}, v{160+2*j}, v{161+2*j}")
    a("v_lshlrev_b32 v2, 16, v132\n v_lshlrev_b32 v3, 16, v144\n v_add_f32 v2, v2, v3\n s_nop 0\n v_readlane_b32 s75, v2, 63\n s_cselect_b32 s75, s75, 0")
    a(pk('', 160, 160, 162)); a(pk('', 164, 164, 166)); a(pk('', 160, 160, 164)); a("v_sub_f32 v160, v160, v161")
    reduce_lanes(a, [160], 176, ['ror1', 'ror2', 'ror4', 'ror8', 'p16', 'p32'])
    a("v_add_f32 v160, s75, v160\n s_nop 0\n v_readfirstlane_b32 s97, v160")
    def between(rnd):
        if rnd < 2: fold_round_loads(a, vm, rnd+2)
        for s in ((0, 1, 2), (3, 4, 5), (6, 7), ())[rnd]:
            a(f"s_add_u32 m0, s21, {s*SLOT3}\n s_nop 0")
            for x in sh_dma(32, 8): a(x)
            a("s_add_u32 s17, s17, 128")
            vm.add('pf', 4)
    fold_compute(a, vm, between)
    stamp(a, 1)
    a(f"s_lshl_b32 s23, s66, 2\n s_add_u32 s23, s23, s67\n s_lshl_b32 s23, s23, 7\n s_add_u32 s23, s23, {WS_FL+16384}")
    publish(a, 's23')
    for i in range(4): a(f"v_mov_b32 v{56+i}, 0")
    tile_vec(a, 36)
    for i in range(8): a(f"v_mfma_f32_32x32x16_bf16 a[{16*i}:{15+16*i}], v[56:59], v[56:59], 0")
    a(f"""
    v_lshlrev_b32 v2, 31, v1
    v_xor_b32 v2, s75, v2
    v_add_f32 v40, v40, v2
    s_lshl_b32 s26, s66, 7
    s_lshl_b32 s27, s67, 5
    s_add_u32 s26, s26, s27
    s_lshl_b32 s27, s3, 3
    s_add_u32 s26, s26, s27
    s_lshl_b32 s26, s26, 2
    s_add_u32 s26, s26, {WS_RV}
    v_lshlrev_b32 v2, 2, v1
    s_mov_b64 exec, 0xff
    buffer_store_dword v40, v2, s[12:15], s26 offen sc1
    s_mov_b64 exec, -1
    """)
    stamp(a, 10)
    sh_voff(a, 20, 13, 24)
    a("v_lshlrev_b32 v12, 4, v1")
    a("""
    v_and_b32 v2, 15, v1
    v_lshrrev_b32 v3, 1, v2
    v_lshrrev_b32 v4, 4, v1
    v_xor_b32 v3, v3, v4
    v_lshlrev_b32 v2, 7, v2
    v_lshl_add_u32 v16, v3, 4, v2
    v_xor_b32 v3, 4, v3
    v_lshl_add_u32 v17, v3, 4, v2
    """)
    a(f"""
    s_lshl_b32 s26, s30, 1
    s_lshr_b32 s27, s67, 1
    s_add_u32 s26, s26, s27
    s_lshl_b32 s26, s26, 3
    s_and_b32 s27, s67, 1
    s_lshl_b32 s27, s27, 2
    s_add_u32 s26, s26, s27
    s_add_u32 s26, s26, s3
    s_lshl_b32 s26, s26, 16
    s_add_u32 s22, s26, {WS_Z}
    """)
    srd_ws(a, 32, 22, 65536)
    a(f"s_and_b32 s23, s67, 1\n s_lshl_b32 s23, s23, 2\n s_add_u32 s23, s23, s3\n s_lshl_b32 s23, s23, 9\n s_add_u32 s23, s23, {WS_FL+16384}")
    poll(a, [('s23', '0xf')], cnt=4)
    stamp(a, 2)
    a(f"s_lshl_b32 s22, s67, 10\n s_add_u32 s22, s22, {WS_CV}\n s_cmp_eq_u32 s30, 0\n s_cselect_b32 s23, 1.0, 0")
    acc_load(a, 4, 192, 22, 8)
    a("s_mov_b32 s74, s23")
    dloop(a, 'd1', 4, 0, (20, 36), D=4, mid=lambda: a(f"s_mov_b32 s31, {WS_FL+16384}\n v_and_b32 v6, 31, v1\n v_lshlrev_b32 v6, 7, v6\n buffer_load_dwordx2 v[48:49], v6, s[12:15], s31 offen sc1"), init=lambda: stamp(a, 11))
    a("s_lshl_b32 s22, s30, 13\n" + f"s_add_u32 s22, s22, {WS_UP}\n v_lshlrev_b32 v2, 5, v1\n s_add_u32 s23, s22, 4096")
    a(f"s_waitcnt lgkmcnt(0)\n s_nop 7")
    stamp(a, 3)
    a("v_cmp_ne_u32 vcc, s98, v48\n v_cmp_ne_u32 s[28:29], s99, v49\n s_or_b64 vcc, vcc, s[28:29]\n s_and_b64 vcc, vcc, 0xffffffff\n s_cbranch_scc0 L_uok")
    poll(a, [('s31', '0xffffffff')], cnt=32)
    a("s_waitcnt vmcnt(0)\n L_uok:")
    for i in range(8): a(f"buffer_load_dwordx4 v[{128+4*i}:{131+4*i}], v2, s[12:15], s{22+(i>>2)} offen offset:{((i>>1)&1)*2048+(i&1)*16} sc1")
    a(f"""
    v_lshrrev_b32 v2, 4, v1
    v_and_b32 v3, 1, v2
    v_lshrrev_b32 v2, 1, v2
    v_lshl_add_u32 v2, v3, 1, v2
    v_and_b32 v3, 15, v1
    v_lshlrev_b32 v3, 4, v3
    v_lshl_add_u32 v14, v2, 8, v3
    s_lshr_b32 s26, s67, 1
    s_lshl_b32 s26, s26, 4
    s_and_b32 s27, s66, 3
    s_lshl_b32 s27, s27, 2
    s_add_u32 s26, s26, s27
    s_lshl_b32 s26, s26, 16
    s_lshl_b32 s27, s30, 15
    s_add_u32 s26, s26, s27
    s_and_b32 s27, s67, 1
    s_lshl_b32 s27, s27, 14
    s_add_u32 s26, s26, s27
    s_lshl_b32 s27, s3, 12
    s_add_u32 s26, s26, s27
    s_add_u32 s25, s26, {WS_AT}
    """)
    a("v_lshlrev_b32 v3, 31, v1")
    for i in range(16): a(f"v_mul_f32 v{192+i}, s74, v{192+i}\n v_xor_b32 v{192+i}, v3, v{192+i}")
    for nb in range(8):
        t = 32 + (nb & 1)*24
        for i in range(16): a(f"v_accvgpr_read_b32 v{t+i}, a{nb*16+i}")
        for i in range(0, 16, 2): a(pk('', t+i, t+i, 192+i))
        for i in range(8): a(f"v_cvt_pk_bf16_f32 v{t+16+i}, v{t+2*i}, v{t+2*i+1}")
        a("s_nop 1")
        for p in range(2):
            a(f"v_permlane16_swap_b32 v{t+16+4*p}, v{t+18+4*p}\n v_permlane16_swap_b32 v{t+17+4*p}, v{t+19+4*p}")
        for p in range(2):
            a(f"s_add_u32 s26, s25, {(nb >> 1)*65536 + p*2048 + (nb & 1)*1024}")
            a(f"buffer_store_dwordx4 v[{t+16+4*p}:{t+19+4*p}], v14, s[12:15], s26 offen sc1")
    a(f"s_and_b32 s26, s66, 3\n s_lshl_b32 s26, s26, 1\n s_add_u32 s26, s26, s30\n s_lshl_b32 s26, s26, 2\n s_add_u32 s26, s26, s67\n s_lshl_b32 s26, s26, 7\n s_add_u32 s23, s26, {WS_FL+24576}")
    stamp(a, 12)
    publish(a, 's23')
    stamp(a, 13)
    for i in range(4): a(f"v_mov_b32 v{56+i}, 0")
    a("s_nop 1")
    for i in range(9): a(f"v_mfma_f32_32x32x16_bf16 a[{16*i}:{15+16*i}], v[56:59], v[56:59], 0")
    for j in range(0, 8, 2): a(pk('', 128+j, 128+j, 136+j)); a(pk('', 144+j, 144+j, 152+j))
    for j in range(0, 8, 2): a(pk('', 128+j, 128+j, 144+j))
    for j in range(4): a(f"v_cvt_pk_bf16_f32 v{60+j}, v{128+2*j}, v{129+2*j}")
    tile_vec(a, 60)
    a(f"s_lshl_b32 s23, s67, 10\n s_add_u32 s23, s23, {WS_FL+24576}\n v_and_b32 v6, 7, v1\n v_lshlrev_b32 v6, 7, v6\n buffer_load_dwordx2 v[56:57], v6, s[12:15], s23 offen sc1")
    a(f"v_mov_b32 v41, 0\n v_mov_b32 v42, {ALT}")
    for j in range(4): a(f"v_dot2_f32_bf16 v41, v{60+j}, v42, v41")
    a("s_nop 2")
    reduce_lanes(a, [41], 48, ['ror1', 'ror2', 'ror4', 'ror8', 'p16', 'p32'])
    a(f"""
    v_cmp_eq_u32 vcc, 8, v1
    s_cmp_eq_u32 s30, 0
    s_cselect_b32 s26, 1.0, 0
    v_cndmask_b32 v40, v40, v41, vcc
    v_mov_b32 v160, s97
    v_mul_f32 v160, s26, v160
    v_lshlrev_b32 v2, 31, v1
    v_xor_b32 v2, v2, v160
    v_add_f32 v40, v40, v2
    v_cvt_pk_bf16_f32 v40, v40, v40
    s_and_b32 s26, s66, 3
    s_lshl_b32 s26, s26, 7
    s_lshl_b32 s27, s67, 5
    s_add_u32 s26, s26, s27
    s_lshl_b32 s27, s3, 3
    s_add_u32 s26, s26, s27
    v_add_u32 v3, s26, v1
    v_mov_b32 v4, 512
    v_cndmask_b32 v3, v3, v4, vcc
    v_lshlrev_b32 v3, 6, v3
    s_mul_i32 s26, s30, {TPS}
    s_add_u32 s26, s26, {WS_Y + 16*EGS}
    s_add_u32 s27, s26, {YD}
    s_cmp_eq_u32 s30, 0
    s_mov_b32 s28, 0xff
    s_cselect_b32 exec_lo, 0x1ff, s28
    s_mov_b32 exec_hi, 0
    buffer_store_dword v40, v3, s[12:15], s26 offen sc1
    buffer_store_dword v40, v3, s[12:15], s27 offen sc1
    s_mov_b64 exec, -1
    """)
    a(f"""
    s_lshl_b32 s26, s30, 4
    s_lshl_b32 s27, s67, 2
    s_add_u32 s26, s26, s27
    s_add_u32 s26, s26, s3
    s_lshl_b32 s26, s26, 16
    s_add_u32 s22, s26, {WS_AT}
    """)
    srd_ws(a, 32, 22, 65536)
    a(f"""
    s_cmp_eq_u32 s66, 0
    s_cselect_b32 s31, 1, 0
    v_mov_b32 v24, {ALT}
    v_mov_b32 v25, {ALT}
    v_mov_b32 v26, {ALT}
    v_mov_b32 v27, {ALT}
    """)
    srd(a, 4, 88, 3584*1024*2)
    g2_wpre(a, [(8, 4)])
    a("s_waitcnt vmcnt(2)\n v_cmp_ne_u32 vcc, s98, v56\n v_cmp_ne_u32 s[28:29], s99, v57\n s_or_b64 vcc, vcc, s[28:29]\n s_cbranch_scc0 L_s2_ok")
    poll(a, [('s23', '0xff')], gap=2, cnt=8)
    a("L_s2_ok:")
    stamp(a, 4)
    a(f"s_lshl_b32 s22, s67, 9\n s_add_u32 s22, s22, {WS_RV}\n s_cmp_eq_u32 s30, 0\n s_cselect_b32 s23, 1.0, 0")
    a("s_cselect_b32 s75, 0, -1.0\n s_mov_b32 s74, s23")
    acc_load(a, 2, 192, 22, 7)
    acc_load(a, 2, 200, 22, 7, 2048)
    dloop(a, 'd2a', 2, 0, (20, 80), extra=True, init=lambda: stamp(a, 14))
    stamp(a, 15)
    dloop(a, 'd2b', 2, 64, (8, 4), first=False, inc=64*2048)
    stamp(a, 16)
    a("s_waitcnt lgkmcnt(0)\n s_nop 7")
    a(f"""
    v_and_b32 v2, 15, v1
    v_lshlrev_b32 v20, 6, v2
    v_lshrrev_b32 v3, 4, v1
    v_and_b32 v4, 1, v3
    v_lshl_add_u32 v20, v4, 5, v20
    v_lshrrev_b32 v4, 1, v3
    v_lshl_add_u32 v20, v4, 4, v20
    v_lshlrev_b32 v21, 3, v3
    s_lshl_b32 s22, s67, 2
    s_add_u32 s22, s22, s3
    s_mul_i32 s22, s22, {EGS}
    s_mul_i32 s27, s30, {TPS}
    s_add_u32 s22, s22, s27
    s_add_u32 s22, s22, {WS_Y}
    s_and_b32 s26, s66, 3
    s_lshl_b32 s26, s26, 13
    s_add_u32 s25, s22, s26
    """)
    a("v_lshlrev_b32 v3, 31, v1")
    for i in range(8): a(f"v_mul_f32 v{192+i}, s74, v{192+i}\n v_mul_f32 v{200+i}, s75, v{200+i}")
    for i in range(8): a(f"v_sub_f32 v{208+i}, v{192+i}, v{200+i}\n v_add_f32 v{216+i}, v{192+i}, v{200+i}")
    for i in range(16): a(f"v_xor_b32 v{208+i}, v3, v{208+i}")
    for nb in range(8):
        t = 32 + (nb & 1)*32
        for i in range(8): a(f"v_accvgpr_read_b32 v{t+i}, a{nb*8+i}\n v_accvgpr_read_b32 v{t+8+i}, a{64+nb*8+i}")
        for i in range(0, 8, 2): a(pk('', t+16+i, t+i, t+8+i, neg=True)); a(pk('', t+i, t+i, t+8+i))
        for i in range(0, 8, 2): a(pk('', t+16+i, t+16+i, 208+i)); a(pk('', t+i, t+i, 216+i))
        for i in range(4): a(f"v_cvt_pk_bf16_f32 v{t+24+i}, v{t+16+2*i}, v{t+17+2*i}\n v_cvt_pk_bf16_f32 v{t+28+i}, v{t+2*i}, v{t+2*i+1}")
        a("s_nop 1")
        for p in range(2):
            a(f"v_permlane16_swap_b32 v{t+24+4*p}, v{t+26+4*p}\n v_permlane16_swap_b32 v{t+25+4*p}, v{t+27+4*p}")
        for p in range(2):
            a(f"s_add_u32 s26, s25, {nb*1024 + p*YD}")
            a(f"buffer_store_dwordx4 v[{t+24+4*p}:{t+27+4*p}], v20, s[12:15], s26 offen sc1")
    a("s_cmp_eq_u32 s31, 0\n s_cbranch_scc1 L_dft_nox")
    for i in range(8): a(f"v_accvgpr_read_b32 v{32+i}, a{128+i}")
    for i in range(0, 8, 2): a(pk('', 32+i, 32+i, 192+i))
    for i in range(4): a(f"v_cvt_pk_bf16_f32 v{40+i}, v{32+2*i}, v{33+2*i}")
    a(f"s_add_u32 s26, s22, {512*64}\n s_add_u32 s27, s26, {YD}\n s_mov_b32 exec_lo, 0x00010001\n s_mov_b32 exec_hi, 0x00010001")
    for mb in range(2):
        a(f"buffer_store_dwordx2 v[{40+2*mb}:{41+2*mb}], v21, s[12:15], s26 offen offset:{mb*32} sc1\n buffer_store_dwordx2 v[{40+2*mb}:{41+2*mb}], v21, s[12:15], s27 offen offset:{mb*32} sc1")
    a("s_mov_b64 exec, -1\nL_dft_nox:")
    stamp(a, 17)
    a(f"s_lshl_b32 s23, s66, 2\n s_add_u32 s23, s23, s67\n s_lshl_b32 s23, s23, 7\n s_add_u32 s23, s23, {WS_FL+32768}")
    g2_pre(a, True)
    a(f"v_mov_b32 v2, 0\n v_mov_b32 v3, 0\n v_mov_b32 v4, 0\n v_mov_b32 v5, 0\n s_mov_b32 s68, {OOB}\n s_nop 0")
    g2_zero(a, 2, 0, 8)
    publish(a, 's23')
    stamp(a, 18)
    poll(a, [('s44', '3')], vb=192, gap=2, cnt=2)
    h_chunk(a, 0)
    a("s_waitcnt vmcnt(0)")
    stamp(a, 5)


def kern():
    a = Asm()
    a(f"""
    s_cmp_ge_u32 s2, 256
    s_cbranch_scc1 L_end
    s_load_dwordx2 s[40:41], s[0:1], 0
    s_load_dwordx4 s[44:47], s[0:1], 48
    s_load_dwordx2 s[48:49], s[0:1], 96
    s_load_dwordx2 s[88:89], s[0:1], 64
    s_load_dwordx2 s[42:43], s[0:1], 80
    s_load_dwordx8 s[52:59], s[0:1], 8
    s_load_dwordx2 s[60:61], s[0:1], 72
    s_getpc_b64 s[28:29]
    s_lshr_b32 s27, s2, 3
    s_mul_i32 s26, s27, {CODE_LINES*128}
    v_lshlrev_b32 v2, 7, v0
    v_add_u32 v2, s26, v2
    v_cmp_gt_u32 vcc, {CODE_LINES}, v0
    s_and_saveexec_b64 s[30:31], vcc
    s_cbranch_execz L_nocp
    global_load_dword a255, v2, s[28:29]
    L_nocp:
    s_mov_b64 exec, s[30:31]
    v_and_b32 v1, 63, v0
    v_lshrrev_b32 v2, 6, v0
    s_and_b32 s66, s2, 7
    v_readfirstlane_b32 s3, v2
    s_lshr_b32 s27, s2, 3
    s_sub_u32 s67, s27, 28
    s_and_b32 s24, s66, 1
    s_lshl_b32 s24, s24, 2
    s_and_b32 s68, s27, 3
    s_add_u32 s24, s24, s68
    s_lshr_b32 s25, s66, 1
    s_mul_i32 s25, s25, 7
    s_lshr_b32 s69, s27, 2
    s_add_u32 s25, s25, s69
    """)
    stamp(a, 0)
    if opt.spin: a("s_memrealtime s[100:101]")
    a(f"s_waitcnt lgkmcnt(0)\n s_add_u32 s28, s48, {WS_FL}\n s_addc_u32 s29, s49, 0\n s_load_dword s98, s[28:29], 0")
    if opt.stamp: stamp(a, 23)
    srd(a, 4, 40, 2048*1024*2)
    srd(a, 12, 48, WS_SZ)
    g2_ids(a)
    a("s_lshr_b32 s27, s2, 3\n s_cmp_ge_u32 s27, 28\n s_cbranch_scc1 L_dft")
    gemm1(a)
    a("s_branch L_g2")
    a("L_dft:")
    if opt.xdft: a("s_branch L_end")
    dft(a)
    gemm2(a)
    a("L_end:")
    if opt.spin:
        a(f"s_cmp_lg_u32 s2, 0\n s_cbranch_scc1 L_end3\n L_spin:\n s_memrealtime s[92:93]\n s_waitcnt lgkmcnt(0)\n s_sub_u32 s92, s92, s100\n s_cmp_lt_u32 s92, {opt.spin}\n s_cbranch_scc1 L_spin\n L_end3:")
    if opt.stamp:
        a("s_cmp_ge_u32 s2, 256\n s_cbranch_scc1 L_end2\n s_mov_b64 exec, -1")
        srd(a, 12, 48, WS_SZ)
        stamp(a, 8)
        stamp_flush(a, 0)
        if opt.dbgmax:
            a("s_load_dwordx2 s[28:29], s[0:1], 88\n v_subrev_u32 v2, 40, v1\n v_lshlrev_b32 v2, 2, v2\n v_not_b32 v3, v31\n v_cmp_eq_u32 vcc, 40, v1\n s_nop 1\n v_cndmask_b32 v31, v31, v3, vcc")
            a("s_lshr_b32 s27, s2, 3\n s_cmp_ge_u32 s27, 28\n s_cbranch_scc1 L_dm_d\n s_mov_b32 exec_lo, 0\n s_mov_b32 exec_hi, 0x1ff00\n s_branch L_dm_go\n L_dm_d:")
            for k, w in ((1, 9), (2, 10), (3, 11), (4, 12), (16, 13), (18, 14), (0, 15)):
                a(f"v_mov_b32 v3, {4*w}\n v_cmp_eq_u32 vcc, {40+k}, v1\n s_nop 1\n v_cndmask_b32 v2, v2, v3, vcc")
            m = sum(1 << (8+k) for k in (0, 1, 2, 3, 4, 16, 18))
            a(f"s_mov_b32 exec_lo, 0\n s_mov_b32 exec_hi, {m}\n L_dm_go:\n s_waitcnt lgkmcnt(0)\n global_atomic_umax v2, v31, s[28:29] sc1\n s_waitcnt vmcnt(0)")
        a("L_end2:")
    return kernel(KN, a.text(), vgpr=256, agpr=256)

KN = 'gated_mix__spectral_fnet__geglu_ffn__prompt_kernel'
def main():
    fn = sys.argv[1]
    for o in sys.argv[2:]:
        k, v = o.split('=', 1)
        setattr(opt, k, eval(v))
    c, d = kern()
    hdr = open('gated_mix__spectral_fnet__geglu_ffn__prompt.s.ref').read().split('; Override launch')[0]
    src = hdr + f'; @launch grid=(256,1,1) block=(256,1,1) lds={R1*SLOT1}\n.amdgcn_target "amdgcn-amd-amdhsa--gfx950"\n' + c + '.text\n.fill 2048, 4, 0xbf800000\n' + d
    open(fn, 'w').write(src)
if __name__ == '__main__': main()
```

```python
import sys, math, struct
from ab import *

WS_H   = 0
HS     = 262144
WS_Z   = (16 << 20) + 65536
WS_AT  = (18 << 20) + 131072
WS_Y   = (20 << 20) + 196608
YD     = 2 << 20
EGS    = 528*64
TPS    = 17*EGS
WS_LP  = (24 << 20) + 131072
WS_UP  = WS_LP + 32768
WS_CV  = WS_UP + 32768
WS_RV  = WS_CV + 4096
WS_FL  = 25 << 20
WS_XB  = 26 << 20
XBS    = 4224
WS_TS  = 40 << 20
WS_SZ  = 256 << 20
OOB = 0x40000000
ALT = 0xBF803F80
R1 = 5; SLOT1 = 32768
R2 = 8; SLOT2 = 16384
R3 = 8; SLOT3 = 16384
MF = "v_mfma_f32_16x16x32_bf16"
class Opt: pass
opt = Opt()
opt.stamp = False; opt.trace = False; opt.hflags = 'sc1'; opt.psleep = 4; opt.order = 3; opt.tlb = True; opt.smem = True; opt.dbgmax = False; opt.notw = 0; opt.nofold = 0; opt.shift = 0; opt.dm2 = (5, 11); opt.pw = 0; opt.prepos = 1; opt.xdft = 0; opt.nf = 3; opt.pub = 1; opt.r3 = 0; opt.r2 = 1; opt.r2b = False; opt.nox = False; opt.nt_fold = ''; opt.nt_w = ''; opt.nt_c = ''; opt.fmask = 0xffff; opt.x2 = 0; opt.rdo = [1,1,2,2,3,3,4,4,5,5,6,6,7,7,9,9]; opt.rde = [0,0,1,1,2,2,3,3,4,5,6,7,9,10,11,12]; opt.dmo = [3, 7]; opt.HS = 229376; opt.tlb2 = False; opt.g2gap = 2; opt.spin = 0; opt.oflags = ''; opt.g2touch = False; opt.tflags = ''; opt.killw = None
fbits = lambda x: struct.unpack('<I', struct.pack('<f', x))[0]
CODE_LINES = int(__import__("os").environ.get("CL", 16))

def srd(a, d, base, size):
    a(f"s_mov_b32 s{d}, s{base}\n s_and_b32 s{d+1}, s{base+1}, 0xffff\n s_mov_b32 s{d+2}, {size}\n s_mov_b32 s{d+3}, 0x20000")
def srd_ws(a, d, soff, size):
    a(f"s_add_u32 s{d}, s48, s{soff}\n s_addc_u32 s{d+1}, s49, 0\n s_and_b32 s{d+1}, s{d+1}, 0xffff\n s_mov_b32 s{d+2}, {size}\n s_mov_b32 s{d+3}, 0x20000")
def interleave(a, mfmas, fill):
    for s in fill.get(-1, []): a(s)
    for i, m in enumerate(mfmas):
        a(m)
        for s in fill.get(i, []): a(s)
def lab(a, p): return f"L_{p}_{len(a.l)}"

def stamp(a, idx):
    if not opt.stamp: return
    a(f"s_memrealtime s[92:93]\n s_memtime s[94:95]\n s_waitcnt lgkmcnt(0)\n v_writelane_b32 v31, s92, {40+idx}\n v_writelane_b32 v30, s94, {40+idx}")
def trace_ops(sidx):
    return ["s_memtime s[92:93]", "s_memrealtime s[94:95]", "s_waitcnt lgkmcnt(0)", f"v_cmp_eq_u32 vcc, {sidx}, v1", "v_mov_b32 v6, s92", "v_mov_b32 v7, s94",
            "v_cndmask_b32 v30, v30, v6, vcc", "v_cndmask_b32 v31, v31, v7, vcc"]
def stamp_flush(a, half):
    if not opt.stamp: return
    a(f"s_lshl_b32 s90, s2, 2\n s_add_u32 s90, s90, s3\n s_lshl_b32 s90, s90, 9\n s_add_u32 s90, s90, {WS_TS + half*524288}")
    a(f"v_lshlrev_b32 v29, 3, v1\n buffer_store_dwordx2 v[30:31], v29, s[12:15], s90 offen")

def nonce(a):
    a("s_mul_i32 s98, s98, 0x9E3779B1\n s_add_u32 s98, s98, 0x7F4A7C15\n s_xor_b32 s99, s98, 0x5bd1e995")
def started(a, vt=2):
    L = lab(a, 'st0')
    a(f"s_cmp_lg_u32 s3, 0\n s_cbranch_scc1 {L}\n s_lshl_b32 s26, s2, 7\n s_add_u32 s26, s26, {WS_FL+393216}")
    flag_store(a, 's26', vt)
    a(f"{L}:")
def flag_store(a, soff, vt=2):
    a(f"""
    v_lshlrev_b32 v{vt}, 3, v1
    v_mov_b32 v{vt+2}, s98
    v_mov_b32 v{vt+3}, s99
    s_mov_b64 exec, {opt.fmask}
    buffer_store_dwordx2 v[{vt+2}:{vt+3}], v{vt}, s[12:15], {soff} offen sc1
    s_mov_b64 exec, -1
    """)
def publish(a, soff):
    a("s_waitcnt vmcnt(0)\n s_barrier")
    L = lab(a, 'pub')
    a(f"s_cmp_lg_u32 s3, 0\n s_cbranch_scc1 {L}")
    flag_store(a, soff)
    a(f"{L}:")
def poll(a, items, vb=48, gap=1, cnt=56, voff=6):
    L = lab(a, 'poll'); n = len(items)
    def issue(k):
        for i, (so, mk) in enumerate(items): a(f"buffer_load_dwordx2 v[{vb+2*(k*n+i)}:{vb+2*(k*n+i)+1}], v{voff}, s[12:15], {so} offen sc1")
    if voff == 6: a(f"v_cmp_gt_u32 vcc, {cnt}, v1\n v_lshlrev_b32 v6, 7, v1\n v_mov_b32 v7, {OOB}\n v_cndmask_b32 v6, v7, v6, vcc")
    a("s_mov_b32 s27, 0")
    issue(0); a(f"s_sleep {opt.psleep}"); issue(1); a(f"s_sleep {opt.psleep}");
    a(f"{L}:")
    for k in range(3):
        issue((k+2) % 3)
        a(f"s_waitcnt vmcnt({2*n})")
        for i, (so, mk) in enumerate(items):
            r = vb + 2*(k*n+i)
            a(f"v_cmp_ne_u32 vcc, s98, v{r}\n v_cmp_ne_u32 s[28:29], s99, v{r+1}\n s_or_b64 vcc, vcc, s[28:29]")
            a(f"s_and_b64 {'s[64:65]' if i == 0 else 'vcc'}, vcc, {mk}")
            if i: a("s_or_b64 s[64:65], s[64:65], vcc")
        a(f"s_cbranch_scc0 {L}_done\n s_sleep {gap}")
    a(f"""
    s_add_u32 s27, s27, 1
    s_cmp_lt_u32 s27, 0x20000
    s_cbranch_scc1 {L}
    {L}_done:
    """)
def reduce_lanes(a, regs, tmp, steps):
    for st in steps:
        if st.startswith('ror'):
            a("s_nop 1")
            for r in regs: a(f"v_add_f32_dpp v{r}, v{r}, v{r} row_ror:{st[3:]} row_mask:0xf bank_mask:0xf")
        else:
            for i, r in enumerate(regs): a(f"v_mov_b32 v{tmp+i}, v{r}")
            a("s_nop 1")
            for i, r in enumerate(regs): a(f"v_permlane{st[1:]}_swap_b32 v{r}, v{tmp+i}")
            a("s_nop 1")
            for i, r in enumerate(regs): a(f"v_add_f32 v{r}, v{r}, v{tmp+i}")
def unp(dst, src, j):
    return f"v_lshlrev_b32 v{dst}, 16, v{src+j//2}" if j % 2 == 0 else f"v_and_b32 v{dst}, 0xffff0000, v{src+j//2}"
def pk(op, d, x, y, neg=False):
    return f"v_pk_add_f32 v[{d}:{d+1}], v[{x}:{x+1}], v[{y}:{y+1}]" + (" neg_lo:[0,1] neg_hi:[0,1]" if neg else "")

def tlb_setup(a, vd):
    a(f"""
    s_mov_b32 s76, s48
    s_mov_b32 s77, s49
    s_mov_b32 s78, {26 << 20}
    s_cmp_eq_u32 s3, 1
    s_cselect_b32 s76, s42, s76
    s_cselect_b32 s77, s43, s77
    s_cselect_b32 s78, {4 << 20}, s78
    s_cmp_eq_u32 s3, 2
    s_cselect_b32 s76, s88, s76
    s_cselect_b32 s77, s89, s77
    s_cselect_b32 s78, {3584*2048}, s78
    s_cmp_eq_u32 s3, 3
    s_cselect_b32 s76, s52, s76
    s_cselect_b32 s77, s53, s77
    s_cselect_b32 s78, {5 << 20}, s78
    s_and_b32 s77, s77, 0xffff
    s_mov_b32 s79, 0x20000
    v_lshlrev_b32 v{vd}, 20, v1
    v_add_u32 v{vd}, {(1 << 20) - 128}, v{vd}
    v_cmp_eq_u32 vcc, 16, v1
    v_mov_b32 v2, {(16 << 20) + 128}
    s_nop 0
    v_cndmask_b32 v{vd}, v{vd}, v2, vcc
    v_cmp_le_u32 vcc, 17, v1
    v_mov_b32 v2, {(18 << 20) + 65536 + 128}
    s_nop 0
    v_cndmask_b32 v{vd}, v{vd}, v2, vcc
    v_cmp_le_u32 vcc, 18, v1
    v_lshlrev_b32 v2, 21, v1
    v_subrev_u32 v2, {(18 << 21) - ((22 << 20) - 128)}, v2
    v_cndmask_b32 v{vd}, v{vd}, v2, vcc
    """)

class VM:
    def __init__(s): s.ops = []
    def add(s, tag, n=1): s.ops += [tag]*n
    def wait(s, a, tag, extra=""):
        last = max(i for i, t in enumerate(s.ops) if t == tag)
        a(f"s_waitcnt vmcnt({min(63, len(s.ops)-1-last)}) {extra}")
V_WX, V_WD, V_L16, V_LDS, V_TMP, V_OOB, V_F64, V_FJ, V_S4, V_H1, V_OUT, V_Y, V_LP, AD = 96, 100, 104, 105, 106, 107, 108, 109, 110, 111, 112, 114, 119, 120
def w_voff(a, vb, wshift, t=2):
    a(f"""
    v_lshrrev_b32 v{t+1}, 4, v1
    s_lshl_b32 s26, s3, {wshift}
    v_add_u32 v{t}, s26, v{t+1}
    v_lshlrev_b32 v{t}, 11, v{t}
    v_add_u32 v{t}, s27, v{t}
    v_lshlrev_b32 v{t+1}, 1, v{t+1}
    v_and_b32 v{vb}, 15, v1
    v_xor_b32 v{t+1}, v{t+1}, v{vb}
    v_lshl_add_u32 v{vb}, v{t+1}, 4, v{t}
    v_xor_b32 v{t+1}, 8, v{t+1}
    v_lshl_add_u32 v{vb+1}, v{t+1}, 4, v{t}
    v_add_u32 v{vb+2}, {2*(4*2048-1024)}, v{vb}
    v_add_u32 v{vb+3}, {3*(4*2048-1024)}, v{vb+1}
    v_add_u32 v{vb+1}, {1*(4*2048-1024)}, v{vb+1}
    """)
def g2_ids(a):
    a("""
    s_lshr_b32 s27, s2, 3
    s_and_b32 s50, s2, 1
    s_lshl_b32 s50, s50, 2
    s_and_b32 s26, s27, 3
    s_add_u32 s50, s50, s26
    s_lshr_b32 s51, s27, 2
    s_bfe_u32 s96, s2, 0x20001
    """)
def g2_wpre(a, variants):
    a(f"s_mul_i32 s27, s96, {896*2048}\n s_lshl_b32 s26, s51, 8\n s_add_u32 s27, s27, s26")
    for vb, sh in variants: w_voff(a, vb, sh)
SPOS = [40, 41, 42, 43, 76, 77, 78]
OWNL = 98304
def g2_pre(a, dft):
    srd(a, 52, 42, 2048*1024*2)
    srd(a, 32, 88, 3584*1024*2)
    g2_wpre(a, [(V_WD, 4)] if dft else [(V_WX, 5), (V_WD, 4)])
    a(f"s_lshl_b32 s27, s50, 2\n s_add_u32 s27, s27, s3\n s_lshl_b32 s27, s27, 1\n s_mul_i32 s27, s27, {opt.HS}\n s_mul_i32 s26, s96, 57344\n s_add_u32 s27, s27, s26")
    srd_ws(a, 56, 27, opt.HS + 57344)
    a("s_mov_b32 s45, 0" if dft else "s_mov_b32 s45, s51")
    a(f"s_lshl_b32 s40, s45, 18\n s_lshr_b32 s79, s96, 1\n s_mul_i32 s79, s79, {opt.HS}")
    for p in range(1, 7): a(f"s_cmp_le_u32 s45, {p-1}\n s_mov_b32 s{SPOS[p]}, {(p-1) << 18}\n s_cselect_b32 s{SPOS[p]}, {p << 18}, s{SPOS[p]}")
    a(f"""
    v_lshlrev_b32 v{V_L16}, 4, v1
    v_mov_b32 v{V_OOB}, {OOB}
    v_lshrrev_b32 v3, 4, v1
    v_lshrrev_b32 v4, 2, v1
    v_and_b32 v4, 3, v4
    v_lshl_add_u32 v5, v3, 2, v4
    v_and_b32 v6, 7, v5
    s_and_b32 s26, s96, 1
    s_lshl_b32 s26, s26, 2
    v_xor_b32 v6, s26, v6
    v_lshlrev_b32 v5, 8, v5
    v_lshl_add_u32 v5, v6, 5, v5
    v_and_b32 v7, 3, v1
    v_lshl_add_u32 v{V_LDS}, v7, 3, v5
    s_lshl_b32 s26, s50, 1
    s_lshr_b32 s27, s3, 1
    s_add_u32 s26, s26, s27
    s_lshl_b32 s26, s26, 13
    s_mul_i32 s44, s96, {14*128}
    s_add_u32 s44, s44, s26
    s_add_u32 s44, s44, {WS_FL+65536}
    v_lshlrev_b32 v{V_F64}, 7, v1
    v_and_b32 v{V_S4}, 31, v1
    v_lshlrev_b32 v{V_S4}, 7, v{V_S4}
    v_add_u32 v{V_S4}, {WS_FL+32768}, v{V_S4}
    v_lshrrev_b32 v2, 1, v1
    v_cmp_le_u32 vcc, s45, v2
    v_add_u32 v3, 1, v2
    v_and_b32 v4, 1, v1
    v_cndmask_b32 v2, v2, v3, vcc
    v_cmp_gt_u32 vcc, 12, v1
    v_lshl_add_u32 v2, v2, 1, v4
    v_lshlrev_b32 v2, 7, v2
    v_cndmask_b32 v{V_FJ}, v{V_OOB}, v2, vcc
    s_lshl_b32 s70, s3, 13
    s_add_u32 s70, s70, {WS_FL+393216}
    s_cmp_eq_u32 s2, 0
    s_cselect_b32 s70, s70, {OOB}
    s_cselect_b64 s[60:61], -1, 0
    s_lshl_b32 s26, s2, 2
    s_add_u32 s26, s26, s3
    s_mul_i32 s71, s26, 12288
    s_add_u32 s71, s71, {WS_XB}
    s_lshl_b32 s69, s26, 7
    s_add_u32 s69, s69, {WS_FL+262144}
    """)
    for mb in range(8): a(f"v_xor_b32 v{AD+mb}, {mb*32}, v{V_LDS}")
    a(f"""
    s_lshl_b32 s64, s51, 1
    s_and_b32 s26, s96, 1
    s_add_u32 s64, s64, s26
    s_lshl_b32 s26, s50, 8
    s_lshl_b32 s27, s3, 6
    s_add_u32 s27, s26, s27
    s_lshr_b32 s26, s96, 1
    s_lshl_b32 s26, s26, 5
    s_add_u32 s27, s27, s26
    v_and_b32 v2, 15, v1
    v_add_u32 v2, s27, v2
    v_lshlrev_b32 v{V_LP}, 4, v2
    v_add_u32 v{V_LP}, {WS_LP}, v{V_LP}
    v_lshlrev_b32 v2, 11, v2
    v_lshrrev_b32 v3, 4, v1
    v_and_b32 v4, 1, v3
    v_lshl_add_u32 v2, v4, 5, v2
    v_lshrrev_b32 v4, 1, v3
    v_lshl_add_u32 v2, v4, 4, v2
    s_lshl_b32 s26, s64, 7
    v_add_u32 v{V_OUT}, s26, v2
    v_add_u32 v{V_OUT+1}, 32768, v{V_OUT}
    s_lshl_b32 s26, s64, 1
    s_sub_u32 s65, 30, s26
    s_cmp_ge_u32 s64, 8
    s_cselect_b64 s[46:47], -1, 0
    s_cselect_b32 s65, s65, s26
    s_mul_i32 s65, s65, {EGS}
    s_add_u32 s65, s65, {WS_Y}
    s_mov_b32 s26, {TPS}
    """)
    for j in range(5):
        if j < 4: a(f"v_lshrrev_b32 v2, 2, v1\n v_lshl_add_u32 v2, v2, 1, {j&1}\n v_and_b32 v3, 3, v1\n v_lshlrev_b32 v3, 4, v3\n v_add_u32 v3, {(j>>1)*EGS}, v3")
        else: a(f"v_and_b32 v2, 31, v1\n v_mov_b32 v3, {2*EGS}")
        a(f"""
        v_add_u32 v2, s27, v2
        v_sub_u32 v4, 2048, v2
        v_min_u32 v4, v4, v2
        v_cmp_lt_u32 vcc, 1024, v2
        v_and_b32 v5, 1, v4
        v_mul_lo_u32 v5, v5, s26
        v_lshrrev_b32 v4, 1, v4
        v_lshl_add_u32 v4, v4, 6, v5
        s_xor_b64 vcc, vcc, s[46:47]
        v_add3_u32 v4, v4, v3, s65
        v_add_u32 v5, {YD}, v4
        v_cndmask_b32 v{V_Y+j}, v4, v5, vcc
        """)
def g2_zero(a, z, lo, hi):
    for i in range(lo, hi): a(f"v_mfma_f32_32x32x16_bf16 a[{16*i}:{15+16*i}], v[{z}:{z+3}], v[{z}:{z+3}], 0")
def fl_bad(a, r, mask):
    a(f"v_cmp_ne_u32 vcc, s98, v{r}\n v_cmp_ne_u32 s[28:29], s99, v{r+1}\n s_or_b64 vcc, vcc, s[28:29]\n s_and_b64 vcc, vcc, {mask}")
HB = 128
def h_base(p): return [f"s_lshr_b32 s16, s{SPOS[p]}, 5", f"s_sub_u32 s25, s16, s79", "s_add_u32 s16, s16, s79", f"s_add_u32 s25, s25, {opt.HS}"]
def h_load(half, st, nb, v=V_L16):
    r = HB + 64*half + 16*st + 4*nb
    return f"buffer_load_dwordx4 v[{r}:{r+3}], v{v}, s[56:59], s{(16, 25)[nb >> 1]} offen offset:{(st & 1)*2048 + (nb & 1)*1024} sc1"
def h_chunk(a, p, v=V_L16):
    for x in h_base(p): a(x)
    for st in range(4):
        for nb in range(4): a(h_load(p & 1, st, nb, v))
        if st == 1: a("s_add_u32 s16, s16, 4096\n s_add_u32 s25, s25, 4096")

def gemm2(a):
    WF = 32; PV = 192
    vm = VM()
    def dma(): return [f"buffer_load_dwordx4 v{V_WD+i}, s[32:35], s17 offen offset:{i*1024} lds" for i in range(4)]
    def wreads(st, off, mbs=range(8), base=None):
        r = []
        for k, mb in enumerate(mbs):
            b = (WF + st*32 + mb*4) if base is None else base + 4*k
            r.append(f"ds_read_b64_tr_b16 v[{b}:{b+1}], v{AD+mb} offset:{off}")
            r.append(f"ds_read_b64_tr_b16 v[{b+2}:{b+3}], v{AD+mb} offset:{off+4096}")
        return r
    def sample(): a(f"buffer_load_dwordx2 v[24:25], v{V_FJ}, s[12:15], s44 offen sc1"); vm.add('smp')
    def pmask(p): return 3 << (2*(p-1))
    rare = []
    a("L_g2:"); vm.add('own')
    sample()
    a(f"buffer_load_dwordx2 v[18:19], v{V_F64}, s[12:15], s70 offen sc1"); vm.add('ep')
    for x in wreads(0, 0): a(x)
    a(f"s_lshl_b32 s21, s3, 12\n v_mov_b32 v26, s98\n v_mov_b32 v27, s99\n v_and_b32 v23, 15, v1\n v_lshlrev_b32 v23, 3, v23")
    stamp(a, 6)
    OD = [(nb, mb) for nb in range(4) for mb in (range(4) if nb % 2 == 0 else range(3, -1, -1))] + [(nb, 4+mb) for nb in range(3, -1, -1) for mb in (range(4) if nb % 2 else range(3, -1, -1))]
    def step(T, loads):
        p = T & 1; pos = T >> 2; st = T & 3; slot = T >> 1
        if pos >= 2: vm.wait(a, f'h{T}', "lgkmcnt(8)")
        else: a("s_waitcnt lgkmcnt(8)")
        ms = []
        for nb, mb in OD:
            b = WF + p*32 + mb*4; c = (nb*8+mb)*4; h = HB + 64*(pos & 1) + 16*st + 4*nb
            ms.append(f"{MF} a[{c}:{c+3}], v[{b}:{b+3}], v[{h}:{h+3}], a[{c}:{c+3}]")
        f = {k: [] for k in range(32)}
        for k, x in enumerate(wreads(p ^ 1, (p ^ 1)*8192)): f[2*k].append(x)
        f[15].append("s_waitcnt lgkmcnt(8)")
        g = slot + 5
        ops = []
        if 6 <= g <= 13: ops += [(opt.dm2[0], dma()[2*p], f'w{g}'), (opt.dm2[1], dma()[2*p+1], f'w{g}')]
        if loads:
            if st == 0:
                hb = h_base(pos+2); f[1] += hb[:2]; f[3] += hb[2:]
            ops += [(19+4*k, h_load(pos & 1, st, nb), f'h{T+8}') for k, nb in enumerate((3, 2, 1, 0))]
            if st == 1: f[31].append("PLACEHOLDER")
        if p == 1:
            need = slot + 2
            f[16].append("BARRIER")
            if 6 <= g+1 <= 13:
                f[17] += [f"s_add_u32 m0, s21, {((g+1) % 8)*SLOT2}", f"s_add_u32 s17, s{SPOS[(g+1) >> 1]}, {((g+1) & 1)*64*2048}"]
        else:
            f[7].append(f"v_add_u32 v{V_TMP}, {((slot+1) % 8)*SLOT2}, v{V_LDS}")
            for mb in range(8): f[max(4*mb+3, 9+mb)].append(f"v_xor_b32 v{AD+mb}, {mb*32}, v{V_TMP}")
        ops.sort()
        for i, m in enumerate(ms):
            a(m)
            for x in f[i]:
                if x == "BARRIER":
                    if f'w{slot+2}' in vm.ops: vm.wait(a, f'w{slot+2}')
                    a("s_barrier")
                elif x != "PLACEHOLDER": a(x)
            for gp, x, tag in ops:
                if gp == i: a(x); vm.add(tag)
            if "PLACEHOLDER" in f[i]: a("s_add_u32 s16, s16, 4096\n s_add_u32 s25, s25, 4096")
    step(0, False)
    vm.wait(a, 'own'); a("buffer_store_dwordx2 v[26:27], v23, s[12:15], s68 offen sc1"); vm.add('fl')
    step(1, False)
    vm.wait(a, 'ep')
    fl_bad(a, 24, pmask(1))
    a(f"s_cselect_b32 s31, 1, 0\n s_cselect_b32 s26, {OOB}, 0\n v_add_u32 v{V_H1}, s26, v{V_L16}")
    h_chunk(a, 1, V_H1); vm.add('p1', 16)
    sample()
    step(2, False); step(3, False)
    stamp(a, 19)
    vm.wait(a, 'smp')
    fl_bad(a, 24, pmask(1) | pmask(2) | pmask(3))
    a("s_cbranch_scc1 L_g2_late0\n s_cmp_lg_u32 s31, 0\n s_cbranch_scc1 L_g2_redo\n L_g2_cont0:")
    fl_bad(a, 18, "s[60:61]")
    a("s_cbranch_scc1 L_g2_ep\n L_g2_cont1:")
    stamp(a, 20)
    for x in h_base(2): a(x)
    for st in range(4):
        for nb in range(4): a(h_load(0, st, nb)); vm.add(f'h{8+st}')
        if st == 1: a("s_add_u32 s16, s16, 4096\n s_add_u32 s25, s25, 4096")
    sample()
    for pos in range(1, 6):
        if 2 <= pos <= 4:
            vm.wait(a, 'smp')
            fl_bad(a, 24, pmask(pos+2))
            a(f"s_cbranch_scc1 L_g2_late{pos}\n L_g2_cont{pos}x:")
            rare.append(pos)
            if pos < 4: sample()
        if pos == 2:
            a(f"s_or_b32 s26, s2, s3\n s_cmp_eq_u32 s26, 0\n s_mov_b32 s68, {OOB}\n s_cselect_b32 s68, {WS_FL}, s68\n buffer_store_dwordx2 v[26:27], v23, s[12:15], s68 offen sc1"); vm.add('eps')
        if pos == 4:
            a(f"buffer_load_dwordx2 v[18:19], v{V_S4}, s[12:15], 0 offen sc1"); vm.add('s4')
        if pos == 5:
            vm.wait(a, 's4')
            fl_bad(a, 18, -1)
            a("s_cbranch_scc1 L_g2_s4\n L_g2_s4ok:")
            a(f"buffer_load_dwordx4 a[160:163], v{V_LP}, s[12:15], 0 offen sc1\n buffer_load_dwordx4 a[164:167], v{V_LP}, s[12:15], 0 offen offset:256 sc1")
            for j in range(4): a(f"buffer_load_dwordx4 a[{136+4*j}:{139+4*j}], v{V_Y+j}, s[12:15], 0 offen sc1")
            a(f"buffer_load_dword a152, v{V_Y+4}, s[12:15], 0 offen sc1"); vm.add('y', 7)
        if pos in (2, 5): stamp(a, 21 if pos == 2 else 22)
        for st in range(4): step(4*pos + st, pos <= 4)
    Q = [32, 48, 64, 80]
    def hrd(st, fo, q): return wreads(0, (st >> 1)*16384 + (st & 1)*8192, range(4*fo, 4*fo+4), Q[q])
    def sendl(g):
        o = []
        for k in range(4):
            nb = 2*(g >> 1) + (k >> 1); c = (nb*8 + 4*(g & 1) + 2*(k & 1))*4; t = PV + 8*(k & 1); d = 224 + 4*((g*4+k) % 8)
            o += [f"v_accvgpr_read_b32 v{t+i}, a{c+i}" for i in range(8)]
            o += [f"v_cvt_pk_bf16_f32 v{d+i}, v{t+2*i}, v{t+1+2*i}" for i in range(4)]
            o += [f"buffer_store_dwordx4 v[{d}:{d+3}], v{V_L16}, s[12:15], s{(0, 71, 16, 25)[g]} offen offset:{k*1024} sc1"]
        return o
    a("s_add_u32 s16, s71, 4096\n s_add_u32 s25, s71, 8192")
    phases = [(0, 1, 1, range(4)), (1, 1, 2, range(4)), (2, 1, 3, range(4)), (3, 1, 1, range(4))] + \
             [(st, 0, (0, 2, 3, 1)[st], (2, 3)) for st in range(4)] + [(st, 0, (0, 2, 3, 1)[st], (0, 1)) for st in range(4)]
    pre = {0: hrd(1, 1, 2) + hrd(2, 1, 3), 1: hrd(3, 1, 1), 2: hrd(1, 0, 2), 3: hrd(2, 0, 3), 4: hrd(3, 0, 1)}
    send = []
    for k, (st, fo, q, nbs) in enumerate(phases):
        if k == 0: vm.wait(a, 'h27', "lgkmcnt(0)")
        elif k in (1, 2, 3, 5, 6): a("s_waitcnt lgkmcnt(8)")
        elif k == 7: a("s_waitcnt lgkmcnt(0)")
        if k == 4: send += [None]*8 + sendl(3) + sendl(1)
        if k == 8: send += [None]*max(0, 12 - len(send)) + sendl(2)
        ms = []
        for i, nb in enumerate(nbs):
            for m in (range(4) if i % 2 == 0 else range(3, -1, -1)):
                c = (nb*8 + 4*fo + m)*4; b = Q[q] + 4*m; h = HB + 16*st + 4*nb
                ms.append(f"{MF} a[{c}:{c+3}], v[{b}:{b+3}], v[{h}:{h+3}], a[{c}:{c+3}]")
        f = {}
        rd = pre.get(k, [])
        for j, x in enumerate(rd): f.setdefault(j*len(ms)//len(rd), []).append(x)
        for g in range(len(ms)):
            for _ in range(3):
                if send:
                    x = send.pop(0)
                    if x: f.setdefault(g, []).append(x)
        interleave(a, ms, f)
    assert not send, len(send)
    stamp(a, 7)
    a("""
    s_mul_i32 s26, s3, 4608
    s_add_u32 s26, s26, 131072
    v_lshrrev_b32 v4, 2, v1
    v_mul_u32_u24 v4, 288, v4
    v_and_b32 v5, 3, v1
    v_lshl_add_u32 v4, v5, 4, v4
    v_add_u32 v4, s26, v4
    v_and_b32 v5, 31, v1
    v_mul_u32_u24 v5, 144, v5
    v_add_u32 v5, s26, v5
    """)
    for j in range(4): a(f"ds_write_b128 v4, a[{136+4*j}:{139+4*j}] offset:{(j&1)*144 + (j>>1)*64}")
    a("ds_write_b32 v5, a152 offset:128")
    a("""
    v_and_b32 v4, 15, v1
    v_mul_u32_u24 v4, 144, v4
    v_lshrrev_b32 v5, 4, v1
    v_lshlrev_b32 v5, 3, v5
    v_sub_u32 v6, 24, v5
    v_cndmask_b32 v5, v5, v6, s[46:47]
    v_add3_u32 v4, v4, v5, s26
    s_waitcnt vmcnt(0) lgkmcnt(0)
    buffer_store_dwordx2 v[26:27], v23, s[12:15], s69 offen sc1
    """)
    for k in range(8):
        a(f"ds_read_b64 v[{128+4*k}:{129+4*k}], v4 offset:{(k>>2)*16*144 + (k&3)*32}\n ds_read_b32 v{130+4*k}, v4 offset:{(k>>2)*16*144 + (k&3)*32 + 8}")
    a(f"""
    v_add_u32 v6, 1, v1
    v_lshlrev_b32 v6, 10, v6
    v_xor_b32 v6, s69, v6
    v_cmp_gt_u32 vcc, 3, v1
    s_lshl_b32 s26, s2, 2
    s_add_u32 s26, s26, s3
    v_cndmask_b32 v{V_FJ}, v{V_OOB}, v6, vcc
    """)
    for g in range(1, 4): a(f"s_xor_b32 s27, s26, {8*g}\n s_mul_i32 s{40+g}, s27, 12288\n s_add_u32 s{40+g}, s{40+g}, {WS_XB + (g-1)*4096}")
    for nb in range(2):
        for i in range(4): a(f"v_accvgpr_read_b32 v{40+i}, a{160+4*nb+i}")
        a(f"""
        v_add_f32 v40, v40, v41
        v_add_f32 v42, v42, v43
        v_add_f32 v40, v40, v42
        v_cvt_pk_bf16_f32 v40, v40, v40
        v_lshlrev_b32 v40, 16, v40
        v_mul_f32 v40, {fbits(-math.log2(math.e))}, v40
        v_exp_f32 v40, v40
        s_nop 0
        v_add_f32 v40, 1.0, v40
        v_rcp_f32 v40, v40
        s_nop 0
        v_cvt_pk_bf16_f32 v40, v40, v40
        v_lshlrev_b32 v{32+nb}, 16, v40
        v_sub_f32 v40, 1.0, v{32+nb}
        v_cvt_pk_bf16_f32 v40, v40, v40
        v_lshlrev_b32 v{34+nb}, 16, v40
        v_and_b32 v{36+nb}, 0xffff, v40
        """)
    for nb in range(2):
        for i in range(16): a(f"v_accvgpr_read_b32 v{64+nb*16+i}, a{nb*32+i}")
    for nb in range(2):
        for i in range(16): a(f"v_mul_f32 v{64+nb*16+i}, v{34+nb}, v{64+nb*16+i}")
    a(f"buffer_load_dwordx2 v[24:25], v{V_FJ}, s[12:15], 0 offen sc1")
    a("s_waitcnt lgkmcnt(0)\n s_cmp_lg_u32 s46, 0\n s_cbranch_scc1 L_g2_mir")
    for mir in range(2):
        if mir: a("L_g2_mir:")
        for nb in range(2):
            for mb in range(4):
                d = 128 + (nb*4 + (3-mb if mir else mb))*4; o = 64 + (nb*4+mb)*4
                els = [4, 3, 2, 1] if mir else [0, 1, 2, 3]
                for r in range(4): a(unp(40+r, d, els[r]))
                for r in range(4): a(f"v_fma_f32 v{o+r}, v{40+r}, v{32+nb}, v{o+r}")
        if not mir: a("s_branch L_g2_st")
    a("L_g2_st:")
    stamp(a, 9)
    a("s_waitcnt vmcnt(0)")
    fl_bad(a, 24, 7)
    a("s_cbranch_scc0 L_g2_xok\n s_mov_b32 s26, 0")
    poll(a, [('s26', '7')], vb=44, gap=1, voff=V_FJ)
    a("L_g2_xok:")
    stamp(a, 10)
    for k in range(4):
        for g in range(1, 4): a(f"buffer_load_dwordx4 v[{128+16*k+4*g}:{131+16*k+4*g}], v{V_L16}, s[12:15], s{40+g} offen offset:{k*1024} sc1")
    for k in range(4):
        a(f"s_waitcnt vmcnt({3*(3-k) + k})")
        for g in range(1, 4):
            for r in range(8): a(f"v_dot2_f32_bf16 v{64+8*k+r}, v{128+16*k+4*g+r//2}, v{(36, 34)[r & 1]+(k>>1)}, v{64+8*k+r}")
        a("s_nop 2")
        for i in range(4): a(f"v_cvt_pk_bf16_f32 v{PV+4*k+i}, v{64+8*k+2*i}, v{64+8*k+2*i+1}")
        a(f"s_nop 1\n v_permlane16_swap_b32 v{PV+4*k}, v{PV+4*k+2}\n v_permlane16_swap_b32 v{PV+4*k+1}, v{PV+4*k+3}")
        a(f"buffer_store_dwordx4 v[{PV+4*k}:{PV+4*k+3}], v{V_OUT+(k>>1)}, s[52:55], 0 offen offset:{(k&1)*64} {opt.oflags}")
    a("s_branch L_end")
    a("L_g2_late0:")
    poll(a, [('s44', pmask(1) | pmask(2) | pmask(3))], vb=10, gap=opt.g2gap, voff=V_FJ)
    a("s_waitcnt vmcnt(0)\n s_cmp_eq_u32 s31, 0\n s_cbranch_scc1 L_g2_cont0\n L_g2_redo:")
    h_chunk(a, 1)
    a("s_waitcnt vmcnt(0)\n s_branch L_g2_cont0")
    a("L_g2_ep:")
    poll(a, [('s70', '-1')], vb=10, gap=2, cnt=64)
    a("s_waitcnt vmcnt(0)\n s_branch L_g2_cont1")
    for pos in rare:
        a(f"L_g2_late{pos}:")
        poll(a, [('s44', pmask(pos+2))], vb=10, gap=2, voff=V_FJ)
        a(f"s_waitcnt vmcnt(0)\n s_branch L_g2_cont{pos}x")
    a(f"L_g2_s4:\n s_mov_b32 s26, {WS_FL+32768}")
    poll(a, [('s26', '0xffffffff')], vb=10, gap=2, cnt=32)
    a("s_waitcnt vmcnt(0)\n s_branch L_g2_s4ok")

def ACCG(mb, nb): return 128 + (nb*4+mb)*4
def ACCU(mb, nb): return (nb*4+mb)*4
def FR(st, i): return 128 + st*64 + i*4

def gemm1(a):
    XS = 32768; WB = 98304; WSL = 16384
    a("s_lshl_b32 s29, s24, 19\n s_lshl_b32 s26, s3, 16\n s_add_u32 s29, s29, s26")
    sh_voff(a, 8, 11, 29)
    a("""
    v_lshrrev_b32 v2, 4, v1
    s_and_b32 s26, s3, 1
    s_lshl_b32 s26, s26, 4
    v_add_u32 v3, s26, v2
    s_mov_b32 s27, 7168
    v_mul_lo_u32 v3, v3, s27
    s_lshl_b32 s26, s25, 8
    v_add_u32 v3, s26, v3
    v_lshlrev_b32 v2, 1, v2
    v_and_b32 v4, 15, v1
    v_xor_b32 v2, v2, v4
    v_lshl_add_u32 v12, v2, 4, v3
    v_xor_b32 v2, 8, v2
    v_lshl_add_u32 v14, v2, 4, v3
    """)
    a(f"v_add_u32 v13, {1*(4*7168-1024)}, v12\n v_add_u32 v15, {3*(4*7168-1024)}, v14\n v_add_u32 v14, {2*(4*7168-1024)}, v14")
    a(f"s_mov_b32 s16, 0\n s_mov_b32 s22, 65536\n s_mov_b32 s17, 0\n s_lshl_b32 s21, s3, 12\n s_add_u32 s21, s21, {WB}\n s_lshl_b32 s23, s3, 13")
    def dma_x(h): return [f"buffer_load_dwordx4 v{8+i}, s[4:7], s{(16, 22)[h]} offen offset:{i*1024} lds" for i in range(4)]
    def dma_w(): return [f"buffer_load_dwordx4 v{12+i}, s[8:11], s17 offen offset:{i*1024} lds" for i in range(4)]
    def px(s):
        a(f"s_add_u32 m0, s23, {s*XS}\n s_nop 0")
        for x in dma_x(0): a(x)
        a(f"s_add_u32 m0, s23, {s*XS+4096}\n s_add_u32 s16, s16, 128")
        for x in dma_x(1): a(x)
        a("s_add_u32 s22, s22, 128")
    def pw(s):
        a(f"s_add_u32 m0, s21, {s*WSL}\n s_nop 0")
        for x in dma_w(): a(x)
        a(f"s_add_u32 s17, s17, {32*7168}")
    a("s_waitcnt lgkmcnt(0)")
    srd(a, 4, 40, 2048*1024*2)
    a("s_cmp_ge_u32 s3, 2\n s_cselect_b32 s26, s46, s44\n s_cselect_b32 s27, s47, s45")
    srd(a, 8, 26, 1024*3584*2)
    stamp(a, 21)
    pw(0); px(0); pw(1)
    stamp(a, 22)
    common_setup(a)
    a(f"""
    s_cmp_eq_u32 s3, 1
    s_cselect_b32 s80, s46, s44
    s_cselect_b32 s81, s47, s45
    s_mov_b32 s82, {1024*3584*2}
    s_cmp_eq_u32 s3, 2
    s_cselect_b32 s80, s40, s80
    s_cselect_b32 s81, s41, s81
    s_cselect_b32 s82, {2048*1024*2}, s82
    s_cmp_eq_u32 s3, 3
    s_cselect_b32 s80, s88, s80
    s_cselect_b32 s81, s89, s81
    s_and_b32 s81, s81, 0xffff
    s_mov_b32 s83, 0x20000
    v_mov_b32 v3, {OOB}
    s_add_u32 s86, s67, 28
    s_cmp_ge_u32 s3, 2
    s_cbranch_scc1 L_t_x
    v_lshrrev_b32 v2, 4, v1
    v_lshlrev_b32 v2, 5, v2
    v_bfe_u32 v4, v1, 1, 3
    v_add_u32 v2, v2, v4
    s_lshl_b32 s26, s68, 3
    v_add_u32 v2, s26, v2
    s_mov_b32 s27, 7168
    v_mul_lo_u32 v2, v2, s27
    v_and_b32 v4, 1, v1
    v_lshl_add_u32 v2, v4, 7, v2
    s_lshl_b32 s26, s25, 8
    v_add_u32 v26, s26, v2
    v_cmp_gt_u32 vcc, 32, v1
    s_mov_b32 s84, {2*32*7168}
    s_mov_b32 s85, {2*32*7168}
    v_cndmask_b32 v27, v3, v26, vcc
    s_mov_b32 s75, {4*32*7168}
    v_mov_b32 v42, {'v3' if opt.notw else 'v26'}
    buffer_load_dword v28, v3, s[4:7], 0 offen
    buffer_load_dword v28, v3, s[4:7], 0 offen
    s_branch L_t_done
    L_t_x:
    s_cmp_eq_u32 s3, 3
    s_cbranch_scc1 L_t_wd
    s_mul_i32 s26, s69, 37
    s_lshl_b32 s27, s24, 8
    s_add_u32 s26, s26, s27
    v_add_u32 v2, s26, v1
    v_lshlrev_b32 v2, 11, v2
    v_cmp_gt_u32 vcc, {0 if opt.nox else 37}, v1
    s_mov_b32 s84, 128
    s_mov_b32 s85, 0
    v_cndmask_b32 v42, v3, v2, vcc
    s_mov_b32 s75, 128
    v_mov_b32 v27, v3
    buffer_load_dword v28, v42, s[80:83], s84 offen offset:128
    buffer_load_dword v28, v3, s[4:7], 0 offen
    s_branch L_t_done
    L_t_wd:
    s_mul_i32 s27, s86, 49
    v_cmp_gt_u32 vcc, {0 if (opt.xdft & 2) or opt.nofold else 49}, v1
    s_lshl_b32 s28, s66, 6
    """)
    for k in range(3):
        a(f"""
        v_add_u32 v2, s27, v1
        v_add_u32 v2, {1372*k}, v2
        v_bfe_u32 v4, v2, 4, 3
        v_bfe_u32 v5, v2, 7, 2
        v_lshl_add_u32 v4, v5, 4, v4
        v_bfe_u32 v5, v2, 11, 1
        v_lshl_add_u32 v4, v5, 3, v4
        v_add_u32 v4, s28, v4
        v_bfe_u32 v5, v2, 9, 2
        v_and_b32 v6, 1, v5
        v_lshrrev_b32 v7, 1, v5
        v_xor_b32 v6, v6, v7
        v_sub_u32 v7, 0, v4
        v_cmp_eq_u32 s[62:63], 1, v6
        v_and_b32 v2, 15, v2
        v_lshlrev_b32 v2, 7, v2
        v_cndmask_b32 v4, v4, v7, s[62:63]
        v_lshlrev_b32 v6, 11, v5
        v_cmp_le_u32 s[62:63], 2, v5
        v_mov_b32 v7, 1024
        s_nop 0
        v_cndmask_b32 v6, v6, v7, s[62:63]
        v_add_u32 v4, v4, v6
        v_lshl_add_u32 v2, v4, 11, v2
        v_cndmask_b32 v{46+k}, v3, v2, vcc
        """)
        if k < opt.nf: a(f"buffer_load_dword v28, v{46+k}, s[4:7], 0 offen {opt.nt_fold}")
    a(f"""
    v_lshlrev_b32 v2, 7, v1
    v_cmp_gt_u32 vcc, 32, v1
    s_mul_i32 s84, s66, 28
    s_add_u32 s84, s84, s86
    s_lshl_b32 s84, s84, 12
    v_cndmask_b32 v27, v3, v2, vcc
    s_mov_b32 s85, {224*4096}
    s_mov_b32 s75, 0
    v_mov_b32 v42, v3
    L_t_done:
    """)
    stamp(a, 19)
    a(f"buffer_load_dword v28, v42, s[80:83], s84 offen {opt.nt_w}\n s_add_u32 s84, s84, s75")
    stamp(a, 20)
    a(f"""
    s_cmp_lt_u32 s66, 4
    s_cselect_b32 s36, s56, s58
    s_cselect_b32 s37, s57, s59
    s_cmp_eq_u32 s3, 2
    s_cselect_b32 s36, s52, s36
    s_cselect_b32 s37, s53, s37
    s_cmp_eq_u32 s3, 3
    s_cselect_b32 s36, s54, s36
    s_cselect_b32 s37, s55, s37
    s_and_b32 s37, s37, 0xffff
    s_mov_b32 s39, 0x20000
    s_and_b32 s28, s66, 3
    s_lshl_b32 s26, s28, 18
    s_lshl_b32 s28, s28, 8
    s_lshr_b32 s27, s66, 2
    s_add_u32 s28, s28, s27
    s_lshl_b32 s28, s28, 12
    s_cmp_eq_u32 s3, 1
    s_cselect_b32 s28, s26, s28
    s_cselect_b32 s26, 11, 13
    s_cselect_b32 s38, {1024*1024*2}, s82
    s_mul_i32 s27, s86, 37
    v_add_u32 v2, s27, v1
    v_lshrrev_b32 v4, 3, v2
    v_lshlrev_b32 v4, s26, v4
    v_and_b32 v2, 7, v2
    v_lshl_add_u32 v2, v2, 7, v4
    s_cmp_eq_u32 s3, 0
    s_cselect_b32 s27, 0, 37
    v_cmp_gt_u32 vcc, s27, v1
    v_mov_b32 v3, {OOB}
    s_nop 0
    v_cndmask_b32 v2, v3, v2, vcc
    v_add_u32 v34, s28, v2
    s_cmp_eq_u32 s3, 1
    s_cselect_b64 vcc, -1, 0
    s_nop 0
    v_cndmask_b32 v2, v3, v34, vcc
    v_cndmask_b32 v34, v34, v3, vcc
    buffer_load_dword v28, v2, s[36:39], 0 offen {opt.nt_c}
    """)
    if opt.tlb:
        a("v_lshlrev_b32 v40, 21, v1\n v_add_u32 v40, 0x100000, v40")
    else: a(f"v_mov_b32 v40, {OOB}")
    if opt.tlb2:
        a(f"""
        s_cmp_eq_u32 s3, 1
        s_cselect_b32 s76, s42, s48
        s_cselect_b32 s77, s43, s49
        s_cselect_b32 s78, {4 << 20}, {32 << 20}
        s_and_b32 s77, s77, 0xffff
        s_mov_b32 s79, 0x20000
        s_mov_b32 s26, {opt.HS}
        s_mov_b32 s27, {opt.HS - 128}
        s_cmp_eq_u32 s3, 1
        s_cselect_b32 s26, 65536, s26
        s_cselect_b32 s27, 0, s27
        s_cmp_eq_u32 s3, 2
        s_cselect_b32 s26, {16*XBS}, s26
        s_cselect_b32 s27, {WS_XB + 4096}, s27
        s_cmp_eq_u32 s3, 3
        s_cselect_b32 s26, {EGS}, s26
        s_cselect_b32 s27, {WS_Y + 520*64}, s27
        v_mul_lo_u32 v41, v1, s26
        v_add_u32 v41, s27, v41
        s_cbranch_scc0 L_tl_done
        v_cmp_lt_u32 vcc, 31, v1
        v_add_u32 v2, {YD - 32*EGS}, v41
        s_nop 0
        v_cndmask_b32 v41, v41, v2, vcc
        v_cmp_eq_u32 vcc, 63, v1
        v_mov_b32 v2, {WS_FL + 4096}
        s_nop 0
        v_cndmask_b32 v41, v41, v2, vcc
        L_tl_done:
        """.replace("s_cselect_b32 s78, 4194304, 33554432", "s_mov_b32 s78, 33554432\n s_cselect_b32 s78, 4194304, s78"))
    a(f"""
    s_lshr_b32 s26, s3, 1
    s_lshl_b32 s26, s26, 7
    v_and_b32 v2, 15, v1
    v_lshrrev_b32 v5, 1, v2
    v_add_u32 v2, s26, v2
    v_lshlrev_b32 v2, 7, v2
    v_lshrrev_b32 v3, 4, v1
    v_xor_b32 v5, v3, v5
    v_lshl_add_u32 v16, v5, 4, v2
    v_xor_b32 v5, 4, v5
    v_lshl_add_u32 v33, v5, 4, v2
    v_lshrrev_b32 v4, 2, v1
    v_and_b32 v4, 3, v4
    v_lshl_add_u32 v5, v3, 3, v4
    v_lshlrev_b32 v5, 8, v5
    v_add_u32 v5, {WB}, v5
    v_and_b32 v6, 3, v1
    v_lshl_add_u32 v5, v6, 3, v5
    v_and_b32 v6, 1, v3
    v_lshl_or_b32 v6, v6, 2, v4
    s_and_b32 s26, s3, 1
    s_lshl_b32 s26, s26, 2
    v_xor_b32 v6, s26, v6
    """)
    for mb in range(4):
        a(f"v_xor_b32 v7, {mb}, v6\n v_lshl_add_u32 v{17+mb}, v7, 5, v5")
    for i in range(5): a(f"v_mov_b32 v{21+i}, v{16+i}")
    def reads(st):
        def wr(mat, mb):
            b = FR(st, mat*4+mb)
            return [f"ds_read_b64_tr_b16 a[{b}:{b+1}], v{22+mb} offset:{mat*8192}",
                    f"ds_read_b64_tr_b16 a[{b+2}:{b+3}], v{22+mb} offset:{mat*8192+1024}"]
        def xr(nb):
            b = FR(st, 8+nb)
            return [f"ds_read_b128 a[{b}:{b+3}], v21 offset:{nb*2048}"]
        r = []
        for i in range(8): r += wr(i & 1, i >> 1) + xr(i)
        return r
    def mf(st):
        m = []
        od = [(nb if (mb*2+mat) % 2 == 0 else 7-nb, mb, mat) for mb in range(4) for mat in range(2) for nb in range(8)]
        for nb, mb, mat in od:
            c = f"v[{ACCG(mb,nb)}:{ACCG(mb,nb)+3}]" if mat == 0 else f"a[{ACCU(mb,nb)}:{ACCU(mb,nb)+3}]"
            fa = FR(st, mat*4+mb); fb_ = FR(st, 8+nb)
            if opt.pw & 1: fa, fb_ = fb_, fa
            x = f"{MF} {c}, a[{fa}:{fa+3}], a[{fb_}:{fb_+3}], {c}"
            if opt.pw & 2:
                c2 = c.replace('v[', 'a[')
                x = f"{MF} {c2}, v[{fa}:{fa+3}], v[{fb_}:{fb_+3}], {c2}"
            m.append(x)
        return m
    if opt.pw & 2:
        reads0 = reads
        reads = lambda st: [x.replace(' a[', ' v[') for x in reads0(st)]
    for i in range(4): a(f"v_mov_b32 v{36+i}, 0")
    a("s_nop 1")
    for i in range(8): a(f"v_mfma_f32_32x32x16_bf16 v[{128+16*i}:{143+16*i}], v[36:39], v[36:39], 0\n v_mfma_f32_32x32x16_bf16 a[{16*i}:{15+16*i}], v[36:39], v[36:39], 0")
    def preblk():
        a(f"""
    s_lshl_b32 s86, s24, 3
    s_lshr_b32 s31, s3, 1
    s_lshl_b32 s31, s31, 2
    s_add_u32 s86, s86, s31
    s_lshl_b32 s68, s86, 11
    s_mul_i32 s86, s86, {opt.HS}
    s_lshl_b32 s31, s25, 13
    s_add_u32 s86, s86, s31
    s_and_b32 s31, s3, 1
    s_lshl_b32 s31, s31, 12
    s_add_u32 s86, s86, s31
    s_lshl_b32 s31, s25, 1
    s_and_b32 s26, s3, 1
    s_add_u32 s31, s31, s26
    s_lshl_b32 s31, s31, 7
    s_add_u32 s68, s68, s31
    s_add_u32 s68, s68, {WS_FL+65536}
    """)
        g2_pre(a, False)
    preblk()
    stamp(a, 1)
    a(f"s_waitcnt vmcnt(8) lgkmcnt(0)\n s_barrier")
    for x in reads(0): a(x)
    nonce(a)
    a(f"s_lshl_b32 s26, s2, 7\n s_add_u32 s26, s26, {WS_FL+393216}\n s_cmp_eq_u32 s3, 0\n s_cselect_b32 s26, s26, {OOB}\n v_and_b32 v43, 15, v1\n v_lshl_add_u32 v43, v43, 3, s26\n v_mov_b32 v44, s98\n v_mov_b32 v45, s99")
    a(f"s_mov_b32 s19, 0\n s_mov_b32 s20, {XS}\n s_mov_b32 s18, 0\n s_mov_b32 s28, {WSL}\n s_mov_b32 s29, 0")
    a("v_mov_b32 v21, v33")
    for i in range(4): a(f"v_add_u32 v{22+i}, s28, v{17+i}")
    a(f"s_mov_b32 s72, {32*7168}\n s_mov_b32 s73, 128\n s_mov_b32 s74, 65536")
    stamp(a, 2)
    for st in (2, 0, 1):
        peel = st == 2
        if peel: st = 0
        if not peel and st == 0: a(".p2align 6\n" + "s_nop 0\n"*opt.shift + "L_g1_loop:")
        if st == 1: a("L_g1_mid:")
        f = {-1: ["s_waitcnt lgkmcnt(0)"]}
        if opt.trace: f[-1] = trace_ops("s18")
        f[0] = [f"s_waitcnt vmcnt({4 if peel else (24, 12)[st]})", "s_barrier"]
        if peel:
            A = Asm(); save = a
            def cap(fn, *args):
                n0 = len(a.l); fn(*args); out = [x.strip() for x in a.l[n0:]]; del a.l[n0:]; return out
            ops = cap(pw, 2) + cap(px, 1) + cap(pw, 3) + ["buffer_load_dword v28, v40, s[80:83], 0 offen"] + cap(px, 2) + ["buffer_store_dwordx2 v[44:45], v43, s[12:15], 0 offen sc1"]
            g = 2
            for x in ops:
                if x == 's_nop 0': continue
                f.setdefault(g-1 if 'm0' in x else g, []).append(x)
                if x.startswith('buffer'): g += 2
            assert g <= 63, g
            if opt.stamp: f.setdefault(63, []).extend(["s_memrealtime s[92:93]", "s_waitcnt lgkmcnt(0)", "v_writelane_b32 v31, s92, 41"])
            f.setdefault(63, []).append("s_branch L_g1_mid")
        rd = reads(st ^ 1)
        for i, x in enumerate(rd): f.setdefault(1 + 2*i, []).append(x)
        f.setdefault(2, []).append(f"s_add_u32 s28, s28, {WSL}")
        f.setdefault(4, []).append(f"s_and_b32 s28, s28, {4*WSL-1}")
        f.setdefault(6, []).append("s_add_u32 s18, s18, 1")
        for i in range(4): f.setdefault(50+2*i, []).append(f"v_add_u32 v{22+i}, s28, v{17+i}")
        if st == 0:
            f.setdefault(58, []).append("v_add_u32 v21, s20, v16")
        else:
            f.setdefault(58, []).append("v_add_u32 v21, s19, v33")
            dq = dma_w() + dma_w() + dma_x(0) + dma_x(1)
            dp = opt.dp if hasattr(opt, 'dp') else [2 + 4*i - (i > 11)*(i-11) for i in range(16)]
            f[0].append("s_add_u32 m0, s21, s29")
            for i, x in enumerate(dq): f.setdefault(dp[i], []).append(x)
            f[dp[3]] += [f"s_add_u32 m0, m0, {WSL}", "s_add_u32 s17, s17, s72"]
            f[dp[7]] += ["s_add_u32 m0, s23, s19", "s_add_u32 s17, s17, s72"]
            f[dp[8]] += [f"s_xor_b32 s29, s29, {2*WSL}"]
            f[dp[9]] += ["s_mov_b32 s19, s20"]
            f[dp[10]] += [f"s_add_u32 s20, s20, {XS}", f"s_cmp_eq_u32 s20, {3*XS}"]
            f[dp[11]] += ["s_cselect_b32 s20, 0, s20", "s_add_u32 m0, m0, 4096"]
            f[dp[12]] += ["s_add_u32 s16, s16, s73"]
            f[dp[15]] += ["s_cmp_ge_u32 s18, 26", "s_cbranch_scc1 L_g1_sw", "L_g1_swd:", "s_add_u32 s22, s16, s74"]
            f.setdefault(62, []).extend([f"buffer_load_dword v28, v27, s[80:83], s84 offen {opt.tflags}", "s_add_u32 s84, s84, s85"])
            f[62] += ["s_cmp_lg_u32 s18, 4", "s_cbranch_scc1 L_g1_noseq", "buffer_load_dword v28, v34, s[36:39], 0 offen"] + (["buffer_load_dword v28, v41, s[76:79], 0 offen"] if opt.tlb2 else []) + ["L_g1_noseq:"]
            f.setdefault(63, []).extend(["s_cmp_lt_u32 s18, 32", "s_cbranch_scc1 L_g1_loop"])
        interleave(a, mf(st), f)
    a("s_branch L_g1_done")
    a("L_g1_sw:\n s_cmp_eq_u32 s18, 26\n s_cbranch_scc0 L_g1_sw2\n s_mov_b64 s[4:5], s[32:33]\n s_mov_b32 s6, s34")
    for i in range(4): a(f"v_mov_b32 v{8+i}, v{V_WX+i}")
    a(f"s_mov_b32 s16, s41\n s_mov_b32 s74, {16*2048}\n s_branch L_g1_swd")
    a("L_g1_sw2:\n s_cmp_eq_u32 s18, 28\n s_cselect_b32 s16, s42, s40\n s_branch L_g1_swd")
    a("L_g1_done:")
    stamp(a, 3)
    if opt.xdft: a("s_branch L_end")
    c0 = -2*math.sqrt(2/math.pi)*math.log2(math.e); c1 = c0*0.044715
    a(f"s_mov_b32 s26, {fbits(c0)}\n s_mov_b32 s28, {fbits(c1)}\n s_mov_b32 s29, {fbits(c1)}")
    a("v_mov_b32 v24, s26\n v_mov_b32 v25, s26\n v_mov_b32 v2, 0\n v_mov_b32 v3, 0\n v_mov_b32 v4, 0\n v_mov_b32 v5, 0\n s_waitcnt lgkmcnt(0)")
    a(f"s_lshr_b32 s27, s3, 1\n s_lshl_b32 s27, s27, 15\n s_and_b32 s26, s3, 1\n s_lshl_b32 s26, s26, 12\n s_add_u32 s26, s26, s27\n s_add_u32 s26, s26, {OWNL}\n v_add_u32 v29, s26, v{V_L16}")
    for nb in range(8):
        g0 = ACCG(0, nb); u0 = ACCU(0, nb)
        U = 32 + (nb % 2)*32; Z = U+16; O = g0
        for i in range(16): a(f"v_accvgpr_read_b32 v{U+i}, a{u0+i}")
        for i in range(0, 16, 2): a(f"v_pk_mul_f32 v[{Z+i}:{Z+i+1}], v[{g0+i}:{g0+i+1}], v[{g0+i}:{g0+i+1}]")
        for i in range(0, 16, 2): a(f"v_pk_fma_f32 v[{Z+i}:{Z+i+1}], v[{Z+i}:{Z+i+1}], s[28:29], v[24:25]")
        for i in range(0, 16, 2): a(f"v_pk_mul_f32 v[{Z+i}:{Z+i+1}], v[{Z+i}:{Z+i+1}], v[{g0+i}:{g0+i+1}]")
        for i in range(16): a(f"v_exp_f32 v{Z+i}, v{Z+i}")
        for i in range(0, 16, 2): a(f"v_pk_mul_f32 v[{U+i}:{U+i+1}], v[{U+i}:{U+i+1}], v[{g0+i}:{g0+i+1}]")
        for i in range(0, 16, 2): a(f"v_pk_add_f32 v[{Z+i}:{Z+i+1}], v[{Z+i}:{Z+i+1}], 1.0 op_sel_hi:[1,0]")
        for i in range(16): a(f"v_rcp_f32 v{Z+i}, v{Z+i}")
        a("s_nop 0")
        for i in range(0, 16, 2): a(f"v_pk_mul_f32 v[{U+i}:{U+i+1}], v[{U+i}:{U+i+1}], v[{Z+i}:{Z+i+1}]")
        for i in range(0, 16, 2): a(f"v_cvt_pk_bf16_f32 v{O+i//2}, v{U+i}, v{U+i+1}")
        for p in range(2):
            off = (nb >> 1)*opt.HS + (p*2 + (nb & 1))*1024
            a(f"s_add_u32 s31, s86, {off}")
            a(f"buffer_store_dwordx4 v[{O+4*p}:{O+4*p+3}], v{V_L16}, s[12:15], s31 offen {opt.hflags}")
        if nb == 0: a("s_waitcnt vmcnt(2)\n s_barrier")
        a(f"ds_write_b128 v29, v[{O}:{O+3}] offset:{(nb >> 1)*8192 + (nb & 1)*1024}\n ds_write_b128 v29, v[{O+4}:{O+7}] offset:{(nb >> 1)*8192 + (nb & 1)*1024 + 2048}")
        if nb == 3: g2_zero(a, 2, 0, 4)
        if nb == 6: g2_zero(a, 2, 4, 7)
    stamp(a, 4)
    g2_zero(a, 2, 7, 8)
    a(f"s_lshl_b32 s26, s3, 14\n s_lshr_b32 s27, s96, 1\n s_lshl_b32 s27, s27, 13\n s_add_u32 s26, s26, {OWNL}\n s_add_u32 s27, s27, s26\n v_add_u32 v29, s27, v{V_L16}\n v_xor_b32 v10, 8192, v29\n s_waitcnt lgkmcnt(0)\n s_barrier")
    for st in range(4):
        for nb in range(4): a(f"ds_read_b128 v[{128+16*st+4*nb}:{131+16*st+4*nb}], v{(29, 10)[nb >> 1]} offset:{st*2048 + (nb & 1)*1024}")
    stamp(a, 5)

RAW = 64; GT = 192; EU = 208; SV = 216
def fold_loads(a, vm):
    a("""
    s_lshl_b32 s26, s66, 2
    s_add_u32 s26, s26, s67
    s_lshl_b32 s26, s26, 4
    v_lshrrev_b32 v40, 3, v1
    v_add_u32 v40, s26, v40
    v_cmp_eq_u32 s[62:63], 0, v40
    v_and_b32 v2, 7, v1
    v_cmp_eq_u32 s[70:71], 0, v2
    v_add_u32 v44, 8, v40
    v_lshlrev_b32 v2, 4, v2
    s_lshl_b32 s26, s3, 8
    v_add_u32 v2, s26, v2
    v_sub_u32 v3, 1904, v2
    v_sub_u32 v41, 2048, v40
    v_sub_u32 v42, 1024, v40
    v_add_u32 v43, 1024, v40
    v_sub_u32 v45, 2048, v44
    v_sub_u32 v46, 1024, v44
    v_add_u32 v47, 1024, v44
    v_mov_b32 v4, 512
    v_mov_b32 v5, 1536
    v_cndmask_b32 v41, v41, v4, s[62:63]
    v_cndmask_b32 v43, v43, v5, s[62:63]
    s_sub_u32 s74, 2048, s26
    """)
    for k in range(8): a(f"v_lshl_add_u32 v{224+8*(k>>2)+(k&3)}, v{40+k}, 11, v2\n v_lshl_add_u32 v{228+8*(k>>2)+(k&3)}, v{40+k}, 11, v3")
    for gi in range(2):
        a(f"buffer_load_dwordx4 v[{GT+8*gi}:{GT+8*gi+3}], v2, s[32:35], 0 offen offset:{gi*128}")
        a(f"buffer_load_dwordx4 v[{GT+8*gi+4}:{GT+8*gi+7}], v3, s[32:35], 0 offen offset:{(1-gi)*128}")
        vm.add('g', 2)
def fold_round_loads(a, vm, rnd):
    if True:
        hf, gi = rnd >> 1, rnd & 1
        b = RAW + 32*rnd
        for i in range(4):
            a(f"buffer_load_dwordx4 v[{b+8*i}:{b+8*i+3}], v{224+8*hf+i}, s[4:7], 0 offen offset:{gi*128}")
            a(f"buffer_load_dwordx4 v[{b+8*i+4}:{b+8*i+7}], v{228+8*hf+i}, s[4:7], 0 offen offset:{(1-gi)*128}")
        if gi == 0:
            for i in range(4):
                a(f"v_lshlrev_b32 v4, 11, v{40+4*hf+i}\n buffer_load_ushort v{EU+4*hf+i}, v4, s[4:7], s74 offen")
            vm.add(f'r{rnd}', 12)
        else: vm.add(f'r{rnd}', 8)
def fold_compute(a, vm, between):
    LP = 8; UU = 16
    a(f"v_mov_b32 v24, {ALT}")
    for r in range(8, 24): a(f"v_mov_b32 v{r}, 0")
    a(f"""
    s_lshl_b32 s26, s66, 2
    s_add_u32 s26, s26, s67
    s_lshr_b32 s27, s26, 2
    s_lshl_b32 s27, s27, 16
    s_and_b32 s26, s26, 3
    s_lshl_b32 s26, s26, 10
    s_add_u32 s26, s26, s27
    s_lshl_b32 s27, s3, 14
    s_add_u32 s26, s26, s27
    s_add_u32 s22, s26, {WS_Z}
    v_bfe_u32 v2, v1, 2, 1
    v_lshlrev_b32 v25, 12, v2
    v_and_b32 v2, 3, v1
    v_lshl_add_u32 v25, v2, 8, v25
    v_lshrrev_b32 v2, 3, v1
    v_lshl_add_u32 v25, v2, 4, v25
    s_cmp_eq_u32 s3, 0
    s_cselect_b64 s[72:73], s[70:71], 0
    """)
    T = 240
    for rnd in range(4):
        hf, gi = rnd >> 1, rnd & 1
        b = RAW + 32*rnd; g = GT + 8*gi
        S = [224, RAW+96 if rnd < 2 else RAW+8, 48, 56]
        vm.wait(a, f'r{rnd}')
        if rnd in (0, 1): stamp(a, 19+2*rnd)
        for j in range(4):
            for i in range(4):
                a(f"v_dot2_f32_bf16 v{LP+4*hf+i}, v{b+8*i+j}, v{g+j}, v{LP+4*hf+i}")
            for i in range(4):
                a(f"v_dot2_f32_bf16 v{LP+4*hf+i}, v{b+8*i+4+j}, v{g+4+j}, v{LP+4*hf+i}")
        if hf == 0:
            for i in (1, 3):
                for j in range(8): a(f"v_cndmask_b32 v{b+8*i+j}, v{b+8*i+j}, 0, s[62:63]")
                if gi == 0: a(f"v_cndmask_b32 v{EU+i}, v{EU+i}, 0, s[62:63]")
        if gi == 0:
            for i in range(4): a(f"v_cndmask_b32 v{EU+4*hf+i}, v{EU+4*hf+i}, 0, s[72:73]")
            for i in range(4): a(f"v_mov_b32 v{SV+i}, v{b+8*i+4}")
        else:
            for i in range(4): a(f"v_mov_b32_dpp v{EU+4*hf+i}, v{SV+i} row_shl:7 row_mask:0xf bank_mask:0xf")
            for i in range(4): a(f"v_lshlrev_b32 v{2+i}, 16, v{b+8*i+4}")
            a(f"v_add_f32 v2, v2, v3\n v_add_f32 v4, v4, v5\n v_add_f32 v{26+2*hf}, v2, v4\n v_sub_f32 v{27+2*hf}, v2, v4")
        for i in range(4): a(f"v_mov_b32_dpp v{SV+4+i}, v{b+8*i+4} row_shr:1 row_mask:0xf bank_mask:0xf")
        for i in range(4): a(f"v_cndmask_b32 v{SV+4+i}, v{SV+4+i}, v{EU+4*hf+i}, s[70:71]")
        for i in range(4):
            for j in range(8): a(unp(T+j, b+8*i, j))
            a(f"v_lshlrev_b32 v{T+8}, 16, v{SV+4+i}")
            for j in range(1, 8): a(unp(T+8+j, b+8*i+4, 8-j))
            for j in range(0, 8, 2):
                a(pk('', S[i]+j, T+j, T+8+j))
                a(pk('', b+8*i+j, T+j, T+8+j, neg=True))
        for j in range(0, 8, 2):
            a(pk('', S[0]+j, S[0]+j, S[1]+j)); a(pk('', S[2]+j, S[2]+j, S[3]+j))
            a(pk('', b+j, b+j, b+8+j, neg=True)); a(pk('', b+16+j, b+16+j, b+24+j, neg=True))
        for j in range(0, 8, 2):
            a(pk('', S[1]+j, S[0]+j, S[2]+j)); a(pk('', S[3]+j, S[0]+j, S[2]+j, neg=True))
            a(pk('', b+8+j, b+j, b+16+j, neg=True)); a(pk('', b+24+j, b+j, b+16+j))
        for j in range(0, 8, 2):
            a(pk('', UU+4*hf, UU+4*hf, S[1]+j)); a(pk('', UU+4*hf+2, UU+4*hf+2, S[3]+j))
        for cls, src in enumerate((S[1], S[3], b+8, b+24)):
            o = b + 4*(cls & 1) + 16*(cls >> 1)
            for j in range(4): a(f"v_cvt_pk_bf16_f32 v{o+j}, v{src+2*j}, v{src+2*j+1}")
            a(f"s_add_u32 s26, s22, {cls*524288 + gi*8192 + hf*128}")
            a(f"buffer_store_dwordx4 v[{o}:{o+3}], v25, s[12:15], s26 offen sc1")
            vm.add('st')
        if rnd in (0, 1): stamp(a, 20+2*rnd)
        between(rnd)
    a("""
    s_cmp_eq_u32 s3, 3
    s_cselect_b32 s26, 0x80808080, 0
    s_mov_b32 s27, s26
    v_sub_f32 v16, v16, v17
    v_sub_f32 v17, v18, v19
    v_sub_f32 v18, v20, v21
    v_sub_f32 v19, v22, v23
    """)
    for k in range(4): a(f"v_cndmask_b32 v{20+k}, 0, v{26+k}, s[26:27]")
    for k in range(4): a(f"v_add_f32 v{16+k}, v{16+k}, v{20+k}")
    a("s_nop 0")
    for ctl in ("quad_perm:[1,0,3,2]", "quad_perm:[2,3,0,1]", "row_half_mirror"):
        for r in range(8, 20): a(f"v_add_f32_dpp v{r}, v{r}, v{r} {ctl} row_mask:0xf bank_mask:0xf")
    a(f"""
    s_lshl_b32 s26, s3, 2
    s_lshl_b32 s27, s3, 11
    s_add_u32 s27, s27, {WS_UP}
    s_mov_b32 s28, {WS_CV}
    s_add_u32 s29, s27, 8192
    """)
    for k in range(8): a(f"v_lshl_add_u32 v{68+k}, v{40+k}, 4, s26")
    a(f"v_lshlrev_b32 v76, 2, v40\n s_mov_b32 s26, {WS_LP}\n s_mov_b64 exec, s[70:71]")
    for k in range(8): a(f"buffer_store_dword v{8+k}, v{68+k}, s[12:15], s26 offen sc1")
    for hf in range(2):
        a(f"buffer_store_dword v{16+2*hf}, v76, s[12:15], s27 offen offset:{32*hf} sc1\n buffer_store_dword v{17+2*hf}, v76, s[12:15], s29 offen offset:{32*hf} sc1")
    a(f"""
    s_mov_b64 exec, -1
    s_cmp_lg_u32 s3, 3
    s_cbranch_scc1 L_fc2
    s_mov_b32 exec_lo, 0x80808080
    s_mov_b32 exec_hi, 0x80808080
    buffer_store_dword v26, v76, s[12:15], s28 offen sc1
    buffer_store_dword v27, v76, s[12:15], s28 offen offset:2048 sc1
    buffer_store_dword v28, v76, s[12:15], s28 offen offset:32 sc1
    buffer_store_dword v29, v76, s[12:15], s28 offen offset:2080 sc1
    s_mov_b64 exec, -1
    L_fc2:
    """)

def sh_voff(a, vb, rs_shift, srow):
    a(f"""
    v_lshrrev_b32 v2, 3, v1
    s_lshl_b32 s26, s3, 5
    v_add_u32 v2, s26, v2
    v_lshlrev_b32 v2, {rs_shift}, v2
    v_add_u32 v2, s{srow}, v2
    v_lshrrev_b32 v3, 4, v1
    v_and_b32 v4, 7, v1
    v_xor_b32 v3, v3, v4
    v_lshl_add_u32 v{vb}, v3, 4, v2
    v_xor_b32 v3, 4, v3
    v_lshl_add_u32 v{vb+1}, v3, 4, v2
    v_add_u32 v{vb+2}, {2*((8<<rs_shift)-1024)}, v{vb}
    v_add_u32 v{vb+3}, {3*((8<<rs_shift)-1024)}, v{vb+1}
    v_add_u32 v{vb+1}, {((8<<rs_shift)-1024)}, v{vb+1}
    """)
def sh_touch(a, sr, rs_shift, srow):
    a(f"""
    s_lshl_b32 s26, s67, 5
    s_lshl_b32 s27, s3, 3
    s_add_u32 s26, s26, s27
    v_lshrrev_b32 v2, 3, v1
    v_add_u32 v2, s26, v2
    v_lshlrev_b32 v2, {rs_shift}, v2
    v_and_b32 v3, 7, v1
    v_lshl_add_u32 v2, v3, 7, v2
    buffer_load_dword a255, v2, s[{sr}:{sr+3}], s{srow} offen
    """)
def sh_dma(vb, sr): return [f"buffer_load_dwordx4 v{vb+i}, s[{sr}:{sr+3}], s17 offen offset:{i*1024} lds" for i in range(4)]

def dloop(a, name, nm, accb, dma, extra=False, first=True, init=None, D=8, inc=128, mid=None):
    PB = 128; SF = 64
    def pl(i, off): return f"buffer_load_dwordx4 v[{PB+4*i}:{PB+4*i+3}], v12, s[32:35], s16 offen offset:{off} sc1"
    def sreads(st, ks): return [f"ds_read_b128 v[{SF+st*32+4*nb}:{SF+st*32+4*nb+3}], v{18+ks} offset:{nb*2048}" for nb in range(8)]
    if first:
        a("s_mov_b32 s16, 0")
        for t in range(D):
            for i in range(nm): a(pl(t*nm+i, i*1024))
            a(f"s_add_u32 s16, s16, {nm*1024}")
        a("v_mov_b32 v18, v16\n v_mov_b32 v19, v17")
        for x in sreads(0, 0): a(x)
        a(f"s_mov_b32 s19, 0\n s_mov_b32 s20, {SLOT3}\n ")
        init()
    a(f"s_mov_b32 s18, 0\n s_mov_b32 s17, 0")
    a(f".p2align 6\nL_{name}_loop:")
    NM = 8*nm
    if mid: mid()
    for t in range(8):
        ks = t & 1
        ms = []
        for mb in range(nm):
            for nb in range(8):
                c = accb + (nb*nm+mb)*4; pa = PB + ((t % D)*nm+mb)*4; sb = SF + ks*32 + nb*4
                ms.append(f"{MF} a[{c}:{c+3}], v[{pa}:{pa+3}], v[{sb}:{sb+3}], a[{c}:{c+3}]")
        f = {-1: [f"s_waitcnt vmcnt({(D-1)*nm}) lgkmcnt(0)"]}
        if extra:
            L = f"L_{name}_x{t}"
            f[-1] += ["s_cmp_eq_u32 s31, 0", f"s_cbranch_scc1 {L}"] + \
                     [f"{MF} a[{128+4*mb}:{131+4*mb}], v[{PB+(t*nm+mb)*4}:{PB+(t*nm+mb)*4+3}], v[24:27], a[{128+4*mb}:{131+4*mb}]" for mb in range(nm)] + [f"{L}:"]
        if ks == 1:
            f[0] = ["s_barrier", "v_add_u32 v18, s20, v16"]
            rd = sreads(0, 0)
        else:
            rd = sreads(1, 1)
        sp = NM // 16
        for k, x in enumerate(rd): f.setdefault(1+sp*k, []).append(x)
        for mb in range(nm): f.setdefault(8*mb+7, []).append(pl((t % D)*nm+mb, mb*1024))
        f[NM-1].append(f"s_add_u32 s16, s16, {nm*1024}")
        if ks == 1:
            if dma:
                f.setdefault(1, []).append("s_add_u32 m0, s21, s19")
                for k, x in enumerate(sh_dma(*dma)): f.setdefault(2+(NM//5)*k, []).append(x)
                f.setdefault(NM-3, []).append(f"s_add_u32 s17, s17, {inc}")
            f.setdefault(NM//2+1, []).append("v_add_u32 v19, s20, v17")
            f.setdefault(NM-3, []).extend(["s_mov_b32 s19, s20", f"s_add_u32 s20, s20, {SLOT3}"])
            f.setdefault(NM-2, []).append(f"s_and_b32 s20, s20, {R3*SLOT3-1}")
        interleave(a, ms, f)
    a(f"s_add_u32 s18, s18, 1\n s_cmp_lt_u32 s18, 2\n s_cbranch_scc1 L_{name}_loop")

def tile_vec(a, vec):
    a("""
    s_lshl_b32 s26, s67, 5
    s_lshl_b32 s27, s3, 3
    s_add_u32 s26, s26, s27
    s_lshl_b32 s27, s26, 7
    v_lshrrev_b32 v2, 3, v1
    v_lshlrev_b32 v2, 14, v2
    v_add_u32 v2, s27, v2
    s_lshr_b32 s26, s26, 1
    v_and_b32 v3, 7, v1
    v_xor_b32 v3, s26, v3
    v_and_b32 v3, 7, v3
    """)
    for i in range(8):
        a(f"v_xor_b32 v4, {i>>1}, v3\n v_lshl_add_u32 v4, v4, 4, v2\n ds_read_b128 v[{96+4*i}:{99+4*i}], v4 offset:{i*128}")
    for i in range(8): a(f"v_mov_b32 v{40+i}, 0")
    a("s_waitcnt lgkmcnt(0)")
    for j in range(4):
        for i in range(8): a(f"v_dot2_f32_bf16 v{40+i}, v{96+4*i+j}, v{vec+j}, v{40+i}")
    a("s_nop 2")
    reduce_lanes(a, list(range(40, 48)), 48, ['ror1', 'ror2', 'ror4', 'ror8', 'p16', 'p32'])
    for i in range(1, 8): a(f"v_cmp_eq_u32 vcc, {i}, v1\n s_nop 1\n v_cndmask_b32 v40, v40, v{40+i}, vcc")

def acc_load(a, nm, vb, svec, wshift, off=0):
    a(f"v_lshrrev_b32 v2, 4, v1\n v_lshlrev_b32 v2, 4, v2\n s_lshl_b32 s26, s3, {wshift}\n v_add_u32 v2, s26, v2")
    for mb in range(nm): a(f"buffer_load_dwordx4 v[{vb+4*mb}:{vb+3+4*mb}], v2, s[12:15], s{svec} offen offset:{off+mb*64} sc1")
def acc_init(a, nm, vb, accb, sscale, withx=False):
    a(f"v_lshlrev_b32 v3, 31, v1")
    for i in range(4*nm): a(f"v_mul_f32 v{vb+i}, s{sscale}, v{vb+i}")
    if withx:
        for i in range(4*nm): a(f"v_accvgpr_write_b32 a{128+i}, v{vb+i}")
    for i in range(4*nm): a(f"v_xor_b32 v{vb+i}, v3, v{vb+i}")
    for nb in range(8):
        for i in range(4*nm): a(f"v_accvgpr_write_b32 a{accb+nb*4*nm+i}, v{vb+i}")

def dft(a):
    vm = VM()
    a("s_waitcnt lgkmcnt(0)")
    srd(a, 4, 40, 2048*1024*2)
    srd(a, 32, 60, 2048)
    a("""
    v_lshlrev_b32 v2, 4, v1
    v_sub_u32 v3, 2032, v2
    s_mov_b32 s26, 0x100000
    s_mov_b32 s27, 0x300000
    buffer_load_dwordx4 v[128:131], v2, s[4:7], s26 offen
    buffer_load_dwordx4 v[132:135], v3, s[4:7], s26 offen
    buffer_load_dwordx4 v[140:143], v2, s[4:7], s27 offen
    buffer_load_dwordx4 v[144:147], v3, s[4:7], s27 offen
    """); vm.add('z', 4)
    fold_loads(a, vm)
    fold_round_loads(a, vm, 0); fold_round_loads(a, vm, 1)
    common_setup(a)
    a("s_lshr_b32 s30, s66, 2\n s_cmp_eq_u32 s30, 0\n s_cselect_b32 s26, s56, s58\n s_cselect_b32 s27, s57, s59")
    srd(a, 8, 26, 1024*1024*2)
    a("s_and_b32 s25, s66, 3\n s_lshl_b32 s25, s25, 18\n s_lshl_b32 s21, s3, 12")
    sh_voff(a, 32, 11, 25)
    srd(a, 36, 52, 2048*2048*2)
    srd(a, 80, 54, 2048*2048*2)
    a("s_and_b32 s24, s66, 3\n s_lshl_b32 s24, s24, 8\n s_add_u32 s24, s24, s30\n s_lshl_b32 s24, s24, 12")
    a("s_waitcnt lgkmcnt(0)\n s_mov_b32 s17, 0")
    nonce(a)
    started(a)
    stamp(a, 9)
    vm.wait(a, 'z')
    a("v_mov_b32 v136, 0\n v_mov_b32 v148, 0\n s_cmp_eq_u32 s30, 0\n s_cselect_b32 s26, 1.0, -1.0")
    a("v_mov_b32_dpp v136, v132 wave_shr:1 row_mask:0xf bank_mask:0xf\n v_mov_b32_dpp v148, v144 wave_shr:1 row_mask:0xf bank_mask:0xf")
    for k, b in enumerate((128, 140)):
        for j in range(8): a(unp(160+16*k+j, b, j))
        a(f"v_lshlrev_b32 v{168+16*k}, 16, v{b+8}")
        for j in range(1, 8): a(unp(168+16*k+j, b+4, 8-j))
    for j in range(16): a(f"v_fma_f32 v{160+j}, v{176+j}, s26, v{160+j}")
    for j in range(8): a(f"v_fma_f32 v{160+j}, v{168+j}, s26, v{160+j}")
    for j in range(4): a(f"v_cvt_pk_bf16_f32 v{36+j}, v{160+2*j}, v{161+2*j}")
    a("v_lshlrev_b32 v2, 16, v132\n v_lshlrev_b32 v3, 16, v144\n v_add_f32 v2, v2, v3\n s_nop 0\n v_readlane_b32 s75, v2, 63\n s_cselect_b32 s75, s75, 0")
    a(pk('', 160, 160, 162)); a(pk('', 164, 164, 166)); a(pk('', 160, 160, 164)); a("v_sub_f32 v160, v160, v161")
    reduce_lanes(a, [160], 176, ['ror1', 'ror2', 'ror4', 'ror8', 'p16', 'p32'])
    a("v_add_f32 v160, s75, v160\n s_nop 0\n v_readfirstlane_b32 s97, v160")
    def between(rnd):
        if rnd < 2: fold_round_loads(a, vm, rnd+2)
        for s in ((0, 1, 2), (3, 4, 5), (6, 7), ())[rnd]:
            a(f"s_add_u32 m0, s21, {s*SLOT3}\n s_nop 0")
            for x in sh_dma(32, 8): a(x)
            a("s_add_u32 s17, s17, 128")
            vm.add('pf', 4)
    fold_compute(a, vm, between)
    stamp(a, 1)
    a(f"s_lshl_b32 s23, s66, 2\n s_add_u32 s23, s23, s67\n s_lshl_b32 s23, s23, 7\n s_add_u32 s23, s23, {WS_FL+16384}")
    publish(a, 's23')
    for i in range(4): a(f"v_mov_b32 v{56+i}, 0")
    tile_vec(a, 36)
    for i in range(8): a(f"v_mfma_f32_32x32x16_bf16 a[{16*i}:{15+16*i}], v[56:59], v[56:59], 0")
    a(f"""
    v_lshlrev_b32 v2, 31, v1
    v_xor_b32 v2, s75, v2
    v_add_f32 v40, v40, v2
    s_lshl_b32 s26, s66, 7
    s_lshl_b32 s27, s67, 5
    s_add_u32 s26, s26, s27
    s_lshl_b32 s27, s3, 3
    s_add_u32 s26, s26, s27
    s_lshl_b32 s26, s26, 2
    s_add_u32 s26, s26, {WS_RV}
    v_lshlrev_b32 v2, 2, v1
    s_mov_b64 exec, 0xff
    buffer_store_dword v40, v2, s[12:15], s26 offen sc1
    s_mov_b64 exec, -1
    """)
    stamp(a, 10)
    sh_voff(a, 20, 13, 24)
    a("v_lshlrev_b32 v12, 4, v1")
    a("""
    v_and_b32 v2, 15, v1
    v_lshrrev_b32 v3, 1, v2
    v_lshrrev_b32 v4, 4, v1
    v_xor_b32 v3, v3, v4
    v_lshlrev_b32 v2, 7, v2
    v_lshl_add_u32 v16, v3, 4, v2
    v_xor_b32 v3, 4, v3
    v_lshl_add_u32 v17, v3, 4, v2
    """)
    a(f"""
    s_lshl_b32 s26, s30, 1
    s_lshr_b32 s27, s67, 1
    s_add_u32 s26, s26, s27
    s_lshl_b32 s26, s26, 3
    s_and_b32 s27, s67, 1
    s_lshl_b32 s27, s27, 2
    s_add_u32 s26, s26, s27
    s_add_u32 s26, s26, s3
    s_lshl_b32 s26, s26, 16
    s_add_u32 s22, s26, {WS_Z}
    """)
    srd_ws(a, 32, 22, 65536)
    a(f"s_and_b32 s23, s67, 1\n s_lshl_b32 s23, s23, 2\n s_add_u32 s23, s23, s3\n s_lshl_b32 s23, s23, 9\n s_add_u32 s23, s23, {WS_FL+16384}")
    poll(a, [('s23', '0xf')], cnt=4)
    stamp(a, 2)
    a(f"s_lshl_b32 s22, s67, 10\n s_add_u32 s22, s22, {WS_CV}\n s_cmp_eq_u32 s30, 0\n s_cselect_b32 s23, 1.0, 0")
    acc_load(a, 4, 192, 22, 8)
    a("s_mov_b32 s74, s23")
    dloop(a, 'd1', 4, 0, (20, 36), D=4, mid=lambda: a(f"s_mov_b32 s31, {WS_FL+16384}\n v_and_b32 v6, 31, v1\n v_lshlrev_b32 v6, 7, v6\n buffer_load_dwordx2 v[48:49], v6, s[12:15], s31 offen sc1"), init=lambda: stamp(a, 11))
    a("s_lshl_b32 s22, s30, 13\n" + f"s_add_u32 s22, s22, {WS_UP}\n v_lshlrev_b32 v2, 5, v1\n s_add_u32 s23, s22, 4096")
    a(f"s_waitcnt lgkmcnt(0)\n s_nop 7")
    stamp(a, 3)
    a("v_cmp_ne_u32 vcc, s98, v48\n v_cmp_ne_u32 s[28:29], s99, v49\n s_or_b64 vcc, vcc, s[28:29]\n s_and_b64 vcc, vcc, 0xffffffff\n s_cbranch_scc0 L_uok")
    poll(a, [('s31', '0xffffffff')], cnt=32)
    a("s_waitcnt vmcnt(0)\n L_uok:")
    for i in range(8): a(f"buffer_load_dwordx4 v[{128+4*i}:{131+4*i}], v2, s[12:15], s{22+(i>>2)} offen offset:{((i>>1)&1)*2048+(i&1)*16} sc1")
    a(f"""
    v_lshrrev_b32 v2, 4, v1
    v_and_b32 v3, 1, v2
    v_lshrrev_b32 v2, 1, v2
    v_lshl_add_u32 v2, v3, 1, v2
    v_and_b32 v3, 15, v1
    v_lshlrev_b32 v3, 4, v3
    v_lshl_add_u32 v14, v2, 8, v3
    s_lshr_b32 s26, s67, 1
    s_lshl_b32 s26, s26, 4
    s_and_b32 s27, s66, 3
    s_lshl_b32 s27, s27, 2
    s_add_u32 s26, s26, s27
    s_lshl_b32 s26, s26, 16
    s_lshl_b32 s27, s30, 15
    s_add_u32 s26, s26, s27
    s_and_b32 s27, s67, 1
    s_lshl_b32 s27, s27, 14
    s_add_u32 s26, s26, s27
    s_lshl_b32 s27, s3, 12
    s_add_u32 s26, s26, s27
    s_add_u32 s25, s26, {WS_AT}
    """)
    a("v_lshlrev_b32 v3, 31, v1")
    for i in range(16): a(f"v_mul_f32 v{192+i}, s74, v{192+i}\n v_xor_b32 v{192+i}, v3, v{192+i}")
    for nb in range(8):
        t = 32 + (nb & 1)*24
        for i in range(16): a(f"v_accvgpr_read_b32 v{t+i}, a{nb*16+i}")
        for i in range(0, 16, 2): a(pk('', t+i, t+i, 192+i))
        for i in range(8): a(f"v_cvt_pk_bf16_f32 v{t+16+i}, v{t+2*i}, v{t+2*i+1}")
        a("s_nop 1")
        for p in range(2):
            a(f"v_permlane16_swap_b32 v{t+16+4*p}, v{t+18+4*p}\n v_permlane16_swap_b32 v{t+17+4*p}, v{t+19+4*p}")
        for p in range(2):
            a(f"s_add_u32 s26, s25, {(nb >> 1)*65536 + p*2048 + (nb & 1)*1024}")
            a(f"buffer_store_dwordx4 v[{t+16+4*p}:{t+19+4*p}], v14, s[12:15], s26 offen sc1")
    a(f"s_and_b32 s26, s66, 3\n s_lshl_b32 s26, s26, 1\n s_add_u32 s26, s26, s30\n s_lshl_b32 s26, s26, 2\n s_add_u32 s26, s26, s67\n s_lshl_b32 s26, s26, 7\n s_add_u32 s23, s26, {WS_FL+24576}")
    stamp(a, 12)
    publish(a, 's23')
    stamp(a, 13)
    for i in range(4): a(f"v_mov_b32 v{56+i}, 0")
    a("s_nop 1")
    for i in range(9): a(f"v_mfma_f32_32x32x16_bf16 a[{16*i}:{15+16*i}], v[56:59], v[56:59], 0")
    for j in range(0, 8, 2): a(pk('', 128+j, 128+j, 136+j)); a(pk('', 144+j, 144+j, 152+j))
    for j in range(0, 8, 2): a(pk('', 128+j, 128+j, 144+j))
    for j in range(4): a(f"v_cvt_pk_bf16_f32 v{60+j}, v{128+2*j}, v{129+2*j}")
    tile_vec(a, 60)
    a(f"s_lshl_b32 s23, s67, 10\n s_add_u32 s23, s23, {WS_FL+24576}\n v_and_b32 v6, 7, v1\n v_lshlrev_b32 v6, 7, v6\n buffer_load_dwordx2 v[56:57], v6, s[12:15], s23 offen sc1")
    a(f"v_mov_b32 v41, 0\n v_mov_b32 v42, {ALT}")
    for j in range(4): a(f"v_dot2_f32_bf16 v41, v{60+j}, v42, v41")
    a("s_nop 2")
    reduce_lanes(a, [41], 48, ['ror1', 'ror2', 'ror4', 'ror8', 'p16', 'p32'])
    a(f"""
    v_cmp_eq_u32 vcc, 8, v1
    s_cmp_eq_u32 s30, 0
    s_cselect_b32 s26, 1.0, 0
    v_cndmask_b32 v40, v40, v41, vcc
    v_mov_b32 v160, s97
    v_mul_f32 v160, s26, v160
    v_lshlrev_b32 v2, 31, v1
    v_xor_b32 v2, v2, v160
    v_add_f32 v40, v40, v2
    v_cvt_pk_bf16_f32 v40, v40, v40
    s_and_b32 s26, s66, 3
    s_lshl_b32 s26, s26, 7
    s_lshl_b32 s27, s67, 5
    s_add_u32 s26, s26, s27
    s_lshl_b32 s27, s3, 3
    s_add_u32 s26, s26, s27
    v_add_u32 v3, s26, v1
    v_mov_b32 v4, 512
    v_cndmask_b32 v3, v3, v4, vcc
    v_lshlrev_b32 v3, 6, v3
    s_mul_i32 s26, s30, {TPS}
    s_add_u32 s26, s26, {WS_Y + 16*EGS}
    s_add_u32 s27, s26, {YD}
    s_cmp_eq_u32 s30, 0
    s_mov_b32 s28, 0xff
    s_cselect_b32 exec_lo, 0x1ff, s28
    s_mov_b32 exec_hi, 0
    buffer_store_dword v40, v3, s[12:15], s26 offen sc1
    buffer_store_dword v40, v3, s[12:15], s27 offen sc1
    s_mov_b64 exec, -1
    """)
    a(f"""
    s_lshl_b32 s26, s30, 4
    s_lshl_b32 s27, s67, 2
    s_add_u32 s26, s26, s27
    s_add_u32 s26, s26, s3
    s_lshl_b32 s26, s26, 16
    s_add_u32 s22, s26, {WS_AT}
    """)
    srd_ws(a, 32, 22, 65536)
    a(f"""
    s_cmp_eq_u32 s66, 0
    s_cselect_b32 s31, 1, 0
    v_mov_b32 v24, {ALT}
    v_mov_b32 v25, {ALT}
    v_mov_b32 v26, {ALT}
    v_mov_b32 v27, {ALT}
    """)
    srd(a, 4, 88, 3584*1024*2)
    g2_wpre(a, [(8, 4)])
    a("s_waitcnt vmcnt(2)\n v_cmp_ne_u32 vcc, s98, v56\n v_cmp_ne_u32 s[28:29], s99, v57\n s_or_b64 vcc, vcc, s[28:29]\n s_cbranch_scc0 L_s2_ok")
    poll(a, [('s23', '0xff')], gap=2, cnt=8)
    a("L_s2_ok:")
    stamp(a, 4)
    a(f"s_lshl_b32 s22, s67, 9\n s_add_u32 s22, s22, {WS_RV}\n s_cmp_eq_u32 s30, 0\n s_cselect_b32 s23, 1.0, 0")
    a("s_cselect_b32 s75, 0, -1.0\n s_mov_b32 s74, s23")
    acc_load(a, 2, 192, 22, 7)
    acc_load(a, 2, 200, 22, 7, 2048)
    dloop(a, 'd2a', 2, 0, (20, 80), extra=True, init=lambda: stamp(a, 14))
    stamp(a, 15)
    dloop(a, 'd2b', 2, 64, (8, 4), first=False, inc=64*2048)
    stamp(a, 16)
    a("s_waitcnt lgkmcnt(0)\n s_nop 7")
    a(f"""
    v_and_b32 v2, 15, v1
    v_lshlrev_b32 v20, 6, v2
    v_lshrrev_b32 v3, 4, v1
    v_and_b32 v4, 1, v3
    v_lshl_add_u32 v20, v4, 5, v20
    v_lshrrev_b32 v4, 1, v3
    v_lshl_add_u32 v20, v4, 4, v20
    v_lshlrev_b32 v21, 3, v3
    s_lshl_b32 s22, s67, 2
    s_add_u32 s22, s22, s3
    s_mul_i32 s22, s22, {EGS}
    s_mul_i32 s27, s30, {TPS}
    s_add_u32 s22, s22, s27
    s_add_u32 s22, s22, {WS_Y}
    s_and_b32 s26, s66, 3
    s_lshl_b32 s26, s26, 13
    s_add_u32 s25, s22, s26
    """)
    a("v_lshlrev_b32 v3, 31, v1")
    for i in range(8): a(f"v_mul_f32 v{192+i}, s74, v{192+i}\n v_mul_f32 v{200+i}, s75, v{200+i}")
    for i in range(8): a(f"v_sub_f32 v{208+i}, v{192+i}, v{200+i}\n v_add_f32 v{216+i}, v{192+i}, v{200+i}")
    for i in range(16): a(f"v_xor_b32 v{208+i}, v3, v{208+i}")
    for nb in range(8):
        t = 32 + (nb & 1)*32
        for i in range(8): a(f"v_accvgpr_read_b32 v{t+i}, a{nb*8+i}\n v_accvgpr_read_b32 v{t+8+i}, a{64+nb*8+i}")
        for i in range(0, 8, 2): a(pk('', t+16+i, t+i, t+8+i, neg=True)); a(pk('', t+i, t+i, t+8+i))
        for i in range(0, 8, 2): a(pk('', t+16+i, t+16+i, 208+i)); a(pk('', t+i, t+i, 216+i))
        for i in range(4): a(f"v_cvt_pk_bf16_f32 v{t+24+i}, v{t+16+2*i}, v{t+17+2*i}\n v_cvt_pk_bf16_f32 v{t+28+i}, v{t+2*i}, v{t+2*i+1}")
        a("s_nop 1")
        for p in range(2):
            a(f"v_permlane16_swap_b32 v{t+24+4*p}, v{t+26+4*p}\n v_permlane16_swap_b32 v{t+25+4*p}, v{t+27+4*p}")
        for p in range(2):
            a(f"s_add_u32 s26, s25, {nb*1024 + p*YD}")
            a(f"buffer_store_dwordx4 v[{t+24+4*p}:{t+27+4*p}], v20, s[12:15], s26 offen sc1")
    a("s_cmp_eq_u32 s31, 0\n s_cbranch_scc1 L_dft_nox")
    for i in range(8): a(f"v_accvgpr_read_b32 v{32+i}, a{128+i}")
    for i in range(0, 8, 2): a(pk('', 32+i, 32+i, 192+i))
    for i in range(4): a(f"v_cvt_pk_bf16_f32 v{40+i}, v{32+2*i}, v{33+2*i}")
    a(f"s_add_u32 s26, s22, {512*64}\n s_add_u32 s27, s26, {YD}\n s_mov_b32 exec_lo, 0x00010001\n s_mov_b32 exec_hi, 0x00010001")
    for mb in range(2):
        a(f"buffer_store_dwordx2 v[{40+2*mb}:{41+2*mb}], v21, s[12:15], s26 offen offset:{mb*32} sc1\n buffer_store_dwordx2 v[{40+2*mb}:{41+2*mb}], v21, s[12:15], s27 offen offset:{mb*32} sc1")
    a("s_mov_b64 exec, -1\nL_dft_nox:")
    stamp(a, 17)
    a(f"s_lshl_b32 s23, s66, 2\n s_add_u32 s23, s23, s67\n s_lshl_b32 s23, s23, 7\n s_add_u32 s23, s23, {WS_FL+32768}")
    g2_pre(a, True)
    a(f"v_mov_b32 v2, 0\n v_mov_b32 v3, 0\n v_mov_b32 v4, 0\n v_mov_b32 v5, 0\n s_mov_b32 s68, {OOB}\n s_nop 0")
    g2_zero(a, 2, 0, 8)
    publish(a, 's23')
    stamp(a, 18)
    poll(a, [('s44', '3')], vb=192, gap=2, cnt=2)
    h_chunk(a, 0)
    a("s_waitcnt vmcnt(0)")
    stamp(a, 5)


def common_setup(a):
    a(f"s_add_u32 s28, s48, {WS_FL}\n s_addc_u32 s29, s49, 0\n s_load_dword s98, s[28:29], 0")
    srd(a, 12, 48, WS_SZ)
    g2_ids(a)

def kern():
    a = Asm()
    a(f"""
    s_cmp_ge_u32 s2, 256
    s_cbranch_scc1 L_end
    s_load_dwordx2 s[40:41], s[0:1], 0
    s_load_dwordx4 s[44:47], s[0:1], 48
    s_load_dwordx2 s[48:49], s[0:1], 96
    s_load_dwordx2 s[88:89], s[0:1], 64
    s_load_dwordx2 s[42:43], s[0:1], 80
    s_load_dwordx8 s[52:59], s[0:1], 8
    s_load_dwordx2 s[60:61], s[0:1], 72
    s_getpc_b64 s[28:29]
    s_lshr_b32 s27, s2, 3
    s_mul_i32 s26, s27, {CODE_LINES*128}
    v_lshlrev_b32 v2, 7, v0
    v_add_u32 v2, s26, v2
    v_cmp_gt_u32 vcc, {CODE_LINES}, v0
    s_and_saveexec_b64 s[30:31], vcc
    s_cbranch_execz L_nocp
    global_load_dword a255, v2, s[28:29]
    L_nocp:
    s_mov_b64 exec, s[30:31]
    v_and_b32 v1, 63, v0
    v_lshrrev_b32 v2, 6, v0
    s_and_b32 s66, s2, 7
    v_readfirstlane_b32 s3, v2
    s_lshr_b32 s27, s2, 3
    s_sub_u32 s67, s27, 28
    s_and_b32 s24, s66, 1
    s_lshl_b32 s24, s24, 2
    s_and_b32 s68, s27, 3
    s_add_u32 s24, s24, s68
    s_lshr_b32 s25, s66, 1
    s_mul_i32 s25, s25, 7
    s_lshr_b32 s69, s27, 2
    s_add_u32 s25, s25, s69
    """)
    stamp(a, 0)
    if opt.spin: a("s_memrealtime s[100:101]")
    a("s_lshr_b32 s27, s2, 3\n s_cmp_ge_u32 s27, 28\n s_cbranch_scc1 L_dft")
    gemm1(a)
    a("s_branch L_g2")
    a("L_dft:")
    if opt.xdft: a("s_branch L_end")
    dft(a)
    gemm2(a)
    a("L_end:")
    if opt.spin:
        a(f"s_cmp_lg_u32 s2, 0\n s_cbranch_scc1 L_end3\n L_spin:\n s_memrealtime s[92:93]\n s_waitcnt lgkmcnt(0)\n s_sub_u32 s92, s92, s100\n s_cmp_lt_u32 s92, {opt.spin}\n s_cbranch_scc1 L_spin\n L_end3:")
    if opt.stamp:
        a("s_cmp_ge_u32 s2, 256\n s_cbranch_scc1 L_end2\n s_mov_b64 exec, -1")
        srd(a, 12, 48, WS_SZ)
        stamp(a, 8)
        stamp_flush(a, 0)
        if opt.dbgmax:
            a("s_load_dwordx2 s[28:29], s[0:1], 88\n v_subrev_u32 v2, 40, v1\n v_lshlrev_b32 v2, 2, v2\n v_not_b32 v3, v31\n v_cmp_eq_u32 vcc, 40, v1\n s_nop 1\n v_cndmask_b32 v31, v31, v3, vcc")
            a("s_lshr_b32 s27, s2, 3\n s_cmp_ge_u32 s27, 28\n s_cbranch_scc1 L_dm_d\n s_mov_b32 exec_lo, 0\n s_mov_b32 exec_hi, 0x1ff00\n s_branch L_dm_go\n L_dm_d:")
            for k, w in ((1, 9), (2, 10), (3, 11), (4, 12), (16, 13), (18, 14), (0, 15)):
                a(f"v_mov_b32 v3, {4*w}\n v_cmp_eq_u32 vcc, {40+k}, v1\n s_nop 1\n v_cndmask_b32 v2, v2, v3, vcc")
            m = sum(1 << (8+k) for k in (0, 1, 2, 3, 4, 16, 18))
            a(f"s_mov_b32 exec_lo, 0\n s_mov_b32 exec_hi, {m}\n L_dm_go:\n s_waitcnt lgkmcnt(0)\n global_atomic_umax v2, v31, s[28:29] sc1\n s_waitcnt vmcnt(0)")
        a("L_end2:")
    return kernel(KN, a.text(), vgpr=256, agpr=256)

KN = 'gated_mix__spectral_fnet__geglu_ffn__prompt_kernel'
def main():
    fn = sys.argv[1]
    for o in sys.argv[2:]:
        k, v = o.split('=', 1)
        setattr(opt, k, eval(v))
    c, d = kern()
    hdr = open('gated_mix__spectral_fnet__geglu_ffn__prompt.s.ref').read().split('; Override launch')[0]
    src = hdr + f'; @launch grid=(256,1,1) block=(256,1,1) lds={R1*SLOT1}\n.amdgcn_target "amdgcn-amd-amdhsa--gfx950"\n' + c + '.text\n.fill 2048, 4, 0xbf800000\n' + d
    open(fn, 'w').write(src)
if __name__ == '__main__': main()
```

```python
import sys, math, struct
from ab import *

WS_H   = 0
HS     = 262144
WS_Z   = (16 << 20) + 65536
WS_AT  = (18 << 20) + 131072
WS_Y   = (20 << 20) + 196608
YD     = 2 << 20
EGS    = 528*64
TPS    = 17*EGS
WS_LP  = (24 << 20) + 131072
WS_UP  = WS_LP + 32768
WS_CV  = WS_UP + 32768
WS_RV  = WS_CV + 4096
WS_FL  = 25 << 20
WS_XB  = 26 << 20
XBS    = 4224
WS_TS  = 40 << 20
WS_SZ  = 256 << 20
OOB = 0x40000000
ALT = 0xBF803F80
R1 = 5; SLOT1 = 32768
R2 = 8; SLOT2 = 16384
R3 = 8; SLOT3 = 16384
MF = "v_mfma_f32_16x16x32_bf16"
class Opt: pass
opt = Opt()
opt.stamp = False; opt.trace = False; opt.hflags = 'sc1'; opt.psleep = 4; opt.order = 3; opt.tlb = True; opt.smem = True; opt.dbgmax = False; opt.amp = None; opt.ampwg = 3; opt.notw = 0; opt.nofold = 0; opt.shift = 0; opt.dm2 = (5, 11); opt.pw = 0; opt.prepos = 1; opt.xdft = 0; opt.nf = 3; opt.pub = 1; opt.r3 = 0; opt.r2 = 1; opt.r2b = False; opt.nox = False; opt.nt_fold = ''; opt.nt_w = ''; opt.nt_c = ''; opt.fmask = 0xffff; opt.x2 = 0; opt.rdo = [1,1,2,2,3,3,4,4,5,5,6,6,7,7,9,9]; opt.rde = [0,0,1,1,2,2,3,3,4,5,6,7,9,10,11,12]; opt.dmo = [3, 7]; opt.HS = 229376; opt.tlb2 = False; opt.g2gap = 2; opt.spin = 0; opt.oflags = ''; opt.g2touch = False; opt.tflags = ''; opt.killw = None
fbits = lambda x: struct.unpack('<I', struct.pack('<f', x))[0]
CODE_LINES = int(__import__("os").environ.get("CL", 16))

def srd(a, d, base, size):
    a(f"s_mov_b32 s{d}, s{base}\n s_and_b32 s{d+1}, s{base+1}, 0xffff\n s_mov_b32 s{d+2}, {size}\n s_mov_b32 s{d+3}, 0x20000")
def srd_ws(a, d, soff, size):
    a(f"s_add_u32 s{d}, s48, s{soff}\n s_addc_u32 s{d+1}, s49, 0\n s_and_b32 s{d+1}, s{d+1}, 0xffff\n s_mov_b32 s{d+2}, {size}\n s_mov_b32 s{d+3}, 0x20000")
def interleave(a, mfmas, fill):
    for s in fill.get(-1, []): a(s)
    for i, m in enumerate(mfmas):
        a(m)
        for s in fill.get(i, []): a(s)
def lab(a, p): return f"L_{p}_{len(a.l)}"

def stamp(a, idx):
    if not opt.stamp: return
    a(f"s_memrealtime s[92:93]\n s_memtime s[94:95]\n s_waitcnt lgkmcnt(0)\n v_writelane_b32 v31, s92, {40+idx}\n v_writelane_b32 v30, s94, {40+idx}")
def trace_ops(sidx):
    return ["s_memtime s[92:93]", "s_memrealtime s[94:95]", "s_waitcnt lgkmcnt(0)", f"v_cmp_eq_u32 vcc, {sidx}, v1", "v_mov_b32 v6, s92", "v_mov_b32 v7, s94",
            "v_cndmask_b32 v30, v30, v6, vcc", "v_cndmask_b32 v31, v31, v7, vcc"]
def stamp_flush(a, half):
    if not opt.stamp: return
    a(f"s_lshl_b32 s90, s2, 2\n s_add_u32 s90, s90, s3\n s_lshl_b32 s90, s90, 9\n s_add_u32 s90, s90, {WS_TS + half*524288}")
    a(f"v_lshlrev_b32 v29, 3, v1\n buffer_store_dwordx2 v[30:31], v29, s[12:15], s90 offen")

def nonce(a):
    a("s_mul_i32 s98, s98, 0x9E3779B1\n s_add_u32 s98, s98, 0x7F4A7C15\n s_xor_b32 s99, s98, 0x5bd1e995")
def started(a, vt=2):
    L = lab(a, 'st0')
    a(f"s_cmp_lg_u32 s3, 0\n s_cbranch_scc1 {L}\n s_lshl_b32 s26, s2, 7\n s_add_u32 s26, s26, {WS_FL+393216}")
    flag_store(a, 's26', vt)
    a(f"{L}:")
def flag_store(a, soff, vt=2):
    a(f"""
    v_lshlrev_b32 v{vt}, 3, v1
    v_mov_b32 v{vt+2}, s98
    v_mov_b32 v{vt+3}, s99
    s_mov_b64 exec, {opt.fmask}
    buffer_store_dwordx2 v[{vt+2}:{vt+3}], v{vt}, s[12:15], {soff} offen sc1
    s_mov_b64 exec, -1
    """)
def publish(a, soff):
    a("s_waitcnt vmcnt(0)\n s_barrier")
    L = lab(a, 'pub')
    a(f"s_cmp_lg_u32 s3, 0\n s_cbranch_scc1 {L}")
    flag_store(a, soff)
    a(f"{L}:")
def poll(a, items, vb=48, gap=1, cnt=56, voff=6):
    L = lab(a, 'poll'); n = len(items)
    def issue(k):
        for i, (so, mk) in enumerate(items): a(f"buffer_load_dwordx2 v[{vb+2*(k*n+i)}:{vb+2*(k*n+i)+1}], v{voff}, s[12:15], {so} offen sc1")
    if voff == 6: a(f"v_cmp_gt_u32 vcc, {cnt}, v1\n v_lshlrev_b32 v6, 7, v1\n v_mov_b32 v7, {OOB}\n v_cndmask_b32 v6, v7, v6, vcc")
    a("s_mov_b32 s27, 0")
    issue(0); a(f"s_sleep {opt.psleep}"); issue(1); a(f"s_sleep {opt.psleep}");
    a(f"{L}:")
    for k in range(3):
        issue((k+2) % 3)
        a(f"s_waitcnt vmcnt({2*n})")
        for i, (so, mk) in enumerate(items):
            r = vb + 2*(k*n+i)
            a(f"v_cmp_ne_u32 vcc, s98, v{r}\n v_cmp_ne_u32 s[28:29], s99, v{r+1}\n s_or_b64 vcc, vcc, s[28:29]")
            a(f"s_and_b64 {'s[64:65]' if i == 0 else 'vcc'}, vcc, {mk}")
            if i: a("s_or_b64 s[64:65], s[64:65], vcc")
        a(f"s_cbranch_scc0 {L}_done\n s_sleep {gap}")
    a(f"""
    s_add_u32 s27, s27, 1
    s_cmp_lt_u32 s27, 0x20000
    s_cbranch_scc1 {L}
    {L}_done:
    """)
def reduce_lanes(a, regs, tmp, steps):
    for st in steps:
        if st.startswith('ror'):
            a("s_nop 1")
            for r in regs: a(f"v_add_f32_dpp v{r}, v{r}, v{r} row_ror:{st[3:]} row_mask:0xf bank_mask:0xf")
        else:
            for i, r in enumerate(regs): a(f"v_mov_b32 v{tmp+i}, v{r}")
            a("s_nop 1")
            for i, r in enumerate(regs): a(f"v_permlane{st[1:]}_swap_b32 v{r}, v{tmp+i}")
            a("s_nop 1")
            for i, r in enumerate(regs): a(f"v_add_f32 v{r}, v{r}, v{tmp+i}")
def unp(dst, src, j):
    return f"v_lshlrev_b32 v{dst}, 16, v{src+j//2}" if j % 2 == 0 else f"v_and_b32 v{dst}, 0xffff0000, v{src+j//2}"
def pk(op, d, x, y, neg=False):
    return f"v_pk_add_f32 v[{d}:{d+1}], v[{x}:{x+1}], v[{y}:{y+1}]" + (" neg_lo:[0,1] neg_hi:[0,1]" if neg else "")

def tlb_setup(a, vd):
    a(f"""
    s_mov_b32 s76, s48
    s_mov_b32 s77, s49
    s_mov_b32 s78, {26 << 20}
    s_cmp_eq_u32 s3, 1
    s_cselect_b32 s76, s42, s76
    s_cselect_b32 s77, s43, s77
    s_cselect_b32 s78, {4 << 20}, s78
    s_cmp_eq_u32 s3, 2
    s_cselect_b32 s76, s88, s76
    s_cselect_b32 s77, s89, s77
    s_cselect_b32 s78, {3584*2048}, s78
    s_cmp_eq_u32 s3, 3
    s_cselect_b32 s76, s52, s76
    s_cselect_b32 s77, s53, s77
    s_cselect_b32 s78, {5 << 20}, s78
    s_and_b32 s77, s77, 0xffff
    s_mov_b32 s79, 0x20000
    v_lshlrev_b32 v{vd}, 20, v1
    v_add_u32 v{vd}, {(1 << 20) - 128}, v{vd}
    v_cmp_eq_u32 vcc, 16, v1
    v_mov_b32 v2, {(16 << 20) + 128}
    s_nop 0
    v_cndmask_b32 v{vd}, v{vd}, v2, vcc
    v_cmp_le_u32 vcc, 17, v1
    v_mov_b32 v2, {(18 << 20) + 65536 + 128}
    s_nop 0
    v_cndmask_b32 v{vd}, v{vd}, v2, vcc
    v_cmp_le_u32 vcc, 18, v1
    v_lshlrev_b32 v2, 21, v1
    v_subrev_u32 v2, {(18 << 21) - ((22 << 20) - 128)}, v2
    v_cndmask_b32 v{vd}, v{vd}, v2, vcc
    """)

class VM:
    def __init__(s): s.ops = []
    def add(s, tag, n=1): s.ops += [tag]*n
    def wait(s, a, tag, extra=""):
        last = max(i for i, t in enumerate(s.ops) if t == tag)
        a(f"s_waitcnt vmcnt({min(63, len(s.ops)-1-last)}) {extra}")
V_WX, V_WD, V_L16, V_LDS, V_TMP, V_OOB, V_F64, V_FJ, V_S4, V_H1, V_OUT, V_Y, V_LP, AD = 96, 100, 104, 105, 106, 107, 108, 109, 110, 111, 112, 114, 119, 120
def w_voff(a, vb, wshift, t=2):
    a(f"""
    v_lshrrev_b32 v{t+1}, 4, v1
    s_lshl_b32 s26, s3, {wshift}
    v_add_u32 v{t}, s26, v{t+1}
    v_lshlrev_b32 v{t}, 11, v{t}
    v_add_u32 v{t}, s27, v{t}
    v_lshlrev_b32 v{t+1}, 1, v{t+1}
    v_and_b32 v{vb}, 15, v1
    v_xor_b32 v{t+1}, v{t+1}, v{vb}
    v_lshl_add_u32 v{vb}, v{t+1}, 4, v{t}
    v_xor_b32 v{t+1}, 8, v{t+1}
    v_lshl_add_u32 v{vb+1}, v{t+1}, 4, v{t}
    v_add_u32 v{vb+2}, {2*(4*2048-1024)}, v{vb}
    v_add_u32 v{vb+3}, {3*(4*2048-1024)}, v{vb+1}
    v_add_u32 v{vb+1}, {1*(4*2048-1024)}, v{vb+1}
    """)
def g2_ids(a):
    a("""
    s_lshr_b32 s27, s2, 3
    s_and_b32 s50, s2, 1
    s_lshl_b32 s50, s50, 2
    s_and_b32 s26, s27, 3
    s_add_u32 s50, s50, s26
    s_lshr_b32 s51, s27, 2
    s_bfe_u32 s96, s2, 0x20001
    """)
def g2_wpre(a, variants):
    a(f"s_mul_i32 s27, s96, {896*2048}\n s_lshl_b32 s26, s51, 8\n s_add_u32 s27, s27, s26")
    for vb, sh in variants: w_voff(a, vb, sh)
SPOS = [40, 41, 42, 43, 76, 77, 78]
OWNL = 98304
def g2_pre(a, dft):
    srd(a, 52, 42, 2048*1024*2)
    srd(a, 32, 88, 3584*1024*2)
    g2_wpre(a, [(V_WD, 4)] if dft else [(V_WX, 5), (V_WD, 4)])
    a(f"s_lshl_b32 s27, s50, 2\n s_add_u32 s27, s27, s3\n s_lshl_b32 s27, s27, 1\n s_mul_i32 s27, s27, {opt.HS}\n s_mul_i32 s26, s96, 57344\n s_add_u32 s27, s27, s26")
    srd_ws(a, 56, 27, opt.HS + 57344)
    a("s_mov_b32 s45, 0" if dft else "s_mov_b32 s45, s51")
    a(f"s_lshl_b32 s40, s45, 18\n s_lshr_b32 s79, s96, 1\n s_mul_i32 s79, s79, {opt.HS}")
    for p in range(1, 7): a(f"s_cmp_le_u32 s45, {p-1}\n s_mov_b32 s{SPOS[p]}, {(p-1) << 18}\n s_cselect_b32 s{SPOS[p]}, {p << 18}, s{SPOS[p]}")
    a(f"""
    v_lshlrev_b32 v{V_L16}, 4, v1
    v_mov_b32 v{V_OOB}, {OOB}
    v_lshrrev_b32 v3, 4, v1
    v_lshrrev_b32 v4, 2, v1
    v_and_b32 v4, 3, v4
    v_lshl_add_u32 v5, v3, 2, v4
    v_and_b32 v6, 7, v5
    s_and_b32 s26, s96, 1
    s_lshl_b32 s26, s26, 2
    v_xor_b32 v6, s26, v6
    v_lshlrev_b32 v5, 8, v5
    v_lshl_add_u32 v5, v6, 5, v5
    v_and_b32 v7, 3, v1
    v_lshl_add_u32 v{V_LDS}, v7, 3, v5
    s_lshl_b32 s26, s50, 1
    s_lshr_b32 s27, s3, 1
    s_add_u32 s26, s26, s27
    s_lshl_b32 s26, s26, 13
    s_mul_i32 s44, s96, {14*128}
    s_add_u32 s44, s44, s26
    s_add_u32 s44, s44, {WS_FL+65536}
    v_lshlrev_b32 v{V_F64}, 7, v1
    v_and_b32 v{V_S4}, 31, v1
    v_lshlrev_b32 v{V_S4}, 7, v{V_S4}
    v_add_u32 v{V_S4}, {WS_FL+32768}, v{V_S4}
    v_lshrrev_b32 v2, 1, v1
    v_cmp_le_u32 vcc, s45, v2
    v_add_u32 v3, 1, v2
    v_and_b32 v4, 1, v1
    v_cndmask_b32 v2, v2, v3, vcc
    v_cmp_gt_u32 vcc, 12, v1
    v_lshl_add_u32 v2, v2, 1, v4
    v_lshlrev_b32 v2, 7, v2
    v_cndmask_b32 v{V_FJ}, v{V_OOB}, v2, vcc
    s_lshl_b32 s70, s3, 13
    s_add_u32 s70, s70, {WS_FL+393216}
    s_cmp_eq_u32 s2, 0
    s_cselect_b32 s70, s70, {OOB}
    s_cselect_b64 s[60:61], -1, 0
    s_lshl_b32 s26, s2, 2
    s_add_u32 s26, s26, s3
    s_mul_i32 s71, s26, 12288
    s_add_u32 s71, s71, {WS_XB}
    s_lshl_b32 s69, s26, 7
    s_add_u32 s69, s69, {WS_FL+262144}
    """)
    for mb in range(8): a(f"v_xor_b32 v{AD+mb}, {mb*32}, v{V_LDS}")
    a(f"""
    s_lshl_b32 s64, s51, 1
    s_and_b32 s26, s96, 1
    s_add_u32 s64, s64, s26
    s_lshl_b32 s26, s50, 8
    s_lshl_b32 s27, s3, 6
    s_add_u32 s27, s26, s27
    s_lshr_b32 s26, s96, 1
    s_lshl_b32 s26, s26, 5
    s_add_u32 s27, s27, s26
    v_and_b32 v2, 15, v1
    v_add_u32 v2, s27, v2
    v_lshlrev_b32 v{V_LP}, 4, v2
    v_add_u32 v{V_LP}, {WS_LP}, v{V_LP}
    v_lshlrev_b32 v2, 11, v2
    v_lshrrev_b32 v3, 4, v1
    v_and_b32 v4, 1, v3
    v_lshl_add_u32 v2, v4, 5, v2
    v_lshrrev_b32 v4, 1, v3
    v_lshl_add_u32 v2, v4, 4, v2
    s_lshl_b32 s26, s64, 7
    v_add_u32 v{V_OUT}, s26, v2
    v_add_u32 v{V_OUT+1}, 32768, v{V_OUT}
    s_lshl_b32 s26, s64, 1
    s_sub_u32 s65, 30, s26
    s_cmp_ge_u32 s64, 8
    s_cselect_b64 s[46:47], -1, 0
    s_cselect_b32 s65, s65, s26
    s_mul_i32 s65, s65, {EGS}
    s_add_u32 s65, s65, {WS_Y}
    s_mov_b32 s26, {TPS}
    """)
    for j in range(5):
        if j < 4: a(f"v_lshrrev_b32 v2, 2, v1\n v_lshl_add_u32 v2, v2, 1, {j&1}\n v_and_b32 v3, 3, v1\n v_lshlrev_b32 v3, 4, v3\n v_add_u32 v3, {(j>>1)*EGS}, v3")
        else: a(f"v_and_b32 v2, 31, v1\n v_mov_b32 v3, {2*EGS}")
        a(f"""
        v_add_u32 v2, s27, v2
        v_sub_u32 v4, 2048, v2
        v_min_u32 v4, v4, v2
        v_cmp_lt_u32 vcc, 1024, v2
        v_and_b32 v5, 1, v4
        v_mul_lo_u32 v5, v5, s26
        v_lshrrev_b32 v4, 1, v4
        v_lshl_add_u32 v4, v4, 6, v5
        s_xor_b64 vcc, vcc, s[46:47]
        v_add3_u32 v4, v4, v3, s65
        v_add_u32 v5, {YD}, v4
        v_cndmask_b32 v{V_Y+j}, v4, v5, vcc
        """)
def g2_zero(a, z, lo, hi):
    for i in range(lo, hi): a(f"v_mfma_f32_32x32x16_bf16 a[{16*i}:{15+16*i}], v[{z}:{z+3}], v[{z}:{z+3}], 0")
def fl_bad(a, r, mask):
    a(f"v_cmp_ne_u32 vcc, s98, v{r}\n v_cmp_ne_u32 s[28:29], s99, v{r+1}\n s_or_b64 vcc, vcc, s[28:29]\n s_and_b64 vcc, vcc, {mask}")
HB = 128
def h_base(p): return [f"s_lshr_b32 s16, s{SPOS[p]}, 5", f"s_sub_u32 s25, s16, s79", "s_add_u32 s16, s16, s79", f"s_add_u32 s25, s25, {opt.HS}"]
def h_load(half, st, nb, v=V_L16):
    r = HB + 64*half + 16*st + 4*nb
    return f"buffer_load_dwordx4 v[{r}:{r+3}], v{v}, s[56:59], s{(16, 25)[nb >> 1]} offen offset:{(st & 1)*2048 + (nb & 1)*1024} sc1"
def h_chunk(a, p, v=V_L16):
    for x in h_base(p): a(x)
    for st in range(4):
        for nb in range(4): a(h_load(p & 1, st, nb, v))
        if st == 1: a("s_add_u32 s16, s16, 4096\n s_add_u32 s25, s25, 4096")

def gemm2(a):
    WF = 32; PV = 192
    vm = VM()
    def dma(): return [f"buffer_load_dwordx4 v{V_WD+i}, s[32:35], s17 offen offset:{i*1024} lds" for i in range(4)]
    def wreads(st, off, mbs=range(8), base=None):
        r = []
        for k, mb in enumerate(mbs):
            b = (WF + st*32 + mb*4) if base is None else base + 4*k
            r.append(f"ds_read_b64_tr_b16 v[{b}:{b+1}], v{AD+mb} offset:{off}")
            r.append(f"ds_read_b64_tr_b16 v[{b+2}:{b+3}], v{AD+mb} offset:{off+4096}")
        return r
    def sample(): a(f"buffer_load_dwordx2 v[24:25], v{V_FJ}, s[12:15], s44 offen sc1"); vm.add('smp')
    def pmask(p): return 3 << (2*(p-1))
    rare = []
    a("L_g2:"); vm.add('own')
    sample()
    a(f"buffer_load_dwordx2 v[18:19], v{V_F64}, s[12:15], s70 offen sc1"); vm.add('ep')
    for x in wreads(0, 0): a(x)
    a(f"s_lshl_b32 s21, s3, 12\n v_mov_b32 v26, s98\n v_mov_b32 v27, s99\n v_and_b32 v23, 15, v1\n v_lshlrev_b32 v23, 3, v23")
    stamp(a, 6)
    OD = [(nb, mb) for nb in range(4) for mb in (range(4) if nb % 2 == 0 else range(3, -1, -1))] + [(nb, 4+mb) for nb in range(3, -1, -1) for mb in (range(4) if nb % 2 else range(3, -1, -1))]
    def step(T, loads):
        p = T & 1; pos = T >> 2; st = T & 3; slot = T >> 1
        if pos >= 2: vm.wait(a, f'h{T}', "lgkmcnt(8)")
        else: a("s_waitcnt lgkmcnt(8)")
        ms = []
        for nb, mb in OD:
            b = WF + p*32 + mb*4; c = (nb*8+mb)*4; h = HB + 64*(pos & 1) + 16*st + 4*nb
            ms.append(f"{MF} a[{c}:{c+3}], v[{b}:{b+3}], v[{h}:{h+3}], a[{c}:{c+3}]")
        f = {k: [] for k in range(32)}
        for k, x in enumerate(wreads(p ^ 1, (p ^ 1)*8192)): f[2*k].append(x)
        f[15].append("s_waitcnt lgkmcnt(8)")
        g = slot + 5
        ops = []
        if 6 <= g <= 13: ops += [(opt.dm2[0], dma()[2*p], f'w{g}'), (opt.dm2[1], dma()[2*p+1], f'w{g}')]
        if loads:
            if st == 0:
                hb = h_base(pos+2); f[1] += hb[:2]; f[3] += hb[2:]
            ops += [(19+4*k, h_load(pos & 1, st, nb), f'h{T+8}') for k, nb in enumerate((3, 2, 1, 0))]
            if st == 1: f[31].append("PLACEHOLDER")
        if p == 1:
            need = slot + 2
            f[16].append("BARRIER")
            if 6 <= g+1 <= 13:
                f[17] += [f"s_add_u32 m0, s21, {((g+1) % 8)*SLOT2}", f"s_add_u32 s17, s{SPOS[(g+1) >> 1]}, {((g+1) & 1)*64*2048}"]
        else:
            f[7].append(f"v_add_u32 v{V_TMP}, {((slot+1) % 8)*SLOT2}, v{V_LDS}")
            for mb in range(8): f[max(4*mb+3, 9+mb)].append(f"v_xor_b32 v{AD+mb}, {mb*32}, v{V_TMP}")
        ops.sort()
        for i, m in enumerate(ms):
            a(m)
            for x in f[i]:
                if x == "BARRIER":
                    if f'w{slot+2}' in vm.ops: vm.wait(a, f'w{slot+2}')
                    a("s_barrier")
                elif x != "PLACEHOLDER": a(x)
            for gp, x, tag in ops:
                if gp == i: a(x); vm.add(tag)
            if "PLACEHOLDER" in f[i]: a("s_add_u32 s16, s16, 4096\n s_add_u32 s25, s25, 4096")
    step(0, False)
    vm.wait(a, 'own'); a("buffer_store_dwordx2 v[26:27], v23, s[12:15], s68 offen sc1"); vm.add('fl')
    step(1, False)
    a("buffer_store_dwordx2 v[26:27], v23, s[12:15], s87 offen sc1"); vm.add('fl4')
    vm.wait(a, 'ep')
    fl_bad(a, 24, pmask(1))
    a(f"s_cselect_b32 s31, 1, 0\n s_cselect_b32 s26, {OOB}, 0\n v_add_u32 v{V_H1}, s26, v{V_L16}")
    h_chunk(a, 1, V_H1); vm.add('p1', 16)
    sample()
    step(2, False); step(3, False)
    stamp(a, 19)
    vm.wait(a, 'smp')
    fl_bad(a, 24, pmask(1) | pmask(2) | pmask(3))
    a("s_cbranch_scc1 L_g2_late0\n s_cmp_lg_u32 s31, 0\n s_cbranch_scc1 L_g2_redo\n L_g2_cont0:")
    fl_bad(a, 18, "s[60:61]")
    a("s_cbranch_scc1 L_g2_ep\n L_g2_cont1:")
    stamp(a, 20)
    for x in h_base(2): a(x)
    for st in range(4):
        for nb in range(4): a(h_load(0, st, nb)); vm.add(f'h{8+st}')
        if st == 1: a("s_add_u32 s16, s16, 4096\n s_add_u32 s25, s25, 4096")
    sample()
    for pos in range(1, 6):
        if 2 <= pos <= 4:
            vm.wait(a, 'smp')
            fl_bad(a, 24, pmask(pos+2))
            a(f"s_cbranch_scc1 L_g2_late{pos}\n L_g2_cont{pos}x:")
            rare.append(pos)
            if pos < 4: sample()
        if pos == 2:
            a(f"s_or_b32 s26, s2, s3\n s_cmp_eq_u32 s26, 0\n s_mov_b32 s68, {OOB}\n s_cselect_b32 s68, {WS_FL}, s68\n buffer_store_dwordx2 v[26:27], v23, s[12:15], s68 offen sc1"); vm.add('eps')
        if pos == 4:
            a(f"buffer_load_dwordx2 v[18:19], v{V_S4}, s[12:15], 0 offen sc1"); vm.add('s4')
        if pos == 5:
            vm.wait(a, 's4')
            fl_bad(a, 18, -1)
            a("s_cbranch_scc1 L_g2_s4\n L_g2_s4ok:")
            a(f"buffer_load_dwordx4 a[160:163], v{V_LP}, s[12:15], 0 offen sc1\n buffer_load_dwordx4 a[164:167], v{V_LP}, s[12:15], 0 offen offset:256 sc1")
            for j in range(4): a(f"buffer_load_dwordx4 a[{136+4*j}:{139+4*j}], v{V_Y+j}, s[12:15], 0 offen sc1")
            a(f"buffer_load_dword a152, v{V_Y+4}, s[12:15], 0 offen sc1"); vm.add('y', 7)
        if pos in (2, 5): stamp(a, 21 if pos == 2 else 22)
        for st in range(4): step(4*pos + st, pos <= 4)
    Q = [32, 48, 64, 80]
    def hrd(st, fo, q): return wreads(0, (st >> 1)*16384 + (st & 1)*8192, range(4*fo, 4*fo+4), Q[q])
    def sendl(g):
        o = []
        for k in range(4):
            nb = 2*(g >> 1) + (k >> 1); c = (nb*8 + 4*(g & 1) + 2*(k & 1))*4; t = PV + 8*(k & 1); d = 224 + 4*((g*4+k) % 8)
            o += [f"v_accvgpr_read_b32 v{t+i}, a{c+i}" for i in range(8)]
            o += [f"v_cvt_pk_bf16_f32 v{d+i}, v{t+2*i}, v{t+1+2*i}" for i in range(4)]
            o += [f"buffer_store_dwordx4 v[{d}:{d+3}], v{V_L16}, s[12:15], s{(0, 71, 16, 25)[g]} offen offset:{k*1024} sc1"]
        return o
    a("s_add_u32 s16, s71, 4096\n s_add_u32 s25, s71, 8192")
    phases = [(0, 1, 1, range(4)), (1, 1, 2, range(4)), (2, 1, 3, range(4)), (3, 1, 1, range(4))] + \
             [(st, 0, (0, 2, 3, 1)[st], (2, 3)) for st in range(4)] + [(st, 0, (0, 2, 3, 1)[st], (0, 1)) for st in range(4)]
    pre = {0: hrd(1, 1, 2) + hrd(2, 1, 3), 1: hrd(3, 1, 1), 2: hrd(1, 0, 2), 3: hrd(2, 0, 3), 4: hrd(3, 0, 1)}
    send = []
    for k, (st, fo, q, nbs) in enumerate(phases):
        if k == 0: vm.wait(a, 'h27', "lgkmcnt(0)")
        elif k in (1, 2, 3, 5, 6): a("s_waitcnt lgkmcnt(8)")
        elif k == 7: a("s_waitcnt lgkmcnt(0)")
        if k == 4: send += [None]*8 + sendl(3) + sendl(1)
        if k == 8: send += [None]*max(0, 12 - len(send)) + sendl(2)
        ms = []
        for i, nb in enumerate(nbs):
            for m in (range(4) if i % 2 == 0 else range(3, -1, -1)):
                c = (nb*8 + 4*fo + m)*4; b = Q[q] + 4*m; h = HB + 16*st + 4*nb
                ms.append(f"{MF} a[{c}:{c+3}], v[{b}:{b+3}], v[{h}:{h+3}], a[{c}:{c+3}]")
        f = {}
        rd = pre.get(k, [])
        for j, x in enumerate(rd): f.setdefault(j*len(ms)//len(rd), []).append(x)
        for g in range(len(ms)):
            for _ in range(3):
                if send:
                    x = send.pop(0)
                    if x: f.setdefault(g, []).append(x)
        interleave(a, ms, f)
    assert not send, len(send)
    stamp(a, 7)
    a("""
    s_mul_i32 s26, s3, 4608
    s_add_u32 s26, s26, 131072
    v_lshrrev_b32 v4, 2, v1
    v_mul_u32_u24 v4, 288, v4
    v_and_b32 v5, 3, v1
    v_lshl_add_u32 v4, v5, 4, v4
    v_add_u32 v4, s26, v4
    v_and_b32 v5, 31, v1
    v_mul_u32_u24 v5, 144, v5
    v_add_u32 v5, s26, v5
    """)
    for j in range(4): a(f"ds_write_b128 v4, a[{136+4*j}:{139+4*j}] offset:{(j&1)*144 + (j>>1)*64}")
    a("ds_write_b32 v5, a152 offset:128")
    a("""
    v_and_b32 v4, 15, v1
    v_mul_u32_u24 v4, 144, v4
    v_lshrrev_b32 v5, 4, v1
    v_lshlrev_b32 v5, 3, v5
    v_sub_u32 v6, 24, v5
    v_cndmask_b32 v5, v5, v6, s[46:47]
    v_add3_u32 v4, v4, v5, s26
    s_waitcnt vmcnt(0) lgkmcnt(0)
    buffer_store_dwordx2 v[26:27], v23, s[12:15], s69 offen sc1
    """)
    for k in range(8):
        a(f"ds_read_b64 v[{128+4*k}:{129+4*k}], v4 offset:{(k>>2)*16*144 + (k&3)*32}\n ds_read_b32 v{130+4*k}, v4 offset:{(k>>2)*16*144 + (k&3)*32 + 8}")
    a(f"""
    v_add_u32 v6, 1, v1
    v_lshlrev_b32 v6, 10, v6
    v_xor_b32 v6, s69, v6
    v_cmp_gt_u32 vcc, 3, v1
    s_lshl_b32 s26, s2, 2
    s_add_u32 s26, s26, s3
    v_cndmask_b32 v{V_FJ}, v{V_OOB}, v6, vcc
    """)
    for g in range(1, 4): a(f"s_xor_b32 s27, s26, {8*g}\n s_mul_i32 s{40+g}, s27, 12288\n s_add_u32 s{40+g}, s{40+g}, {WS_XB + (g-1)*4096}")
    for nb in range(2):
        for i in range(4): a(f"v_accvgpr_read_b32 v{40+i}, a{160+4*nb+i}")
        a(f"""
        v_add_f32 v40, v40, v41
        v_add_f32 v42, v42, v43
        v_add_f32 v40, v40, v42
        v_cvt_pk_bf16_f32 v40, v40, v40
        v_lshlrev_b32 v40, 16, v40
        v_mul_f32 v40, {fbits(-math.log2(math.e))}, v40
        v_exp_f32 v40, v40
        s_nop 0
        v_add_f32 v40, 1.0, v40
        v_rcp_f32 v40, v40
        s_nop 0
        v_cvt_pk_bf16_f32 v40, v40, v40
        v_lshlrev_b32 v{32+nb}, 16, v40
        v_sub_f32 v40, 1.0, v{32+nb}
        v_cvt_pk_bf16_f32 v40, v40, v40
        v_lshlrev_b32 v{34+nb}, 16, v40
        v_and_b32 v{36+nb}, 0xffff, v40
        """)
    for nb in range(2):
        for i in range(16): a(f"v_accvgpr_read_b32 v{64+nb*16+i}, a{nb*32+i}")
    for nb in range(2):
        for i in range(16): a(f"v_mul_f32 v{64+nb*16+i}, v{34+nb}, v{64+nb*16+i}")
    a(f"buffer_load_dwordx2 v[24:25], v{V_FJ}, s[12:15], 0 offen sc1")
    a("s_waitcnt lgkmcnt(0)\n s_cmp_lg_u32 s46, 0\n s_cbranch_scc1 L_g2_mir")
    for mir in range(2):
        if mir: a("L_g2_mir:")
        for nb in range(2):
            for mb in range(4):
                d = 128 + (nb*4 + (3-mb if mir else mb))*4; o = 64 + (nb*4+mb)*4
                els = [4, 3, 2, 1] if mir else [0, 1, 2, 3]
                for r in range(4): a(unp(40+r, d, els[r]))
                for r in range(4): a(f"v_fma_f32 v{o+r}, v{40+r}, v{32+nb}, v{o+r}")
        if not mir: a("s_branch L_g2_st")
    a("L_g2_st:")
    stamp(a, 9)
    a("s_waitcnt vmcnt(0)")
    fl_bad(a, 24, 7)
    a("s_cbranch_scc0 L_g2_xok\n s_mov_b32 s26, 0")
    poll(a, [('s26', '7')], vb=44, gap=1, voff=V_FJ)
    a("L_g2_xok:")
    stamp(a, 10)
    for k in range(4):
        for g in range(1, 4): a(f"buffer_load_dwordx4 v[{128+16*k+4*g}:{131+16*k+4*g}], v{V_L16}, s[12:15], s{40+g} offen offset:{k*1024} sc1")
    for k in range(4):
        a(f"s_waitcnt vmcnt({3*(3-k) + k})")
        for g in range(1, 4):
            for r in range(8): a(f"v_dot2_f32_bf16 v{64+8*k+r}, v{128+16*k+4*g+r//2}, v{(36, 34)[r & 1]+(k>>1)}, v{64+8*k+r}")
        a("s_nop 2")
        for i in range(4): a(f"v_cvt_pk_bf16_f32 v{PV+4*k+i}, v{64+8*k+2*i}, v{64+8*k+2*i+1}")
        a(f"s_nop 1\n v_permlane16_swap_b32 v{PV+4*k}, v{PV+4*k+2}\n v_permlane16_swap_b32 v{PV+4*k+1}, v{PV+4*k+3}")
        a(f"buffer_store_dwordx4 v[{PV+4*k}:{PV+4*k+3}], v{V_OUT+(k>>1)}, s[52:55], 0 offen offset:{(k&1)*64} {opt.oflags}")
    a("s_branch L_end")
    a("L_g2_late0:")
    poll(a, [('s44', pmask(1) | pmask(2) | pmask(3))], vb=10, gap=opt.g2gap, voff=V_FJ)
    a("s_waitcnt vmcnt(0)\n s_cmp_eq_u32 s31, 0\n s_cbranch_scc1 L_g2_cont0\n L_g2_redo:")
    h_chunk(a, 1)
    a("s_waitcnt vmcnt(0)\n s_branch L_g2_cont0")
    a("L_g2_ep:")
    poll(a, [('s70', '-1')], vb=10, gap=2, cnt=64)
    a("s_waitcnt vmcnt(0)\n s_branch L_g2_cont1")
    for pos in rare:
        a(f"L_g2_late{pos}:")
        poll(a, [('s44', pmask(pos+2))], vb=10, gap=2, voff=V_FJ)
        a(f"s_waitcnt vmcnt(0)\n s_branch L_g2_cont{pos}x")
    a(f"L_g2_s4:\n s_mov_b32 s26, {WS_FL+32768}")
    poll(a, [('s26', '0xffffffff')], vb=10, gap=2, cnt=32)
    a("s_waitcnt vmcnt(0)\n s_branch L_g2_s4ok")

def ACCG(mb, nb): return 128 + (nb*4+mb)*4
def ACCU(mb, nb): return (nb*4+mb)*4
def FR(st, i): return 128 + st*64 + i*4

def gemm1(a):
    XS = 32768; WB = 98304; WSL = 16384
    a("s_lshl_b32 s29, s24, 19\n s_lshl_b32 s26, s3, 16\n s_add_u32 s29, s29, s26")
    sh_voff(a, 8, 11, 29)
    a("""
    v_lshrrev_b32 v2, 4, v1
    s_and_b32 s26, s3, 1
    s_lshl_b32 s26, s26, 4
    v_add_u32 v3, s26, v2
    s_mov_b32 s27, 7168
    v_mul_lo_u32 v3, v3, s27
    s_lshl_b32 s26, s25, 8
    v_add_u32 v3, s26, v3
    v_lshlrev_b32 v2, 1, v2
    v_and_b32 v4, 15, v1
    v_xor_b32 v2, v2, v4
    v_lshl_add_u32 v12, v2, 4, v3
    v_xor_b32 v2, 8, v2
    v_lshl_add_u32 v14, v2, 4, v3
    """)
    a(f"v_add_u32 v13, {1*(4*7168-1024)}, v12\n v_add_u32 v15, {3*(4*7168-1024)}, v14\n v_add_u32 v14, {2*(4*7168-1024)}, v14")
    a(f"s_mov_b32 s16, 0\n s_mov_b32 s22, 65536\n s_mov_b32 s17, 0\n s_lshl_b32 s21, s3, 12\n s_add_u32 s21, s21, {WB}\n s_lshl_b32 s23, s3, 13")
    def dma_x(h): return [f"buffer_load_dwordx4 v{8+i}, s[4:7], s{(16, 22)[h]} offen offset:{i*1024} lds" for i in range(4)]
    def dma_w(): return [f"buffer_load_dwordx4 v{12+i}, s[8:11], s17 offen offset:{i*1024} lds" for i in range(4)]
    def px(s):
        a(f"s_add_u32 m0, s23, {s*XS}\n s_nop 0")
        for x in dma_x(0): a(x)
        a(f"s_add_u32 m0, s23, {s*XS+4096}\n s_add_u32 s16, s16, 128")
        for x in dma_x(1): a(x)
        a("s_add_u32 s22, s22, 128")
    def pw(s):
        a(f"s_add_u32 m0, s21, {s*WSL}\n s_nop 0")
        for x in dma_w(): a(x)
        a(f"s_add_u32 s17, s17, {32*7168}")
    a("s_waitcnt lgkmcnt(0)")
    srd(a, 4, 40, 2048*1024*2)
    a("s_cmp_ge_u32 s3, 2\n s_cselect_b32 s26, s46, s44\n s_cselect_b32 s27, s47, s45")
    srd(a, 8, 26, 1024*3584*2)
    stamp(a, 21)
    pw(0); px(0); pw(1)
    stamp(a, 22)
    common_setup(a)
    a(f"""
    s_cmp_eq_u32 s3, 1
    s_cselect_b32 s80, s46, s44
    s_cselect_b32 s81, s47, s45
    s_mov_b32 s82, {1024*3584*2}
    s_cmp_eq_u32 s3, 2
    s_cselect_b32 s80, s40, s80
    s_cselect_b32 s81, s41, s81
    s_cselect_b32 s82, {2048*1024*2}, s82
    s_cmp_eq_u32 s3, 3
    s_cselect_b32 s80, s88, s80
    s_cselect_b32 s81, s89, s81
    s_and_b32 s81, s81, 0xffff
    s_mov_b32 s83, 0x20000
    v_mov_b32 v3, {OOB}
    s_add_u32 s86, s67, 28
    s_cmp_ge_u32 s3, 2
    s_cbranch_scc1 L_t_x
    v_lshrrev_b32 v2, 4, v1
    v_lshlrev_b32 v2, 5, v2
    v_bfe_u32 v4, v1, 1, 3
    v_add_u32 v2, v2, v4
    s_lshl_b32 s26, s68, 3
    v_add_u32 v2, s26, v2
    s_mov_b32 s27, 7168
    v_mul_lo_u32 v2, v2, s27
    v_and_b32 v4, 1, v1
    v_lshl_add_u32 v2, v4, 7, v2
    s_lshl_b32 s26, s25, 8
    v_add_u32 v26, s26, v2
    v_cmp_gt_u32 vcc, 32, v1
    s_mov_b32 s84, {2*32*7168}
    s_mov_b32 s85, {2*32*7168}
    v_cndmask_b32 v27, v3, v26, vcc
    s_mov_b32 s75, {4*32*7168}
    v_mov_b32 v42, {'v3' if opt.notw else 'v26'}
    buffer_load_dword v28, v3, s[4:7], 0 offen
    buffer_load_dword v28, v3, s[4:7], 0 offen
    s_branch L_t_done
    L_t_x:
    s_cmp_eq_u32 s3, 3
    s_cbranch_scc1 L_t_wd
    s_mul_i32 s26, s69, 37
    s_lshl_b32 s27, s24, 8
    s_add_u32 s26, s26, s27
    v_add_u32 v2, s26, v1
    v_lshlrev_b32 v2, 11, v2
    v_cmp_gt_u32 vcc, {0 if opt.nox else 37}, v1
    s_mov_b32 s84, 128
    s_mov_b32 s85, 0
    v_cndmask_b32 v42, v3, v2, vcc
    s_mov_b32 s75, 128
    v_mov_b32 v27, v3
    buffer_load_dword v28, v42, s[80:83], s84 offen offset:128
    buffer_load_dword v28, v3, s[4:7], 0 offen
    s_branch L_t_done
    L_t_wd:
    s_mul_i32 s27, s86, 49
    v_cmp_gt_u32 vcc, {0 if (opt.xdft & 2) or opt.nofold else 49}, v1
    s_lshl_b32 s28, s66, 6
    """)
    for k in range(3):
        a(f"""
        v_add_u32 v2, s27, v1
        v_add_u32 v2, {1372*k}, v2
        v_bfe_u32 v4, v2, 4, 3
        v_bfe_u32 v5, v2, 7, 2
        v_lshl_add_u32 v4, v5, 4, v4
        v_bfe_u32 v5, v2, 11, 1
        v_lshl_add_u32 v4, v5, 3, v4
        v_add_u32 v4, s28, v4
        v_bfe_u32 v5, v2, 9, 2
        v_and_b32 v6, 1, v5
        v_lshrrev_b32 v7, 1, v5
        v_xor_b32 v6, v6, v7
        v_sub_u32 v7, 0, v4
        v_cmp_eq_u32 s[62:63], 1, v6
        v_and_b32 v2, 15, v2
        v_lshlrev_b32 v2, 7, v2
        v_cndmask_b32 v4, v4, v7, s[62:63]
        v_lshlrev_b32 v6, 11, v5
        v_cmp_le_u32 s[62:63], 2, v5
        v_mov_b32 v7, 1024
        s_nop 0
        v_cndmask_b32 v6, v6, v7, s[62:63]
        v_add_u32 v4, v4, v6
        v_lshl_add_u32 v2, v4, 11, v2
        v_cndmask_b32 v{46+k}, v3, v2, vcc
        """)
        if k < opt.nf: a(f"buffer_load_dword v28, v{46+k}, s[4:7], 0 offen {opt.nt_fold}")
    a(f"""
    v_lshlrev_b32 v2, 7, v1
    v_cmp_gt_u32 vcc, 32, v1
    s_mul_i32 s84, s66, 28
    s_add_u32 s84, s84, s86
    s_lshl_b32 s84, s84, 12
    v_cndmask_b32 v27, v3, v2, vcc
    s_mov_b32 s85, {224*4096}
    s_mov_b32 s75, 0
    v_mov_b32 v42, v3
    L_t_done:
    """)
    stamp(a, 19)
    a(f"buffer_load_dword v28, v42, s[80:83], s84 offen {opt.nt_w}\n s_add_u32 s84, s84, s75")
    stamp(a, 20)
    a(f"""
    s_cmp_lt_u32 s66, 4
    s_cselect_b32 s36, s56, s58
    s_cselect_b32 s37, s57, s59
    s_cmp_eq_u32 s3, 2
    s_cselect_b32 s36, s52, s36
    s_cselect_b32 s37, s53, s37
    s_cmp_eq_u32 s3, 3
    s_cselect_b32 s36, s54, s36
    s_cselect_b32 s37, s55, s37
    s_and_b32 s37, s37, 0xffff
    s_mov_b32 s39, 0x20000
    s_and_b32 s28, s66, 3
    s_lshl_b32 s26, s28, 18
    s_lshl_b32 s28, s28, 8
    s_lshr_b32 s27, s66, 2
    s_add_u32 s28, s28, s27
    s_lshl_b32 s28, s28, 12
    s_cmp_eq_u32 s3, 1
    s_cselect_b32 s28, s26, s28
    s_cselect_b32 s26, 11, 13
    s_cselect_b32 s38, {1024*1024*2}, s82
    s_mul_i32 s27, s86, 37
    v_add_u32 v2, s27, v1
    v_lshrrev_b32 v4, 3, v2
    v_lshlrev_b32 v4, s26, v4
    v_and_b32 v2, 7, v2
    v_lshl_add_u32 v2, v2, 7, v4
    s_cmp_eq_u32 s3, 0
    s_cselect_b32 s27, 0, 37
    v_cmp_gt_u32 vcc, s27, v1
    v_mov_b32 v3, {OOB}
    s_nop 0
    v_cndmask_b32 v2, v3, v2, vcc
    v_add_u32 v34, s28, v2
    s_cmp_eq_u32 s3, 1
    s_cselect_b64 vcc, -1, 0
    s_nop 0
    v_cndmask_b32 v2, v3, v34, vcc
    v_cndmask_b32 v34, v34, v3, vcc
    buffer_load_dword v28, v2, s[36:39], 0 offen {opt.nt_c}
    """)
    if opt.tlb:
        a("v_lshlrev_b32 v40, 21, v1\n v_add_u32 v40, 0x100000, v40")
    else: a(f"v_mov_b32 v40, {OOB}")
    if opt.tlb2:
        a(f"""
        s_cmp_eq_u32 s3, 1
        s_cselect_b32 s76, s42, s48
        s_cselect_b32 s77, s43, s49
        s_cselect_b32 s78, {4 << 20}, {32 << 20}
        s_and_b32 s77, s77, 0xffff
        s_mov_b32 s79, 0x20000
        s_mov_b32 s26, {opt.HS}
        s_mov_b32 s27, {opt.HS - 128}
        s_cmp_eq_u32 s3, 1
        s_cselect_b32 s26, 65536, s26
        s_cselect_b32 s27, 0, s27
        s_cmp_eq_u32 s3, 2
        s_cselect_b32 s26, {16*XBS}, s26
        s_cselect_b32 s27, {WS_XB + 4096}, s27
        s_cmp_eq_u32 s3, 3
        s_cselect_b32 s26, {EGS}, s26
        s_cselect_b32 s27, {WS_Y + 520*64}, s27
        v_mul_lo_u32 v41, v1, s26
        v_add_u32 v41, s27, v41
        s_cbranch_scc0 L_tl_done
        v_cmp_lt_u32 vcc, 31, v1
        v_add_u32 v2, {YD - 32*EGS}, v41
        s_nop 0
        v_cndmask_b32 v41, v41, v2, vcc
        v_cmp_eq_u32 vcc, 63, v1
        v_mov_b32 v2, {WS_FL + 4096}
        s_nop 0
        v_cndmask_b32 v41, v41, v2, vcc
        L_tl_done:
        """.replace("s_cselect_b32 s78, 4194304, 33554432", "s_mov_b32 s78, 33554432\n s_cselect_b32 s78, 4194304, s78"))
    a(f"""
    s_lshr_b32 s26, s3, 1
    s_lshl_b32 s26, s26, 7
    v_and_b32 v2, 15, v1
    v_lshrrev_b32 v5, 1, v2
    v_add_u32 v2, s26, v2
    v_lshlrev_b32 v2, 7, v2
    v_lshrrev_b32 v3, 4, v1
    v_xor_b32 v5, v3, v5
    v_lshl_add_u32 v16, v5, 4, v2
    v_xor_b32 v5, 4, v5
    v_lshl_add_u32 v33, v5, 4, v2
    v_lshrrev_b32 v4, 2, v1
    v_and_b32 v4, 3, v4
    v_lshl_add_u32 v5, v3, 3, v4
    v_lshlrev_b32 v5, 8, v5
    v_add_u32 v5, {WB}, v5
    v_and_b32 v6, 3, v1
    v_lshl_add_u32 v5, v6, 3, v5
    v_and_b32 v6, 1, v3
    v_lshl_or_b32 v6, v6, 2, v4
    s_and_b32 s26, s3, 1
    s_lshl_b32 s26, s26, 2
    v_xor_b32 v6, s26, v6
    """)
    for mb in range(4):
        a(f"v_xor_b32 v7, {mb}, v6\n v_lshl_add_u32 v{17+mb}, v7, 5, v5")
    for i in range(5): a(f"v_mov_b32 v{21+i}, v{16+i}")
    def reads(st):
        def wr(mat, mb):
            b = FR(st, mat*4+mb)
            return [f"ds_read_b64_tr_b16 a[{b}:{b+1}], v{22+mb} offset:{mat*8192}",
                    f"ds_read_b64_tr_b16 a[{b+2}:{b+3}], v{22+mb} offset:{mat*8192+1024}"]
        def xr(nb):
            b = FR(st, 8+nb)
            return [f"ds_read_b128 a[{b}:{b+3}], v21 offset:{nb*2048}"]
        r = []
        for i in range(8): r += wr(i & 1, i >> 1) + xr(i)
        return r
    def mf(st):
        m = []
        od = [(nb if (mb*2+mat) % 2 == 0 else 7-nb, mb, mat) for mb in range(4) for mat in range(2) for nb in range(8)]
        for nb, mb, mat in od:
            c = f"v[{ACCG(mb,nb)}:{ACCG(mb,nb)+3}]" if mat == 0 else f"a[{ACCU(mb,nb)}:{ACCU(mb,nb)+3}]"
            fa = FR(st, mat*4+mb); fb_ = FR(st, 8+nb)
            if opt.pw & 1: fa, fb_ = fb_, fa
            x = f"{MF} {c}, a[{fa}:{fa+3}], a[{fb_}:{fb_+3}], {c}"
            if opt.pw & 2:
                c2 = c.replace('v[', 'a[')
                x = f"{MF} {c2}, v[{fa}:{fa+3}], v[{fb_}:{fb_+3}], {c2}"
            m.append(x)
        return m
    if opt.pw & 2:
        reads0 = reads
        reads = lambda st: [x.replace(' a[', ' v[') for x in reads0(st)]
    for i in range(4): a(f"v_mov_b32 v{36+i}, 0")
    a("s_nop 1")
    for i in range(8): a(f"v_mfma_f32_32x32x16_bf16 v[{128+16*i}:{143+16*i}], v[36:39], v[36:39], 0\n v_mfma_f32_32x32x16_bf16 a[{16*i}:{15+16*i}], v[36:39], v[36:39], 0")
    def preblk():
        a(f"""
    s_lshl_b32 s86, s24, 3
    s_lshr_b32 s31, s3, 1
    s_lshl_b32 s31, s31, 2
    s_add_u32 s86, s86, s31
    s_lshl_b32 s68, s86, 11
    s_mul_i32 s86, s86, {opt.HS}
    s_lshl_b32 s31, s25, 13
    s_add_u32 s86, s86, s31
    s_and_b32 s31, s3, 1
    s_lshl_b32 s31, s31, 12
    s_add_u32 s86, s86, s31
    s_lshl_b32 s31, s25, 1
    s_and_b32 s26, s3, 1
    s_add_u32 s31, s31, s26
    s_lshl_b32 s31, s31, 7
    s_add_u32 s68, s68, s31
    s_add_u32 s68, s68, {WS_FL+65536}
    """)
        g2_pre(a, False)
    preblk()
    stamp(a, 1)
    a(f"s_waitcnt vmcnt(8) lgkmcnt(0)\n s_barrier")
    for x in reads(0): a(x)
    nonce(a)
    a(f"s_lshl_b32 s26, s2, 7\n s_add_u32 s26, s26, {WS_FL+393216}\n s_cmp_eq_u32 s3, 0\n s_cselect_b32 s26, s26, {OOB}\n v_and_b32 v43, 15, v1\n v_lshl_add_u32 v43, v43, 3, s26\n v_mov_b32 v44, s98\n v_mov_b32 v45, s99")
    a(f"s_mov_b32 s19, 0\n s_mov_b32 s20, {XS}\n s_mov_b32 s18, 0\n s_mov_b32 s28, {WSL}\n s_mov_b32 s29, 0")
    a("v_mov_b32 v21, v33")
    for i in range(4): a(f"v_add_u32 v{22+i}, s28, v{17+i}")
    a(f"s_mov_b32 s72, {32*7168}\n s_mov_b32 s73, 128\n s_mov_b32 s74, 65536")
    stamp(a, 2)
    for st in (2, 0, 1):
        peel = st == 2
        if peel: st = 0
        if not peel and st == 0: a(".p2align 6\n" + "s_nop 0\n"*opt.shift + "L_g1_loop:")
        if st == 1: a("L_g1_mid:")
        f = {-1: ["s_waitcnt lgkmcnt(0)"]}
        if opt.trace: f[-1] = trace_ops("s18")
        f[0] = [f"s_waitcnt vmcnt({4 if peel else (24, 12)[st]})", "s_barrier"]
        if peel:
            A = Asm(); save = a
            def cap(fn, *args):
                n0 = len(a.l); fn(*args); out = [x.strip() for x in a.l[n0:]]; del a.l[n0:]; return out
            ops = cap(pw, 2) + cap(px, 1) + cap(pw, 3) + ["buffer_load_dword v28, v40, s[80:83], 0 offen"] + cap(px, 2) + ["buffer_store_dwordx2 v[44:45], v43, s[12:15], 0 offen sc1"]
            g = 2
            for x in ops:
                if x == 's_nop 0': continue
                f.setdefault(g-1 if 'm0' in x else g, []).append(x)
                if x.startswith('buffer'): g += 2
            assert g <= 63, g
            if opt.stamp: f.setdefault(63, []).extend(["s_memrealtime s[92:93]", "s_waitcnt lgkmcnt(0)", "v_writelane_b32 v31, s92, 41"])
            f.setdefault(63, []).append("s_branch L_g1_mid")
        rd = reads(st ^ 1)
        for i, x in enumerate(rd): f.setdefault(1 + 2*i, []).append(x)
        f.setdefault(2, []).append(f"s_add_u32 s28, s28, {WSL}")
        f.setdefault(4, []).append(f"s_and_b32 s28, s28, {4*WSL-1}")
        f.setdefault(6, []).append("s_add_u32 s18, s18, 1")
        for i in range(4): f.setdefault(50+2*i, []).append(f"v_add_u32 v{22+i}, s28, v{17+i}")
        if st == 0:
            f.setdefault(58, []).append("v_add_u32 v21, s20, v16")
        else:
            f.setdefault(58, []).append("v_add_u32 v21, s19, v33")
            dq = dma_w() + dma_w() + dma_x(0) + dma_x(1)
            dp = opt.dp if hasattr(opt, 'dp') else [2 + 4*i - (i > 11)*(i-11) for i in range(16)]
            f[0].append("s_add_u32 m0, s21, s29")
            for i, x in enumerate(dq): f.setdefault(dp[i], []).append(x)
            f[dp[3]] += [f"s_add_u32 m0, m0, {WSL}", "s_add_u32 s17, s17, s72"]
            f[dp[7]] += ["s_add_u32 m0, s23, s19", "s_add_u32 s17, s17, s72"]
            f[dp[8]] += [f"s_xor_b32 s29, s29, {2*WSL}"]
            f[dp[9]] += ["s_mov_b32 s19, s20"]
            f[dp[10]] += [f"s_add_u32 s20, s20, {XS}", f"s_cmp_eq_u32 s20, {3*XS}"]
            f[dp[11]] += ["s_cselect_b32 s20, 0, s20", "s_add_u32 m0, m0, 4096"]
            f[dp[12]] += ["s_add_u32 s16, s16, s73"]
            f[dp[15]] += ["s_cmp_ge_u32 s18, 26", "s_cbranch_scc1 L_g1_sw", "L_g1_swd:", "s_add_u32 s22, s16, s74"]
            f.setdefault(62, []).extend([f"buffer_load_dword v28, v27, s[80:83], s84 offen {opt.tflags}", "s_add_u32 s84, s84, s85"])
            f[62] += ["s_cmp_lg_u32 s18, 4", "s_cbranch_scc1 L_g1_noseq", "buffer_load_dword v28, v34, s[36:39], 0 offen"] + (["buffer_load_dword v28, v41, s[76:79], 0 offen"] if opt.tlb2 else []) + ["L_g1_noseq:"]
            f.setdefault(63, []).extend(["s_cmp_lt_u32 s18, 32", "s_cbranch_scc1 L_g1_loop"])
        interleave(a, mf(st), f)
    a("s_branch L_g1_done")
    a("L_g1_sw:\n s_cmp_eq_u32 s18, 26\n s_cbranch_scc0 L_g1_sw2\n s_mov_b64 s[4:5], s[32:33]\n s_mov_b32 s6, s34")
    for i in range(4): a(f"v_mov_b32 v{8+i}, v{V_WX+i}")
    a(f"s_mov_b32 s16, s41\n s_mov_b32 s74, {16*2048}\n s_branch L_g1_swd")
    a("L_g1_sw2:\n s_cmp_eq_u32 s18, 28\n s_cselect_b32 s16, s42, s40\n s_branch L_g1_swd")
    a("L_g1_done:")
    stamp(a, 3)
    if opt.xdft: a("s_branch L_end")
    c0 = -2*math.sqrt(2/math.pi)*math.log2(math.e); c1 = c0*0.044715
    a(f"s_mov_b32 s26, {fbits(c0)}\n s_mov_b32 s28, {fbits(c1)}\n s_mov_b32 s29, {fbits(c1)}")
    a("v_mov_b32 v24, s26\n v_mov_b32 v25, s26\n v_mov_b32 v2, 0\n v_mov_b32 v3, 0\n v_mov_b32 v4, 0\n v_mov_b32 v5, 0\n s_waitcnt lgkmcnt(0)")
    a(f"s_lshr_b32 s27, s3, 1\n s_lshl_b32 s27, s27, 15\n s_and_b32 s26, s3, 1\n s_lshl_b32 s26, s26, 12\n s_add_u32 s26, s26, s27\n s_add_u32 s26, s26, {OWNL}\n v_add_u32 v29, s26, v{V_L16}")
    for nb in range(8):
        g0 = ACCG(0, nb); u0 = ACCU(0, nb)
        U = 32 + (nb % 2)*32; Z = U+16; O = g0
        for i in range(16): a(f"v_accvgpr_read_b32 v{U+i}, a{u0+i}")
        for i in range(0, 16, 2): a(f"v_pk_mul_f32 v[{Z+i}:{Z+i+1}], v[{g0+i}:{g0+i+1}], v[{g0+i}:{g0+i+1}]")
        for i in range(0, 16, 2): a(f"v_pk_fma_f32 v[{Z+i}:{Z+i+1}], v[{Z+i}:{Z+i+1}], s[28:29], v[24:25]")
        for i in range(0, 16, 2): a(f"v_pk_mul_f32 v[{Z+i}:{Z+i+1}], v[{Z+i}:{Z+i+1}], v[{g0+i}:{g0+i+1}]")
        for i in range(16): a(f"v_exp_f32 v{Z+i}, v{Z+i}")
        for i in range(0, 16, 2): a(f"v_pk_mul_f32 v[{U+i}:{U+i+1}], v[{U+i}:{U+i+1}], v[{g0+i}:{g0+i+1}]")
        for i in range(0, 16, 2): a(f"v_pk_add_f32 v[{Z+i}:{Z+i+1}], v[{Z+i}:{Z+i+1}], 1.0 op_sel_hi:[1,0]")
        for i in range(16): a(f"v_rcp_f32 v{Z+i}, v{Z+i}")
        a("s_nop 0")
        for i in range(0, 16, 2): a(f"v_pk_mul_f32 v[{U+i}:{U+i+1}], v[{U+i}:{U+i+1}], v[{Z+i}:{Z+i+1}]")
        for i in range(0, 16, 2): a(f"v_cvt_pk_bf16_f32 v{O+i//2}, v{U+i}, v{U+i+1}")
        for p in range(2):
            off = (nb >> 1)*opt.HS + (p*2 + (nb & 1))*1024
            a(f"s_add_u32 s31, s86, {off}")
            a(f"buffer_store_dwordx4 v[{O+4*p}:{O+4*p+3}], v{V_L16}, s[12:15], s31 offen {opt.hflags}")
        if nb == 0: a("s_waitcnt vmcnt(2)\n s_barrier")
        a(f"ds_write_b128 v29, v[{O}:{O+3}] offset:{(nb >> 1)*8192 + (nb & 1)*1024}\n ds_write_b128 v29, v[{O+4}:{O+7}] offset:{(nb >> 1)*8192 + (nb & 1)*1024 + 2048}")
        if nb == 3: g2_zero(a, 2, 0, 4)
        if nb == 6: g2_zero(a, 2, 4, 7)
    stamp(a, 4)
    g2_zero(a, 2, 7, 8)
    a(f"s_mov_b32 s87, {OOB}")
    a(f"s_lshl_b32 s26, s3, 14\n s_lshr_b32 s27, s96, 1\n s_lshl_b32 s27, s27, 13\n s_add_u32 s26, s26, {OWNL}\n s_add_u32 s27, s27, s26\n v_add_u32 v29, s27, v{V_L16}\n v_xor_b32 v10, 8192, v29\n s_waitcnt lgkmcnt(0)\n s_barrier")
    for st in range(4):
        for nb in range(4): a(f"ds_read_b128 v[{128+16*st+4*nb}:{131+16*st+4*nb}], v{(29, 10)[nb >> 1]} offset:{st*2048 + (nb & 1)*1024}")
    stamp(a, 5)

RAW = 64; GT = 192; EU = 208; SV = 216
def fold_loads(a, vm):
    a("""
    s_lshl_b32 s26, s66, 2
    s_add_u32 s26, s26, s67
    s_lshl_b32 s26, s26, 4
    v_lshrrev_b32 v40, 3, v1
    v_add_u32 v40, s26, v40
    v_cmp_eq_u32 s[62:63], 0, v40
    v_and_b32 v2, 7, v1
    v_cmp_eq_u32 s[70:71], 0, v2
    v_add_u32 v44, 8, v40
    v_lshlrev_b32 v2, 4, v2
    s_lshl_b32 s26, s3, 8
    v_add_u32 v2, s26, v2
    v_sub_u32 v3, 1904, v2
    v_sub_u32 v41, 2048, v40
    v_sub_u32 v42, 1024, v40
    v_add_u32 v43, 1024, v40
    v_sub_u32 v45, 2048, v44
    v_sub_u32 v46, 1024, v44
    v_add_u32 v47, 1024, v44
    v_mov_b32 v4, 512
    v_mov_b32 v5, 1536
    v_cndmask_b32 v41, v41, v4, s[62:63]
    v_cndmask_b32 v43, v43, v5, s[62:63]
    s_sub_u32 s74, 2048, s26
    """)
    for k in range(8): a(f"v_lshl_add_u32 v{224+8*(k>>2)+(k&3)}, v{40+k}, 11, v2\n v_lshl_add_u32 v{228+8*(k>>2)+(k&3)}, v{40+k}, 11, v3")
    for gi in range(2):
        a(f"buffer_load_dwordx4 v[{GT+8*gi}:{GT+8*gi+3}], v2, s[32:35], 0 offen offset:{gi*128}")
        a(f"buffer_load_dwordx4 v[{GT+8*gi+4}:{GT+8*gi+7}], v3, s[32:35], 0 offen offset:{(1-gi)*128}")
        vm.add('g', 2)
def fold_round_loads(a, vm, rnd):
    if True:
        hf, gi = rnd >> 1, rnd & 1
        b = RAW + 32*rnd
        for i in range(4):
            a(f"buffer_load_dwordx4 v[{b+8*i}:{b+8*i+3}], v{224+8*hf+i}, s[4:7], 0 offen offset:{gi*128}")
            a(f"buffer_load_dwordx4 v[{b+8*i+4}:{b+8*i+7}], v{228+8*hf+i}, s[4:7], 0 offen offset:{(1-gi)*128}")
        if gi == 0:
            for i in range(4):
                a(f"v_lshlrev_b32 v4, 11, v{40+4*hf+i}\n buffer_load_ushort v{EU+4*hf+i}, v4, s[4:7], s74 offen")
            vm.add(f'r{rnd}', 12)
        else: vm.add(f'r{rnd}', 8)
def fold_compute(a, vm, between):
    LP = 8; UU = 16
    a(f"v_mov_b32 v24, {ALT}")
    for r in range(8, 24): a(f"v_mov_b32 v{r}, 0")
    a(f"""
    s_lshl_b32 s26, s66, 2
    s_add_u32 s26, s26, s67
    s_lshr_b32 s27, s26, 2
    s_lshl_b32 s27, s27, 16
    s_and_b32 s26, s26, 3
    s_lshl_b32 s26, s26, 10
    s_add_u32 s26, s26, s27
    s_lshl_b32 s27, s3, 14
    s_add_u32 s26, s26, s27
    s_add_u32 s22, s26, {WS_Z}
    v_bfe_u32 v2, v1, 2, 1
    v_lshlrev_b32 v25, 12, v2
    v_and_b32 v2, 3, v1
    v_lshl_add_u32 v25, v2, 8, v25
    v_lshrrev_b32 v2, 3, v1
    v_lshl_add_u32 v25, v2, 4, v25
    s_cmp_eq_u32 s3, 0
    s_cselect_b64 s[72:73], s[70:71], 0
    """)
    T = 240
    for rnd in range(4):
        hf, gi = rnd >> 1, rnd & 1
        b = RAW + 32*rnd; g = GT + 8*gi
        S = [224, RAW+96 if rnd < 2 else RAW+8, 48, 56]
        vm.wait(a, f'r{rnd}')
        if rnd in (0, 1): stamp(a, 19+2*rnd)
        for j in range(4):
            for i in range(4):
                a(f"v_dot2_f32_bf16 v{LP+4*hf+i}, v{b+8*i+j}, v{g+j}, v{LP+4*hf+i}")
            for i in range(4):
                a(f"v_dot2_f32_bf16 v{LP+4*hf+i}, v{b+8*i+4+j}, v{g+4+j}, v{LP+4*hf+i}")
        if hf == 0:
            for i in (1, 3):
                for j in range(8): a(f"v_cndmask_b32 v{b+8*i+j}, v{b+8*i+j}, 0, s[62:63]")
                if gi == 0: a(f"v_cndmask_b32 v{EU+i}, v{EU+i}, 0, s[62:63]")
        if gi == 0:
            for i in range(4): a(f"v_cndmask_b32 v{EU+4*hf+i}, v{EU+4*hf+i}, 0, s[72:73]")
            for i in range(4): a(f"v_mov_b32 v{SV+i}, v{b+8*i+4}")
        else:
            for i in range(4): a(f"v_mov_b32_dpp v{EU+4*hf+i}, v{SV+i} row_shl:7 row_mask:0xf bank_mask:0xf")
            for i in range(4): a(f"v_lshlrev_b32 v{2+i}, 16, v{b+8*i+4}")
            a(f"v_add_f32 v2, v2, v3\n v_add_f32 v4, v4, v5\n v_add_f32 v{26+2*hf}, v2, v4\n v_sub_f32 v{27+2*hf}, v2, v4")
        for i in range(4): a(f"v_mov_b32_dpp v{SV+4+i}, v{b+8*i+4} row_shr:1 row_mask:0xf bank_mask:0xf")
        for i in range(4): a(f"v_cndmask_b32 v{SV+4+i}, v{SV+4+i}, v{EU+4*hf+i}, s[70:71]")
        for i in range(4):
            for j in range(8): a(unp(T+j, b+8*i, j))
            a(f"v_lshlrev_b32 v{T+8}, 16, v{SV+4+i}")
            for j in range(1, 8): a(unp(T+8+j, b+8*i+4, 8-j))
            for j in range(0, 8, 2):
                a(pk('', S[i]+j, T+j, T+8+j))
                a(pk('', b+8*i+j, T+j, T+8+j, neg=True))
        for j in range(0, 8, 2):
            a(pk('', S[0]+j, S[0]+j, S[1]+j)); a(pk('', S[2]+j, S[2]+j, S[3]+j))
            a(pk('', b+j, b+j, b+8+j, neg=True)); a(pk('', b+16+j, b+16+j, b+24+j, neg=True))
        for j in range(0, 8, 2):
            a(pk('', S[1]+j, S[0]+j, S[2]+j)); a(pk('', S[3]+j, S[0]+j, S[2]+j, neg=True))
            a(pk('', b+8+j, b+j, b+16+j, neg=True)); a(pk('', b+24+j, b+j, b+16+j))
        for j in range(0, 8, 2):
            a(pk('', UU+4*hf, UU+4*hf, S[1]+j)); a(pk('', UU+4*hf+2, UU+4*hf+2, S[3]+j))
        for cls, src in enumerate((S[1], S[3], b+8, b+24)):
            o = b + 4*(cls & 1) + 16*(cls >> 1)
            for j in range(4): a(f"v_cvt_pk_bf16_f32 v{o+j}, v{src+2*j}, v{src+2*j+1}")
            a(f"s_add_u32 s26, s22, {cls*524288 + gi*8192 + hf*128}")
            a(f"buffer_store_dwordx4 v[{o}:{o+3}], v25, s[12:15], s26 offen sc1")
            vm.add('st')
        if rnd in (0, 1): stamp(a, 20+2*rnd)
        between(rnd)
    a("""
    s_cmp_eq_u32 s3, 3
    s_cselect_b32 s26, 0x80808080, 0
    s_mov_b32 s27, s26
    v_sub_f32 v16, v16, v17
    v_sub_f32 v17, v18, v19
    v_sub_f32 v18, v20, v21
    v_sub_f32 v19, v22, v23
    """)
    for k in range(4): a(f"v_cndmask_b32 v{20+k}, 0, v{26+k}, s[26:27]")
    for k in range(4): a(f"v_add_f32 v{16+k}, v{16+k}, v{20+k}")
    a("s_nop 0")
    for ctl in ("quad_perm:[1,0,3,2]", "quad_perm:[2,3,0,1]", "row_half_mirror"):
        for r in range(8, 20): a(f"v_add_f32_dpp v{r}, v{r}, v{r} {ctl} row_mask:0xf bank_mask:0xf")
    a(f"""
    s_lshl_b32 s26, s3, 2
    s_lshl_b32 s27, s3, 11
    s_add_u32 s27, s27, {WS_UP}
    s_mov_b32 s28, {WS_CV}
    s_add_u32 s29, s27, 8192
    """)
    for k in range(8): a(f"v_lshl_add_u32 v{68+k}, v{40+k}, 4, s26")
    a(f"v_lshlrev_b32 v76, 2, v40\n s_mov_b32 s26, {WS_LP}\n s_mov_b64 exec, s[70:71]")
    for k in range(8): a(f"buffer_store_dword v{8+k}, v{68+k}, s[12:15], s26 offen sc1")
    for hf in range(2):
        a(f"buffer_store_dword v{16+2*hf}, v76, s[12:15], s27 offen offset:{32*hf} sc1\n buffer_store_dword v{17+2*hf}, v76, s[12:15], s29 offen offset:{32*hf} sc1")
    a(f"""
    s_mov_b64 exec, -1
    s_cmp_lg_u32 s3, 3
    s_cbranch_scc1 L_fc2
    s_mov_b32 exec_lo, 0x80808080
    s_mov_b32 exec_hi, 0x80808080
    buffer_store_dword v26, v76, s[12:15], s28 offen sc1
    buffer_store_dword v27, v76, s[12:15], s28 offen offset:2048 sc1
    buffer_store_dword v28, v76, s[12:15], s28 offen offset:32 sc1
    buffer_store_dword v29, v76, s[12:15], s28 offen offset:2080 sc1
    s_mov_b64 exec, -1
    L_fc2:
    """)

def sh_voff(a, vb, rs_shift, srow):
    a(f"""
    v_lshrrev_b32 v2, 3, v1
    s_lshl_b32 s26, s3, 5
    v_add_u32 v2, s26, v2
    v_lshlrev_b32 v2, {rs_shift}, v2
    v_add_u32 v2, s{srow}, v2
    v_lshrrev_b32 v3, 4, v1
    v_and_b32 v4, 7, v1
    v_xor_b32 v3, v3, v4
    v_lshl_add_u32 v{vb}, v3, 4, v2
    v_xor_b32 v3, 4, v3
    v_lshl_add_u32 v{vb+1}, v3, 4, v2
    v_add_u32 v{vb+2}, {2*((8<<rs_shift)-1024)}, v{vb}
    v_add_u32 v{vb+3}, {3*((8<<rs_shift)-1024)}, v{vb+1}
    v_add_u32 v{vb+1}, {((8<<rs_shift)-1024)}, v{vb+1}
    """)
def sh_touch(a, sr, rs_shift, srow):
    a(f"""
    s_lshl_b32 s26, s67, 5
    s_lshl_b32 s27, s3, 3
    s_add_u32 s26, s26, s27
    v_lshrrev_b32 v2, 3, v1
    v_add_u32 v2, s26, v2
    v_lshlrev_b32 v2, {rs_shift}, v2
    v_and_b32 v3, 7, v1
    v_lshl_add_u32 v2, v3, 7, v2
    buffer_load_dword a255, v2, s[{sr}:{sr+3}], s{srow} offen
    """)
def sh_dma(vb, sr): return [f"buffer_load_dwordx4 v{vb+i}, s[{sr}:{sr+3}], s17 offen offset:{i*1024} lds" for i in range(4)]

def dloop(a, name, nm, accb, dma, extra=False, first=True, init=None, D=8, inc=128, mid=None):
    PB = 192; SF = 128; accb += 64
    def pl(i, off): return f"buffer_load_dwordx4 a[{PB+4*i}:{PB+4*i+3}], v12, s[32:35], s16 offen offset:{off} sc1"
    def sreads(st, ks): return [f"ds_read_b128 a[{SF+st*32+4*nb}:{SF+st*32+4*nb+3}], v{18+ks} offset:{nb*2048}" for nb in range(8)]
    if first:
        a("s_mov_b32 s16, 0")
        for t in range(D):
            for i in range(nm): a(pl(t*nm+i, i*1024))
            a(f"s_add_u32 s16, s16, {nm*1024}")
        a("v_mov_b32 v18, v16\n v_mov_b32 v19, v17")
        for x in sreads(0, 0): a(x)
        a(f"s_mov_b32 s19, 0\n s_mov_b32 s20, {SLOT3}\n ")
        init()
    a(f"s_mov_b32 s18, 0\n s_mov_b32 s17, 0")
    a(f".p2align 6\nL_{name}_loop:")
    NM = 8*nm
    if mid: mid()
    for t in range(8):
        ks = t & 1
        ms = []
        for mb in range(nm):
            for nb in range(8):
                c = accb + (nb*nm+mb)*4; pa = PB + ((t % D)*nm+mb)*4; sb = SF + ks*32 + nb*4
                ms.append(f"{MF} v[{c}:{c+3}], a[{pa}:{pa+3}], a[{sb}:{sb+3}], v[{c}:{c+3}]")
        f = {-1: [f"s_waitcnt vmcnt({(D-1)*nm}) lgkmcnt(0)"]}
        if extra:
            L = f"L_{name}_x{t}"
            f[-1] += ["s_cmp_eq_u32 s31, 0", f"s_cbranch_scc1 {L}"] + \
                     [f"{MF} v[{240+4*mb}:{243+4*mb}], a[{PB+(t*nm+mb)*4}:{PB+(t*nm+mb)*4+3}], v[24:27], v[{240+4*mb}:{243+4*mb}]" for mb in range(nm)] + [f"{L}:"]
        if ks == 1:
            f[0] = ["s_barrier", "v_add_u32 v18, s20, v16"]
            rd = sreads(0, 0)
        else:
            rd = sreads(1, 1)
        sp = NM // 16
        for k, x in enumerate(rd): f.setdefault(1+sp*k, []).append(x)
        for mb in range(nm): f.setdefault(8*mb+7, []).append(pl((t % D)*nm+mb, mb*1024))
        f[NM-1].append(f"s_add_u32 s16, s16, {nm*1024}")
        if ks == 1:
            if dma:
                f.setdefault(1, []).append("s_add_u32 m0, s21, s19")
                for k, x in enumerate(sh_dma(*dma)): f.setdefault(2+(NM//5)*k, []).append(x)
                f.setdefault(NM-3, []).append(f"s_add_u32 s17, s17, {inc}")
            f.setdefault(NM//2+1, []).append("v_add_u32 v19, s20, v17")
            f.setdefault(NM-3, []).extend(["s_mov_b32 s19, s20", f"s_add_u32 s20, s20, {SLOT3}"])
            f.setdefault(NM-2, []).append(f"s_and_b32 s20, s20, {R3*SLOT3-1}")
        interleave(a, ms, f)
    a(f"s_add_u32 s18, s18, 1\n s_cmp_lt_u32 s18, 2\n s_cbranch_scc1 L_{name}_loop")

def tile_vec(a, vec):
    a("""
    s_lshl_b32 s26, s67, 5
    s_lshl_b32 s27, s3, 3
    s_add_u32 s26, s26, s27
    s_lshl_b32 s27, s26, 7
    v_lshrrev_b32 v2, 3, v1
    v_lshlrev_b32 v2, 14, v2
    v_add_u32 v2, s27, v2
    s_lshr_b32 s26, s26, 1
    v_and_b32 v3, 7, v1
    v_xor_b32 v3, s26, v3
    v_and_b32 v3, 7, v3
    """)
    for i in range(8):
        a(f"v_xor_b32 v4, {i>>1}, v3\n v_lshl_add_u32 v4, v4, 4, v2\n ds_read_b128 v[{208+4*i}:{211+4*i}], v4 offset:{i*128}")
    for i in range(8): a(f"v_mov_b32 v{40+i}, 0")
    a("s_waitcnt lgkmcnt(0)")
    for j in range(4):
        for i in range(8): a(f"v_dot2_f32_bf16 v{40+i}, v{208+4*i+j}, v{vec+j}, v{40+i}")
    a("s_nop 2")
    reduce_lanes(a, list(range(40, 48)), 48, ['ror1', 'ror2', 'ror4', 'ror8', 'p16', 'p32'])
    for i in range(1, 8): a(f"v_cmp_eq_u32 vcc, {i}, v1\n s_nop 1\n v_cndmask_b32 v40, v40, v{40+i}, vcc")

def acc_load(a, nm, vb, svec, wshift, off=0):
    a(f"v_lshrrev_b32 v2, 4, v1\n v_lshlrev_b32 v2, 4, v2\n s_lshl_b32 s26, s3, {wshift}\n v_add_u32 v2, s26, v2")
    for mb in range(nm): a(f"buffer_load_dwordx4 v[{vb+4*mb}:{vb+3+4*mb}], v2, s[12:15], s{svec} offen offset:{off+mb*64} sc1")
def acc_init(a, nm, vb, accb, sscale, withx=False):
    a(f"v_lshlrev_b32 v3, 31, v1")
    for i in range(4*nm): a(f"v_mul_f32 v{vb+i}, s{sscale}, v{vb+i}")
    if withx:
        for i in range(4*nm): a(f"v_accvgpr_write_b32 a{128+i}, v{vb+i}")
    for i in range(4*nm): a(f"v_xor_b32 v{vb+i}, v3, v{vb+i}")
    for nb in range(8):
        for i in range(4*nm): a(f"v_accvgpr_write_b32 a{accb+nb*4*nm+i}, v{vb+i}")

def dft(a):
    vm = VM()
    a("s_waitcnt lgkmcnt(0)")
    srd(a, 4, 40, 2048*1024*2)
    srd(a, 32, 60, 2048)
    a("""
    v_lshlrev_b32 v2, 4, v1
    v_sub_u32 v3, 2032, v2
    s_mov_b32 s26, 0x100000
    s_mov_b32 s27, 0x300000
    buffer_load_dwordx4 v[128:131], v2, s[4:7], s26 offen
    buffer_load_dwordx4 v[132:135], v3, s[4:7], s26 offen
    buffer_load_dwordx4 v[140:143], v2, s[4:7], s27 offen
    buffer_load_dwordx4 v[144:147], v3, s[4:7], s27 offen
    """); vm.add('z', 4)
    fold_loads(a, vm)
    fold_round_loads(a, vm, 0); fold_round_loads(a, vm, 1)
    common_setup(a)
    a("s_lshr_b32 s30, s66, 2\n s_cmp_eq_u32 s30, 0\n s_cselect_b32 s26, s56, s58\n s_cselect_b32 s27, s57, s59")
    srd(a, 8, 26, 1024*1024*2)
    a("s_and_b32 s25, s66, 3\n s_lshl_b32 s25, s25, 18\n s_lshl_b32 s21, s3, 12")
    sh_voff(a, 32, 11, 25)
    srd(a, 36, 52, 2048*2048*2)
    srd(a, 80, 54, 2048*2048*2)
    a("s_and_b32 s24, s66, 3\n s_lshl_b32 s24, s24, 8\n s_add_u32 s24, s24, s30\n s_lshl_b32 s24, s24, 12")
    a("s_waitcnt lgkmcnt(0)\n s_mov_b32 s17, 0")
    nonce(a)
    started(a)
    stamp(a, 9)
    vm.wait(a, 'z')
    a("v_mov_b32 v136, 0\n v_mov_b32 v148, 0\n s_cmp_eq_u32 s30, 0\n s_cselect_b32 s26, 1.0, -1.0")
    a("v_mov_b32_dpp v136, v132 wave_shr:1 row_mask:0xf bank_mask:0xf\n v_mov_b32_dpp v148, v144 wave_shr:1 row_mask:0xf bank_mask:0xf")
    for k, b in enumerate((128, 140)):
        for j in range(8): a(unp(160+16*k+j, b, j))
        a(f"v_lshlrev_b32 v{168+16*k}, 16, v{b+8}")
        for j in range(1, 8): a(unp(168+16*k+j, b+4, 8-j))
    for j in range(16): a(f"v_fma_f32 v{160+j}, v{176+j}, s26, v{160+j}")
    for j in range(8): a(f"v_fma_f32 v{160+j}, v{168+j}, s26, v{160+j}")
    for j in range(4): a(f"v_cvt_pk_bf16_f32 v{36+j}, v{160+2*j}, v{161+2*j}")
    a("v_lshlrev_b32 v2, 16, v132\n v_lshlrev_b32 v3, 16, v144\n v_add_f32 v2, v2, v3\n s_nop 0\n v_readlane_b32 s75, v2, 63\n s_cselect_b32 s75, s75, 0")
    a(pk('', 160, 160, 162)); a(pk('', 164, 164, 166)); a(pk('', 160, 160, 164)); a("v_sub_f32 v160, v160, v161")
    reduce_lanes(a, [160], 176, ['ror1', 'ror2', 'ror4', 'ror8', 'p16', 'p32'])
    a("v_add_f32 v160, s75, v160\n s_nop 0\n v_readfirstlane_b32 s97, v160")
    def between(rnd):
        if rnd < 2: fold_round_loads(a, vm, rnd+2)
        for s in ((0, 1, 2), (3, 4, 5), (6, 7), ())[rnd]:
            a(f"s_add_u32 m0, s21, {s*SLOT3}\n s_nop 0")
            for x in sh_dma(32, 8): a(x)
            a("s_add_u32 s17, s17, 128")
            vm.add('pf', 4)
    fold_compute(a, vm, between)
    stamp(a, 1)
    a(f"s_lshl_b32 s23, s66, 2\n s_add_u32 s23, s23, s67\n s_lshl_b32 s23, s23, 7\n s_add_u32 s23, s23, {WS_FL+16384}")
    publish(a, 's23')
    for i in range(4): a(f"v_mov_b32 v{56+i}, 0")
    tile_vec(a, 36)
    for i in range(8): a(f"v_mfma_f32_32x32x16_bf16 v[{64+16*i}:{79+16*i}], v[56:59], v[56:59], 0\n v_mfma_f32_32x32x16_bf16 a[{16*i}:{15+16*i}], v[56:59], v[56:59], 0")
    a(f"""
    v_lshlrev_b32 v2, 31, v1
    v_xor_b32 v2, s75, v2
    v_add_f32 v40, v40, v2
    s_lshl_b32 s26, s66, 7
    s_lshl_b32 s27, s67, 5
    s_add_u32 s26, s26, s27
    s_lshl_b32 s27, s3, 3
    s_add_u32 s26, s26, s27
    s_lshl_b32 s26, s26, 2
    s_add_u32 s26, s26, {WS_RV}
    v_lshlrev_b32 v2, 2, v1
    s_mov_b64 exec, 0xff
    buffer_store_dword v40, v2, s[12:15], s26 offen sc1
    s_mov_b64 exec, -1
    """)
    stamp(a, 10)
    sh_voff(a, 20, 13, 24)
    a("v_lshlrev_b32 v12, 4, v1")
    a("""
    v_and_b32 v2, 15, v1
    v_lshrrev_b32 v3, 1, v2
    v_lshrrev_b32 v4, 4, v1
    v_xor_b32 v3, v3, v4
    v_lshlrev_b32 v2, 7, v2
    v_lshl_add_u32 v16, v3, 4, v2
    v_xor_b32 v3, 4, v3
    v_lshl_add_u32 v17, v3, 4, v2
    """)
    a(f"""
    s_lshl_b32 s26, s30, 1
    s_lshr_b32 s27, s67, 1
    s_add_u32 s26, s26, s27
    s_lshl_b32 s26, s26, 3
    s_and_b32 s27, s67, 1
    s_lshl_b32 s27, s27, 2
    s_add_u32 s26, s26, s27
    s_add_u32 s26, s26, s3
    s_lshl_b32 s26, s26, 16
    s_add_u32 s22, s26, {WS_Z}
    """)
    srd_ws(a, 32, 22, 65536)
    a(f"s_and_b32 s23, s67, 1\n s_lshl_b32 s23, s23, 2\n s_add_u32 s23, s23, s3\n s_lshl_b32 s23, s23, 9\n s_add_u32 s23, s23, {WS_FL+16384}")
    poll(a, [('s23', '0xf')], cnt=4)
    stamp(a, 2)
    a(f"s_lshl_b32 s22, s67, 10\n s_add_u32 s22, s22, {WS_CV}\n s_cmp_eq_u32 s30, 0\n s_cselect_b32 s23, 1.0, 0")
    acc_load(a, 4, 192, 22, 8)
    a("s_mov_b32 s74, s23")
    dloop(a, 'd1', 4, 0, (20, 36), D=4, mid=lambda: a(f"s_mov_b32 s31, {WS_FL+16384}\n v_and_b32 v6, 31, v1\n v_lshlrev_b32 v6, 7, v6\n buffer_load_dwordx2 v[48:49], v6, s[12:15], s31 offen sc1"), init=lambda: stamp(a, 11))
    a("s_lshl_b32 s22, s30, 13\n" + f"s_add_u32 s22, s22, {WS_UP}\n v_lshlrev_b32 v2, 5, v1\n s_add_u32 s23, s22, 4096")
    a(f"s_waitcnt lgkmcnt(0)\n s_nop 7")
    stamp(a, 3)
    a("v_cmp_ne_u32 vcc, s98, v48\n v_cmp_ne_u32 s[28:29], s99, v49\n s_or_b64 vcc, vcc, s[28:29]\n s_and_b64 vcc, vcc, 0xffffffff\n s_cbranch_scc0 L_uok")
    poll(a, [('s31', '0xffffffff')], cnt=32)
    a("s_waitcnt vmcnt(0)\n L_uok:")
    for i in range(8): a(f"buffer_load_dwordx4 v[{208+4*i}:{211+4*i}], v2, s[12:15], s{22+(i>>2)} offen offset:{((i>>1)&1)*2048+(i&1)*16} sc1")
    a(f"""
    v_lshrrev_b32 v2, 4, v1
    v_and_b32 v3, 1, v2
    v_lshrrev_b32 v2, 1, v2
    v_lshl_add_u32 v2, v3, 1, v2
    v_and_b32 v3, 15, v1
    v_lshlrev_b32 v3, 4, v3
    v_lshl_add_u32 v14, v2, 8, v3
    s_lshr_b32 s26, s67, 1
    s_lshl_b32 s26, s26, 4
    s_and_b32 s27, s66, 3
    s_lshl_b32 s27, s27, 2
    s_add_u32 s26, s26, s27
    s_lshl_b32 s26, s26, 16
    s_lshl_b32 s27, s30, 15
    s_add_u32 s26, s26, s27
    s_and_b32 s27, s67, 1
    s_lshl_b32 s27, s27, 14
    s_add_u32 s26, s26, s27
    s_lshl_b32 s27, s3, 12
    s_add_u32 s26, s26, s27
    s_add_u32 s25, s26, {WS_AT}
    """)
    a("v_lshlrev_b32 v3, 31, v1")
    for i in range(16): a(f"v_mul_f32 v{192+i}, s74, v{192+i}\n v_xor_b32 v{192+i}, v3, v{192+i}")
    for nb in range(8):
        t = 16 + (nb & 1)*8; c = 64 + nb*16
        for i in range(0, 16, 2): a(pk('', c+i, c+i, 192+i))
        for i in range(8): a(f"v_cvt_pk_bf16_f32 v{t+16+i}, v{c+2*i}, v{c+2*i+1}")
        a("s_nop 1")
        for p in range(2):
            a(f"v_permlane16_swap_b32 v{t+16+4*p}, v{t+18+4*p}\n v_permlane16_swap_b32 v{t+17+4*p}, v{t+19+4*p}")
        for p in range(2):
            a(f"s_add_u32 s26, s25, {(nb >> 1)*65536 + p*2048 + (nb & 1)*1024}")
            a(f"buffer_store_dwordx4 v[{t+16+4*p}:{t+19+4*p}], v14, s[12:15], s26 offen sc1")
    a(f"s_and_b32 s26, s66, 3\n s_lshl_b32 s26, s26, 1\n s_add_u32 s26, s26, s30\n s_lshl_b32 s26, s26, 2\n s_add_u32 s26, s26, s67\n s_lshl_b32 s26, s26, 7\n s_add_u32 s23, s26, {WS_FL+24576}")
    stamp(a, 12)
    publish(a, 's23')
    stamp(a, 13)
    for i in range(4): a(f"v_mov_b32 v{56+i}, 0")
    a("s_nop 1")
    for i in list(range(8)) + [11]: a(f"v_mfma_f32_32x32x16_bf16 v[{64+16*i}:{79+16*i}], v[56:59], v[56:59], 0")
    for j in range(0, 8, 2): a(pk('', 208+j, 208+j, 216+j)); a(pk('', 224+j, 224+j, 232+j))
    for j in range(0, 8, 2): a(pk('', 208+j, 208+j, 224+j))
    for j in range(4): a(f"v_cvt_pk_bf16_f32 v{60+j}, v{208+2*j}, v{209+2*j}")
    tile_vec(a, 60)
    a(f"s_lshl_b32 s23, s67, 10\n s_add_u32 s23, s23, {WS_FL+24576}\n v_and_b32 v6, 7, v1\n v_lshlrev_b32 v6, 7, v6\n buffer_load_dwordx2 v[56:57], v6, s[12:15], s23 offen sc1")
    a(f"v_mov_b32 v41, 0\n v_mov_b32 v42, {ALT}")
    for j in range(4): a(f"v_dot2_f32_bf16 v41, v{60+j}, v42, v41")
    a("s_nop 2")
    reduce_lanes(a, [41], 48, ['ror1', 'ror2', 'ror4', 'ror8', 'p16', 'p32'])
    a(f"""
    v_cmp_eq_u32 vcc, 8, v1
    s_cmp_eq_u32 s30, 0
    s_cselect_b32 s26, 1.0, 0
    v_cndmask_b32 v40, v40, v41, vcc
    v_mov_b32 v7, s97
    v_mul_f32 v7, s26, v7
    v_lshlrev_b32 v2, 31, v1
    v_xor_b32 v2, v2, v7
    v_add_f32 v40, v40, v2
    v_cvt_pk_bf16_f32 v40, v40, v40
    s_and_b32 s26, s66, 3
    s_lshl_b32 s26, s26, 7
    s_lshl_b32 s27, s67, 5
    s_add_u32 s26, s26, s27
    s_lshl_b32 s27, s3, 3
    s_add_u32 s26, s26, s27
    v_add_u32 v3, s26, v1
    v_mov_b32 v4, 512
    v_cndmask_b32 v3, v3, v4, vcc
    v_lshlrev_b32 v3, 6, v3
    s_mul_i32 s26, s30, {TPS}
    s_add_u32 s26, s26, {WS_Y + 16*EGS}
    s_add_u32 s27, s26, {YD}
    s_cmp_eq_u32 s30, 0
    s_mov_b32 s28, 0xff
    s_cselect_b32 exec_lo, 0x1ff, s28
    s_mov_b32 exec_hi, 0
    buffer_store_dword v40, v3, s[12:15], s26 offen sc1
    buffer_store_dword v40, v3, s[12:15], s27 offen sc1
    s_mov_b64 exec, -1
    """)
    a(f"""
    s_lshl_b32 s26, s30, 4
    s_lshl_b32 s27, s67, 2
    s_add_u32 s26, s26, s27
    s_add_u32 s26, s26, s3
    s_lshl_b32 s26, s26, 16
    s_add_u32 s22, s26, {WS_AT}
    """)
    srd_ws(a, 32, 22, 65536)
    a(f"""
    s_cmp_eq_u32 s66, 0
    s_cselect_b32 s31, 1, 0
    v_mov_b32 v24, {ALT}
    v_mov_b32 v25, {ALT}
    v_mov_b32 v26, {ALT}
    v_mov_b32 v27, {ALT}
    """)
    srd(a, 4, 88, 3584*1024*2)
    g2_wpre(a, [(8, 4)])
    a("s_waitcnt vmcnt(2)\n v_cmp_ne_u32 vcc, s98, v56\n v_cmp_ne_u32 s[28:29], s99, v57\n s_or_b64 vcc, vcc, s[28:29]\n s_cbranch_scc0 L_s2_ok")
    poll(a, [('s23', '0xff')], gap=2, cnt=8)
    a("L_s2_ok:")
    stamp(a, 4)
    a(f"s_lshl_b32 s22, s67, 9\n s_add_u32 s22, s22, {WS_RV}\n s_cmp_eq_u32 s30, 0\n s_cselect_b32 s23, 1.0, 0")
    a("s_cselect_b32 s75, 0, -1.0\n s_mov_b32 s74, s23")
    acc_load(a, 2, 192, 22, 7)
    acc_load(a, 2, 200, 22, 7, 2048)
    dloop(a, 'd2a', 2, 0, (20, 80), extra=True, init=lambda: stamp(a, 14))
    stamp(a, 15)
    dloop(a, 'd2b', 2, 64, (8, 4), first=False, inc=64*2048)
    stamp(a, 16)
    a("s_waitcnt lgkmcnt(0)\n s_nop 7")
    a(f"""
    v_and_b32 v2, 15, v1
    v_lshlrev_b32 v20, 6, v2
    v_lshrrev_b32 v3, 4, v1
    v_and_b32 v4, 1, v3
    v_lshl_add_u32 v20, v4, 5, v20
    v_lshrrev_b32 v4, 1, v3
    v_lshl_add_u32 v20, v4, 4, v20
    v_lshlrev_b32 v21, 3, v3
    s_lshl_b32 s22, s67, 2
    s_add_u32 s22, s22, s3
    s_mul_i32 s22, s22, {EGS}
    s_mul_i32 s27, s30, {TPS}
    s_add_u32 s22, s22, s27
    s_add_u32 s22, s22, {WS_Y}
    s_and_b32 s26, s66, 3
    s_lshl_b32 s26, s26, 13
    s_add_u32 s25, s22, s26
    """)
    a("v_lshlrev_b32 v3, 31, v1")
    for i in range(8): a(f"v_mul_f32 v{192+i}, s74, v{192+i}\n v_mul_f32 v{200+i}, s75, v{200+i}")
    for i in range(8): a(f"v_sub_f32 v{208+i}, v{192+i}, v{200+i}\n v_add_f32 v{216+i}, v{192+i}, v{200+i}")
    for i in range(16): a(f"v_xor_b32 v{208+i}, v3, v{208+i}")
    for nb in range(8):
        t = 8 + (nb & 1)*8; P = 64 + nb*8; Qr = 128 + nb*8
        for i in range(0, 8, 2): a(pk('', 48+i, P+i, Qr+i, neg=True)); a(pk('', P+i, P+i, Qr+i))
        for i in range(0, 8, 2): a(pk('', 48+i, 48+i, 208+i)); a(pk('', P+i, P+i, 216+i))
        for i in range(4): a(f"v_cvt_pk_bf16_f32 v{t+24+i}, v{48+2*i}, v{49+2*i}\n v_cvt_pk_bf16_f32 v{t+28+i}, v{P+2*i}, v{P+2*i+1}")
        a("s_nop 1")
        for p in range(2):
            a(f"v_permlane16_swap_b32 v{t+24+4*p}, v{t+26+4*p}\n v_permlane16_swap_b32 v{t+25+4*p}, v{t+27+4*p}")
        for p in range(2):
            a(f"s_add_u32 s26, s25, {nb*1024 + p*YD}")
            a(f"buffer_store_dwordx4 v[{t+24+4*p}:{t+27+4*p}], v20, s[12:15], s26 offen sc1")
    a("s_cmp_eq_u32 s31, 0\n s_cbranch_scc1 L_dft_nox")
    for i in range(0, 8, 2): a(pk('', 240+i, 240+i, 192+i))
    for i in range(4): a(f"v_cvt_pk_bf16_f32 v{56+i}, v{240+2*i}, v{241+2*i}")
    a(f"s_add_u32 s26, s22, {512*64}\n s_add_u32 s27, s26, {YD}\n s_mov_b32 exec_lo, 0x00010001\n s_mov_b32 exec_hi, 0x00010001")
    for mb in range(2):
        a(f"buffer_store_dwordx2 v[{56+2*mb}:{57+2*mb}], v21, s[12:15], s26 offen offset:{mb*32} sc1\n buffer_store_dwordx2 v[{56+2*mb}:{57+2*mb}], v21, s[12:15], s27 offen offset:{mb*32} sc1")
    a("s_mov_b64 exec, -1\nL_dft_nox:")
    stamp(a, 17)
    a(f"s_lshl_b32 s23, s66, 2\n s_add_u32 s23, s23, s67\n s_lshl_b32 s23, s23, 7\n s_add_u32 s23, s23, {WS_FL+32768}")
    a(f"s_cmp_eq_u32 s3, 0\n s_cselect_b32 s87, s23, {OOB}\n s_mov_b32 s68, {OOB}")
    g2_pre(a, True)
    a("s_waitcnt vmcnt(16)\n s_barrier")
    stamp(a, 18)
    poll(a, [('s44', '3')], vb=192, gap=2, cnt=2)
    h_chunk(a, 0)
    a("s_waitcnt vmcnt(0)")
    stamp(a, 5)


def common_setup(a):
    a(f"s_add_u32 s28, s48, {WS_FL}\n s_addc_u32 s29, s49, 0\n s_load_dword s98, s[28:29], 0")
    srd(a, 12, 48, WS_SZ)
    g2_ids(a)

def kern():
    a = Asm()
    a(f"""
    s_cmp_ge_u32 s2, 256
    s_cbranch_scc1 L_end
    s_load_dwordx2 s[40:41], s[0:1], 0
    s_load_dwordx4 s[44:47], s[0:1], 48
    s_load_dwordx2 s[48:49], s[0:1], 96
    s_load_dwordx2 s[88:89], s[0:1], 64
    s_load_dwordx2 s[42:43], s[0:1], 80
    s_load_dwordx8 s[52:59], s[0:1], 8
    s_load_dwordx2 s[60:61], s[0:1], 72
    s_getpc_b64 s[28:29]
    s_lshr_b32 s27, s2, 3
    s_mul_i32 s26, s27, {CODE_LINES*128}
    v_lshlrev_b32 v2, 7, v0
    v_add_u32 v2, s26, v2
    v_cmp_gt_u32 vcc, {CODE_LINES}, v0
    s_and_saveexec_b64 s[30:31], vcc
    s_cbranch_execz L_nocp
    global_load_dword a255, v2, s[28:29]
    L_nocp:
    s_mov_b64 exec, s[30:31]
    v_and_b32 v1, 63, v0
    v_lshrrev_b32 v2, 6, v0
    s_and_b32 s66, s2, 7
    v_readfirstlane_b32 s3, v2
    s_lshr_b32 s27, s2, 3
    s_sub_u32 s67, s27, 28
    s_and_b32 s24, s66, 1
    s_lshl_b32 s24, s24, 2
    s_and_b32 s68, s27, 3
    s_add_u32 s24, s24, s68
    s_lshr_b32 s25, s66, 1
    s_mul_i32 s25, s25, 7
    s_lshr_b32 s69, s27, 2
    s_add_u32 s25, s25, s69
    """)
    stamp(a, 0)
    if opt.spin: a("s_memrealtime s[100:101]")
    a("s_lshr_b32 s27, s2, 3\n s_cmp_ge_u32 s27, 28\n s_cbranch_scc1 L_dft")
    gemm1(a)
    a("s_branch L_g2")
    a("L_dft:")
    if opt.xdft: a("s_branch L_end")
    dft(a)
    gemm2(a)
    a("L_end:")
    if opt.spin:
        a(f"s_cmp_lg_u32 s2, 0\n s_cbranch_scc1 L_end3\n L_spin:\n s_memrealtime s[92:93]\n s_waitcnt lgkmcnt(0)\n s_sub_u32 s92, s92, s100\n s_cmp_lt_u32 s92, {opt.spin}\n s_cbranch_scc1 L_spin\n L_end3:")
    if opt.stamp:
        a("s_cmp_ge_u32 s2, 256\n s_cbranch_scc1 L_end2\n s_mov_b64 exec, -1")
        srd(a, 12, 48, WS_SZ)
        stamp(a, 8)
        if opt.amp is not None:
            a(f"s_cmp_lg_u32 s2, {opt.ampwg}\n s_cbranch_scc1 L_amp_d\n v_readlane_b32 s20, v31, {40+opt.amp}\n v_readlane_b32 s21, v31, 40\n v_readlane_b32 s22, v31, 48\n s_sub_u32 s20, s20, s21\n s_lshl_b32 s20, s20, 3")
            a("L_amp:\n s_memrealtime s[92:93]\n s_waitcnt lgkmcnt(0)\n s_sub_u32 s92, s92, s22\n s_cmp_lt_u32 s92, s20\n s_cbranch_scc1 L_amp\n L_amp_d:")
        else: stamp_flush(a, 0)
        if opt.dbgmax:
            a("s_load_dwordx2 s[28:29], s[0:1], 88\n v_subrev_u32 v2, 40, v1\n v_lshlrev_b32 v2, 2, v2\n v_not_b32 v3, v31\n v_cmp_eq_u32 vcc, 40, v1\n s_nop 1\n v_cndmask_b32 v31, v31, v3, vcc")
            a("s_lshr_b32 s27, s2, 3\n s_cmp_ge_u32 s27, 28\n s_cbranch_scc1 L_dm_d\n s_mov_b32 exec_lo, 0\n s_mov_b32 exec_hi, 0x1ff00\n s_branch L_dm_go\n L_dm_d:")
            for k, w in ((1, 9), (2, 10), (3, 11), (4, 12), (16, 13), (18, 14), (0, 15)):
                a(f"v_mov_b32 v3, {4*w}\n v_cmp_eq_u32 vcc, {40+k}, v1\n s_nop 1\n v_cndmask_b32 v2, v2, v3, vcc")
            m = sum(1 << (8+k) for k in (0, 1, 2, 3, 4, 16, 18))
            a(f"s_mov_b32 exec_lo, 0\n s_mov_b32 exec_hi, {m}\n L_dm_go:\n s_waitcnt lgkmcnt(0)\n global_atomic_umax v2, v31, s[28:29] sc1\n s_waitcnt vmcnt(0)")
        a("L_end2:")
    return kernel(KN, a.text(), vgpr=256, agpr=256)

KN = 'gated_mix__spectral_fnet__geglu_ffn__prompt_kernel'
def main():
    fn = sys.argv[1]
    for o in sys.argv[2:]:
        k, v = o.split('=', 1)
        setattr(opt, k, eval(v))
    c, d = kern()
    hdr = open('gated_mix__spectral_fnet__geglu_ffn__prompt.s.ref').read().split('; Override launch')[0]
    src = hdr + f'; @launch grid=(256,1,1) block=(256,1,1) lds={R1*SLOT1}\n.amdgcn_target "amdgcn-amd-amdhsa--gfx950"\n' + c + '.text\n.fill 2048, 4, 0xbf800000\n' + d
    open(fn, 'w').write(src)
if __name__ == '__main__': main()
```

```python
import sys, math, struct
from ab import *

WS_H   = 0
HS     = 262144
WS_Z   = (16 << 20) + 65536
WS_AT  = (18 << 20) + 131072
WS_Y   = (20 << 20) + 196608
YD     = 2 << 20
EGS    = 528*64
TPS    = 17*EGS
WS_LP  = (24 << 20) + 131072
WS_UP  = WS_LP + 32768
WS_CV  = WS_UP + 32768
WS_RV  = WS_CV + 4096
WS_FL  = 25 << 20
WS_XB  = 26 << 20
XBS    = 4224
WS_TS  = 40 << 20
WS_SZ  = 256 << 20
OOB = 0x40000000
ALT = 0xBF803F80
R1 = 5; SLOT1 = 32768
R2 = 8; SLOT2 = 16384
R3 = 8; SLOT3 = 16384
MF = "v_mfma_f32_16x16x32_bf16"
class Opt: pass
opt = Opt()
opt.stamp = False; opt.trace = False; opt.hflags = 'sc1'; opt.psleep = 4; opt.order = 3; opt.tlb = True; opt.smem = True; opt.dbgmax = False; opt.prefill = True; opt.pfn = (0, 40, 120); opt.ps = 1; opt.il2 = True; opt.dgap = 2; opt.xgap = 1; opt.xs = True; opt.amp = None; opt.ampwg = 3; opt.notw = 0; opt.nofold = 0; opt.shift = 0; opt.dm2 = (5, 11); opt.pw = 0; opt.prepos = 1; opt.xdft = 0; opt.nf = 3; opt.pub = 1; opt.r3 = 0; opt.r2 = 1; opt.r2b = False; opt.nox = False; opt.nt_fold = ''; opt.nt_w = ''; opt.nt_c = ''; opt.fmask = 0xffff; opt.x2 = 0; opt.rdo = [1,1,2,2,3,3,4,4,5,5,6,6,7,7,9,9]; opt.rde = [0,0,1,1,2,2,3,3,4,5,6,7,9,10,11,12]; opt.dmo = [3, 7]; opt.HS = 229376; opt.tlb2 = False; opt.g2gap = 2; opt.spin = 0; opt.oflags = ''; opt.g2touch = False; opt.tflags = ''; opt.killw = None
fbits = lambda x: struct.unpack('<I', struct.pack('<f', x))[0]
CODE_LINES = int(__import__("os").environ.get("CL", 16))

def srd(a, d, base, size):
    a(f"s_mov_b32 s{d}, s{base}\n s_and_b32 s{d+1}, s{base+1}, 0xffff\n s_mov_b32 s{d+2}, {size}\n s_mov_b32 s{d+3}, 0x20000")
def srd_ws(a, d, soff, size):
    a(f"s_add_u32 s{d}, s48, s{soff}\n s_addc_u32 s{d+1}, s49, 0\n s_and_b32 s{d+1}, s{d+1}, 0xffff\n s_mov_b32 s{d+2}, {size}\n s_mov_b32 s{d+3}, 0x20000")
def interleave(a, mfmas, fill):
    for s in fill.get(-1, []): a(s)
    for i, m in enumerate(mfmas):
        a(m)
        for s in fill.get(i, []): a(s)
def lab(a, p): return f"L_{p}_{len(a.l)}"

def stamp(a, idx):
    if not opt.stamp: return
    a(f"s_memrealtime s[92:93]\n s_memtime s[94:95]\n s_waitcnt lgkmcnt(0)\n v_writelane_b32 v31, s92, {40+idx}\n v_writelane_b32 v30, s94, {40+idx}")
def trace_ops(sidx):
    return ["s_memtime s[92:93]", "s_memrealtime s[94:95]", "s_waitcnt lgkmcnt(0)", f"v_cmp_eq_u32 vcc, {sidx}, v1", "v_mov_b32 v6, s92", "v_mov_b32 v7, s94",
            "v_cndmask_b32 v30, v30, v6, vcc", "v_cndmask_b32 v31, v31, v7, vcc"]
def stamp_flush(a, half):
    if not opt.stamp: return
    a(f"s_lshl_b32 s90, s2, 2\n s_add_u32 s90, s90, s3\n s_lshl_b32 s90, s90, 9\n s_add_u32 s90, s90, {WS_TS + half*524288}")
    a(f"v_lshlrev_b32 v29, 3, v1\n buffer_store_dwordx2 v[30:31], v29, s[12:15], s90 offen")

def nonce(a):
    a("s_mul_i32 s98, s98, 0x9E3779B1\n s_add_u32 s98, s98, 0x7F4A7C15\n s_xor_b32 s99, s98, 0x5bd1e995")
def started(a, vt=2):
    L = lab(a, 'st0')
    a(f"s_cmp_lg_u32 s3, 0\n s_cbranch_scc1 {L}\n s_lshl_b32 s26, s2, 7\n s_add_u32 s26, s26, {WS_FL+393216}")
    flag_store(a, 's26', vt)
    a(f"{L}:")
def flag_store(a, soff, vt=2):
    a(f"""
    v_lshlrev_b32 v{vt}, 3, v1
    v_mov_b32 v{vt+2}, s98
    v_mov_b32 v{vt+3}, s99
    s_mov_b64 exec, {opt.fmask}
    buffer_store_dwordx2 v[{vt+2}:{vt+3}], v{vt}, s[12:15], {soff} offen sc1
    s_mov_b64 exec, -1
    """)
def publish(a, soff):
    a("s_waitcnt vmcnt(0)\n s_barrier")
    L = lab(a, 'pub')
    a(f"s_cmp_lg_u32 s3, 0\n s_cbranch_scc1 {L}")
    flag_store(a, soff)
    a(f"{L}:")
def poll(a, items, vb=48, gap=1, cnt=56, voff=6):
    L = lab(a, 'poll'); n = len(items)
    def issue(k):
        for i, (so, mk) in enumerate(items): a(f"buffer_load_dwordx2 v[{vb+2*(k*n+i)}:{vb+2*(k*n+i)+1}], v{voff}, s[12:15], {so} offen sc1")
    if voff == 6: a(f"v_cmp_gt_u32 vcc, {cnt}, v1\n v_lshlrev_b32 v6, 7, v1\n v_mov_b32 v7, {OOB}\n v_cndmask_b32 v6, v7, v6, vcc")
    a("s_mov_b32 s27, 0")
    issue(0); a(f"s_sleep {opt.psleep}"); issue(1); a(f"s_sleep {opt.psleep}");
    a(f"{L}:")
    for k in range(3):
        issue((k+2) % 3)
        a(f"s_waitcnt vmcnt({2*n})")
        for i, (so, mk) in enumerate(items):
            r = vb + 2*(k*n+i)
            a(f"v_cmp_ne_u32 vcc, s98, v{r}\n v_cmp_ne_u32 s[28:29], s99, v{r+1}\n s_or_b64 vcc, vcc, s[28:29]")
            a(f"s_and_b64 {'s[64:65]' if i == 0 else 'vcc'}, vcc, {mk}")
            if i: a("s_or_b64 s[64:65], s[64:65], vcc")
        a(f"s_cbranch_scc0 {L}_done\n s_sleep {gap}")
    a(f"""
    s_add_u32 s27, s27, 1
    s_cmp_lt_u32 s27, 0x20000
    s_cbranch_scc1 {L}
    {L}_done:
    """)
def reduce_lanes(a, regs, tmp, steps):
    for st in steps:
        if st.startswith('ror'):
            a("s_nop 1")
            for r in regs: a(f"v_add_f32_dpp v{r}, v{r}, v{r} row_ror:{st[3:]} row_mask:0xf bank_mask:0xf")
        else:
            for i, r in enumerate(regs): a(f"v_mov_b32 v{tmp+i}, v{r}")
            a("s_nop 1")
            for i, r in enumerate(regs): a(f"v_permlane{st[1:]}_swap_b32 v{r}, v{tmp+i}")
            a("s_nop 1")
            for i, r in enumerate(regs): a(f"v_add_f32 v{r}, v{r}, v{tmp+i}")
def unp(dst, src, j):
    return f"v_lshlrev_b32 v{dst}, 16, v{src+j//2}" if j % 2 == 0 else f"v_and_b32 v{dst}, 0xffff0000, v{src+j//2}"
def pk(op, d, x, y, neg=False):
    return f"v_pk_add_f32 v[{d}:{d+1}], v[{x}:{x+1}], v[{y}:{y+1}]" + (" neg_lo:[0,1] neg_hi:[0,1]" if neg else "")

def tlb_setup(a, vd):
    a(f"""
    s_mov_b32 s76, s48
    s_mov_b32 s77, s49
    s_mov_b32 s78, {26 << 20}
    s_cmp_eq_u32 s3, 1
    s_cselect_b32 s76, s42, s76
    s_cselect_b32 s77, s43, s77
    s_cselect_b32 s78, {4 << 20}, s78
    s_cmp_eq_u32 s3, 2
    s_cselect_b32 s76, s88, s76
    s_cselect_b32 s77, s89, s77
    s_cselect_b32 s78, {3584*2048}, s78
    s_cmp_eq_u32 s3, 3
    s_cselect_b32 s76, s52, s76
    s_cselect_b32 s77, s53, s77
    s_cselect_b32 s78, {5 << 20}, s78
    s_and_b32 s77, s77, 0xffff
    s_mov_b32 s79, 0x20000
    v_lshlrev_b32 v{vd}, 20, v1
    v_add_u32 v{vd}, {(1 << 20) - 128}, v{vd}
    v_cmp_eq_u32 vcc, 16, v1
    v_mov_b32 v2, {(16 << 20) + 128}
    s_nop 0
    v_cndmask_b32 v{vd}, v{vd}, v2, vcc
    v_cmp_le_u32 vcc, 17, v1
    v_mov_b32 v2, {(18 << 20) + 65536 + 128}
    s_nop 0
    v_cndmask_b32 v{vd}, v{vd}, v2, vcc
    v_cmp_le_u32 vcc, 18, v1
    v_lshlrev_b32 v2, 21, v1
    v_subrev_u32 v2, {(18 << 21) - ((22 << 20) - 128)}, v2
    v_cndmask_b32 v{vd}, v{vd}, v2, vcc
    """)

class VM:
    def __init__(s): s.ops = []
    def add(s, tag, n=1): s.ops += [tag]*n
    def wait(s, a, tag, extra=""):
        last = max(i for i, t in enumerate(s.ops) if t == tag)
        a(f"s_waitcnt vmcnt({min(63, len(s.ops)-1-last)}) {extra}")
def fillers(A):
    out = []; grp = None
    for x in (y.strip() for y in A.l):
        if not x: continue
        if grp is not None:
            grp.append(x)
            if x == 's_mov_b64 exec, -1' or (x.startswith('s_cselect') and 'exec' not in x and not any('exec' in y for y in grp)):
                out.append('\n'.join(grp)); grp = None
        elif x.startswith('s_cselect'): out[-1] += '\n' + x
        elif 'exec' in x or x.startswith('s_cmp'): grp = [x]
        else: out.append(x)
    assert grp is None
    return out
V_WX, V_WD, V_L16, V_LDS, V_TMP, V_OOB, V_F64, V_FJ, V_S4, V_H1, V_OUT, V_Y, V_LP, AD = 96, 100, 104, 105, 106, 107, 108, 109, 110, 111, 112, 114, 119, 120
def w_voff(a, vb, wshift, t=2):
    a(f"""
    v_lshrrev_b32 v{t+1}, 4, v1
    s_lshl_b32 s26, s3, {wshift}
    v_add_u32 v{t}, s26, v{t+1}
    v_lshlrev_b32 v{t}, 11, v{t}
    v_add_u32 v{t}, s27, v{t}
    v_lshlrev_b32 v{t+1}, 1, v{t+1}
    v_and_b32 v{vb}, 15, v1
    v_xor_b32 v{t+1}, v{t+1}, v{vb}
    v_lshl_add_u32 v{vb}, v{t+1}, 4, v{t}
    v_xor_b32 v{t+1}, 8, v{t+1}
    v_lshl_add_u32 v{vb+1}, v{t+1}, 4, v{t}
    v_add_u32 v{vb+2}, {2*(4*2048-1024)}, v{vb}
    v_add_u32 v{vb+3}, {3*(4*2048-1024)}, v{vb+1}
    v_add_u32 v{vb+1}, {1*(4*2048-1024)}, v{vb+1}
    """)
def g2_ids(a):
    a("""
    s_lshr_b32 s27, s2, 3
    s_and_b32 s50, s2, 1
    s_lshl_b32 s50, s50, 2
    s_and_b32 s26, s27, 3
    s_add_u32 s50, s50, s26
    s_lshr_b32 s51, s27, 2
    s_bfe_u32 s96, s2, 0x20001
    """)
def g2_wpre(a, variants):
    a(f"s_mul_i32 s27, s96, {896*2048}\n s_lshl_b32 s26, s51, 8\n s_add_u32 s27, s27, s26")
    for vb, sh in variants: w_voff(a, vb, sh)
SPOS = [40, 41, 42, 43, 76, 77, 78]
OWNL = 98304
def g2_pre(a, dft):
    srd(a, 52, 42, 2048*1024*2)
    srd(a, 32, 88, 3584*1024*2)
    g2_wpre(a, [(V_WD, 4)] if dft else [(V_WX, 5), (V_WD, 4)])
    a(f"s_lshl_b32 s27, s50, 2\n s_add_u32 s27, s27, s3\n s_lshl_b32 s27, s27, 1\n s_mul_i32 s27, s27, {opt.HS}\n s_mul_i32 s26, s96, 57344\n s_add_u32 s27, s27, s26")
    srd_ws(a, 56, 27, opt.HS + 57344)
    a("s_mov_b32 s45, 0" if dft else "s_mov_b32 s45, s51")
    a(f"s_lshl_b32 s40, s45, 18\n s_lshr_b32 s79, s96, 1\n s_mul_i32 s79, s79, {opt.HS}")
    for p in range(1, 7): a(f"s_cmp_le_u32 s45, {p-1}\n s_mov_b32 s{SPOS[p]}, {(p-1) << 18}\n s_cselect_b32 s{SPOS[p]}, {p << 18}, s{SPOS[p]}")
    a(f"""
    v_lshlrev_b32 v{V_L16}, 4, v1
    v_mov_b32 v{V_OOB}, {OOB}
    v_lshrrev_b32 v3, 4, v1
    v_lshrrev_b32 v4, 2, v1
    v_and_b32 v4, 3, v4
    v_lshl_add_u32 v5, v3, 2, v4
    v_and_b32 v6, 7, v5
    s_and_b32 s26, s96, 1
    s_lshl_b32 s26, s26, 2
    v_xor_b32 v6, s26, v6
    v_lshlrev_b32 v5, 8, v5
    v_lshl_add_u32 v5, v6, 5, v5
    v_and_b32 v7, 3, v1
    v_lshl_add_u32 v{V_LDS}, v7, 3, v5
    s_lshl_b32 s26, s50, 1
    s_lshr_b32 s27, s3, 1
    s_add_u32 s26, s26, s27
    s_lshl_b32 s26, s26, 13
    s_mul_i32 s44, s96, {14*128}
    s_add_u32 s44, s44, s26
    s_add_u32 s44, s44, {WS_FL+65536}
    v_lshlrev_b32 v{V_F64}, 7, v1
    v_and_b32 v{V_S4}, 31, v1
    v_lshlrev_b32 v{V_S4}, 7, v{V_S4}
    v_add_u32 v{V_S4}, {WS_FL+32768}, v{V_S4}
    v_lshrrev_b32 v2, 1, v1
    v_cmp_le_u32 vcc, s45, v2
    v_add_u32 v3, 1, v2
    v_and_b32 v4, 1, v1
    v_cndmask_b32 v2, v2, v3, vcc
    v_cmp_gt_u32 vcc, 12, v1
    v_lshl_add_u32 v2, v2, 1, v4
    v_lshlrev_b32 v2, 7, v2
    v_cndmask_b32 v{V_FJ}, v{V_OOB}, v2, vcc
    s_lshl_b32 s70, s3, 13
    s_add_u32 s70, s70, {WS_FL+393216}
    s_cmp_eq_u32 s2, 0
    s_cselect_b32 s70, s70, {OOB}
    s_cselect_b64 s[60:61], -1, 0
    s_lshl_b32 s26, s2, 2
    s_add_u32 s26, s26, s3
    s_mul_i32 s71, s26, 12288
    s_add_u32 s71, s71, {WS_XB}
    s_lshl_b32 s69, s26, 7
    s_add_u32 s69, s69, {WS_FL+262144}
    """)
    for mb in range(8): a(f"v_xor_b32 v{AD+mb}, {mb*32}, v{V_LDS}")
    a(f"""
    s_lshl_b32 s64, s51, 1
    s_and_b32 s26, s96, 1
    s_add_u32 s64, s64, s26
    s_lshl_b32 s26, s50, 8
    s_lshl_b32 s27, s3, 6
    s_add_u32 s27, s26, s27
    s_lshr_b32 s26, s96, 1
    s_lshl_b32 s26, s26, 5
    s_add_u32 s27, s27, s26
    v_and_b32 v2, 15, v1
    v_add_u32 v2, s27, v2
    v_lshlrev_b32 v{V_LP}, 4, v2
    v_add_u32 v{V_LP}, {WS_LP}, v{V_LP}
    v_lshlrev_b32 v2, 11, v2
    v_lshrrev_b32 v3, 4, v1
    v_and_b32 v4, 1, v3
    v_lshl_add_u32 v2, v4, 5, v2
    v_lshrrev_b32 v4, 1, v3
    v_lshl_add_u32 v2, v4, 4, v2
    s_lshl_b32 s26, s64, 7
    v_add_u32 v{V_OUT}, s26, v2
    v_add_u32 v{V_OUT+1}, 32768, v{V_OUT}
    s_lshl_b32 s26, s64, 1
    s_sub_u32 s65, 30, s26
    s_cmp_ge_u32 s64, 8
    s_cselect_b64 s[46:47], -1, 0
    s_cselect_b32 s65, s65, s26
    s_mul_i32 s65, s65, {EGS}
    s_add_u32 s65, s65, {WS_Y}
    s_mov_b32 s26, {TPS}
    """)
    for j in range(5):
        if j < 4: a(f"v_lshrrev_b32 v2, 2, v1\n v_lshl_add_u32 v2, v2, 1, {j&1}\n v_and_b32 v3, 3, v1\n v_lshlrev_b32 v3, 4, v3\n v_add_u32 v3, {(j>>1)*EGS}, v3")
        else: a(f"v_and_b32 v2, 31, v1\n v_mov_b32 v3, {2*EGS}")
        a(f"""
        v_add_u32 v2, s27, v2
        v_sub_u32 v4, 2048, v2
        v_min_u32 v4, v4, v2
        v_cmp_lt_u32 vcc, 1024, v2
        v_and_b32 v5, 1, v4
        v_mul_lo_u32 v5, v5, s26
        v_lshrrev_b32 v4, 1, v4
        v_lshl_add_u32 v4, v4, 6, v5
        s_xor_b64 vcc, vcc, s[46:47]
        v_add3_u32 v4, v4, v3, s65
        v_add_u32 v5, {YD}, v4
        v_cndmask_b32 v{V_Y+j}, v4, v5, vcc
        """)
def g2_zero(a, z, lo, hi):
    for i in range(lo, hi): a(f"v_mfma_f32_32x32x16_bf16 a[{16*i}:{15+16*i}], v[{z}:{z+3}], v[{z}:{z+3}], 0")
def fl_bad(a, r, mask):
    a(f"v_cmp_ne_u32 vcc, s98, v{r}\n v_cmp_ne_u32 s[28:29], s99, v{r+1}\n s_or_b64 vcc, vcc, s[28:29]\n s_and_b64 vcc, vcc, {mask}")
HB = 128
def h_base(p): return [f"s_lshr_b32 s16, s{SPOS[p]}, 5", f"s_sub_u32 s25, s16, s79", "s_add_u32 s16, s16, s79", f"s_add_u32 s25, s25, {opt.HS}"]
def h_load(half, st, nb, v=V_L16):
    r = HB + 64*half + 16*st + 4*nb
    return f"buffer_load_dwordx4 v[{r}:{r+3}], v{v}, s[56:59], s{(16, 25)[nb >> 1]} offen offset:{(st & 1)*2048 + (nb & 1)*1024} sc1"
def h_chunk(a, p, v=V_L16):
    for x in h_base(p): a(x)
    for st in range(4):
        for nb in range(4): a(h_load(p & 1, st, nb, v))
        if st == 1: a("s_add_u32 s16, s16, 4096\n s_add_u32 s25, s25, 4096")

def gemm2(a):
    WF = 32; PV = 192
    vm = VM()
    def dma(): return [f"buffer_load_dwordx4 v{V_WD+i}, s[32:35], s17 offen offset:{i*1024} lds" for i in range(4)]
    def wreads(st, off, mbs=range(8), base=None):
        r = []
        for k, mb in enumerate(mbs):
            b = (WF + st*32 + mb*4) if base is None else base + 4*k
            r.append(f"ds_read_b64_tr_b16 v[{b}:{b+1}], v{AD+mb} offset:{off}")
            r.append(f"ds_read_b64_tr_b16 v[{b+2}:{b+3}], v{AD+mb} offset:{off+4096}")
        return r
    def sample(): a(f"buffer_load_dwordx2 v[24:25], v{V_FJ}, s[12:15], s44 offen sc1"); vm.add('smp')
    def pmask(p): return 3 << (2*(p-1))
    rare = []
    a("L_g2:"); vm.add('own')
    if opt.ps == 0: sample()
    a(f"buffer_load_dwordx2 v[18:19], v{V_F64}, s[12:15], s70 offen sc1"); vm.add('ep')
    for x in wreads(0, 0): a(x)
    a(f"s_lshl_b32 s21, s3, 12\n v_mov_b32 v26, s98\n v_mov_b32 v27, s99\n v_and_b32 v23, 15, v1\n v_lshlrev_b32 v23, 3, v23")
    stamp(a, 6)
    OD = [(nb, mb) for nb in range(4) for mb in (range(4) if nb % 2 == 0 else range(3, -1, -1))] + [(nb, 4+mb) for nb in range(3, -1, -1) for mb in (range(4) if nb % 2 else range(3, -1, -1))]
    def step(T, loads):
        p = T & 1; pos = T >> 2; st = T & 3; slot = T >> 1
        if pos >= 2: vm.wait(a, f'h{T}', "lgkmcnt(8)")
        else: a("s_waitcnt lgkmcnt(8)")
        ms = []
        for nb, mb in OD:
            b = WF + p*32 + mb*4; c = (nb*8+mb)*4; h = HB + 64*(pos & 1) + 16*st + 4*nb
            ms.append(f"{MF} a[{c}:{c+3}], v[{b}:{b+3}], v[{h}:{h+3}], a[{c}:{c+3}]")
        f = {k: [] for k in range(32)}
        for k, x in enumerate(wreads(p ^ 1, (p ^ 1)*8192)): f[2*k].append(x)
        f[15].append("s_waitcnt lgkmcnt(8)")
        g = slot + 5
        ops = []
        if 6 <= g <= 13: ops += [(opt.dm2[0], dma()[2*p], f'w{g}'), (opt.dm2[1], dma()[2*p+1], f'w{g}')]
        if loads:
            if st == 0:
                hb = h_base(pos+2); f[1] += hb[:2]; f[3] += hb[2:]
            ops += [(19+4*k, h_load(pos & 1, st, nb), f'h{T+8}') for k, nb in enumerate((3, 2, 1, 0))]
            if st == 1: f[31].append("PLACEHOLDER")
        if p == 1:
            need = slot + 2
            f[16].append("BARRIER")
            if 6 <= g+1 <= 13:
                f[17] += [f"s_add_u32 m0, s21, {((g+1) % 8)*SLOT2}", f"s_add_u32 s17, s{SPOS[(g+1) >> 1]}, {((g+1) & 1)*64*2048}"]
        else:
            f[7].append(f"v_add_u32 v{V_TMP}, {((slot+1) % 8)*SLOT2}, v{V_LDS}")
            for mb in range(8): f[max(4*mb+3, 9+mb)].append(f"v_xor_b32 v{AD+mb}, {mb*32}, v{V_TMP}")
        if T in (4, 5) and opt.il2:
            if T == 4: a(f"s_lshr_b32 s22, s{SPOS[2]}, 5\n s_sub_u32 s24, s22, s79\n s_add_u32 s22, s22, s79\n s_add_u32 s24, s24, {opt.HS}")
            else: a("s_add_u32 s22, s22, 4096\n s_add_u32 s24, s24, 4096")
            for k in range(8):
                s2 = 2*(T-4) + (k >> 2)
                ops.append((1 + 4*k if k != 1 else 8, h_load(0, s2, k & 3).replace(', s16 ', ', s22 ').replace(', s25 ', ', s24 '), f'h{8+s2}'))
        ops.sort(key=lambda o: o[0])
        for i, m in enumerate(ms):
            a(m)
            for x in f[i]:
                if x == "BARRIER":
                    if f'w{slot+2}' in vm.ops: vm.wait(a, f'w{slot+2}')
                    a("s_barrier")
                elif x != "PLACEHOLDER": a(x)
            for gp, x, tag in ops:
                if gp == i: a(x); vm.add(tag)
            if "PLACEHOLDER" in f[i]: a("s_add_u32 s16, s16, 4096\n s_add_u32 s25, s25, 4096")
    step(0, False)
    vm.wait(a, 'own'); a("buffer_store_dwordx2 v[26:27], v23, s[12:15], s68 offen sc1"); vm.add('fl')
    step(1, False)
    a("buffer_store_dwordx2 v[26:27], v23, s[12:15], s87 offen sc1"); vm.add('fl4')
    def try1():
        fl_bad(a, 24, pmask(1))
        a(f"s_cselect_b32 s31, 1, 0\n s_cselect_b32 s26, {OOB}, 0\n v_add_u32 v{V_H1}, s26, v{V_L16}")
        h_chunk(a, 1, V_H1); vm.add('p1', 16)
    if opt.ps == 0:
        vm.wait(a, 'ep'); try1(); sample(); step(2, False); step(3, False)
    elif opt.ps == 1:
        sample(); step(2, False); vm.wait(a, 'smp'); try1(); sample(); step(3, False)
    else:
        a("s_mov_b32 s31, 1"); step(2, False); sample(); step(3, False)
    stamp(a, 19)
    vm.wait(a, 'smp')
    fl_bad(a, 24, pmask(1) | pmask(2) | pmask(3))
    a("s_cbranch_scc1 L_g2_late0\n s_cmp_lg_u32 s31, 0\n s_cbranch_scc1 L_g2_redo\n L_g2_cont0:")
    fl_bad(a, 18, "s[60:61]")
    a("s_cbranch_scc1 L_g2_ep\n L_g2_cont1:")
    stamp(a, 20)
    if not opt.il2:
        for x in h_base(2): a(x)
        for st in range(4):
            for nb in range(4): a(h_load(0, st, nb)); vm.add(f'h{8+st}')
            if st == 1: a("s_add_u32 s16, s16, 4096\n s_add_u32 s25, s25, 4096")
    sample()
    for pos in range(1, 6):
        if 2 <= pos <= 4:
            vm.wait(a, 'smp')
            fl_bad(a, 24, pmask(pos+2))
            a(f"s_cbranch_scc1 L_g2_late{pos}\n L_g2_cont{pos}x:")
            rare.append(pos)
            if pos < 4: sample()
        if pos == 2:
            a(f"s_or_b32 s26, s2, s3\n s_cmp_eq_u32 s26, 0\n s_mov_b32 s68, {OOB}\n s_cselect_b32 s68, {WS_FL}, s68\n buffer_store_dwordx2 v[26:27], v23, s[12:15], s68 offen sc1"); vm.add('eps')
        if pos == 4:
            a(f"buffer_load_dwordx2 v[18:19], v{V_S4}, s[12:15], 0 offen sc1"); vm.add('s4')
        if pos == 5:
            vm.wait(a, 's4')
            fl_bad(a, 18, -1)
            a("s_cbranch_scc1 L_g2_s4\n L_g2_s4ok:")
            a(f"buffer_load_dwordx4 a[160:163], v{V_LP}, s[12:15], 0 offen sc1\n buffer_load_dwordx4 a[164:167], v{V_LP}, s[12:15], 0 offen offset:256 sc1")
            for j in range(4): a(f"buffer_load_dwordx4 a[{136+4*j}:{139+4*j}], v{V_Y+j}, s[12:15], 0 offen sc1")
            a(f"buffer_load_dword a152, v{V_Y+4}, s[12:15], 0 offen sc1"); vm.add('y', 7)
        if pos in (2, 5): stamp(a, 21 if pos == 2 else 22)
        for st in range(4): step(4*pos + st, pos <= 4)
    Q = [32, 48, 64, 80]
    def hrd(st, fo, q): return wreads(0, (st >> 1)*16384 + (st & 1)*8192, range(4*fo, 4*fo+4), Q[q])
    def sendl(g):
        o = []
        for k in range(4):
            nb = 2*(g >> 1) + (k >> 1); c = (nb*8 + 4*(g & 1) + 2*(k & 1))*4; t = PV + 8*(k & 1); d = 224 + 4*((g*4+k) % 8)
            o += [f"v_accvgpr_read_b32 v{t+i}, a{c+i}" for i in range(8)]
            o += [f"v_cvt_pk_bf16_f32 v{d+i}, v{t+2*i}, v{t+1+2*i}" for i in range(4)]
            o += [f"buffer_store_dwordx4 v[{d}:{d+3}], v{V_L16}, s[12:15], s{(0, 71, 16, 25)[g]} offen offset:{k*1024} sc1"]
        return o
    a("s_add_u32 s16, s71, 4096\n s_add_u32 s25, s71, 8192")
    phases = [(0, 1, 1, range(4)), (1, 1, 2, range(4)), (2, 1, 3, range(4)), (3, 1, 1, range(4))] + \
             [(st, 0, (0, 2, 3, 1)[st], (2, 3)) for st in range(4)] + [(st, 0, (0, 2, 3, 1)[st], (0, 1)) for st in range(4)]
    pre = {0: hrd(1, 1, 2) + hrd(2, 1, 3), 1: hrd(3, 1, 1), 2: hrd(1, 0, 2), 3: hrd(2, 0, 3), 4: hrd(3, 0, 1)}
    send = []
    for k, (st, fo, q, nbs) in enumerate(phases):
        if k == 0: vm.wait(a, 'h27', "lgkmcnt(0)")
        elif k in (1, 2, 3, 5, 6): a("s_waitcnt lgkmcnt(8)")
        elif k == 7: a("s_waitcnt lgkmcnt(0)")
        if k == 4: send += [None]*8 + sendl(3) + sendl(1)
        if k == 8: send += [None]*max(0, 12 - len(send)) + sendl(2)
        ms = []
        for i, nb in enumerate(nbs):
            for m in (range(4) if i % 2 == 0 else range(3, -1, -1)):
                c = (nb*8 + 4*fo + m)*4; b = Q[q] + 4*m; h = HB + 16*st + 4*nb
                ms.append(f"{MF} a[{c}:{c+3}], v[{b}:{b+3}], v[{h}:{h+3}], a[{c}:{c+3}]")
        f = {}
        rd = pre.get(k, [])
        for j, x in enumerate(rd): f.setdefault(j*len(ms)//len(rd), []).append(x)
        for g in range(len(ms)):
            for _ in range(3):
                if send:
                    x = send.pop(0)
                    if x: f.setdefault(g, []).append(x)
        interleave(a, ms, f)
    assert not send, len(send)
    stamp(a, 7)
    a("""
    s_mul_i32 s26, s3, 4608
    s_add_u32 s26, s26, 131072
    v_lshrrev_b32 v4, 2, v1
    v_mul_u32_u24 v4, 288, v4
    v_and_b32 v5, 3, v1
    v_lshl_add_u32 v4, v5, 4, v4
    v_add_u32 v4, s26, v4
    v_and_b32 v5, 31, v1
    v_mul_u32_u24 v5, 144, v5
    v_add_u32 v5, s26, v5
    """)
    for j in range(4): a(f"ds_write_b128 v4, a[{136+4*j}:{139+4*j}] offset:{(j&1)*144 + (j>>1)*64}")
    a("ds_write_b32 v5, a152 offset:128")
    a("""
    v_and_b32 v4, 15, v1
    v_mul_u32_u24 v4, 144, v4
    v_lshrrev_b32 v5, 4, v1
    v_lshlrev_b32 v5, 3, v5
    v_sub_u32 v6, 24, v5
    v_cndmask_b32 v5, v5, v6, s[46:47]
    v_add3_u32 v4, v4, v5, s26
    s_waitcnt vmcnt(0) lgkmcnt(0)
    buffer_store_dwordx2 v[26:27], v23, s[12:15], s69 offen sc1
    """)
    for k in range(8):
        a(f"ds_read_b64 v[{128+4*k}:{129+4*k}], v4 offset:{(k>>2)*16*144 + (k&3)*32}\n ds_read_b32 v{130+4*k}, v4 offset:{(k>>2)*16*144 + (k&3)*32 + 8}")
    a(f"""
    v_add_u32 v6, 1, v1
    v_lshlrev_b32 v6, 10, v6
    v_xor_b32 v6, s69, v6
    v_cmp_gt_u32 vcc, 3, v1
    s_lshl_b32 s26, s2, 2
    s_add_u32 s26, s26, s3
    v_cndmask_b32 v{V_FJ}, v{V_OOB}, v6, vcc
    """)
    for g in range(1, 4): a(f"s_xor_b32 s27, s26, {8*g}\n s_mul_i32 s{40+g}, s27, 12288\n s_add_u32 s{40+g}, s{40+g}, {WS_XB + (g-1)*4096}")
    for nb in range(2):
        for i in range(4): a(f"v_accvgpr_read_b32 v{40+i}, a{160+4*nb+i}")
        a(f"""
        v_add_f32 v40, v40, v41
        v_add_f32 v42, v42, v43
        v_add_f32 v40, v40, v42
        v_cvt_pk_bf16_f32 v40, v40, v40
        v_lshlrev_b32 v40, 16, v40
        v_mul_f32 v40, {fbits(-math.log2(math.e))}, v40
        v_exp_f32 v40, v40
        s_nop 0
        v_add_f32 v40, 1.0, v40
        v_rcp_f32 v40, v40
        s_nop 0
        v_cvt_pk_bf16_f32 v40, v40, v40
        v_lshlrev_b32 v{32+nb}, 16, v40
        v_sub_f32 v40, 1.0, v{32+nb}
        v_cvt_pk_bf16_f32 v40, v40, v40
        v_lshlrev_b32 v{34+nb}, 16, v40
        v_and_b32 v{36+nb}, 0xffff, v40
        """)
    for nb in range(2):
        for i in range(16): a(f"v_accvgpr_read_b32 v{64+nb*16+i}, a{nb*32+i}")
    for nb in range(2):
        for i in range(16): a(f"v_mul_f32 v{64+nb*16+i}, v{34+nb}, v{64+nb*16+i}")
    if opt.xs: a(f"buffer_load_dwordx2 v[24:25], v{V_FJ}, s[12:15], 0 offen sc1")
    a("s_waitcnt lgkmcnt(0)\n s_cmp_lg_u32 s46, 0\n s_cbranch_scc1 L_g2_mir")
    for mir in range(2):
        if mir: a("L_g2_mir:")
        for nb in range(2):
            for mb in range(4):
                d = 128 + (nb*4 + (3-mb if mir else mb))*4; o = 64 + (nb*4+mb)*4
                els = [4, 3, 2, 1] if mir else [0, 1, 2, 3]
                for r in range(4): a(unp(40+r, d, els[r]))
                for r in range(4): a(f"v_fma_f32 v{o+r}, v{40+r}, v{32+nb}, v{o+r}")
        if not mir: a("s_branch L_g2_st")
    a("L_g2_st:")
    stamp(a, 9)
    if not opt.xs: a(f"buffer_load_dwordx2 v[24:25], v{V_FJ}, s[12:15], 0 offen sc1")
    a("s_waitcnt vmcnt(0)")
    fl_bad(a, 24, 7)
    a("s_cbranch_scc0 L_g2_xok\n s_mov_b32 s26, 0")
    poll(a, [('s26', '7')], vb=44, gap=opt.xgap, voff=V_FJ)
    a("L_g2_xok:")
    stamp(a, 10)
    for k in range(4):
        for g in range(1, 4): a(f"buffer_load_dwordx4 v[{128+16*k+4*g}:{131+16*k+4*g}], v{V_L16}, s[12:15], s{40+g} offen offset:{k*1024} sc1")
    for k in range(4):
        a(f"s_waitcnt vmcnt({3*(3-k) + k})")
        for g in range(1, 4):
            for r in range(8): a(f"v_dot2_f32_bf16 v{64+8*k+r}, v{128+16*k+4*g+r//2}, v{(36, 34)[r & 1]+(k>>1)}, v{64+8*k+r}")
        a("s_nop 2")
        for i in range(4): a(f"v_cvt_pk_bf16_f32 v{PV+4*k+i}, v{64+8*k+2*i}, v{64+8*k+2*i+1}")
        a(f"s_nop 1\n v_permlane16_swap_b32 v{PV+4*k}, v{PV+4*k+2}\n v_permlane16_swap_b32 v{PV+4*k+1}, v{PV+4*k+3}")
        a(f"buffer_store_dwordx4 v[{PV+4*k}:{PV+4*k+3}], v{V_OUT+(k>>1)}, s[52:55], 0 offen offset:{(k&1)*64} {opt.oflags}")
    a("s_branch L_end")
    a("L_g2_late0:")
    poll(a, [('s44', pmask(1) | pmask(2) | pmask(3))], vb=10, gap=opt.g2gap, voff=V_FJ)
    a("s_waitcnt vmcnt(0)\n s_cmp_eq_u32 s31, 0\n s_cbranch_scc1 L_g2_cont0\n L_g2_redo:")
    h_chunk(a, 1)
    a("s_waitcnt vmcnt(0)\n s_branch L_g2_cont0")
    a("L_g2_ep:")
    poll(a, [('s70', '-1')], vb=10, gap=2, cnt=64)
    a("s_waitcnt vmcnt(0)\n s_branch L_g2_cont1")
    for pos in rare:
        a(f"L_g2_late{pos}:")
        poll(a, [('s44', pmask(pos+2))], vb=10, gap=2, voff=V_FJ)
        a(f"s_waitcnt vmcnt(0)\n s_branch L_g2_cont{pos}x")
    a(f"L_g2_s4:\n s_mov_b32 s26, {WS_FL+32768}")
    poll(a, [('s26', '0xffffffff')], vb=10, gap=2, cnt=32)
    a("s_waitcnt vmcnt(0)\n s_branch L_g2_s4ok")

def ACCG(mb, nb): return 128 + (nb*4+mb)*4
def ACCU(mb, nb): return (nb*4+mb)*4
def FR(st, i): return 128 + st*64 + i*4

def gemm1(a):
    XS = 32768; WB = 98304; WSL = 16384
    a("s_lshl_b32 s29, s24, 19\n s_lshl_b32 s26, s3, 16\n s_add_u32 s29, s29, s26")
    sh_voff(a, 8, 11, 29)
    a("""
    v_lshrrev_b32 v2, 4, v1
    s_and_b32 s26, s3, 1
    s_lshl_b32 s26, s26, 4
    v_add_u32 v3, s26, v2
    s_mov_b32 s27, 7168
    v_mul_lo_u32 v3, v3, s27
    s_lshl_b32 s26, s25, 8
    v_add_u32 v3, s26, v3
    v_lshlrev_b32 v2, 1, v2
    v_and_b32 v4, 15, v1
    v_xor_b32 v2, v2, v4
    v_lshl_add_u32 v12, v2, 4, v3
    v_xor_b32 v2, 8, v2
    v_lshl_add_u32 v14, v2, 4, v3
    """)
    a(f"v_add_u32 v13, {1*(4*7168-1024)}, v12\n v_add_u32 v15, {3*(4*7168-1024)}, v14\n v_add_u32 v14, {2*(4*7168-1024)}, v14")
    a(f"s_mov_b32 s16, 0\n s_mov_b32 s22, 65536\n s_mov_b32 s17, 0\n s_lshl_b32 s21, s3, 12\n s_add_u32 s21, s21, {WB}\n s_lshl_b32 s23, s3, 13")
    def dma_x(h): return [f"buffer_load_dwordx4 v{8+i}, s[4:7], s{(16, 22)[h]} offen offset:{i*1024} lds" for i in range(4)]
    def dma_w(): return [f"buffer_load_dwordx4 v{12+i}, s[8:11], s17 offen offset:{i*1024} lds" for i in range(4)]
    def px(s):
        a(f"s_add_u32 m0, s23, {s*XS}\n s_nop 0")
        for x in dma_x(0): a(x)
        a(f"s_add_u32 m0, s23, {s*XS+4096}\n s_add_u32 s16, s16, 128")
        for x in dma_x(1): a(x)
        a("s_add_u32 s22, s22, 128")
    def pw(s):
        a(f"s_add_u32 m0, s21, {s*WSL}\n s_nop 0")
        for x in dma_w(): a(x)
        a(f"s_add_u32 s17, s17, {32*7168}")
    a("s_waitcnt lgkmcnt(0)")
    srd(a, 4, 40, 2048*1024*2)
    a("s_cmp_ge_u32 s3, 2\n s_cselect_b32 s26, s46, s44\n s_cselect_b32 s27, s47, s45")
    srd(a, 8, 26, 1024*3584*2)
    stamp(a, 21)
    pw(0); px(0); pw(1)
    stamp(a, 22)
    common_setup(a)
    a(f"""
    s_cmp_eq_u32 s3, 1
    s_cselect_b32 s80, s46, s44
    s_cselect_b32 s81, s47, s45
    s_mov_b32 s82, {1024*3584*2}
    s_cmp_eq_u32 s3, 2
    s_cselect_b32 s80, s40, s80
    s_cselect_b32 s81, s41, s81
    s_cselect_b32 s82, {2048*1024*2}, s82
    s_cmp_eq_u32 s3, 3
    s_cselect_b32 s80, s88, s80
    s_cselect_b32 s81, s89, s81
    s_and_b32 s81, s81, 0xffff
    s_mov_b32 s83, 0x20000
    v_mov_b32 v3, {OOB}
    s_add_u32 s86, s67, 28
    s_cmp_ge_u32 s3, 2
    s_cbranch_scc1 L_t_x
    v_lshrrev_b32 v2, 4, v1
    v_lshlrev_b32 v2, 5, v2
    v_bfe_u32 v4, v1, 1, 3
    v_add_u32 v2, v2, v4
    s_lshl_b32 s26, s68, 3
    v_add_u32 v2, s26, v2
    s_mov_b32 s27, 7168
    v_mul_lo_u32 v2, v2, s27
    v_and_b32 v4, 1, v1
    v_lshl_add_u32 v2, v4, 7, v2
    s_lshl_b32 s26, s25, 8
    v_add_u32 v26, s26, v2
    v_cmp_gt_u32 vcc, 32, v1
    s_mov_b32 s84, {2*32*7168}
    s_mov_b32 s85, {2*32*7168}
    v_cndmask_b32 v27, v3, v26, vcc
    s_mov_b32 s75, {4*32*7168}
    v_mov_b32 v42, {'v3' if opt.notw else 'v26'}
    buffer_load_dword v28, v3, s[4:7], 0 offen
    buffer_load_dword v28, v3, s[4:7], 0 offen
    s_branch L_t_done
    L_t_x:
    s_cmp_eq_u32 s3, 3
    s_cbranch_scc1 L_t_wd
    s_mul_i32 s26, s69, 37
    s_lshl_b32 s27, s24, 8
    s_add_u32 s26, s26, s27
    v_add_u32 v2, s26, v1
    v_lshlrev_b32 v2, 11, v2
    v_cmp_gt_u32 vcc, {0 if opt.nox else 37}, v1
    s_mov_b32 s84, 128
    s_mov_b32 s85, 0
    v_cndmask_b32 v42, v3, v2, vcc
    s_mov_b32 s75, 128
    v_mov_b32 v27, v3
    buffer_load_dword v28, v42, s[80:83], s84 offen offset:128
    buffer_load_dword v28, v3, s[4:7], 0 offen
    s_branch L_t_done
    L_t_wd:
    s_mul_i32 s27, s86, 49
    v_cmp_gt_u32 vcc, {0 if (opt.xdft & 2) or opt.nofold else 49}, v1
    s_lshl_b32 s28, s66, 6
    """)
    for k in range(3):
        a(f"""
        v_add_u32 v2, s27, v1
        v_add_u32 v2, {1372*k}, v2
        v_bfe_u32 v4, v2, 4, 3
        v_bfe_u32 v5, v2, 7, 2
        v_lshl_add_u32 v4, v5, 4, v4
        v_bfe_u32 v5, v2, 11, 1
        v_lshl_add_u32 v4, v5, 3, v4
        v_add_u32 v4, s28, v4
        v_bfe_u32 v5, v2, 9, 2
        v_and_b32 v6, 1, v5
        v_lshrrev_b32 v7, 1, v5
        v_xor_b32 v6, v6, v7
        v_sub_u32 v7, 0, v4
        v_cmp_eq_u32 s[62:63], 1, v6
        v_and_b32 v2, 15, v2
        v_lshlrev_b32 v2, 7, v2
        v_cndmask_b32 v4, v4, v7, s[62:63]
        v_lshlrev_b32 v6, 11, v5
        v_cmp_le_u32 s[62:63], 2, v5
        v_mov_b32 v7, 1024
        s_nop 0
        v_cndmask_b32 v6, v6, v7, s[62:63]
        v_add_u32 v4, v4, v6
        v_lshl_add_u32 v2, v4, 11, v2
        v_cndmask_b32 v{46+k}, v3, v2, vcc
        """)
        if k < opt.nf: a(f"buffer_load_dword v28, v{46+k}, s[4:7], 0 offen {opt.nt_fold}")
    a(f"""
    v_lshlrev_b32 v2, 7, v1
    v_cmp_gt_u32 vcc, 32, v1
    s_mul_i32 s84, s66, 28
    s_add_u32 s84, s84, s86
    s_lshl_b32 s84, s84, 12
    v_cndmask_b32 v27, v3, v2, vcc
    s_mov_b32 s85, {224*4096}
    s_mov_b32 s75, 0
    v_mov_b32 v42, v3
    L_t_done:
    """)
    stamp(a, 19)
    a(f"buffer_load_dword v28, v42, s[80:83], s84 offen {opt.nt_w}\n s_add_u32 s84, s84, s75")
    stamp(a, 20)
    a(f"""
    s_cmp_lt_u32 s66, 4
    s_cselect_b32 s36, s56, s58
    s_cselect_b32 s37, s57, s59
    s_cmp_eq_u32 s3, 2
    s_cselect_b32 s36, s52, s36
    s_cselect_b32 s37, s53, s37
    s_cmp_eq_u32 s3, 3
    s_cselect_b32 s36, s54, s36
    s_cselect_b32 s37, s55, s37
    s_and_b32 s37, s37, 0xffff
    s_mov_b32 s39, 0x20000
    s_and_b32 s28, s66, 3
    s_lshl_b32 s26, s28, 18
    s_lshl_b32 s28, s28, 8
    s_lshr_b32 s27, s66, 2
    s_add_u32 s28, s28, s27
    s_lshl_b32 s28, s28, 12
    s_cmp_eq_u32 s3, 1
    s_cselect_b32 s28, s26, s28
    s_cselect_b32 s26, 11, 13
    s_cselect_b32 s38, {1024*1024*2}, s82
    s_mul_i32 s27, s86, 37
    v_add_u32 v2, s27, v1
    v_lshrrev_b32 v4, 3, v2
    v_lshlrev_b32 v4, s26, v4
    v_and_b32 v2, 7, v2
    v_lshl_add_u32 v2, v2, 7, v4
    s_cmp_eq_u32 s3, 0
    s_cselect_b32 s27, 0, 37
    v_cmp_gt_u32 vcc, s27, v1
    v_mov_b32 v3, {OOB}
    s_nop 0
    v_cndmask_b32 v2, v3, v2, vcc
    v_add_u32 v34, s28, v2
    s_cmp_eq_u32 s3, 1
    s_cselect_b64 vcc, -1, 0
    s_nop 0
    v_cndmask_b32 v2, v3, v34, vcc
    v_cndmask_b32 v34, v34, v3, vcc
    buffer_load_dword v28, v2, s[36:39], 0 offen {opt.nt_c}
    """)
    if opt.tlb:
        a("v_lshlrev_b32 v40, 21, v1\n v_add_u32 v40, 0x100000, v40")
    else: a(f"v_mov_b32 v40, {OOB}")
    if opt.tlb2:
        a(f"""
        s_cmp_eq_u32 s3, 1
        s_cselect_b32 s76, s42, s48
        s_cselect_b32 s77, s43, s49
        s_cselect_b32 s78, {4 << 20}, {32 << 20}
        s_and_b32 s77, s77, 0xffff
        s_mov_b32 s79, 0x20000
        s_mov_b32 s26, {opt.HS}
        s_mov_b32 s27, {opt.HS - 128}
        s_cmp_eq_u32 s3, 1
        s_cselect_b32 s26, 65536, s26
        s_cselect_b32 s27, 0, s27
        s_cmp_eq_u32 s3, 2
        s_cselect_b32 s26, {16*XBS}, s26
        s_cselect_b32 s27, {WS_XB + 4096}, s27
        s_cmp_eq_u32 s3, 3
        s_cselect_b32 s26, {EGS}, s26
        s_cselect_b32 s27, {WS_Y + 520*64}, s27
        v_mul_lo_u32 v41, v1, s26
        v_add_u32 v41, s27, v41
        s_cbranch_scc0 L_tl_done
        v_cmp_lt_u32 vcc, 31, v1
        v_add_u32 v2, {YD - 32*EGS}, v41
        s_nop 0
        v_cndmask_b32 v41, v41, v2, vcc
        v_cmp_eq_u32 vcc, 63, v1
        v_mov_b32 v2, {WS_FL + 4096}
        s_nop 0
        v_cndmask_b32 v41, v41, v2, vcc
        L_tl_done:
        """.replace("s_cselect_b32 s78, 4194304, 33554432", "s_mov_b32 s78, 33554432\n s_cselect_b32 s78, 4194304, s78"))
    a(f"""
    s_lshr_b32 s26, s3, 1
    s_lshl_b32 s26, s26, 7
    v_and_b32 v2, 15, v1
    v_lshrrev_b32 v5, 1, v2
    v_add_u32 v2, s26, v2
    v_lshlrev_b32 v2, 7, v2
    v_lshrrev_b32 v3, 4, v1
    v_xor_b32 v5, v3, v5
    v_lshl_add_u32 v16, v5, 4, v2
    v_xor_b32 v5, 4, v5
    v_lshl_add_u32 v33, v5, 4, v2
    v_lshrrev_b32 v4, 2, v1
    v_and_b32 v4, 3, v4
    v_lshl_add_u32 v5, v3, 3, v4
    v_lshlrev_b32 v5, 8, v5
    v_add_u32 v5, {WB}, v5
    v_and_b32 v6, 3, v1
    v_lshl_add_u32 v5, v6, 3, v5
    v_and_b32 v6, 1, v3
    v_lshl_or_b32 v6, v6, 2, v4
    s_and_b32 s26, s3, 1
    s_lshl_b32 s26, s26, 2
    v_xor_b32 v6, s26, v6
    """)
    for mb in range(4):
        a(f"v_xor_b32 v7, {mb}, v6\n v_lshl_add_u32 v{17+mb}, v7, 5, v5")
    for i in range(5): a(f"v_mov_b32 v{21+i}, v{16+i}")
    def reads(st):
        def wr(mat, mb):
            b = FR(st, mat*4+mb)
            return [f"ds_read_b64_tr_b16 a[{b}:{b+1}], v{22+mb} offset:{mat*8192}",
                    f"ds_read_b64_tr_b16 a[{b+2}:{b+3}], v{22+mb} offset:{mat*8192+1024}"]
        def xr(nb):
            b = FR(st, 8+nb)
            return [f"ds_read_b128 a[{b}:{b+3}], v21 offset:{nb*2048}"]
        r = []
        for i in range(8): r += wr(i & 1, i >> 1) + xr(i)
        return r
    def mf(st):
        m = []
        od = [(nb if (mb*2+mat) % 2 == 0 else 7-nb, mb, mat) for mb in range(4) for mat in range(2) for nb in range(8)]
        for nb, mb, mat in od:
            c = f"v[{ACCG(mb,nb)}:{ACCG(mb,nb)+3}]" if mat == 0 else f"a[{ACCU(mb,nb)}:{ACCU(mb,nb)+3}]"
            fa = FR(st, mat*4+mb); fb_ = FR(st, 8+nb)
            if opt.pw & 1: fa, fb_ = fb_, fa
            x = f"{MF} {c}, a[{fa}:{fa+3}], a[{fb_}:{fb_+3}], {c}"
            if opt.pw & 2:
                c2 = c.replace('v[', 'a[')
                x = f"{MF} {c2}, v[{fa}:{fa+3}], v[{fb_}:{fb_+3}], {c2}"
            m.append(x)
        return m
    if opt.pw & 2:
        reads0 = reads
        reads = lambda st: [x.replace(' a[', ' v[') for x in reads0(st)]
    for i in range(4): a(f"v_mov_b32 v{36+i}, 0")
    a("s_nop 1")
    for i in range(8): a(f"v_mfma_f32_32x32x16_bf16 v[{128+16*i}:{143+16*i}], v[36:39], v[36:39], 0\n v_mfma_f32_32x32x16_bf16 a[{16*i}:{15+16*i}], v[36:39], v[36:39], 0")
    def preblk():
        a(f"""
    s_lshl_b32 s86, s24, 3
    s_lshr_b32 s31, s3, 1
    s_lshl_b32 s31, s31, 2
    s_add_u32 s86, s86, s31
    s_lshl_b32 s68, s86, 11
    s_mul_i32 s86, s86, {opt.HS}
    s_lshl_b32 s31, s25, 13
    s_add_u32 s86, s86, s31
    s_and_b32 s31, s3, 1
    s_lshl_b32 s31, s31, 12
    s_add_u32 s86, s86, s31
    s_lshl_b32 s31, s25, 1
    s_and_b32 s26, s3, 1
    s_add_u32 s31, s31, s26
    s_lshl_b32 s31, s31, 7
    s_add_u32 s68, s68, s31
    s_add_u32 s68, s68, {WS_FL+65536}
    """)
        g2_pre(a, False)
    if not opt.prefill: preblk()
    stamp(a, 1)
    a(f"s_waitcnt vmcnt(8) lgkmcnt(0)\n s_barrier")
    for x in reads(0): a(x)
    nonce(a)
    a(f"s_lshl_b32 s26, s2, 7\n s_add_u32 s26, s26, {WS_FL+393216}\n s_cmp_eq_u32 s3, 0\n s_cselect_b32 s26, s26, {OOB}\n v_and_b32 v43, 15, v1\n v_lshl_add_u32 v43, v43, 3, s26\n v_mov_b32 v44, s98\n v_mov_b32 v45, s99")
    a(f"s_mov_b32 s19, 0\n s_mov_b32 s20, {XS}\n s_mov_b32 s18, 0\n s_mov_b32 s28, {WSL}\n s_mov_b32 s29, 0")
    a("v_mov_b32 v21, v33")
    for i in range(4): a(f"v_add_u32 v{22+i}, s28, v{17+i}")
    a(f"s_mov_b32 s72, {32*7168}\n s_mov_b32 s73, 128\n s_mov_b32 s74, 65536")
    stamp(a, 2)
    def cap(fn, *args):
        n0 = len(a.l); fn(*args); out = [x.strip() for x in a.l[n0:]]; del a.l[n0:]; return out
    P = Asm(); P.l = cap(preblk) if opt.prefill else []; fl = fillers(P)
    for hsi in range(6):
        peel = hsi == 0; st = hsi & 1; inloop = hsi >= 4
        if hsi == 4: a(".p2align 6\n" + "s_nop 0\n"*opt.shift + "L_g1_loop:")
        f = {-1: ["s_waitcnt lgkmcnt(0)"]}
        if opt.trace: f[-1] = trace_ops("s18")
        f[0] = [f"s_waitcnt vmcnt({4 if peel else (24, 12)[st]})", "s_barrier"]
        if peel:
            ops = cap(pw, 2) + cap(px, 1) + cap(pw, 3) + ["buffer_load_dword v28, v40, s[80:83], 0 offen"] + cap(px, 2) + ["buffer_store_dwordx2 v[44:45], v43, s[12:15], 0 offen sc1"]
            g = 2
            for x in ops:
                if x == 's_nop 0': continue
                f.setdefault(g-1 if 'm0' in x else g, []).append(x)
                if x.startswith('buffer'): g += 2
            assert g <= 63, g
            if opt.stamp: f.setdefault(63, []).extend(["s_memrealtime s[92:93]", "s_waitcnt lgkmcnt(0)", "v_writelane_b32 v31, s92, 41"])
        rd = reads(st ^ 1)
        for i, x in enumerate(rd): f.setdefault(1 + 2*i, []).append(x)
        f.setdefault(2, []).append(f"s_add_u32 s28, s28, {WSL}")
        f.setdefault(4, []).append(f"s_and_b32 s28, s28, {4*WSL-1}")
        f.setdefault(6, []).append("s_add_u32 s18, s18, 1")
        for i in range(4): f.setdefault(50+2*i, []).append(f"v_add_u32 v{22+i}, s28, v{17+i}")
        if st == 0:
            f.setdefault(58, []).append("v_add_u32 v21, s20, v16")
        else:
            f.setdefault(58, []).append("v_add_u32 v21, s19, v33")
            dq = dma_w() + dma_w() + dma_x(0) + dma_x(1)
            dp = opt.dp if hasattr(opt, 'dp') else [2 + 4*i - (i > 11)*(i-11) for i in range(16)]
            f[0].append("s_add_u32 m0, s21, s29")
            for i, x in enumerate(dq): f.setdefault(dp[i], []).append(x)
            f[dp[3]] += [f"s_add_u32 m0, m0, {WSL}", "s_add_u32 s17, s17, s72"]
            f[dp[7]] += ["s_add_u32 m0, s23, s19", "s_add_u32 s17, s17, s72"]
            f[dp[8]] += [f"s_xor_b32 s29, s29, {2*WSL}"]
            f[dp[9]] += ["s_mov_b32 s19, s20"]
            f[dp[10]] += [f"s_add_u32 s20, s20, {XS}", f"s_cmp_eq_u32 s20, {3*XS}", "s_cselect_b32 s20, 0, s20"]
            f[dp[11]] += ["s_add_u32 m0, m0, 4096"]
            f[dp[12]] += ["s_add_u32 s16, s16, s73"]
            f[dp[15]] += (["s_cmp_ge_u32 s18, 26", "s_cbranch_scc1 L_g1_sw", "L_g1_swd:"] if inloop else []) + ["s_add_u32 s22, s16, s74"]
            f.setdefault(62, []).extend([f"buffer_load_dword v28, v27, s[80:83], s84 offen {opt.tflags}", "s_add_u32 s84, s84, s85"])
            if hsi == 3: f[62].append("buffer_load_dword v28, v34, s[36:39], 0 offen")
            if inloop: f.setdefault(63, []).extend(["s_cmp_lt_u32 s18, 32", "s_cbranch_scc1 L_g1_loop"])
        if not inloop:
            n = len(fl) if hsi == 3 else min(len(fl), opt.pfn[hsi])
            for k in range(n): f.setdefault(1 + (k*61)//n, []).append(fl.pop(0))
        interleave(a, mf(st), f)
    a("s_branch L_g1_done")
    a("L_g1_sw:\n s_cmp_eq_u32 s18, 26\n s_cbranch_scc0 L_g1_sw2\n s_mov_b64 s[4:5], s[32:33]\n s_mov_b32 s6, s34")
    for i in range(4): a(f"v_mov_b32 v{8+i}, v{V_WX+i}")
    a(f"s_mov_b32 s16, s41\n s_mov_b32 s74, {16*2048}\n s_branch L_g1_swd")
    a("L_g1_sw2:\n s_cmp_eq_u32 s18, 28\n s_cselect_b32 s16, s42, s40\n s_branch L_g1_swd")
    a("L_g1_done:")
    stamp(a, 3)
    if opt.xdft: a("s_branch L_end")
    c0 = -2*math.sqrt(2/math.pi)*math.log2(math.e); c1 = c0*0.044715
    a(f"s_mov_b32 s26, {fbits(c0)}\n s_mov_b32 s28, {fbits(c1)}\n s_mov_b32 s29, {fbits(c1)}")
    a("v_mov_b32 v24, s26\n v_mov_b32 v25, s26\n v_mov_b32 v2, 0\n v_mov_b32 v3, 0\n v_mov_b32 v4, 0\n v_mov_b32 v5, 0\n s_waitcnt lgkmcnt(0)")
    a(f"s_lshr_b32 s27, s3, 1\n s_lshl_b32 s27, s27, 15\n s_and_b32 s26, s3, 1\n s_lshl_b32 s26, s26, 12\n s_add_u32 s26, s26, s27\n s_add_u32 s26, s26, {OWNL}\n v_add_u32 v29, s26, v{V_L16}")
    for nb in range(8):
        g0 = ACCG(0, nb); u0 = ACCU(0, nb)
        U = 32 + (nb % 2)*32; Z = U+16; O = g0
        for i in range(16): a(f"v_accvgpr_read_b32 v{U+i}, a{u0+i}")
        for i in range(0, 16, 2): a(f"v_pk_mul_f32 v[{Z+i}:{Z+i+1}], v[{g0+i}:{g0+i+1}], v[{g0+i}:{g0+i+1}]")
        for i in range(0, 16, 2): a(f"v_pk_fma_f32 v[{Z+i}:{Z+i+1}], v[{Z+i}:{Z+i+1}], s[28:29], v[24:25]")
        for i in range(0, 16, 2): a(f"v_pk_mul_f32 v[{Z+i}:{Z+i+1}], v[{Z+i}:{Z+i+1}], v[{g0+i}:{g0+i+1}]")
        for i in range(16): a(f"v_exp_f32 v{Z+i}, v{Z+i}")
        for i in range(0, 16, 2): a(f"v_pk_mul_f32 v[{U+i}:{U+i+1}], v[{U+i}:{U+i+1}], v[{g0+i}:{g0+i+1}]")
        for i in range(0, 16, 2): a(f"v_pk_add_f32 v[{Z+i}:{Z+i+1}], v[{Z+i}:{Z+i+1}], 1.0 op_sel_hi:[1,0]")
        for i in range(16): a(f"v_rcp_f32 v{Z+i}, v{Z+i}")
        a("s_nop 0")
        for i in range(0, 16, 2): a(f"v_pk_mul_f32 v[{U+i}:{U+i+1}], v[{U+i}:{U+i+1}], v[{Z+i}:{Z+i+1}]")
        for i in range(0, 16, 2): a(f"v_cvt_pk_bf16_f32 v{O+i//2}, v{U+i}, v{U+i+1}")
        for p in range(2):
            off = (nb >> 1)*opt.HS + (p*2 + (nb & 1))*1024
            a(f"s_add_u32 s31, s86, {off}")
            a(f"buffer_store_dwordx4 v[{O+4*p}:{O+4*p+3}], v{V_L16}, s[12:15], s31 offen {opt.hflags}")
        if nb == 0: a("s_waitcnt vmcnt(2)\n s_barrier")
        a(f"ds_write_b128 v29, v[{O}:{O+3}] offset:{(nb >> 1)*8192 + (nb & 1)*1024}\n ds_write_b128 v29, v[{O+4}:{O+7}] offset:{(nb >> 1)*8192 + (nb & 1)*1024 + 2048}")
        if nb == 3: g2_zero(a, 2, 0, 4)
        if nb == 6: g2_zero(a, 2, 4, 7)
    stamp(a, 4)
    g2_zero(a, 2, 7, 8)
    a(f"s_mov_b32 s87, {OOB}")
    a(f"s_lshl_b32 s26, s3, 14\n s_lshr_b32 s27, s96, 1\n s_lshl_b32 s27, s27, 13\n s_add_u32 s26, s26, {OWNL}\n s_add_u32 s27, s27, s26\n v_add_u32 v29, s27, v{V_L16}\n v_xor_b32 v10, 8192, v29\n s_waitcnt lgkmcnt(0)\n s_barrier")
    for st in range(4):
        for nb in range(4): a(f"ds_read_b128 v[{128+16*st+4*nb}:{131+16*st+4*nb}], v{(29, 10)[nb >> 1]} offset:{st*2048 + (nb & 1)*1024}")
    stamp(a, 5)

RAW = 64; GT = 192; EU = 208; SV = 216
def fold_loads(a, vm):
    a("""
    s_lshl_b32 s26, s66, 2
    s_add_u32 s26, s26, s67
    s_lshl_b32 s26, s26, 4
    v_lshrrev_b32 v40, 3, v1
    v_add_u32 v40, s26, v40
    v_cmp_eq_u32 s[62:63], 0, v40
    v_and_b32 v2, 7, v1
    v_cmp_eq_u32 s[70:71], 0, v2
    v_add_u32 v44, 8, v40
    v_lshlrev_b32 v2, 4, v2
    s_lshl_b32 s26, s3, 8
    v_add_u32 v2, s26, v2
    v_sub_u32 v3, 1904, v2
    v_sub_u32 v41, 2048, v40
    v_sub_u32 v42, 1024, v40
    v_add_u32 v43, 1024, v40
    v_sub_u32 v45, 2048, v44
    v_sub_u32 v46, 1024, v44
    v_add_u32 v47, 1024, v44
    v_mov_b32 v4, 512
    v_mov_b32 v5, 1536
    v_cndmask_b32 v41, v41, v4, s[62:63]
    v_cndmask_b32 v43, v43, v5, s[62:63]
    s_sub_u32 s74, 2048, s26
    """)
    for k in range(8): a(f"v_lshl_add_u32 v{224+8*(k>>2)+(k&3)}, v{40+k}, 11, v2\n v_lshl_add_u32 v{228+8*(k>>2)+(k&3)}, v{40+k}, 11, v3")
    for gi in range(2):
        a(f"buffer_load_dwordx4 v[{GT+8*gi}:{GT+8*gi+3}], v2, s[32:35], 0 offen offset:{gi*128}")
        a(f"buffer_load_dwordx4 v[{GT+8*gi+4}:{GT+8*gi+7}], v3, s[32:35], 0 offen offset:{(1-gi)*128}")
        vm.add('g', 2)
def fold_round_loads(a, vm, rnd):
    if True:
        hf, gi = rnd >> 1, rnd & 1
        b = RAW + 32*rnd
        for i in range(4):
            a(f"buffer_load_dwordx4 v[{b+8*i}:{b+8*i+3}], v{224+8*hf+i}, s[4:7], 0 offen offset:{gi*128}")
            a(f"buffer_load_dwordx4 v[{b+8*i+4}:{b+8*i+7}], v{228+8*hf+i}, s[4:7], 0 offen offset:{(1-gi)*128}")
        if gi == 0:
            for i in range(4):
                a(f"v_lshlrev_b32 v4, 11, v{40+4*hf+i}\n buffer_load_ushort v{EU+4*hf+i}, v4, s[4:7], s74 offen")
            vm.add(f'r{rnd}', 12)
        else: vm.add(f'r{rnd}', 8)
def fold_compute(a, vm, between):
    LP = 8; UU = 16
    a(f"v_mov_b32 v24, {ALT}")
    for r in range(8, 24): a(f"v_mov_b32 v{r}, 0")
    a(f"""
    s_lshl_b32 s26, s66, 2
    s_add_u32 s26, s26, s67
    s_lshr_b32 s27, s26, 2
    s_lshl_b32 s27, s27, 16
    s_and_b32 s26, s26, 3
    s_lshl_b32 s26, s26, 10
    s_add_u32 s26, s26, s27
    s_lshl_b32 s27, s3, 14
    s_add_u32 s26, s26, s27
    s_add_u32 s22, s26, {WS_Z}
    v_bfe_u32 v2, v1, 2, 1
    v_lshlrev_b32 v25, 12, v2
    v_and_b32 v2, 3, v1
    v_lshl_add_u32 v25, v2, 8, v25
    v_lshrrev_b32 v2, 3, v1
    v_lshl_add_u32 v25, v2, 4, v25
    s_cmp_eq_u32 s3, 0
    s_cselect_b64 s[72:73], s[70:71], 0
    """)
    T = 240
    for rnd in range(4):
        hf, gi = rnd >> 1, rnd & 1
        b = RAW + 32*rnd; g = GT + 8*gi
        S = [224, RAW+96 if rnd < 2 else RAW+8, 48, 56]
        vm.wait(a, f'r{rnd}')
        if rnd in (0, 1): stamp(a, 19+2*rnd)
        for j in range(4):
            for i in range(4):
                a(f"v_dot2_f32_bf16 v{LP+4*hf+i}, v{b+8*i+j}, v{g+j}, v{LP+4*hf+i}")
            for i in range(4):
                a(f"v_dot2_f32_bf16 v{LP+4*hf+i}, v{b+8*i+4+j}, v{g+4+j}, v{LP+4*hf+i}")
        if hf == 0:
            for i in (1, 3):
                for j in range(8): a(f"v_cndmask_b32 v{b+8*i+j}, v{b+8*i+j}, 0, s[62:63]")
                if gi == 0: a(f"v_cndmask_b32 v{EU+i}, v{EU+i}, 0, s[62:63]")
        if gi == 0:
            for i in range(4): a(f"v_cndmask_b32 v{EU+4*hf+i}, v{EU+4*hf+i}, 0, s[72:73]")
            for i in range(4): a(f"v_mov_b32 v{SV+i}, v{b+8*i+4}")
        else:
            for i in range(4): a(f"v_mov_b32_dpp v{EU+4*hf+i}, v{SV+i} row_shl:7 row_mask:0xf bank_mask:0xf")
            for i in range(4): a(f"v_lshlrev_b32 v{2+i}, 16, v{b+8*i+4}")
            a(f"v_add_f32 v2, v2, v3\n v_add_f32 v4, v4, v5\n v_add_f32 v{26+2*hf}, v2, v4\n v_sub_f32 v{27+2*hf}, v2, v4")
        for i in range(4): a(f"v_mov_b32_dpp v{SV+4+i}, v{b+8*i+4} row_shr:1 row_mask:0xf bank_mask:0xf")
        for i in range(4): a(f"v_cndmask_b32 v{SV+4+i}, v{SV+4+i}, v{EU+4*hf+i}, s[70:71]")
        for i in range(4):
            for j in range(8): a(unp(T+j, b+8*i, j))
            a(f"v_lshlrev_b32 v{T+8}, 16, v{SV+4+i}")
            for j in range(1, 8): a(unp(T+8+j, b+8*i+4, 8-j))
            for j in range(0, 8, 2):
                a(pk('', S[i]+j, T+j, T+8+j))
                a(pk('', b+8*i+j, T+j, T+8+j, neg=True))
        for j in range(0, 8, 2):
            a(pk('', S[0]+j, S[0]+j, S[1]+j)); a(pk('', S[2]+j, S[2]+j, S[3]+j))
            a(pk('', b+j, b+j, b+8+j, neg=True)); a(pk('', b+16+j, b+16+j, b+24+j, neg=True))
        for j in range(0, 8, 2):
            a(pk('', S[1]+j, S[0]+j, S[2]+j)); a(pk('', S[3]+j, S[0]+j, S[2]+j, neg=True))
            a(pk('', b+8+j, b+j, b+16+j, neg=True)); a(pk('', b+24+j, b+j, b+16+j))
        for j in range(0, 8, 2):
            a(pk('', UU+4*hf, UU+4*hf, S[1]+j)); a(pk('', UU+4*hf+2, UU+4*hf+2, S[3]+j))
        for cls, src in enumerate((S[1], S[3], b+8, b+24)):
            o = b + 4*(cls & 1) + 16*(cls >> 1)
            for j in range(4): a(f"v_cvt_pk_bf16_f32 v{o+j}, v{src+2*j}, v{src+2*j+1}")
            a(f"s_add_u32 s26, s22, {cls*524288 + gi*8192 + hf*128}")
            a(f"buffer_store_dwordx4 v[{o}:{o+3}], v25, s[12:15], s26 offen sc1")
            vm.add('st')
        if rnd in (0, 1): stamp(a, 20+2*rnd)
        between(rnd)
    a("""
    s_cmp_eq_u32 s3, 3
    s_cselect_b32 s26, 0x80808080, 0
    s_mov_b32 s27, s26
    v_sub_f32 v16, v16, v17
    v_sub_f32 v17, v18, v19
    v_sub_f32 v18, v20, v21
    v_sub_f32 v19, v22, v23
    """)
    for k in range(4): a(f"v_cndmask_b32 v{20+k}, 0, v{26+k}, s[26:27]")
    for k in range(4): a(f"v_add_f32 v{16+k}, v{16+k}, v{20+k}")
    a("s_nop 0")
    for ctl in ("quad_perm:[1,0,3,2]", "quad_perm:[2,3,0,1]", "row_half_mirror"):
        for r in range(8, 20): a(f"v_add_f32_dpp v{r}, v{r}, v{r} {ctl} row_mask:0xf bank_mask:0xf")
    a(f"""
    s_lshl_b32 s26, s3, 2
    s_lshl_b32 s27, s3, 11
    s_add_u32 s27, s27, {WS_UP}
    s_mov_b32 s28, {WS_CV}
    s_add_u32 s29, s27, 8192
    """)
    for k in range(8): a(f"v_lshl_add_u32 v{68+k}, v{40+k}, 4, s26")
    a(f"v_lshlrev_b32 v76, 2, v40\n s_mov_b32 s26, {WS_LP}\n s_mov_b64 exec, s[70:71]")
    for k in range(8): a(f"buffer_store_dword v{8+k}, v{68+k}, s[12:15], s26 offen sc1")
    for hf in range(2):
        a(f"buffer_store_dword v{16+2*hf}, v76, s[12:15], s27 offen offset:{32*hf} sc1\n buffer_store_dword v{17+2*hf}, v76, s[12:15], s29 offen offset:{32*hf} sc1")
    a(f"""
    s_mov_b64 exec, -1
    s_cmp_lg_u32 s3, 3
    s_cbranch_scc1 L_fc2
    s_mov_b32 exec_lo, 0x80808080
    s_mov_b32 exec_hi, 0x80808080
    buffer_store_dword v26, v76, s[12:15], s28 offen sc1
    buffer_store_dword v27, v76, s[12:15], s28 offen offset:2048 sc1
    buffer_store_dword v28, v76, s[12:15], s28 offen offset:32 sc1
    buffer_store_dword v29, v76, s[12:15], s28 offen offset:2080 sc1
    s_mov_b64 exec, -1
    L_fc2:
    """)

def sh_voff(a, vb, rs_shift, srow):
    a(f"""
    v_lshrrev_b32 v2, 3, v1
    s_lshl_b32 s26, s3, 5
    v_add_u32 v2, s26, v2
    v_lshlrev_b32 v2, {rs_shift}, v2
    v_add_u32 v2, s{srow}, v2
    v_lshrrev_b32 v3, 4, v1
    v_and_b32 v4, 7, v1
    v_xor_b32 v3, v3, v4
    v_lshl_add_u32 v{vb}, v3, 4, v2
    v_xor_b32 v3, 4, v3
    v_lshl_add_u32 v{vb+1}, v3, 4, v2
    v_add_u32 v{vb+2}, {2*((8<<rs_shift)-1024)}, v{vb}
    v_add_u32 v{vb+3}, {3*((8<<rs_shift)-1024)}, v{vb+1}
    v_add_u32 v{vb+1}, {((8<<rs_shift)-1024)}, v{vb+1}
    """)
def sh_touch(a, sr, rs_shift, srow):
    a(f"""
    s_lshl_b32 s26, s67, 5
    s_lshl_b32 s27, s3, 3
    s_add_u32 s26, s26, s27
    v_lshrrev_b32 v2, 3, v1
    v_add_u32 v2, s26, v2
    v_lshlrev_b32 v2, {rs_shift}, v2
    v_and_b32 v3, 7, v1
    v_lshl_add_u32 v2, v3, 7, v2
    buffer_load_dword a255, v2, s[{sr}:{sr+3}], s{srow} offen
    """)
def sh_dma(vb, sr): return [f"buffer_load_dwordx4 v{vb+i}, s[{sr}:{sr+3}], s17 offen offset:{i*1024} lds" for i in range(4)]

def dloop(a, name, nm, accb, dma, extra=False, first=True, init=None, D=8, inc=128, mid=None):
    PB = 192; SF = 128; accb += 64
    def pl(i, off): return f"buffer_load_dwordx4 a[{PB+4*i}:{PB+4*i+3}], v12, s[32:35], s16 offen offset:{off} sc1"
    def sreads(st, ks): return [f"ds_read_b128 a[{SF+st*32+4*nb}:{SF+st*32+4*nb+3}], v{18+ks} offset:{nb*2048}" for nb in range(8)]
    if first:
        a("s_mov_b32 s16, 0")
        for t in range(D):
            for i in range(nm): a(pl(t*nm+i, i*1024))
            a(f"s_add_u32 s16, s16, {nm*1024}")
        a("v_mov_b32 v18, v16\n v_mov_b32 v19, v17")
        for x in sreads(0, 0): a(x)
        a(f"s_mov_b32 s19, 0\n s_mov_b32 s20, {SLOT3}\n ")
        init()
    a(f"s_mov_b32 s18, 0\n s_mov_b32 s17, 0")
    a(f".p2align 6\nL_{name}_loop:")
    NM = 8*nm
    if mid: mid()
    for t in range(8):
        ks = t & 1
        ms = []
        for mb in range(nm):
            for nb in range(8):
                c = accb + (nb*nm+mb)*4; pa = PB + ((t % D)*nm+mb)*4; sb = SF + ks*32 + nb*4
                ms.append(f"{MF} v[{c}:{c+3}], a[{pa}:{pa+3}], a[{sb}:{sb+3}], v[{c}:{c+3}]")
        f = {-1: [f"s_waitcnt vmcnt({(D-1)*nm}) lgkmcnt(0)"]}
        if extra:
            L = f"L_{name}_x{t}"
            f[-1] += ["s_cmp_eq_u32 s31, 0", f"s_cbranch_scc1 {L}"] + \
                     [f"{MF} v[{240+4*mb}:{243+4*mb}], a[{PB+(t*nm+mb)*4}:{PB+(t*nm+mb)*4+3}], v[24:27], v[{240+4*mb}:{243+4*mb}]" for mb in range(nm)] + [f"{L}:"]
        if ks == 1:
            f[0] = ["s_barrier", "v_add_u32 v18, s20, v16"]
            rd = sreads(0, 0)
        else:
            rd = sreads(1, 1)
        sp = NM // 16
        for k, x in enumerate(rd): f.setdefault(1+sp*k, []).append(x)
        for mb in range(nm): f.setdefault(8*mb+7, []).append(pl((t % D)*nm+mb, mb*1024))
        f[NM-1].append(f"s_add_u32 s16, s16, {nm*1024}")
        if ks == 1:
            if dma:
                f.setdefault(1, []).append("s_add_u32 m0, s21, s19")
                for k, x in enumerate(sh_dma(*dma)): f.setdefault(2+(NM//5)*k, []).append(x)
                f.setdefault(NM-3, []).append(f"s_add_u32 s17, s17, {inc}")
            f.setdefault(NM//2+1, []).append("v_add_u32 v19, s20, v17")
            f.setdefault(NM-3, []).extend(["s_mov_b32 s19, s20", f"s_add_u32 s20, s20, {SLOT3}"])
            f.setdefault(NM-2, []).append(f"s_and_b32 s20, s20, {R3*SLOT3-1}")
        interleave(a, ms, f)
    a(f"s_add_u32 s18, s18, 1\n s_cmp_lt_u32 s18, 2\n s_cbranch_scc1 L_{name}_loop")

def tile_vec(a, vec):
    a("""
    s_lshl_b32 s26, s67, 5
    s_lshl_b32 s27, s3, 3
    s_add_u32 s26, s26, s27
    s_lshl_b32 s27, s26, 7
    v_lshrrev_b32 v2, 3, v1
    v_lshlrev_b32 v2, 14, v2
    v_add_u32 v2, s27, v2
    s_lshr_b32 s26, s26, 1
    v_and_b32 v3, 7, v1
    v_xor_b32 v3, s26, v3
    v_and_b32 v3, 7, v3
    """)
    for i in range(8):
        a(f"v_xor_b32 v4, {i>>1}, v3\n v_lshl_add_u32 v4, v4, 4, v2\n ds_read_b128 v[{208+4*i}:{211+4*i}], v4 offset:{i*128}")
    for i in range(8): a(f"v_mov_b32 v{40+i}, 0")
    a("s_waitcnt lgkmcnt(0)")
    for j in range(4):
        for i in range(8): a(f"v_dot2_f32_bf16 v{40+i}, v{208+4*i+j}, v{vec+j}, v{40+i}")
    a("s_nop 2")
    reduce_lanes(a, list(range(40, 48)), 48, ['ror1', 'ror2', 'ror4', 'ror8', 'p16', 'p32'])
    for i in range(1, 8): a(f"v_cmp_eq_u32 vcc, {i}, v1\n s_nop 1\n v_cndmask_b32 v40, v40, v{40+i}, vcc")

def acc_load(a, nm, vb, svec, wshift, off=0):
    a(f"v_lshrrev_b32 v2, 4, v1\n v_lshlrev_b32 v2, 4, v2\n s_lshl_b32 s26, s3, {wshift}\n v_add_u32 v2, s26, v2")
    for mb in range(nm): a(f"buffer_load_dwordx4 v[{vb+4*mb}:{vb+3+4*mb}], v2, s[12:15], s{svec} offen offset:{off+mb*64} sc1")
def acc_init(a, nm, vb, accb, sscale, withx=False):
    a(f"v_lshlrev_b32 v3, 31, v1")
    for i in range(4*nm): a(f"v_mul_f32 v{vb+i}, s{sscale}, v{vb+i}")
    if withx:
        for i in range(4*nm): a(f"v_accvgpr_write_b32 a{128+i}, v{vb+i}")
    for i in range(4*nm): a(f"v_xor_b32 v{vb+i}, v3, v{vb+i}")
    for nb in range(8):
        for i in range(4*nm): a(f"v_accvgpr_write_b32 a{accb+nb*4*nm+i}, v{vb+i}")

def dft(a):
    vm = VM()
    a("s_waitcnt lgkmcnt(0)")
    srd(a, 4, 40, 2048*1024*2)
    srd(a, 32, 60, 2048)
    a("""
    v_lshlrev_b32 v2, 4, v1
    v_sub_u32 v3, 2032, v2
    s_mov_b32 s26, 0x100000
    s_mov_b32 s27, 0x300000
    buffer_load_dwordx4 v[128:131], v2, s[4:7], s26 offen
    buffer_load_dwordx4 v[132:135], v3, s[4:7], s26 offen
    buffer_load_dwordx4 v[140:143], v2, s[4:7], s27 offen
    buffer_load_dwordx4 v[144:147], v3, s[4:7], s27 offen
    """); vm.add('z', 4)
    fold_loads(a, vm)
    fold_round_loads(a, vm, 0); fold_round_loads(a, vm, 1)
    common_setup(a)
    a("s_lshr_b32 s30, s66, 2\n s_cmp_eq_u32 s30, 0\n s_cselect_b32 s26, s56, s58\n s_cselect_b32 s27, s57, s59")
    srd(a, 8, 26, 1024*1024*2)
    a("s_and_b32 s25, s66, 3\n s_lshl_b32 s25, s25, 18\n s_lshl_b32 s21, s3, 12")
    sh_voff(a, 32, 11, 25)
    srd(a, 36, 52, 2048*2048*2)
    srd(a, 80, 54, 2048*2048*2)
    a("s_and_b32 s24, s66, 3\n s_lshl_b32 s24, s24, 8\n s_add_u32 s24, s24, s30\n s_lshl_b32 s24, s24, 12")
    a("s_waitcnt lgkmcnt(0)\n s_mov_b32 s17, 0")
    nonce(a)
    started(a)
    stamp(a, 9)
    vm.wait(a, 'z')
    a("v_mov_b32 v136, 0\n v_mov_b32 v148, 0\n s_cmp_eq_u32 s30, 0\n s_cselect_b32 s26, 1.0, -1.0")
    a("v_mov_b32_dpp v136, v132 wave_shr:1 row_mask:0xf bank_mask:0xf\n v_mov_b32_dpp v148, v144 wave_shr:1 row_mask:0xf bank_mask:0xf")
    for k, b in enumerate((128, 140)):
        for j in range(8): a(unp(160+16*k+j, b, j))
        a(f"v_lshlrev_b32 v{168+16*k}, 16, v{b+8}")
        for j in range(1, 8): a(unp(168+16*k+j, b+4, 8-j))
    for j in range(16): a(f"v_fma_f32 v{160+j}, v{176+j}, s26, v{160+j}")
    for j in range(8): a(f"v_fma_f32 v{160+j}, v{168+j}, s26, v{160+j}")
    for j in range(4): a(f"v_cvt_pk_bf16_f32 v{36+j}, v{160+2*j}, v{161+2*j}")
    a("v_lshlrev_b32 v2, 16, v132\n v_lshlrev_b32 v3, 16, v144\n v_add_f32 v2, v2, v3\n s_nop 0\n v_readlane_b32 s75, v2, 63\n s_cselect_b32 s75, s75, 0")
    a(pk('', 160, 160, 162)); a(pk('', 164, 164, 166)); a(pk('', 160, 160, 164)); a("v_sub_f32 v160, v160, v161")
    reduce_lanes(a, [160], 176, ['ror1', 'ror2', 'ror4', 'ror8', 'p16', 'p32'])
    a("v_add_f32 v160, s75, v160\n s_nop 0\n v_readfirstlane_b32 s97, v160")
    def between(rnd):
        if rnd < 2: fold_round_loads(a, vm, rnd+2)
        for s in ((0, 1, 2), (3, 4, 5), (6, 7), ())[rnd]:
            a(f"s_add_u32 m0, s21, {s*SLOT3}\n s_nop 0")
            for x in sh_dma(32, 8): a(x)
            a("s_add_u32 s17, s17, 128")
            vm.add('pf', 4)
    fold_compute(a, vm, between)
    stamp(a, 1)
    a(f"s_lshl_b32 s23, s66, 2\n s_add_u32 s23, s23, s67\n s_lshl_b32 s23, s23, 7\n s_add_u32 s23, s23, {WS_FL+16384}")
    publish(a, 's23')
    for i in range(4): a(f"v_mov_b32 v{56+i}, 0")
    tile_vec(a, 36)
    for i in range(8): a(f"v_mfma_f32_32x32x16_bf16 v[{64+16*i}:{79+16*i}], v[56:59], v[56:59], 0\n v_mfma_f32_32x32x16_bf16 a[{16*i}:{15+16*i}], v[56:59], v[56:59], 0")
    a(f"""
    v_lshlrev_b32 v2, 31, v1
    v_xor_b32 v2, s75, v2
    v_add_f32 v40, v40, v2
    s_lshl_b32 s26, s66, 7
    s_lshl_b32 s27, s67, 5
    s_add_u32 s26, s26, s27
    s_lshl_b32 s27, s3, 3
    s_add_u32 s26, s26, s27
    s_lshl_b32 s26, s26, 2
    s_add_u32 s26, s26, {WS_RV}
    v_lshlrev_b32 v2, 2, v1
    s_mov_b64 exec, 0xff
    buffer_store_dword v40, v2, s[12:15], s26 offen sc1
    s_mov_b64 exec, -1
    """)
    stamp(a, 10)
    sh_voff(a, 20, 13, 24)
    a("v_lshlrev_b32 v12, 4, v1")
    a("""
    v_and_b32 v2, 15, v1
    v_lshrrev_b32 v3, 1, v2
    v_lshrrev_b32 v4, 4, v1
    v_xor_b32 v3, v3, v4
    v_lshlrev_b32 v2, 7, v2
    v_lshl_add_u32 v16, v3, 4, v2
    v_xor_b32 v3, 4, v3
    v_lshl_add_u32 v17, v3, 4, v2
    """)
    a(f"""
    s_lshl_b32 s26, s30, 1
    s_lshr_b32 s27, s67, 1
    s_add_u32 s26, s26, s27
    s_lshl_b32 s26, s26, 3
    s_and_b32 s27, s67, 1
    s_lshl_b32 s27, s27, 2
    s_add_u32 s26, s26, s27
    s_add_u32 s26, s26, s3
    s_lshl_b32 s26, s26, 16
    s_add_u32 s22, s26, {WS_Z}
    """)
    srd_ws(a, 32, 22, 65536)
    a(f"s_and_b32 s23, s67, 1\n s_lshl_b32 s23, s23, 2\n s_add_u32 s23, s23, s3\n s_lshl_b32 s23, s23, 9\n s_add_u32 s23, s23, {WS_FL+16384}")
    poll(a, [('s23', '0xf')], cnt=4)
    stamp(a, 2)
    a(f"s_lshl_b32 s22, s67, 10\n s_add_u32 s22, s22, {WS_CV}\n s_cmp_eq_u32 s30, 0\n s_cselect_b32 s23, 1.0, 0")
    acc_load(a, 4, 192, 22, 8)
    a("s_mov_b32 s74, s23")
    dloop(a, 'd1', 4, 0, (20, 36), D=4, mid=lambda: a(f"s_mov_b32 s31, {WS_FL+16384}\n v_and_b32 v6, 31, v1\n v_lshlrev_b32 v6, 7, v6\n buffer_load_dwordx2 v[48:49], v6, s[12:15], s31 offen sc1"), init=lambda: stamp(a, 11))
    a("s_lshl_b32 s22, s30, 13\n" + f"s_add_u32 s22, s22, {WS_UP}\n v_lshlrev_b32 v2, 5, v1\n s_add_u32 s23, s22, 4096")
    a(f"s_waitcnt lgkmcnt(0)\n s_nop 7")
    stamp(a, 3)
    a("v_cmp_ne_u32 vcc, s98, v48\n v_cmp_ne_u32 s[28:29], s99, v49\n s_or_b64 vcc, vcc, s[28:29]\n s_and_b64 vcc, vcc, 0xffffffff\n s_cbranch_scc0 L_uok")
    poll(a, [('s31', '0xffffffff')], cnt=32)
    a("s_waitcnt vmcnt(0)\n L_uok:")
    for i in range(8): a(f"buffer_load_dwordx4 v[{208+4*i}:{211+4*i}], v2, s[12:15], s{22+(i>>2)} offen offset:{((i>>1)&1)*2048+(i&1)*16} sc1")
    a(f"""
    v_lshrrev_b32 v2, 4, v1
    v_and_b32 v3, 1, v2
    v_lshrrev_b32 v2, 1, v2
    v_lshl_add_u32 v2, v3, 1, v2
    v_and_b32 v3, 15, v1
    v_lshlrev_b32 v3, 4, v3
    v_lshl_add_u32 v14, v2, 8, v3
    s_lshr_b32 s26, s67, 1
    s_lshl_b32 s26, s26, 4
    s_and_b32 s27, s66, 3
    s_lshl_b32 s27, s27, 2
    s_add_u32 s26, s26, s27
    s_lshl_b32 s26, s26, 16
    s_lshl_b32 s27, s30, 15
    s_add_u32 s26, s26, s27
    s_and_b32 s27, s67, 1
    s_lshl_b32 s27, s27, 14
    s_add_u32 s26, s26, s27
    s_lshl_b32 s27, s3, 12
    s_add_u32 s26, s26, s27
    s_add_u32 s25, s26, {WS_AT}
    """)
    a("v_lshlrev_b32 v3, 31, v1")
    for i in range(16): a(f"v_mul_f32 v{192+i}, s74, v{192+i}\n v_xor_b32 v{192+i}, v3, v{192+i}")
    for nb in range(8):
        t = 16 + (nb & 1)*8; c = 64 + nb*16
        for i in range(0, 16, 2): a(pk('', c+i, c+i, 192+i))
        for i in range(8): a(f"v_cvt_pk_bf16_f32 v{t+16+i}, v{c+2*i}, v{c+2*i+1}")
        a("s_nop 1")
        for p in range(2):
            a(f"v_permlane16_swap_b32 v{t+16+4*p}, v{t+18+4*p}\n v_permlane16_swap_b32 v{t+17+4*p}, v{t+19+4*p}")
        for p in range(2):
            a(f"s_add_u32 s26, s25, {(nb >> 1)*65536 + p*2048 + (nb & 1)*1024}")
            a(f"buffer_store_dwordx4 v[{t+16+4*p}:{t+19+4*p}], v14, s[12:15], s26 offen sc1")
    a(f"s_and_b32 s26, s66, 3\n s_lshl_b32 s26, s26, 1\n s_add_u32 s26, s26, s30\n s_lshl_b32 s26, s26, 2\n s_add_u32 s26, s26, s67\n s_lshl_b32 s26, s26, 7\n s_add_u32 s23, s26, {WS_FL+24576}")
    stamp(a, 12)
    publish(a, 's23')
    stamp(a, 13)
    for i in range(4): a(f"v_mov_b32 v{56+i}, 0")
    a("s_nop 1")
    for i in list(range(8)) + [11]: a(f"v_mfma_f32_32x32x16_bf16 v[{64+16*i}:{79+16*i}], v[56:59], v[56:59], 0")
    for j in range(0, 8, 2): a(pk('', 208+j, 208+j, 216+j)); a(pk('', 224+j, 224+j, 232+j))
    for j in range(0, 8, 2): a(pk('', 208+j, 208+j, 224+j))
    for j in range(4): a(f"v_cvt_pk_bf16_f32 v{60+j}, v{208+2*j}, v{209+2*j}")
    tile_vec(a, 60)
    a(f"s_lshl_b32 s23, s67, 10\n s_add_u32 s23, s23, {WS_FL+24576}\n v_and_b32 v6, 7, v1\n v_lshlrev_b32 v6, 7, v6\n buffer_load_dwordx2 v[56:57], v6, s[12:15], s23 offen sc1")
    a(f"v_mov_b32 v41, 0\n v_mov_b32 v42, {ALT}")
    for j in range(4): a(f"v_dot2_f32_bf16 v41, v{60+j}, v42, v41")
    a("s_nop 2")
    reduce_lanes(a, [41], 48, ['ror1', 'ror2', 'ror4', 'ror8', 'p16', 'p32'])
    a(f"""
    v_cmp_eq_u32 vcc, 8, v1
    s_cmp_eq_u32 s30, 0
    s_cselect_b32 s26, 1.0, 0
    v_cndmask_b32 v40, v40, v41, vcc
    v_mov_b32 v7, s97
    v_mul_f32 v7, s26, v7
    v_lshlrev_b32 v2, 31, v1
    v_xor_b32 v2, v2, v7
    v_add_f32 v40, v40, v2
    v_cvt_pk_bf16_f32 v40, v40, v40
    s_and_b32 s26, s66, 3
    s_lshl_b32 s26, s26, 7
    s_lshl_b32 s27, s67, 5
    s_add_u32 s26, s26, s27
    s_lshl_b32 s27, s3, 3
    s_add_u32 s26, s26, s27
    v_add_u32 v3, s26, v1
    v_mov_b32 v4, 512
    v_cndmask_b32 v3, v3, v4, vcc
    v_lshlrev_b32 v3, 6, v3
    s_mul_i32 s26, s30, {TPS}
    s_add_u32 s26, s26, {WS_Y + 16*EGS}
    s_add_u32 s27, s26, {YD}
    s_cmp_eq_u32 s30, 0
    s_mov_b32 s28, 0xff
    s_cselect_b32 exec_lo, 0x1ff, s28
    s_mov_b32 exec_hi, 0
    buffer_store_dword v40, v3, s[12:15], s26 offen sc1
    buffer_store_dword v40, v3, s[12:15], s27 offen sc1
    s_mov_b64 exec, -1
    """)
    a(f"""
    s_lshl_b32 s26, s30, 4
    s_lshl_b32 s27, s67, 2
    s_add_u32 s26, s26, s27
    s_add_u32 s26, s26, s3
    s_lshl_b32 s26, s26, 16
    s_add_u32 s22, s26, {WS_AT}
    """)
    srd_ws(a, 32, 22, 65536)
    a(f"""
    s_cmp_eq_u32 s66, 0
    s_cselect_b32 s31, 1, 0
    v_mov_b32 v24, {ALT}
    v_mov_b32 v25, {ALT}
    v_mov_b32 v26, {ALT}
    v_mov_b32 v27, {ALT}
    """)
    srd(a, 4, 88, 3584*1024*2)
    g2_wpre(a, [(8, 4)])
    a("s_waitcnt vmcnt(2)\n v_cmp_ne_u32 vcc, s98, v56\n v_cmp_ne_u32 s[28:29], s99, v57\n s_or_b64 vcc, vcc, s[28:29]\n s_cbranch_scc0 L_s2_ok")
    poll(a, [('s23', '0xff')], gap=2, cnt=8)
    a("L_s2_ok:")
    stamp(a, 4)
    a(f"s_lshl_b32 s22, s67, 9\n s_add_u32 s22, s22, {WS_RV}\n s_cmp_eq_u32 s30, 0\n s_cselect_b32 s23, 1.0, 0")
    a("s_cselect_b32 s75, 0, -1.0\n s_mov_b32 s74, s23")
    acc_load(a, 2, 192, 22, 7)
    acc_load(a, 2, 200, 22, 7, 2048)
    dloop(a, 'd2a', 2, 0, (20, 80), extra=True, init=lambda: stamp(a, 14))
    stamp(a, 15)
    dloop(a, 'd2b', 2, 64, (8, 4), first=False, inc=64*2048)
    stamp(a, 16)
    a("s_waitcnt lgkmcnt(0)\n s_nop 7")
    a(f"""
    v_and_b32 v2, 15, v1
    v_lshlrev_b32 v20, 6, v2
    v_lshrrev_b32 v3, 4, v1
    v_and_b32 v4, 1, v3
    v_lshl_add_u32 v20, v4, 5, v20
    v_lshrrev_b32 v4, 1, v3
    v_lshl_add_u32 v20, v4, 4, v20
    v_lshlrev_b32 v21, 3, v3
    s_lshl_b32 s22, s67, 2
    s_add_u32 s22, s22, s3
    s_mul_i32 s22, s22, {EGS}
    s_mul_i32 s27, s30, {TPS}
    s_add_u32 s22, s22, s27
    s_add_u32 s22, s22, {WS_Y}
    s_and_b32 s26, s66, 3
    s_lshl_b32 s26, s26, 13
    s_add_u32 s25, s22, s26
    """)
    a("v_lshlrev_b32 v3, 31, v1")
    for i in range(8): a(f"v_mul_f32 v{192+i}, s74, v{192+i}\n v_mul_f32 v{200+i}, s75, v{200+i}")
    for i in range(8): a(f"v_sub_f32 v{208+i}, v{192+i}, v{200+i}\n v_add_f32 v{216+i}, v{192+i}, v{200+i}")
    for i in range(16): a(f"v_xor_b32 v{208+i}, v3, v{208+i}")
    for nb in range(8):
        t = 8 + (nb & 1)*8; P = 64 + nb*8; Qr = 128 + nb*8
        for i in range(0, 8, 2): a(pk('', 48+i, P+i, Qr+i, neg=True)); a(pk('', P+i, P+i, Qr+i))
        for i in range(0, 8, 2): a(pk('', 48+i, 48+i, 208+i)); a(pk('', P+i, P+i, 216+i))
        for i in range(4): a(f"v_cvt_pk_bf16_f32 v{t+24+i}, v{48+2*i}, v{49+2*i}\n v_cvt_pk_bf16_f32 v{t+28+i}, v{P+2*i}, v{P+2*i+1}")
        a("s_nop 1")
        for p in range(2):
            a(f"v_permlane16_swap_b32 v{t+24+4*p}, v{t+26+4*p}\n v_permlane16_swap_b32 v{t+25+4*p}, v{t+27+4*p}")
        for p in range(2):
            a(f"s_add_u32 s26, s25, {nb*1024 + p*YD}")
            a(f"buffer_store_dwordx4 v[{t+24+4*p}:{t+27+4*p}], v20, s[12:15], s26 offen sc1")
    a("s_cmp_eq_u32 s31, 0\n s_cbranch_scc1 L_dft_nox")
    for i in range(0, 8, 2): a(pk('', 240+i, 240+i, 192+i))
    for i in range(4): a(f"v_cvt_pk_bf16_f32 v{56+i}, v{240+2*i}, v{241+2*i}")
    a(f"s_add_u32 s26, s22, {512*64}\n s_add_u32 s27, s26, {YD}\n s_mov_b32 exec_lo, 0x00010001\n s_mov_b32 exec_hi, 0x00010001")
    for mb in range(2):
        a(f"buffer_store_dwordx2 v[{56+2*mb}:{57+2*mb}], v21, s[12:15], s26 offen offset:{mb*32} sc1\n buffer_store_dwordx2 v[{56+2*mb}:{57+2*mb}], v21, s[12:15], s27 offen offset:{mb*32} sc1")
    a("s_mov_b64 exec, -1\nL_dft_nox:")
    stamp(a, 17)
    a(f"s_lshl_b32 s23, s66, 2\n s_add_u32 s23, s23, s67\n s_lshl_b32 s23, s23, 7\n s_add_u32 s23, s23, {WS_FL+32768}")
    a(f"s_cmp_eq_u32 s3, 0\n s_cselect_b32 s87, s23, {OOB}\n s_mov_b32 s68, {OOB}")
    g2_pre(a, True)
    a("s_waitcnt vmcnt(16)\n s_barrier")
    stamp(a, 18)
    poll(a, [('s44', '3')], vb=192, gap=opt.dgap, cnt=2)
    h_chunk(a, 0)
    a("s_waitcnt vmcnt(0)")
    stamp(a, 5)


def common_setup(a):
    a(f"s_add_u32 s28, s48, {WS_FL}\n s_addc_u32 s29, s49, 0\n s_load_dword s98, s[28:29], 0")
    srd(a, 12, 48, WS_SZ)
    g2_ids(a)

def kern():
    a = Asm()
    a(f"""
    s_cmp_ge_u32 s2, 256
    s_cbranch_scc1 L_end
    s_load_dwordx2 s[40:41], s[0:1], 0
    s_load_dwordx4 s[44:47], s[0:1], 48
    s_load_dwordx2 s[48:49], s[0:1], 96
    s_load_dwordx2 s[88:89], s[0:1], 64
    s_load_dwordx2 s[42:43], s[0:1], 80
    s_load_dwordx8 s[52:59], s[0:1], 8
    s_load_dwordx2 s[60:61], s[0:1], 72
    s_getpc_b64 s[28:29]
    s_lshr_b32 s27, s2, 3
    s_mul_i32 s26, s27, {CODE_LINES*128}
    v_lshlrev_b32 v2, 7, v0
    v_add_u32 v2, s26, v2
    v_cmp_gt_u32 vcc, {CODE_LINES}, v0
    s_and_saveexec_b64 s[30:31], vcc
    s_cbranch_execz L_nocp
    global_load_dword a255, v2, s[28:29]
    L_nocp:
    s_mov_b64 exec, s[30:31]
    v_and_b32 v1, 63, v0
    v_lshrrev_b32 v2, 6, v0
    s_and_b32 s66, s2, 7
    v_readfirstlane_b32 s3, v2
    s_lshr_b32 s27, s2, 3
    s_sub_u32 s67, s27, 28
    s_and_b32 s24, s66, 1
    s_lshl_b32 s24, s24, 2
    s_and_b32 s68, s27, 3
    s_add_u32 s24, s24, s68
    s_lshr_b32 s25, s66, 1
    s_mul_i32 s25, s25, 7
    s_lshr_b32 s69, s27, 2
    s_add_u32 s25, s25, s69
    """)
    stamp(a, 0)
    if opt.spin: a("s_memrealtime s[100:101]")
    a("s_lshr_b32 s27, s2, 3\n s_cmp_ge_u32 s27, 28\n s_cbranch_scc1 L_dft")
    gemm1(a)
    a("s_branch L_g2")
    a("L_dft:")
    if opt.xdft: a("s_branch L_end")
    dft(a)
    gemm2(a)
    a("L_end:")
    if opt.spin:
        a(f"s_cmp_lg_u32 s2, 0\n s_cbranch_scc1 L_end3\n L_spin:\n s_memrealtime s[92:93]\n s_waitcnt lgkmcnt(0)\n s_sub_u32 s92, s92, s100\n s_cmp_lt_u32 s92, {opt.spin}\n s_cbranch_scc1 L_spin\n L_end3:")
    if opt.stamp:
        a("s_cmp_ge_u32 s2, 256\n s_cbranch_scc1 L_end2\n s_mov_b64 exec, -1")
        srd(a, 12, 48, WS_SZ)
        stamp(a, 8)
        if opt.amp is not None:
            a(f"s_cmp_lg_u32 s2, {opt.ampwg}\n s_cbranch_scc1 L_amp_d\n v_readlane_b32 s20, v31, {40+opt.amp}\n v_readlane_b32 s21, v31, 40\n v_readlane_b32 s22, v31, 48\n s_sub_u32 s20, s20, s21\n s_lshl_b32 s20, s20, 3")
            a("L_amp:\n s_memrealtime s[92:93]\n s_waitcnt lgkmcnt(0)\n s_sub_u32 s92, s92, s22\n s_cmp_lt_u32 s92, s20\n s_cbranch_scc1 L_amp\n L_amp_d:")
        else: stamp_flush(a, 0)
        if opt.dbgmax:
            a("s_load_dwordx2 s[28:29], s[0:1], 88\n v_subrev_u32 v2, 40, v1\n v_lshlrev_b32 v2, 2, v2\n v_not_b32 v3, v31\n v_cmp_eq_u32 vcc, 40, v1\n s_nop 1\n v_cndmask_b32 v31, v31, v3, vcc")
            a("s_lshr_b32 s27, s2, 3\n s_cmp_ge_u32 s27, 28\n s_cbranch_scc1 L_dm_d\n s_mov_b32 exec_lo, 0\n s_mov_b32 exec_hi, 0x1ff00\n s_branch L_dm_go\n L_dm_d:")
            for k, w in ((1, 9), (2, 10), (3, 11), (4, 12), (16, 13), (18, 14), (0, 15)):
                a(f"v_mov_b32 v3, {4*w}\n v_cmp_eq_u32 vcc, {40+k}, v1\n s_nop 1\n v_cndmask_b32 v2, v2, v3, vcc")
            m = sum(1 << (8+k) for k in (0, 1, 2, 3, 4, 16, 18))
            a(f"s_mov_b32 exec_lo, 0\n s_mov_b32 exec_hi, {m}\n L_dm_go:\n s_waitcnt lgkmcnt(0)\n global_atomic_umax v2, v31, s[28:29] sc1\n s_waitcnt vmcnt(0)")
        a("L_end2:")
    return kernel(KN, a.text(), vgpr=256, agpr=256)

KN = 'gated_mix__spectral_fnet__geglu_ffn__prompt_kernel'
def main():
    fn = sys.argv[1]
    for o in sys.argv[2:]:
        k, v = o.split('=', 1)
        setattr(opt, k, eval(v))
    c, d = kern()
    hdr = open('gated_mix__spectral_fnet__geglu_ffn__prompt.s.ref').read().split('; Override launch')[0]
    src = hdr + f'; @launch grid=(256,1,1) block=(256,1,1) lds={R1*SLOT1}\n.amdgcn_target "amdgcn-amd-amdhsa--gfx950"\n' + c + '.text\n.fill 3072, 4, 0xbf800000\n' + d
    open(fn, 'w').write(src)
if __name__ == '__main__': main()
```

```python
import sys, math, struct
from ab import *

WS_H   = 0
HS     = 262144
WS_Z   = (16 << 20) + 65536
WS_AT  = (18 << 20) + 131072
WS_Y   = (20 << 20) + 196608
YD     = 2 << 20
EGS    = 528*64
TPS    = 17*EGS
WS_LP  = (24 << 20) + 131072
WS_UP  = WS_LP + 32768
WS_CV  = WS_UP + 32768
WS_RV  = WS_CV + 4096
WS_FL  = 25 << 20
WS_XB  = 26 << 20
XBS    = 4224
WS_TS  = 40 << 20
WS_SZ  = 256 << 20
OOB = 0x40000000
ALT = 0xBF803F80
R1 = 5; SLOT1 = 32768
R2 = 8; SLOT2 = 16384
R3 = 8; SLOT3 = 16384
MF = "v_mfma_f32_16x16x32_bf16"
class Opt: pass
opt = Opt()
opt.stamp = False; opt.trace = False; opt.hflags = 'sc1'; opt.psleep = 4; opt.order = 3; opt.tlb = True; opt.smem = True; opt.dbgmax = False; opt.spread = False; opt.noloop = 0; opt.prefill = True; opt.pfn = (0, 40, 120); opt.ps = 1; opt.il2 = True; opt.dgap = 2; opt.xgap = 1; opt.xs = True; opt.amp = None; opt.ampwg = 3; opt.notw = 1; opt.nofold = 0; opt.shift = 0; opt.dm2 = (5, 11); opt.pw = 0; opt.prepos = 1; opt.xdft = 0; opt.nf = 3; opt.pub = 1; opt.r3 = 0; opt.r2 = 1; opt.r2b = False; opt.nox = True; opt.nt_fold = ''; opt.nt_w = ''; opt.nt_c = ''; opt.fmask = 0xffff; opt.x2 = 0; opt.rdo = [1,1,2,2,3,3,4,4,5,5,6,6,7,7,9,9]; opt.rde = [0,0,1,1,2,2,3,3,4,5,6,7,9,10,11,12]; opt.dmo = [3, 7]; opt.HS = 229376; opt.tlb2 = False; opt.g2gap = 2; opt.spin = 0; opt.oflags = ''; opt.g2touch = False; opt.tflags = ''; opt.killw = None
fbits = lambda x: struct.unpack('<I', struct.pack('<f', x))[0]
CODE_LINES = int(__import__("os").environ.get("CL", 16))

def srd(a, d, base, size):
    a(f"s_mov_b32 s{d}, s{base}\n s_and_b32 s{d+1}, s{base+1}, 0xffff\n s_mov_b32 s{d+2}, {size}\n s_mov_b32 s{d+3}, 0x20000")
def srd_ws(a, d, soff, size):
    a(f"s_add_u32 s{d}, s48, s{soff}\n s_addc_u32 s{d+1}, s49, 0\n s_and_b32 s{d+1}, s{d+1}, 0xffff\n s_mov_b32 s{d+2}, {size}\n s_mov_b32 s{d+3}, 0x20000")
def interleave(a, mfmas, fill):
    for s in fill.get(-1, []): a(s)
    for i, m in enumerate(mfmas):
        a(m)
        for s in fill.get(i, []): a(s)
def lab(a, p): return f"L_{p}_{len(a.l)}"

def stamp(a, idx):
    if not opt.stamp: return
    a(f"s_memrealtime s[92:93]\n s_memtime s[94:95]\n s_waitcnt lgkmcnt(0)\n v_writelane_b32 v31, s92, {40+idx}\n v_writelane_b32 v30, s94, {40+idx}")
def trace_ops(sidx):
    return ["s_memtime s[92:93]", "s_memrealtime s[94:95]", "s_waitcnt lgkmcnt(0)", f"v_cmp_eq_u32 vcc, {sidx}, v1", "v_mov_b32 v6, s92", "v_mov_b32 v7, s94",
            "v_cndmask_b32 v30, v30, v6, vcc", "v_cndmask_b32 v31, v31, v7, vcc"]
def stamp_flush(a, half):
    if not opt.stamp: return
    a(f"s_lshl_b32 s90, s2, 2\n s_add_u32 s90, s90, s3\n s_lshl_b32 s90, s90, 9\n s_add_u32 s90, s90, {WS_TS + half*524288}")
    a(f"v_lshlrev_b32 v29, 3, v1\n buffer_store_dwordx2 v[30:31], v29, s[12:15], s90 offen")

def nonce(a):
    a("s_mul_i32 s98, s98, 0x9E3779B1\n s_add_u32 s98, s98, 0x7F4A7C15\n s_xor_b32 s99, s98, 0x5bd1e995")
def started(a, vt=2):
    L = lab(a, 'st0')
    a(f"s_cmp_lg_u32 s3, 0\n s_cbranch_scc1 {L}\n s_lshl_b32 s26, s2, 7\n s_add_u32 s26, s26, {WS_FL+393216}")
    flag_store(a, 's26', vt)
    a(f"{L}:")
def flag_store(a, soff, vt=2):
    a(f"""
    v_lshlrev_b32 v{vt}, 3, v1
    v_mov_b32 v{vt+2}, s98
    v_mov_b32 v{vt+3}, s99
    s_mov_b64 exec, {opt.fmask}
    buffer_store_dwordx2 v[{vt+2}:{vt+3}], v{vt}, s[12:15], {soff} offen sc1
    s_mov_b64 exec, -1
    """)
def publish(a, soff):
    a("s_waitcnt vmcnt(0)\n s_barrier")
    L = lab(a, 'pub')
    a(f"s_cmp_lg_u32 s3, 0\n s_cbranch_scc1 {L}")
    flag_store(a, soff)
    a(f"{L}:")
def poll(a, items, vb=48, gap=1, cnt=56, voff=6):
    L = lab(a, 'poll'); n = len(items)
    def issue(k):
        for i, (so, mk) in enumerate(items): a(f"buffer_load_dwordx2 v[{vb+2*(k*n+i)}:{vb+2*(k*n+i)+1}], v{voff}, s[12:15], {so} offen sc1")
    if voff == 6: a(f"v_cmp_gt_u32 vcc, {cnt}, v1\n v_lshlrev_b32 v6, 7, v1\n v_mov_b32 v7, {OOB}\n v_cndmask_b32 v6, v7, v6, vcc")
    a("s_mov_b32 s27, 0")
    issue(0); a(f"s_sleep {opt.psleep}"); issue(1); a(f"s_sleep {opt.psleep}");
    a(f"{L}:")
    for k in range(3):
        issue((k+2) % 3)
        a(f"s_waitcnt vmcnt({2*n})")
        for i, (so, mk) in enumerate(items):
            r = vb + 2*(k*n+i)
            a(f"v_cmp_ne_u32 vcc, s98, v{r}\n v_cmp_ne_u32 s[28:29], s99, v{r+1}\n s_or_b64 vcc, vcc, s[28:29]")
            a(f"s_and_b64 {'s[64:65]' if i == 0 else 'vcc'}, vcc, {mk}")
            if i: a("s_or_b64 s[64:65], s[64:65], vcc")
        a(f"s_cbranch_scc0 {L}_done\n s_sleep {gap}")
    a(f"""
    s_add_u32 s27, s27, 1
    s_cmp_lt_u32 s27, 0x20000
    s_cbranch_scc1 {L}
    {L}_done:
    """)
def reduce_lanes(a, regs, tmp, steps):
    for st in steps:
        if st.startswith('ror'):
            a("s_nop 1")
            for r in regs: a(f"v_add_f32_dpp v{r}, v{r}, v{r} row_ror:{st[3:]} row_mask:0xf bank_mask:0xf")
        else:
            for i, r in enumerate(regs): a(f"v_mov_b32 v{tmp+i}, v{r}")
            a("s_nop 1")
            for i, r in enumerate(regs): a(f"v_permlane{st[1:]}_swap_b32 v{r}, v{tmp+i}")
            a("s_nop 1")
            for i, r in enumerate(regs): a(f"v_add_f32 v{r}, v{r}, v{tmp+i}")
def unp(dst, src, j):
    return f"v_lshlrev_b32 v{dst}, 16, v{src+j//2}" if j % 2 == 0 else f"v_and_b32 v{dst}, 0xffff0000, v{src+j//2}"
def pk(op, d, x, y, neg=False):
    return f"v_pk_add_f32 v[{d}:{d+1}], v[{x}:{x+1}], v[{y}:{y+1}]" + (" neg_lo:[0,1] neg_hi:[0,1]" if neg else "")

def tlb_setup(a, vd):
    a(f"""
    s_mov_b32 s76, s48
    s_mov_b32 s77, s49
    s_mov_b32 s78, {26 << 20}
    s_cmp_eq_u32 s3, 1
    s_cselect_b32 s76, s42, s76
    s_cselect_b32 s77, s43, s77
    s_cselect_b32 s78, {4 << 20}, s78
    s_cmp_eq_u32 s3, 2
    s_cselect_b32 s76, s88, s76
    s_cselect_b32 s77, s89, s77
    s_cselect_b32 s78, {3584*2048}, s78
    s_cmp_eq_u32 s3, 3
    s_cselect_b32 s76, s52, s76
    s_cselect_b32 s77, s53, s77
    s_cselect_b32 s78, {5 << 20}, s78
    s_and_b32 s77, s77, 0xffff
    s_mov_b32 s79, 0x20000
    v_lshlrev_b32 v{vd}, 20, v1
    v_add_u32 v{vd}, {(1 << 20) - 128}, v{vd}
    v_cmp_eq_u32 vcc, 16, v1
    v_mov_b32 v2, {(16 << 20) + 128}
    s_nop 0
    v_cndmask_b32 v{vd}, v{vd}, v2, vcc
    v_cmp_le_u32 vcc, 17, v1
    v_mov_b32 v2, {(18 << 20) + 65536 + 128}
    s_nop 0
    v_cndmask_b32 v{vd}, v{vd}, v2, vcc
    v_cmp_le_u32 vcc, 18, v1
    v_lshlrev_b32 v2, 21, v1
    v_subrev_u32 v2, {(18 << 21) - ((22 << 20) - 128)}, v2
    v_cndmask_b32 v{vd}, v{vd}, v2, vcc
    """)

class VM:
    def __init__(s): s.ops = []
    def add(s, tag, n=1): s.ops += [tag]*n
    def wait(s, a, tag, extra=""):
        last = max(i for i, t in enumerate(s.ops) if t == tag)
        a(f"s_waitcnt vmcnt({min(63, len(s.ops)-1-last)}) {extra}")
def fillers(A):
    out = []; grp = None
    for x in (y.strip() for y in A.l):
        if not x: continue
        if grp is not None:
            grp.append(x)
            if x == 's_mov_b64 exec, -1' or (x.startswith('s_cselect') and 'exec' not in x and not any('exec' in y for y in grp)):
                out.append('\n'.join(grp)); grp = None
        elif x.startswith('s_cselect'): out[-1] += '\n' + x
        elif 'exec' in x or x.startswith('s_cmp'): grp = [x]
        else: out.append(x)
    assert grp is None
    return out
V_WX, V_WD, V_L16, V_LDS, V_TMP, V_OOB, V_F64, V_FJ, V_S4, V_H1, V_OUT, V_Y, V_LP, AD = 96, 100, 104, 105, 106, 107, 108, 109, 110, 111, 112, 114, 119, 120
def w_voff(a, vb, wshift, t=2):
    a(f"""
    v_lshrrev_b32 v{t+1}, 4, v1
    s_lshl_b32 s26, s3, {wshift}
    v_add_u32 v{t}, s26, v{t+1}
    v_lshlrev_b32 v{t}, 11, v{t}
    v_add_u32 v{t}, s27, v{t}
    v_lshlrev_b32 v{t+1}, 1, v{t+1}
    v_and_b32 v{vb}, 15, v1
    v_xor_b32 v{t+1}, v{t+1}, v{vb}
    v_lshl_add_u32 v{vb}, v{t+1}, 4, v{t}
    v_xor_b32 v{t+1}, 8, v{t+1}
    v_lshl_add_u32 v{vb+1}, v{t+1}, 4, v{t}
    v_add_u32 v{vb+2}, {2*(4*2048-1024)}, v{vb}
    v_add_u32 v{vb+3}, {3*(4*2048-1024)}, v{vb+1}
    v_add_u32 v{vb+1}, {1*(4*2048-1024)}, v{vb+1}
    """)
def g2_ids(a):
    a("""
    s_lshr_b32 s27, s2, 3
    s_and_b32 s50, s2, 1
    s_lshl_b32 s50, s50, 2
    s_and_b32 s26, s27, 3
    s_add_u32 s50, s50, s26
    s_lshr_b32 s51, s27, 2
    s_bfe_u32 s96, s2, 0x20001
    """)
def g2_wpre(a, variants):
    a(f"s_mul_i32 s27, s96, {896*2048}\n s_lshl_b32 s26, s51, 8\n s_add_u32 s27, s27, s26")
    for vb, sh in variants: w_voff(a, vb, sh)
SPOS = [40, 41, 42, 43, 76, 77, 78]
OWNL = 98304
def g2_pre(a, dft):
    srd(a, 52, 42, 2048*1024*2)
    srd(a, 32, 88, 3584*1024*2)
    g2_wpre(a, [(V_WD, 4)] if dft else [(V_WX, 5), (V_WD, 4)])
    a(f"s_lshl_b32 s27, s50, 2\n s_add_u32 s27, s27, s3\n s_lshl_b32 s27, s27, 1\n s_mul_i32 s27, s27, {opt.HS}\n s_mul_i32 s26, s96, 57344\n s_add_u32 s27, s27, s26")
    srd_ws(a, 56, 27, opt.HS + 57344)
    a("s_mov_b32 s45, 0" if dft else "s_mov_b32 s45, s51")
    a(f"s_lshl_b32 s40, s45, 18\n s_lshr_b32 s79, s96, 1\n s_mul_i32 s79, s79, {opt.HS}")
    for p in range(1, 7): a(f"s_cmp_le_u32 s45, {p-1}\n s_mov_b32 s{SPOS[p]}, {(p-1) << 18}\n s_cselect_b32 s{SPOS[p]}, {p << 18}, s{SPOS[p]}")
    a(f"""
    v_lshlrev_b32 v{V_L16}, 4, v1
    v_mov_b32 v{V_OOB}, {OOB}
    v_lshrrev_b32 v3, 4, v1
    v_lshrrev_b32 v4, 2, v1
    v_and_b32 v4, 3, v4
    v_lshl_add_u32 v5, v3, 2, v4
    v_and_b32 v6, 7, v5
    s_and_b32 s26, s96, 1
    s_lshl_b32 s26, s26, 2
    v_xor_b32 v6, s26, v6
    v_lshlrev_b32 v5, 8, v5
    v_lshl_add_u32 v5, v6, 5, v5
    v_and_b32 v7, 3, v1
    v_lshl_add_u32 v{V_LDS}, v7, 3, v5
    s_lshl_b32 s26, s50, 1
    s_lshr_b32 s27, s3, 1
    s_add_u32 s26, s26, s27
    s_lshl_b32 s26, s26, 13
    s_mul_i32 s44, s96, {14*128}
    s_add_u32 s44, s44, s26
    s_add_u32 s44, s44, {WS_FL+65536}
    v_lshlrev_b32 v{V_F64}, 7, v1
    v_and_b32 v{V_S4}, 31, v1
    v_lshlrev_b32 v{V_S4}, 7, v{V_S4}
    v_add_u32 v{V_S4}, {WS_FL+32768}, v{V_S4}
    v_lshrrev_b32 v2, 1, v1
    v_cmp_le_u32 vcc, s45, v2
    v_add_u32 v3, 1, v2
    v_and_b32 v4, 1, v1
    v_cndmask_b32 v2, v2, v3, vcc
    v_cmp_gt_u32 vcc, 12, v1
    v_lshl_add_u32 v2, v2, 1, v4
    v_lshlrev_b32 v2, 7, v2
    v_cndmask_b32 v{V_FJ}, v{V_OOB}, v2, vcc
    s_lshl_b32 s70, s3, 13
    s_add_u32 s70, s70, {WS_FL+393216}
    s_cmp_eq_u32 s2, 0
    s_cselect_b32 s70, s70, {OOB}
    s_cselect_b64 s[60:61], -1, 0
    s_lshl_b32 s26, s2, 2
    s_add_u32 s26, s26, s3
    s_mul_i32 s71, s26, 12288
    s_add_u32 s71, s71, {WS_XB}
    s_lshl_b32 s69, s26, 7
    s_add_u32 s69, s69, {WS_FL+262144}
    """)
    for mb in range(8): a(f"v_xor_b32 v{AD+mb}, {mb*32}, v{V_LDS}")
    a(f"""
    s_lshl_b32 s64, s51, 1
    s_and_b32 s26, s96, 1
    s_add_u32 s64, s64, s26
    s_lshl_b32 s26, s50, 8
    s_lshl_b32 s27, s3, 6
    s_add_u32 s27, s26, s27
    s_lshr_b32 s26, s96, 1
    s_lshl_b32 s26, s26, 5
    s_add_u32 s27, s27, s26
    v_and_b32 v2, 15, v1
    v_add_u32 v2, s27, v2
    v_lshlrev_b32 v{V_LP}, 4, v2
    v_add_u32 v{V_LP}, {WS_LP}, v{V_LP}
    v_lshlrev_b32 v2, 11, v2
    v_lshrrev_b32 v3, 4, v1
    v_and_b32 v4, 1, v3
    v_lshl_add_u32 v2, v4, 5, v2
    v_lshrrev_b32 v4, 1, v3
    v_lshl_add_u32 v2, v4, 4, v2
    s_lshl_b32 s26, s64, 7
    v_add_u32 v{V_OUT}, s26, v2
    v_add_u32 v{V_OUT+1}, 32768, v{V_OUT}
    s_lshl_b32 s26, s64, 1
    s_sub_u32 s65, 30, s26
    s_cmp_ge_u32 s64, 8
    s_cselect_b64 s[46:47], -1, 0
    s_cselect_b32 s65, s65, s26
    s_mul_i32 s65, s65, {EGS}
    s_add_u32 s65, s65, {WS_Y}
    s_mov_b32 s26, {TPS}
    """)
    for j in range(5):
        if j < 4: a(f"v_lshrrev_b32 v2, 2, v1\n v_lshl_add_u32 v2, v2, 1, {j&1}\n v_and_b32 v3, 3, v1\n v_lshlrev_b32 v3, 4, v3\n v_add_u32 v3, {(j>>1)*EGS}, v3")
        else: a(f"v_and_b32 v2, 31, v1\n v_mov_b32 v3, {2*EGS}")
        a(f"""
        v_add_u32 v2, s27, v2
        v_sub_u32 v4, 2048, v2
        v_min_u32 v4, v4, v2
        v_cmp_lt_u32 vcc, 1024, v2
        v_and_b32 v5, 1, v4
        v_mul_lo_u32 v5, v5, s26
        v_lshrrev_b32 v4, 1, v4
        v_lshl_add_u32 v4, v4, 6, v5
        s_xor_b64 vcc, vcc, s[46:47]
        v_add3_u32 v4, v4, v3, s65
        v_add_u32 v5, {YD}, v4
        v_cndmask_b32 v{V_Y+j}, v4, v5, vcc
        """)
def g2_zero(a, z, lo, hi):
    for i in range(lo, hi): a(f"v_mfma_f32_32x32x16_bf16 a[{16*i}:{15+16*i}], v[{z}:{z+3}], v[{z}:{z+3}], 0")
def fl_bad(a, r, mask):
    a(f"v_cmp_ne_u32 vcc, s98, v{r}\n v_cmp_ne_u32 s[28:29], s99, v{r+1}\n s_or_b64 vcc, vcc, s[28:29]\n s_and_b64 vcc, vcc, {mask}")
HB = 128
def h_base(p): return [f"s_lshr_b32 s16, s{SPOS[p]}, 5", f"s_sub_u32 s25, s16, s79", "s_add_u32 s16, s16, s79", f"s_add_u32 s25, s25, {opt.HS}"]
def h_load(half, st, nb, v=V_L16):
    r = HB + 64*half + 16*st + 4*nb
    return f"buffer_load_dwordx4 v[{r}:{r+3}], v{v}, s[56:59], s{(16, 25)[nb >> 1]} offen offset:{(st & 1)*2048 + (nb & 1)*1024} sc1"
def h_chunk(a, p, v=V_L16):
    for x in h_base(p): a(x)
    for st in range(4):
        for nb in range(4): a(h_load(p & 1, st, nb, v))
        if st == 1: a("s_add_u32 s16, s16, 4096\n s_add_u32 s25, s25, 4096")

def gemm2(a):
    WF = 32; PV = 192
    vm = VM()
    def dma(): return [f"buffer_load_dwordx4 v{V_WD+i}, s[32:35], s17 offen offset:{i*1024} lds" for i in range(4)]
    def wreads(st, off, mbs=range(8), base=None):
        r = []
        for k, mb in enumerate(mbs):
            b = (WF + st*32 + mb*4) if base is None else base + 4*k
            r.append(f"ds_read_b64_tr_b16 v[{b}:{b+1}], v{AD+mb} offset:{off}")
            r.append(f"ds_read_b64_tr_b16 v[{b+2}:{b+3}], v{AD+mb} offset:{off+4096}")
        return r
    def sample(): a(f"buffer_load_dwordx2 v[24:25], v{V_FJ}, s[12:15], s44 offen sc1"); vm.add('smp')
    def pmask(p): return 3 << (2*(p-1))
    rare = []
    a("L_g2:"); vm.add('own')
    if opt.ps == 0: sample()
    a(f"buffer_load_dwordx2 v[18:19], v{V_F64}, s[12:15], s70 offen sc1"); vm.add('ep')
    for x in wreads(0, 0): a(x)
    a(f"s_lshl_b32 s21, s3, 12\n v_mov_b32 v26, s98\n v_mov_b32 v27, s99\n v_and_b32 v23, 15, v1\n v_lshlrev_b32 v23, 3, v23")
    stamp(a, 6)
    OD = [(nb, mb) for nb in range(4) for mb in (range(4) if nb % 2 == 0 else range(3, -1, -1))] + [(nb, 4+mb) for nb in range(3, -1, -1) for mb in (range(4) if nb % 2 else range(3, -1, -1))]
    def step(T, loads):
        p = T & 1; pos = T >> 2; st = T & 3; slot = T >> 1
        if pos >= 2: vm.wait(a, f'h{T}', "lgkmcnt(8)")
        else: a("s_waitcnt lgkmcnt(8)")
        ms = []
        for nb, mb in OD:
            b = WF + p*32 + mb*4; c = (nb*8+mb)*4; h = HB + 64*(pos & 1) + 16*st + 4*nb
            ms.append(f"{MF} a[{c}:{c+3}], v[{b}:{b+3}], v[{h}:{h+3}], a[{c}:{c+3}]")
        f = {k: [] for k in range(32)}
        for k, x in enumerate(wreads(p ^ 1, (p ^ 1)*8192)): f[2*k].append(x)
        f[15].append("s_waitcnt lgkmcnt(8)")
        g = slot + 5
        ops = []
        if 6 <= g <= 13: ops += [(opt.dm2[0], dma()[2*p], f'w{g}'), (opt.dm2[1], dma()[2*p+1], f'w{g}')]
        if loads:
            if st == 0:
                hb = h_base(pos+2); f[1] += hb[:2]; f[3] += hb[2:]
            ops += [(19+4*k, h_load(pos & 1, st, nb), f'h{T+8}') for k, nb in enumerate((3, 2, 1, 0))]
            if st == 1: f[31].append("PLACEHOLDER")
        if p == 1:
            need = slot + 2
            f[16].append("BARRIER")
            if 6 <= g+1 <= 13:
                f[17] += [f"s_add_u32 m0, s21, {((g+1) % 8)*SLOT2}", f"s_add_u32 s17, s{SPOS[(g+1) >> 1]}, {((g+1) & 1)*64*2048}"]
        else:
            f[7].append(f"v_add_u32 v{V_TMP}, {((slot+1) % 8)*SLOT2}, v{V_LDS}")
            for mb in range(8): f[max(4*mb+3, 9+mb)].append(f"v_xor_b32 v{AD+mb}, {mb*32}, v{V_TMP}")
        if T in (4, 5) and opt.il2:
            if T == 4: a(f"s_lshr_b32 s22, s{SPOS[2]}, 5\n s_sub_u32 s24, s22, s79\n s_add_u32 s22, s22, s79\n s_add_u32 s24, s24, {opt.HS}")
            else: a("s_add_u32 s22, s22, 4096\n s_add_u32 s24, s24, 4096")
            for k in range(8):
                s2 = 2*(T-4) + (k >> 2)
                ops.append((1 + 4*k if k != 1 else 8, h_load(0, s2, k & 3).replace(', s16 ', ', s22 ').replace(', s25 ', ', s24 '), f'h{8+s2}'))
        ops.sort(key=lambda o: o[0])
        for i, m in enumerate(ms):
            a(m)
            for x in f[i]:
                if x == "BARRIER":
                    if f'w{slot+2}' in vm.ops: vm.wait(a, f'w{slot+2}')
                    a("s_barrier")
                elif x != "PLACEHOLDER": a(x)
            for gp, x, tag in ops:
                if gp == i: a(x); vm.add(tag)
            if "PLACEHOLDER" in f[i]: a("s_add_u32 s16, s16, 4096\n s_add_u32 s25, s25, 4096")
    step(0, False)
    vm.wait(a, 'own'); a("buffer_store_dwordx2 v[26:27], v23, s[12:15], s68 offen sc1"); vm.add('fl')
    step(1, False)
    a("buffer_store_dwordx2 v[26:27], v23, s[12:15], s87 offen sc1"); vm.add('fl4')
    def try1():
        fl_bad(a, 24, pmask(1))
        a(f"s_cselect_b32 s31, 1, 0\n s_cselect_b32 s26, {OOB}, 0\n v_add_u32 v{V_H1}, s26, v{V_L16}")
        h_chunk(a, 1, V_H1); vm.add('p1', 16)
    if opt.ps == 0:
        vm.wait(a, 'ep'); try1(); sample(); step(2, False); step(3, False)
    elif opt.ps == 1:
        sample(); step(2, False); vm.wait(a, 'smp'); try1(); sample(); step(3, False)
    else:
        a("s_mov_b32 s31, 1"); step(2, False); sample(); step(3, False)
    stamp(a, 19)
    vm.wait(a, 'smp')
    fl_bad(a, 24, pmask(1) | pmask(2) | pmask(3))
    a("s_cbranch_scc1 L_g2_late0\n s_cmp_lg_u32 s31, 0\n s_cbranch_scc1 L_g2_redo\n L_g2_cont0:")
    fl_bad(a, 18, "s[60:61]")
    a("s_cbranch_scc1 L_g2_ep\n L_g2_cont1:")
    stamp(a, 20)
    if not opt.il2:
        for x in h_base(2): a(x)
        for st in range(4):
            for nb in range(4): a(h_load(0, st, nb)); vm.add(f'h{8+st}')
            if st == 1: a("s_add_u32 s16, s16, 4096\n s_add_u32 s25, s25, 4096")
    sample()
    for pos in range(1, 6):
        if 2 <= pos <= 4:
            vm.wait(a, 'smp')
            fl_bad(a, 24, pmask(pos+2))
            a(f"s_cbranch_scc1 L_g2_late{pos}\n L_g2_cont{pos}x:")
            rare.append(pos)
            if pos < 4: sample()
        if pos == 2:
            a(f"s_or_b32 s26, s2, s3\n s_cmp_eq_u32 s26, 0\n s_mov_b32 s68, {OOB}\n s_cselect_b32 s68, {WS_FL}, s68\n buffer_store_dwordx2 v[26:27], v23, s[12:15], s68 offen sc1"); vm.add('eps')
        if pos == 4:
            a(f"buffer_load_dwordx2 v[18:19], v{V_S4}, s[12:15], 0 offen sc1"); vm.add('s4')
        if pos == 5:
            vm.wait(a, 's4')
            fl_bad(a, 18, -1)
            a("s_cbranch_scc1 L_g2_s4\n L_g2_s4ok:")
            a(f"buffer_load_dwordx4 a[160:163], v{V_LP}, s[12:15], 0 offen sc1\n buffer_load_dwordx4 a[164:167], v{V_LP}, s[12:15], 0 offen offset:256 sc1")
            for j in range(4): a(f"buffer_load_dwordx4 a[{136+4*j}:{139+4*j}], v{V_Y+j}, s[12:15], 0 offen sc1")
            a(f"buffer_load_dword a152, v{V_Y+4}, s[12:15], 0 offen sc1"); vm.add('y', 7)
        if pos in (2, 5): stamp(a, 21 if pos == 2 else 22)
        for st in range(4): step(4*pos + st, pos <= 4)
    Q = [32, 48, 64, 80]
    def hrd(st, fo, q): return wreads(0, (st >> 1)*16384 + (st & 1)*8192, range(4*fo, 4*fo+4), Q[q])
    def sendl(g):
        o = []
        for k in range(4):
            nb = 2*(g >> 1) + (k >> 1); c = (nb*8 + 4*(g & 1) + 2*(k & 1))*4; t = PV + 8*(k & 1); d = 224 + 4*((g*4+k) % 8)
            o += [f"v_accvgpr_read_b32 v{t+i}, a{c+i}" for i in range(8)]
            o += [f"v_cvt_pk_bf16_f32 v{d+i}, v{t+2*i}, v{t+1+2*i}" for i in range(4)]
            o += [f"buffer_store_dwordx4 v[{d}:{d+3}], v{V_L16}, s[12:15], s{(0, 71, 16, 25)[g]} offen offset:{k*1024} sc1"]
        return o
    a("s_add_u32 s16, s71, 4096\n s_add_u32 s25, s71, 8192")
    phases = [(0, 1, 1, range(4)), (1, 1, 2, range(4)), (2, 1, 3, range(4)), (3, 1, 1, range(4))] + \
             [(st, 0, (0, 2, 3, 1)[st], (2, 3)) for st in range(4)] + [(st, 0, (0, 2, 3, 1)[st], (0, 1)) for st in range(4)]
    pre = {0: hrd(1, 1, 2) + hrd(2, 1, 3), 1: hrd(3, 1, 1), 2: hrd(1, 0, 2), 3: hrd(2, 0, 3), 4: hrd(3, 0, 1)}
    send = []
    for k, (st, fo, q, nbs) in enumerate(phases):
        if k == 0: vm.wait(a, 'h27', "lgkmcnt(0)")
        elif k in (1, 2, 3, 5, 6): a("s_waitcnt lgkmcnt(8)")
        elif k == 7: a("s_waitcnt lgkmcnt(0)")
        if k == 4: send += [None]*8 + sendl(3) + sendl(1)
        if k == 8: send += [None]*max(0, 12 - len(send)) + sendl(2)
        ms = []
        for i, nb in enumerate(nbs):
            for m in (range(4) if i % 2 == 0 else range(3, -1, -1)):
                c = (nb*8 + 4*fo + m)*4; b = Q[q] + 4*m; h = HB + 16*st + 4*nb
                ms.append(f"{MF} a[{c}:{c+3}], v[{b}:{b+3}], v[{h}:{h+3}], a[{c}:{c+3}]")
        f = {}
        rd = pre.get(k, [])
        for j, x in enumerate(rd): f.setdefault(j*len(ms)//len(rd), []).append(x)
        for g in range(len(ms)):
            for _ in range(3):
                if send:
                    x = send.pop(0)
                    if x: f.setdefault(g, []).append(x)
        interleave(a, ms, f)
    assert not send, len(send)
    stamp(a, 7)
    a("""
    s_mul_i32 s26, s3, 4608
    s_add_u32 s26, s26, 131072
    v_lshrrev_b32 v4, 2, v1
    v_mul_u32_u24 v4, 288, v4
    v_and_b32 v5, 3, v1
    v_lshl_add_u32 v4, v5, 4, v4
    v_add_u32 v4, s26, v4
    v_and_b32 v5, 31, v1
    v_mul_u32_u24 v5, 144, v5
    v_add_u32 v5, s26, v5
    """)
    for j in range(4): a(f"ds_write_b128 v4, a[{136+4*j}:{139+4*j}] offset:{(j&1)*144 + (j>>1)*64}")
    a("ds_write_b32 v5, a152 offset:128")
    a("""
    v_and_b32 v4, 15, v1
    v_mul_u32_u24 v4, 144, v4
    v_lshrrev_b32 v5, 4, v1
    v_lshlrev_b32 v5, 3, v5
    v_sub_u32 v6, 24, v5
    v_cndmask_b32 v5, v5, v6, s[46:47]
    v_add3_u32 v4, v4, v5, s26
    s_waitcnt vmcnt(0) lgkmcnt(0)
    buffer_store_dwordx2 v[26:27], v23, s[12:15], s69 offen sc1
    """)
    for k in range(8):
        a(f"ds_read_b64 v[{128+4*k}:{129+4*k}], v4 offset:{(k>>2)*16*144 + (k&3)*32}\n ds_read_b32 v{130+4*k}, v4 offset:{(k>>2)*16*144 + (k&3)*32 + 8}")
    a(f"""
    v_add_u32 v6, 1, v1
    v_lshlrev_b32 v6, 10, v6
    v_xor_b32 v6, s69, v6
    v_cmp_gt_u32 vcc, 3, v1
    s_lshl_b32 s26, s2, 2
    s_add_u32 s26, s26, s3
    v_cndmask_b32 v{V_FJ}, v{V_OOB}, v6, vcc
    """)
    for g in range(1, 4): a(f"s_xor_b32 s27, s26, {8*g}\n s_mul_i32 s{40+g}, s27, 12288\n s_add_u32 s{40+g}, s{40+g}, {WS_XB + (g-1)*4096}")
    for nb in range(2):
        for i in range(4): a(f"v_accvgpr_read_b32 v{40+i}, a{160+4*nb+i}")
        a(f"""
        v_add_f32 v40, v40, v41
        v_add_f32 v42, v42, v43
        v_add_f32 v40, v40, v42
        v_cvt_pk_bf16_f32 v40, v40, v40
        v_lshlrev_b32 v40, 16, v40
        v_mul_f32 v40, {fbits(-math.log2(math.e))}, v40
        v_exp_f32 v40, v40
        s_nop 0
        v_add_f32 v40, 1.0, v40
        v_rcp_f32 v40, v40
        s_nop 0
        v_cvt_pk_bf16_f32 v40, v40, v40
        v_lshlrev_b32 v{32+nb}, 16, v40
        v_sub_f32 v40, 1.0, v{32+nb}
        v_cvt_pk_bf16_f32 v40, v40, v40
        v_lshlrev_b32 v{34+nb}, 16, v40
        v_and_b32 v{36+nb}, 0xffff, v40
        """)
    for nb in range(2):
        for i in range(16): a(f"v_accvgpr_read_b32 v{64+nb*16+i}, a{nb*32+i}")
    for nb in range(2):
        for i in range(16): a(f"v_mul_f32 v{64+nb*16+i}, v{34+nb}, v{64+nb*16+i}")
    if opt.xs: a(f"buffer_load_dwordx2 v[24:25], v{V_FJ}, s[12:15], 0 offen sc1")
    a("s_waitcnt lgkmcnt(0)\n s_cmp_lg_u32 s46, 0\n s_cbranch_scc1 L_g2_mir")
    for mir in range(2):
        if mir: a("L_g2_mir:")
        for nb in range(2):
            for mb in range(4):
                d = 128 + (nb*4 + (3-mb if mir else mb))*4; o = 64 + (nb*4+mb)*4
                els = [4, 3, 2, 1] if mir else [0, 1, 2, 3]
                for r in range(4): a(unp(40+r, d, els[r]))
                for r in range(4): a(f"v_fma_f32 v{o+r}, v{40+r}, v{32+nb}, v{o+r}")
        if not mir: a("s_branch L_g2_st")
    a("L_g2_st:")
    stamp(a, 9)
    if not opt.xs: a(f"buffer_load_dwordx2 v[24:25], v{V_FJ}, s[12:15], 0 offen sc1")
    a("s_waitcnt vmcnt(0)")
    fl_bad(a, 24, 7)
    a("s_cbranch_scc0 L_g2_xok\n s_mov_b32 s26, 0")
    poll(a, [('s26', '7')], vb=44, gap=opt.xgap, voff=V_FJ)
    a("L_g2_xok:")
    stamp(a, 10)
    for k in range(4):
        for g in range(1, 4): a(f"buffer_load_dwordx4 v[{128+16*k+4*g}:{131+16*k+4*g}], v{V_L16}, s[12:15], s{40+g} offen offset:{k*1024} sc1")
    for k in range(4):
        a(f"s_waitcnt vmcnt({3*(3-k) + k})")
        for g in range(1, 4):
            for r in range(8): a(f"v_dot2_f32_bf16 v{64+8*k+r}, v{128+16*k+4*g+r//2}, v{(36, 34)[r & 1]+(k>>1)}, v{64+8*k+r}")
        a("s_nop 2")
        for i in range(4): a(f"v_cvt_pk_bf16_f32 v{PV+4*k+i}, v{64+8*k+2*i}, v{64+8*k+2*i+1}")
        a(f"s_nop 1\n v_permlane16_swap_b32 v{PV+4*k}, v{PV+4*k+2}\n v_permlane16_swap_b32 v{PV+4*k+1}, v{PV+4*k+3}")
        a(f"buffer_store_dwordx4 v[{PV+4*k}:{PV+4*k+3}], v{V_OUT+(k>>1)}, s[52:55], 0 offen offset:{(k&1)*64} {opt.oflags}")
    a("s_branch L_end")
    a("L_g2_late0:")
    poll(a, [('s44', pmask(1) | pmask(2) | pmask(3))], vb=10, gap=opt.g2gap, voff=V_FJ)
    a("s_waitcnt vmcnt(0)\n s_cmp_eq_u32 s31, 0\n s_cbranch_scc1 L_g2_cont0\n L_g2_redo:")
    h_chunk(a, 1)
    a("s_waitcnt vmcnt(0)\n s_branch L_g2_cont0")
    a("L_g2_ep:")
    poll(a, [('s70', '-1')], vb=10, gap=2, cnt=64)
    a("s_waitcnt vmcnt(0)\n s_branch L_g2_cont1")
    for pos in rare:
        a(f"L_g2_late{pos}:")
        poll(a, [('s44', pmask(pos+2))], vb=10, gap=2, voff=V_FJ)
        a(f"s_waitcnt vmcnt(0)\n s_branch L_g2_cont{pos}x")
    a(f"L_g2_s4:\n s_mov_b32 s26, {WS_FL+32768}")
    poll(a, [('s26', '0xffffffff')], vb=10, gap=2, cnt=32)
    a("s_waitcnt vmcnt(0)\n s_branch L_g2_s4ok")

def ACCG(mb, nb): return 128 + (nb*4+mb)*4
def ACCU(mb, nb): return (nb*4+mb)*4
def FR(st, i): return 128 + st*64 + i*4

def gemm1(a):
    XS = 32768; WB = 98304; WSL = 16384
    a("s_lshl_b32 s29, s24, 19\n s_lshl_b32 s26, s3, 16\n s_add_u32 s29, s29, s26")
    sh_voff(a, 8, 11, 29)
    a("""
    v_lshrrev_b32 v2, 4, v1
    s_and_b32 s26, s3, 1
    s_lshl_b32 s26, s26, 4
    v_add_u32 v3, s26, v2
    s_mov_b32 s27, 7168
    v_mul_lo_u32 v3, v3, s27
    s_lshl_b32 s26, s25, 8
    v_add_u32 v3, s26, v3
    v_lshlrev_b32 v2, 1, v2
    v_and_b32 v4, 15, v1
    v_xor_b32 v2, v2, v4
    v_lshl_add_u32 v12, v2, 4, v3
    v_xor_b32 v2, 8, v2
    v_lshl_add_u32 v14, v2, 4, v3
    """)
    a(f"v_add_u32 v13, {1*(4*7168-1024)}, v12\n v_add_u32 v15, {3*(4*7168-1024)}, v14\n v_add_u32 v14, {2*(4*7168-1024)}, v14")
    a(f"s_mov_b32 s16, 0\n s_mov_b32 s22, 65536\n s_mov_b32 s17, 0\n s_lshl_b32 s21, s3, 12\n s_add_u32 s21, s21, {WB}\n s_lshl_b32 s23, s3, 13")
    def dma_x(h): return [f"buffer_load_dwordx4 v{8+i}, s[4:7], s{(16, 22)[h]} offen offset:{i*1024} lds" for i in range(4)]
    def dma_w(): return [f"buffer_load_dwordx4 v{12+i}, s[8:11], s17 offen offset:{i*1024} lds" for i in range(4)]
    def px(s):
        a(f"s_add_u32 m0, s23, {s*XS}\n s_nop 0")
        for x in dma_x(0): a(x)
        a(f"s_add_u32 m0, s23, {s*XS+4096}\n s_add_u32 s16, s16, 128")
        for x in dma_x(1): a(x)
        a("s_add_u32 s22, s22, 128")
    def pw(s):
        a(f"s_add_u32 m0, s21, {s*WSL}\n s_nop 0")
        for x in dma_w(): a(x)
        a(f"s_add_u32 s17, s17, {32*7168}")
    a("s_waitcnt lgkmcnt(0)")
    srd(a, 4, 40, 2048*1024*2)
    a("s_cmp_ge_u32 s3, 2\n s_cselect_b32 s26, s46, s44\n s_cselect_b32 s27, s47, s45")
    srd(a, 8, 26, 1024*3584*2)
    stamp(a, 21)
    pw(0); px(0); pw(1)
    stamp(a, 22)
    common_setup(a)
    a(f"""
    s_cmp_eq_u32 s3, 1
    s_cselect_b32 s80, s46, s44
    s_cselect_b32 s81, s47, s45
    s_mov_b32 s82, {1024*3584*2}
    s_cmp_eq_u32 s3, 2
    s_cselect_b32 s80, s40, s80
    s_cselect_b32 s81, s41, s81
    s_cselect_b32 s82, {2048*1024*2}, s82
    s_cmp_eq_u32 s3, 3
    s_cselect_b32 s80, s88, s80
    s_cselect_b32 s81, s89, s81
    s_and_b32 s81, s81, 0xffff
    s_mov_b32 s83, 0x20000
    v_mov_b32 v3, {OOB}
    s_add_u32 s86, s67, 28
    s_cmp_ge_u32 s3, 2
    s_cbranch_scc1 L_t_x
    v_lshrrev_b32 v2, 4, v1
    v_lshlrev_b32 v2, 5, v2
    v_bfe_u32 v4, v1, 1, 3
    v_add_u32 v2, v2, v4
    s_lshl_b32 s26, s68, 3
    v_add_u32 v2, s26, v2
    s_mov_b32 s27, 7168
    v_mul_lo_u32 v2, v2, s27
    v_and_b32 v4, 1, v1
    v_lshl_add_u32 v2, v4, 7, v2
    s_lshl_b32 s26, s25, 8
    v_add_u32 v26, s26, v2
    v_cmp_gt_u32 vcc, {0 if opt.noloop & 1 else 32}, v1
    s_mov_b32 s84, {2*32*7168}
    s_mov_b32 s85, {2*32*7168}
    v_cndmask_b32 v27, v3, v26, vcc
    s_mov_b32 s75, {4*32*7168}
    v_mov_b32 v42, {'v3' if opt.notw else 'v26'}
    buffer_load_dword v28, v3, s[4:7], 0 offen
    buffer_load_dword v28, v3, s[4:7], 0 offen
    s_branch L_t_done
    L_t_x:
    s_cmp_eq_u32 s3, 3
    s_cbranch_scc1 L_t_wd
    s_mul_i32 s26, s69, 37
    s_lshl_b32 s27, s24, 8
    s_add_u32 s26, s26, s27
    v_add_u32 v2, s26, v1
    v_lshlrev_b32 v2, 11, v2
    v_cmp_gt_u32 vcc, {0 if opt.nox else 37}, v1
    s_mov_b32 s84, 128
    s_mov_b32 s85, 0
    v_cndmask_b32 v42, v3, v2, vcc
    s_mov_b32 s75, 128
    v_mov_b32 v27, v3
    buffer_load_dword v28, v42, s[80:83], s84 offen offset:128
    buffer_load_dword v28, v3, s[4:7], 0 offen
    s_branch L_t_done
    L_t_wd:
    s_mul_i32 s27, s86, 49
    v_cmp_gt_u32 vcc, {0 if (opt.xdft & 2) or opt.nofold else 49}, v1
    s_lshl_b32 s28, s66, 6
    """)
    for k in range(3):
        a(f"""
        v_add_u32 v2, s27, v1
        v_add_u32 v2, {1372*k}, v2
        v_bfe_u32 v4, v2, 4, 3
        v_bfe_u32 v5, v2, 7, 2
        v_lshl_add_u32 v4, v5, 4, v4
        v_bfe_u32 v5, v2, 11, 1
        v_lshl_add_u32 v4, v5, 3, v4
        v_add_u32 v4, s28, v4
        v_bfe_u32 v5, v2, 9, 2
        v_and_b32 v6, 1, v5
        v_lshrrev_b32 v7, 1, v5
        v_xor_b32 v6, v6, v7
        v_sub_u32 v7, 0, v4
        v_cmp_eq_u32 s[62:63], 1, v6
        v_and_b32 v2, 15, v2
        v_lshlrev_b32 v2, 7, v2
        v_cndmask_b32 v4, v4, v7, s[62:63]
        v_lshlrev_b32 v6, 11, v5
        v_cmp_le_u32 s[62:63], 2, v5
        v_mov_b32 v7, 1024
        s_nop 0
        v_cndmask_b32 v6, v6, v7, s[62:63]
        v_add_u32 v4, v4, v6
        v_lshl_add_u32 v2, v4, 11, v2
        v_cndmask_b32 v{46+k}, v3, v2, vcc
        """)
        if k < opt.nf: a(f"buffer_load_dword v28, v{46+k}, s[4:7], 0 offen {opt.nt_fold}")
    a(f"""
    v_lshlrev_b32 v2, 7, v1
    v_cmp_gt_u32 vcc, {0 if opt.noloop & 2 else 32}, v1
    s_mul_i32 s84, s66, 28
    s_add_u32 s84, s84, s86
    s_lshl_b32 s84, s84, 12
    v_cndmask_b32 v27, v3, v2, vcc
    s_mov_b32 s85, {224*4096}
    s_mov_b32 s75, 0
    v_mov_b32 v42, v3
    L_t_done:
    """)
    stamp(a, 19)
    a(f"buffer_load_dword v28, v42, s[80:83], s84 offen {opt.nt_w}\n s_add_u32 s84, s84, s75")
    stamp(a, 20)
    a(f"""
    s_cmp_lt_u32 s66, 4
    s_cselect_b32 s36, s56, s58
    s_cselect_b32 s37, s57, s59
    s_cmp_eq_u32 s3, 2
    s_cselect_b32 s36, s52, s36
    s_cselect_b32 s37, s53, s37
    s_cmp_eq_u32 s3, 3
    s_cselect_b32 s36, s54, s36
    s_cselect_b32 s37, s55, s37
    s_and_b32 s37, s37, 0xffff
    s_mov_b32 s39, 0x20000
    s_and_b32 s28, s66, 3
    s_lshl_b32 s26, s28, 18
    s_lshl_b32 s28, s28, 8
    s_lshr_b32 s27, s66, 2
    s_add_u32 s28, s28, s27
    s_lshl_b32 s28, s28, 12
    s_cmp_eq_u32 s3, 1
    s_cselect_b32 s28, s26, s28
    s_cselect_b32 s26, 11, 13
    s_cselect_b32 s38, {1024*1024*2}, s82
    s_mul_i32 s27, s86, 37
    v_add_u32 v2, s27, v1
    v_lshrrev_b32 v4, 3, v2
    v_lshlrev_b32 v4, s26, v4
    v_and_b32 v2, 7, v2
    v_lshl_add_u32 v2, v2, 7, v4
    s_cmp_eq_u32 s3, 0
    s_cselect_b32 s27, 0, 37
    v_cmp_gt_u32 vcc, s27, v1
    v_mov_b32 v3, {OOB}
    s_nop 0
    v_cndmask_b32 v2, v3, v2, vcc
    v_add_u32 v34, s28, v2
    s_cmp_eq_u32 s3, 1
    s_cselect_b64 vcc, -1, 0
    s_nop 0
    v_cndmask_b32 v2, v3, v34, vcc
    v_cndmask_b32 v34, v34, v3, vcc
    buffer_load_dword v28, v2, s[36:39], 0 offen {opt.nt_c}
    """)
    if opt.tlb:
        a("v_lshlrev_b32 v40, 21, v1\n v_add_u32 v40, 0x100000, v40")
    else: a(f"v_mov_b32 v40, {OOB}")
    if opt.tlb2:
        a(f"""
        s_cmp_eq_u32 s3, 1
        s_cselect_b32 s76, s42, s48
        s_cselect_b32 s77, s43, s49
        s_cselect_b32 s78, {4 << 20}, {32 << 20}
        s_and_b32 s77, s77, 0xffff
        s_mov_b32 s79, 0x20000
        s_mov_b32 s26, {opt.HS}
        s_mov_b32 s27, {opt.HS - 128}
        s_cmp_eq_u32 s3, 1
        s_cselect_b32 s26, 65536, s26
        s_cselect_b32 s27, 0, s27
        s_cmp_eq_u32 s3, 2
        s_cselect_b32 s26, {16*XBS}, s26
        s_cselect_b32 s27, {WS_XB + 4096}, s27
        s_cmp_eq_u32 s3, 3
        s_cselect_b32 s26, {EGS}, s26
        s_cselect_b32 s27, {WS_Y + 520*64}, s27
        v_mul_lo_u32 v41, v1, s26
        v_add_u32 v41, s27, v41
        s_cbranch_scc0 L_tl_done
        v_cmp_lt_u32 vcc, 31, v1
        v_add_u32 v2, {YD - 32*EGS}, v41
        s_nop 0
        v_cndmask_b32 v41, v41, v2, vcc
        v_cmp_eq_u32 vcc, 63, v1
        v_mov_b32 v2, {WS_FL + 4096}
        s_nop 0
        v_cndmask_b32 v41, v41, v2, vcc
        L_tl_done:
        """.replace("s_cselect_b32 s78, 4194304, 33554432", "s_mov_b32 s78, 33554432\n s_cselect_b32 s78, 4194304, s78"))
    a(f"""
    s_lshr_b32 s26, s3, 1
    s_lshl_b32 s26, s26, 7
    v_and_b32 v2, 15, v1
    v_lshrrev_b32 v5, 1, v2
    v_add_u32 v2, s26, v2
    v_lshlrev_b32 v2, 7, v2
    v_lshrrev_b32 v3, 4, v1
    v_xor_b32 v5, v3, v5
    v_lshl_add_u32 v16, v5, 4, v2
    v_xor_b32 v5, 4, v5
    v_lshl_add_u32 v33, v5, 4, v2
    v_lshrrev_b32 v4, 2, v1
    v_and_b32 v4, 3, v4
    v_lshl_add_u32 v5, v3, 3, v4
    v_lshlrev_b32 v5, 8, v5
    v_add_u32 v5, {WB}, v5
    v_and_b32 v6, 3, v1
    v_lshl_add_u32 v5, v6, 3, v5
    v_and_b32 v6, 1, v3
    v_lshl_or_b32 v6, v6, 2, v4
    s_and_b32 s26, s3, 1
    s_lshl_b32 s26, s26, 2
    v_xor_b32 v6, s26, v6
    """)
    for mb in range(4):
        a(f"v_xor_b32 v7, {mb}, v6\n v_lshl_add_u32 v{17+mb}, v7, 5, v5")
    for i in range(5): a(f"v_mov_b32 v{21+i}, v{16+i}")
    def reads(st):
        def wr(mat, mb):
            b = FR(st, mat*4+mb)
            return [f"ds_read_b64_tr_b16 a[{b}:{b+1}], v{22+mb} offset:{mat*8192}",
                    f"ds_read_b64_tr_b16 a[{b+2}:{b+3}], v{22+mb} offset:{mat*8192+1024}"]
        def xr(nb):
            b = FR(st, 8+nb)
            return [f"ds_read_b128 a[{b}:{b+3}], v21 offset:{nb*2048}"]
        r = []
        for i in range(8): r += wr(i & 1, i >> 1) + xr(i)
        return r
    def mf(st):
        m = []
        od = [(nb if (mb*2+mat) % 2 == 0 else 7-nb, mb, mat) for mb in range(4) for mat in range(2) for nb in range(8)]
        for nb, mb, mat in od:
            c = f"v[{ACCG(mb,nb)}:{ACCG(mb,nb)+3}]" if mat == 0 else f"a[{ACCU(mb,nb)}:{ACCU(mb,nb)+3}]"
            fa = FR(st, mat*4+mb); fb_ = FR(st, 8+nb)
            if opt.pw & 1: fa, fb_ = fb_, fa
            x = f"{MF} {c}, a[{fa}:{fa+3}], a[{fb_}:{fb_+3}], {c}"
            if opt.pw & 2:
                c2 = c.replace('v[', 'a[')
                x = f"{MF} {c2}, v[{fa}:{fa+3}], v[{fb_}:{fb_+3}], {c2}"
            m.append(x)
        return m
    if opt.pw & 2:
        reads0 = reads
        reads = lambda st: [x.replace(' a[', ' v[') for x in reads0(st)]
    for i in range(4): a(f"v_mov_b32 v{36+i}, 0")
    a("s_nop 1")
    for i in range(8): a(f"v_mfma_f32_32x32x16_bf16 v[{128+16*i}:{143+16*i}], v[36:39], v[36:39], 0\n v_mfma_f32_32x32x16_bf16 a[{16*i}:{15+16*i}], v[36:39], v[36:39], 0")
    def preblk():
        a(f"""
    s_lshl_b32 s86, s24, 3
    s_lshr_b32 s31, s3, 1
    s_lshl_b32 s31, s31, 2
    s_add_u32 s86, s86, s31
    s_lshl_b32 s68, s86, 11
    s_mul_i32 s86, s86, {opt.HS}
    s_lshl_b32 s31, s25, 13
    s_add_u32 s86, s86, s31
    s_and_b32 s31, s3, 1
    s_lshl_b32 s31, s31, 12
    s_add_u32 s86, s86, s31
    s_lshl_b32 s31, s25, 1
    s_and_b32 s26, s3, 1
    s_add_u32 s31, s31, s26
    s_lshl_b32 s31, s31, 7
    s_add_u32 s68, s68, s31
    s_add_u32 s68, s68, {WS_FL+65536}
    """)
        g2_pre(a, False)
    if not opt.prefill: preblk()
    stamp(a, 1)
    a(f"s_waitcnt vmcnt(8) lgkmcnt(0)\n s_barrier")
    for x in reads(0): a(x)
    nonce(a)
    a(f"s_lshl_b32 s26, s2, 7\n s_add_u32 s26, s26, {WS_FL+393216}\n s_cmp_eq_u32 s3, 0\n s_cselect_b32 s26, s26, {OOB}\n v_and_b32 v43, 15, v1\n v_lshl_add_u32 v43, v43, 3, s26\n v_mov_b32 v44, s98\n v_mov_b32 v45, s99")
    a(f"s_mov_b32 s19, 0\n s_mov_b32 s20, {XS}\n s_mov_b32 s18, 0\n s_mov_b32 s28, {WSL}\n s_mov_b32 s29, 0")
    a("v_mov_b32 v21, v33")
    for i in range(4): a(f"v_add_u32 v{22+i}, s28, v{17+i}")
    a(f"s_mov_b32 s72, {32*7168}\n s_mov_b32 s73, 128\n s_mov_b32 s74, 65536")
    stamp(a, 2)
    def cap(fn, *args):
        n0 = len(a.l); fn(*args); out = [x.strip() for x in a.l[n0:]]; del a.l[n0:]; return out
    P = Asm(); P.l = cap(preblk) if opt.prefill else []; fl = fillers(P)
    for hsi in range(6):
        peel = hsi == 0; st = hsi & 1; inloop = hsi >= 4
        if hsi == 4: a(".p2align 6\n" + "s_nop 0\n"*opt.shift + "L_g1_loop:")
        f = {-1: ["s_waitcnt lgkmcnt(0)"]}
        if opt.trace: f[-1] = trace_ops("s18")
        f[0] = [f"s_waitcnt vmcnt({4 if peel else ((16, 12) if opt.spread else (24, 12))[st]})", "s_barrier"]
        if peel:
            ops = cap(pw, 2) + cap(px, 1) + cap(pw, 3) + ["buffer_load_dword v28, v40, s[80:83], 0 offen"] + cap(px, 2) + ["buffer_store_dwordx2 v[44:45], v43, s[12:15], 0 offen sc1"]
            g = 2
            for x in ops:
                if x == 's_nop 0': continue
                f.setdefault(g-1 if 'm0' in x else g, []).append(x)
                if x.startswith('buffer'): g += 2
            assert g <= 63, g
            if opt.stamp: f.setdefault(63, []).extend(["s_memrealtime s[92:93]", "s_waitcnt lgkmcnt(0)", "v_writelane_b32 v31, s92, 41"])
        rd = reads(st ^ 1)
        for i, x in enumerate(rd): f.setdefault(1 + 2*i, []).append(x)
        f.setdefault(2, []).append(f"s_add_u32 s28, s28, {WSL}")
        f.setdefault(4, []).append(f"s_and_b32 s28, s28, {4*WSL-1}")
        f.setdefault(6, []).append("s_add_u32 s18, s18, 1")
        for i in range(4): f.setdefault(50+2*i, []).append(f"v_add_u32 v{22+i}, s28, v{17+i}")
        if opt.spread:
            sp = [4, 11, 18, 25, 32, 39, 46, 53]
            if st == 0:
                f.setdefault(58, []).append("v_add_u32 v21, s20, v16")
                if not peel:
                    f[0].append("s_add_u32 m0, s23, s30")
                    for i, x in enumerate(dma_x(0) + dma_x(1)): f.setdefault(sp[i], []).append(x)
                    f[sp[3]] += ["s_add_u32 m0, m0, 4096", "s_add_u32 s16, s16, 128"]
                    f[sp[7]] += (["s_cmp_ge_u32 s18, 27", "s_cbranch_scc1 L_g1_sw", "L_g1_swd:"] if inloop else []) + ["s_add_u32 s22, s16, s74"]
            else:
                f.setdefault(58, []).append("v_add_u32 v21, s19, v33")
                f[0].append("s_add_u32 m0, s21, s29")
                for i, x in enumerate(dma_w() + dma_w()): f.setdefault(sp[i], []).append(x)
                f[sp[3]] += [f"s_add_u32 m0, m0, {WSL}", "s_add_u32 s17, s17, s72"]
                f[sp[4]] += [f"s_xor_b32 s29, s29, {2*WSL}", "s_mov_b32 s30, s19"]
                f[sp[5]] += ["s_mov_b32 s19, s20"]
                f[sp[6]] += [f"s_add_u32 s20, s20, {XS}", f"s_cmp_eq_u32 s20, {3*XS}", "s_cselect_b32 s20, 0, s20"]
                f[sp[7]] += ["s_add_u32 s17, s17, s72"]
                f.setdefault(61, []).extend([f"buffer_load_dword v28, v27, s[80:83], s84 offen {opt.tflags}", "s_add_u32 s84, s84, s85"])
                if hsi == 3: f[61].append("buffer_load_dword v28, v34, s[36:39], 0 offen")
                if inloop: f.setdefault(63, []).extend(["s_cmp_lt_u32 s18, 32", "s_cbranch_scc1 L_g1_loop"])
        elif st == 0:
            f.setdefault(58, []).append("v_add_u32 v21, s20, v16")
        else:
            f.setdefault(58, []).append("v_add_u32 v21, s19, v33")
            dq = dma_w() + dma_w() + dma_x(0) + dma_x(1)
            dp = opt.dp if hasattr(opt, 'dp') else [2 + 4*i - (i > 11)*(i-11) for i in range(16)]
            f[0].append("s_add_u32 m0, s21, s29")
            for i, x in enumerate(dq): f.setdefault(dp[i], []).append(x)
            f[dp[3]] += [f"s_add_u32 m0, m0, {WSL}", "s_add_u32 s17, s17, s72"]
            f[dp[7]] += ["s_add_u32 m0, s23, s19", "s_add_u32 s17, s17, s72"]
            f[dp[8]] += [f"s_xor_b32 s29, s29, {2*WSL}"]
            f[dp[9]] += ["s_mov_b32 s19, s20"]
            f[dp[10]] += [f"s_add_u32 s20, s20, {XS}", f"s_cmp_eq_u32 s20, {3*XS}", "s_cselect_b32 s20, 0, s20"]
            f[dp[11]] += ["s_add_u32 m0, m0, 4096"]
            f[dp[12]] += ["s_add_u32 s16, s16, s73"]
            f[dp[15]] += (["s_cmp_ge_u32 s18, 26", "s_cbranch_scc1 L_g1_sw", "L_g1_swd:"] if inloop else []) + ["s_add_u32 s22, s16, s74"]
            f.setdefault(62, []).extend([f"buffer_load_dword v28, v27, s[80:83], s84 offen {opt.tflags}", "s_add_u32 s84, s84, s85"])
            if hsi == 3: f[62].append("buffer_load_dword v28, v34, s[36:39], 0 offen")
            if inloop: f.setdefault(63, []).extend(["s_cmp_lt_u32 s18, 32", "s_cbranch_scc1 L_g1_loop"])
        if not inloop:
            n = len(fl) if hsi == 3 else min(len(fl), opt.pfn[hsi])
            for k in range(n): f.setdefault(1 + (k*61)//n, []).append(fl.pop(0))
        interleave(a, mf(st), f)
    if opt.spread:
        a("s_add_u32 m0, s23, s30\n s_nop 0")
        for x in dma_x(0): a(x)
        a("s_add_u32 m0, m0, 4096\n s_nop 0")
        for x in dma_x(1): a(x)
    a("s_branch L_g1_done")
    a(f"L_g1_sw:\n s_cmp_eq_u32 s18, {27 if opt.spread else 26}\n s_cbranch_scc0 L_g1_sw2\n s_mov_b64 s[4:5], s[32:33]\n s_mov_b32 s6, s34")
    for i in range(4): a(f"v_mov_b32 v{8+i}, v{V_WX+i}")
    a(f"s_mov_b32 s16, s41\n s_mov_b32 s74, {16*2048}\n s_branch L_g1_swd")
    a(f"L_g1_sw2:\n s_cmp_eq_u32 s18, {29 if opt.spread else 28}\n s_cselect_b32 s16, s42, s40\n s_branch L_g1_swd")
    a("L_g1_done:")
    stamp(a, 3)
    if opt.xdft: a("s_branch L_end")
    c0 = -2*math.sqrt(2/math.pi)*math.log2(math.e); c1 = c0*0.044715
    a(f"s_mov_b32 s26, {fbits(c0)}\n s_mov_b32 s28, {fbits(c1)}\n s_mov_b32 s29, {fbits(c1)}")
    a("v_mov_b32 v24, s26\n v_mov_b32 v25, s26\n v_mov_b32 v2, 0\n v_mov_b32 v3, 0\n v_mov_b32 v4, 0\n v_mov_b32 v5, 0\n s_waitcnt lgkmcnt(0)")
    a(f"s_lshr_b32 s27, s3, 1\n s_lshl_b32 s27, s27, 15\n s_and_b32 s26, s3, 1\n s_lshl_b32 s26, s26, 12\n s_add_u32 s26, s26, s27\n s_add_u32 s26, s26, {OWNL}\n v_add_u32 v29, s26, v{V_L16}")
    for nb in range(8):
        g0 = ACCG(0, nb); u0 = ACCU(0, nb)
        U = 32 + (nb % 2)*32; Z = U+16; O = g0
        for i in range(16): a(f"v_accvgpr_read_b32 v{U+i}, a{u0+i}")
        for i in range(0, 16, 2): a(f"v_pk_mul_f32 v[{Z+i}:{Z+i+1}], v[{g0+i}:{g0+i+1}], v[{g0+i}:{g0+i+1}]")
        for i in range(0, 16, 2): a(f"v_pk_fma_f32 v[{Z+i}:{Z+i+1}], v[{Z+i}:{Z+i+1}], s[28:29], v[24:25]")
        for i in range(0, 16, 2): a(f"v_pk_mul_f32 v[{Z+i}:{Z+i+1}], v[{Z+i}:{Z+i+1}], v[{g0+i}:{g0+i+1}]")
        for i in range(16): a(f"v_exp_f32 v{Z+i}, v{Z+i}")
        for i in range(0, 16, 2): a(f"v_pk_mul_f32 v[{U+i}:{U+i+1}], v[{U+i}:{U+i+1}], v[{g0+i}:{g0+i+1}]")
        for i in range(0, 16, 2): a(f"v_pk_add_f32 v[{Z+i}:{Z+i+1}], v[{Z+i}:{Z+i+1}], 1.0 op_sel_hi:[1,0]")
        for i in range(16): a(f"v_rcp_f32 v{Z+i}, v{Z+i}")
        a("s_nop 0")
        for i in range(0, 16, 2): a(f"v_pk_mul_f32 v[{U+i}:{U+i+1}], v[{U+i}:{U+i+1}], v[{Z+i}:{Z+i+1}]")
        for i in range(0, 16, 2): a(f"v_cvt_pk_bf16_f32 v{O+i//2}, v{U+i}, v{U+i+1}")
        for p in range(2):
            off = (nb >> 1)*opt.HS + (p*2 + (nb & 1))*1024
            a(f"s_add_u32 s31, s86, {off}")
            a(f"buffer_store_dwordx4 v[{O+4*p}:{O+4*p+3}], v{V_L16}, s[12:15], s31 offen {opt.hflags}")
        if nb == 0: a("s_waitcnt vmcnt(2)\n s_barrier")
        a(f"ds_write_b128 v29, v[{O}:{O+3}] offset:{(nb >> 1)*8192 + (nb & 1)*1024}\n ds_write_b128 v29, v[{O+4}:{O+7}] offset:{(nb >> 1)*8192 + (nb & 1)*1024 + 2048}")
        if nb == 3: g2_zero(a, 2, 0, 4)
        if nb == 6: g2_zero(a, 2, 4, 7)
    stamp(a, 4)
    g2_zero(a, 2, 7, 8)
    a(f"s_mov_b32 s87, {OOB}")
    a(f"s_lshl_b32 s26, s3, 14\n s_lshr_b32 s27, s96, 1\n s_lshl_b32 s27, s27, 13\n s_add_u32 s26, s26, {OWNL}\n s_add_u32 s27, s27, s26\n v_add_u32 v29, s27, v{V_L16}\n v_xor_b32 v10, 8192, v29\n s_waitcnt lgkmcnt(0)\n s_barrier")
    for st in range(4):
        for nb in range(4): a(f"ds_read_b128 v[{128+16*st+4*nb}:{131+16*st+4*nb}], v{(29, 10)[nb >> 1]} offset:{st*2048 + (nb & 1)*1024}")
    stamp(a, 5)

RAW = 64; GT = 192; EU = 208; SV = 216
def fold_loads(a, vm):
    a("""
    s_lshl_b32 s26, s66, 2
    s_add_u32 s26, s26, s67
    s_lshl_b32 s26, s26, 4
    v_lshrrev_b32 v40, 3, v1
    v_add_u32 v40, s26, v40
    v_cmp_eq_u32 s[62:63], 0, v40
    v_and_b32 v2, 7, v1
    v_cmp_eq_u32 s[70:71], 0, v2
    v_add_u32 v44, 8, v40
    v_lshlrev_b32 v2, 4, v2
    s_lshl_b32 s26, s3, 8
    v_add_u32 v2, s26, v2
    v_sub_u32 v3, 1904, v2
    v_sub_u32 v41, 2048, v40
    v_sub_u32 v42, 1024, v40
    v_add_u32 v43, 1024, v40
    v_sub_u32 v45, 2048, v44
    v_sub_u32 v46, 1024, v44
    v_add_u32 v47, 1024, v44
    v_mov_b32 v4, 512
    v_mov_b32 v5, 1536
    v_cndmask_b32 v41, v41, v4, s[62:63]
    v_cndmask_b32 v43, v43, v5, s[62:63]
    s_sub_u32 s74, 2048, s26
    """)
    for k in range(8): a(f"v_lshl_add_u32 v{224+8*(k>>2)+(k&3)}, v{40+k}, 11, v2\n v_lshl_add_u32 v{228+8*(k>>2)+(k&3)}, v{40+k}, 11, v3")
    for gi in range(2):
        a(f"buffer_load_dwordx4 v[{GT+8*gi}:{GT+8*gi+3}], v2, s[32:35], 0 offen offset:{gi*128}")
        a(f"buffer_load_dwordx4 v[{GT+8*gi+4}:{GT+8*gi+7}], v3, s[32:35], 0 offen offset:{(1-gi)*128}")
        vm.add('g', 2)
def fold_round_loads(a, vm, rnd):
    if True:
        hf, gi = rnd >> 1, rnd & 1
        b = RAW + 32*rnd
        for i in range(4):
            a(f"buffer_load_dwordx4 v[{b+8*i}:{b+8*i+3}], v{224+8*hf+i}, s[4:7], 0 offen offset:{gi*128}")
            a(f"buffer_load_dwordx4 v[{b+8*i+4}:{b+8*i+7}], v{228+8*hf+i}, s[4:7], 0 offen offset:{(1-gi)*128}")
        if gi == 0:
            for i in range(4):
                a(f"v_lshlrev_b32 v4, 11, v{40+4*hf+i}\n buffer_load_ushort v{EU+4*hf+i}, v4, s[4:7], s74 offen")
            vm.add(f'r{rnd}', 12)
        else: vm.add(f'r{rnd}', 8)
def fold_compute(a, vm, between):
    LP = 8; UU = 16
    a(f"v_mov_b32 v24, {ALT}")
    for r in range(8, 24): a(f"v_mov_b32 v{r}, 0")
    a(f"""
    s_lshl_b32 s26, s66, 2
    s_add_u32 s26, s26, s67
    s_lshr_b32 s27, s26, 2
    s_lshl_b32 s27, s27, 16
    s_and_b32 s26, s26, 3
    s_lshl_b32 s26, s26, 10
    s_add_u32 s26, s26, s27
    s_lshl_b32 s27, s3, 14
    s_add_u32 s26, s26, s27
    s_add_u32 s22, s26, {WS_Z}
    v_bfe_u32 v2, v1, 2, 1
    v_lshlrev_b32 v25, 12, v2
    v_and_b32 v2, 3, v1
    v_lshl_add_u32 v25, v2, 8, v25
    v_lshrrev_b32 v2, 3, v1
    v_lshl_add_u32 v25, v2, 4, v25
    s_cmp_eq_u32 s3, 0
    s_cselect_b64 s[72:73], s[70:71], 0
    """)
    T = 240
    for rnd in range(4):
        hf, gi = rnd >> 1, rnd & 1
        b = RAW + 32*rnd; g = GT + 8*gi
        S = [224, RAW+96 if rnd < 2 else RAW+8, 48, 56]
        vm.wait(a, f'r{rnd}')
        if rnd in (0, 1): stamp(a, 19+2*rnd)
        for j in range(4):
            for i in range(4):
                a(f"v_dot2_f32_bf16 v{LP+4*hf+i}, v{b+8*i+j}, v{g+j}, v{LP+4*hf+i}")
            for i in range(4):
                a(f"v_dot2_f32_bf16 v{LP+4*hf+i}, v{b+8*i+4+j}, v{g+4+j}, v{LP+4*hf+i}")
        if hf == 0:
            for i in (1, 3):
                for j in range(8): a(f"v_cndmask_b32 v{b+8*i+j}, v{b+8*i+j}, 0, s[62:63]")
                if gi == 0: a(f"v_cndmask_b32 v{EU+i}, v{EU+i}, 0, s[62:63]")
        if gi == 0:
            for i in range(4): a(f"v_cndmask_b32 v{EU+4*hf+i}, v{EU+4*hf+i}, 0, s[72:73]")
            for i in range(4): a(f"v_mov_b32 v{SV+i}, v{b+8*i+4}")
        else:
            for i in range(4): a(f"v_mov_b32_dpp v{EU+4*hf+i}, v{SV+i} row_shl:7 row_mask:0xf bank_mask:0xf")
            for i in range(4): a(f"v_lshlrev_b32 v{2+i}, 16, v{b+8*i+4}")
            a(f"v_add_f32 v2, v2, v3\n v_add_f32 v4, v4, v5\n v_add_f32 v{26+2*hf}, v2, v4\n v_sub_f32 v{27+2*hf}, v2, v4")
        for i in range(4): a(f"v_mov_b32_dpp v{SV+4+i}, v{b+8*i+4} row_shr:1 row_mask:0xf bank_mask:0xf")
        for i in range(4): a(f"v_cndmask_b32 v{SV+4+i}, v{SV+4+i}, v{EU+4*hf+i}, s[70:71]")
        for i in range(4):
            for j in range(8): a(unp(T+j, b+8*i, j))
            a(f"v_lshlrev_b32 v{T+8}, 16, v{SV+4+i}")
            for j in range(1, 8): a(unp(T+8+j, b+8*i+4, 8-j))
            for j in range(0, 8, 2):
                a(pk('', S[i]+j, T+j, T+8+j))
                a(pk('', b+8*i+j, T+j, T+8+j, neg=True))
        for j in range(0, 8, 2):
            a(pk('', S[0]+j, S[0]+j, S[1]+j)); a(pk('', S[2]+j, S[2]+j, S[3]+j))
            a(pk('', b+j, b+j, b+8+j, neg=True)); a(pk('', b+16+j, b+16+j, b+24+j, neg=True))
        for j in range(0, 8, 2):
            a(pk('', S[1]+j, S[0]+j, S[2]+j)); a(pk('', S[3]+j, S[0]+j, S[2]+j, neg=True))
            a(pk('', b+8+j, b+j, b+16+j, neg=True)); a(pk('', b+24+j, b+j, b+16+j))
        for j in range(0, 8, 2):
            a(pk('', UU+4*hf, UU+4*hf, S[1]+j)); a(pk('', UU+4*hf+2, UU+4*hf+2, S[3]+j))
        for cls, src in enumerate((S[1], S[3], b+8, b+24)):
            o = b + 4*(cls & 1) + 16*(cls >> 1)
            for j in range(4): a(f"v_cvt_pk_bf16_f32 v{o+j}, v{src+2*j}, v{src+2*j+1}")
            a(f"s_add_u32 s26, s22, {cls*524288 + gi*8192 + hf*128}")
            a(f"buffer_store_dwordx4 v[{o}:{o+3}], v25, s[12:15], s26 offen sc1")
            vm.add('st')
        if rnd in (0, 1): stamp(a, 20+2*rnd)
        between(rnd)
    a("""
    s_cmp_eq_u32 s3, 3
    s_cselect_b32 s26, 0x80808080, 0
    s_mov_b32 s27, s26
    v_sub_f32 v16, v16, v17
    v_sub_f32 v17, v18, v19
    v_sub_f32 v18, v20, v21
    v_sub_f32 v19, v22, v23
    """)
    for k in range(4): a(f"v_cndmask_b32 v{20+k}, 0, v{26+k}, s[26:27]")
    for k in range(4): a(f"v_add_f32 v{16+k}, v{16+k}, v{20+k}")
    a("s_nop 0")
    for ctl in ("quad_perm:[1,0,3,2]", "quad_perm:[2,3,0,1]", "row_half_mirror"):
        for r in range(8, 20): a(f"v_add_f32_dpp v{r}, v{r}, v{r} {ctl} row_mask:0xf bank_mask:0xf")
    a(f"""
    s_lshl_b32 s26, s3, 2
    s_lshl_b32 s27, s3, 11
    s_add_u32 s27, s27, {WS_UP}
    s_mov_b32 s28, {WS_CV}
    s_add_u32 s29, s27, 8192
    """)
    for k in range(8): a(f"v_lshl_add_u32 v{68+k}, v{40+k}, 4, s26")
    a(f"v_lshlrev_b32 v76, 2, v40\n s_mov_b32 s26, {WS_LP}\n s_mov_b64 exec, s[70:71]")
    for k in range(8): a(f"buffer_store_dword v{8+k}, v{68+k}, s[12:15], s26 offen sc1")
    for hf in range(2):
        a(f"buffer_store_dword v{16+2*hf}, v76, s[12:15], s27 offen offset:{32*hf} sc1\n buffer_store_dword v{17+2*hf}, v76, s[12:15], s29 offen offset:{32*hf} sc1")
    a(f"""
    s_mov_b64 exec, -1
    s_cmp_lg_u32 s3, 3
    s_cbranch_scc1 L_fc2
    s_mov_b32 exec_lo, 0x80808080
    s_mov_b32 exec_hi, 0x80808080
    buffer_store_dword v26, v76, s[12:15], s28 offen sc1
    buffer_store_dword v27, v76, s[12:15], s28 offen offset:2048 sc1
    buffer_store_dword v28, v76, s[12:15], s28 offen offset:32 sc1
    buffer_store_dword v29, v76, s[12:15], s28 offen offset:2080 sc1
    s_mov_b64 exec, -1
    L_fc2:
    """)

def sh_voff(a, vb, rs_shift, srow):
    a(f"""
    v_lshrrev_b32 v2, 3, v1
    s_lshl_b32 s26, s3, 5
    v_add_u32 v2, s26, v2
    v_lshlrev_b32 v2, {rs_shift}, v2
    v_add_u32 v2, s{srow}, v2
    v_lshrrev_b32 v3, 4, v1
    v_and_b32 v4, 7, v1
    v_xor_b32 v3, v3, v4
    v_lshl_add_u32 v{vb}, v3, 4, v2
    v_xor_b32 v3, 4, v3
    v_lshl_add_u32 v{vb+1}, v3, 4, v2
    v_add_u32 v{vb+2}, {2*((8<<rs_shift)-1024)}, v{vb}
    v_add_u32 v{vb+3}, {3*((8<<rs_shift)-1024)}, v{vb+1}
    v_add_u32 v{vb+1}, {((8<<rs_shift)-1024)}, v{vb+1}
    """)
def sh_touch(a, sr, rs_shift, srow):
    a(f"""
    s_lshl_b32 s26, s67, 5
    s_lshl_b32 s27, s3, 3
    s_add_u32 s26, s26, s27
    v_lshrrev_b32 v2, 3, v1
    v_add_u32 v2, s26, v2
    v_lshlrev_b32 v2, {rs_shift}, v2
    v_and_b32 v3, 7, v1
    v_lshl_add_u32 v2, v3, 7, v2
    buffer_load_dword a255, v2, s[{sr}:{sr+3}], s{srow} offen
    """)
def sh_dma(vb, sr): return [f"buffer_load_dwordx4 v{vb+i}, s[{sr}:{sr+3}], s17 offen offset:{i*1024} lds" for i in range(4)]

def dloop(a, name, nm, accb, dma, extra=False, first=True, init=None, D=8, inc=128, mid=None):
    PB = 192; SF = 128; accb += 64
    def pl(i, off): return f"buffer_load_dwordx4 a[{PB+4*i}:{PB+4*i+3}], v12, s[32:35], s16 offen offset:{off} sc1"
    def sreads(st, ks): return [f"ds_read_b128 a[{SF+st*32+4*nb}:{SF+st*32+4*nb+3}], v{18+ks} offset:{nb*2048}" for nb in range(8)]
    if first:
        a("s_mov_b32 s16, 0")
        for t in range(D):
            for i in range(nm): a(pl(t*nm+i, i*1024))
            a(f"s_add_u32 s16, s16, {nm*1024}")
        a("v_mov_b32 v18, v16\n v_mov_b32 v19, v17")
        for x in sreads(0, 0): a(x)
        a(f"s_mov_b32 s19, 0\n s_mov_b32 s20, {SLOT3}\n ")
        init()
    a(f"s_mov_b32 s18, 0\n s_mov_b32 s17, 0")
    a(f".p2align 6\nL_{name}_loop:")
    NM = 8*nm
    if mid: mid()
    for t in range(8):
        ks = t & 1
        ms = []
        for mb in range(nm):
            for nb in range(8):
                c = accb + (nb*nm+mb)*4; pa = PB + ((t % D)*nm+mb)*4; sb = SF + ks*32 + nb*4
                ms.append(f"{MF} v[{c}:{c+3}], a[{pa}:{pa+3}], a[{sb}:{sb+3}], v[{c}:{c+3}]")
        f = {-1: [f"s_waitcnt vmcnt({(D-1)*nm}) lgkmcnt(0)"]}
        if extra:
            L = f"L_{name}_x{t}"
            f[-1] += ["s_cmp_eq_u32 s31, 0", f"s_cbranch_scc1 {L}"] + \
                     [f"{MF} v[{240+4*mb}:{243+4*mb}], a[{PB+(t*nm+mb)*4}:{PB+(t*nm+mb)*4+3}], v[24:27], v[{240+4*mb}:{243+4*mb}]" for mb in range(nm)] + [f"{L}:"]
        if ks == 1:
            f[0] = ["s_barrier", "v_add_u32 v18, s20, v16"]
            rd = sreads(0, 0)
        else:
            rd = sreads(1, 1)
        sp = NM // 16
        for k, x in enumerate(rd): f.setdefault(1+sp*k, []).append(x)
        for mb in range(nm): f.setdefault(8*mb+7, []).append(pl((t % D)*nm+mb, mb*1024))
        f[NM-1].append(f"s_add_u32 s16, s16, {nm*1024}")
        if ks == 1:
            if dma:
                f.setdefault(1, []).append("s_add_u32 m0, s21, s19")
                for k, x in enumerate(sh_dma(*dma)): f.setdefault(2+(NM//5)*k, []).append(x)
                f.setdefault(NM-3, []).append(f"s_add_u32 s17, s17, {inc}")
            f.setdefault(NM//2+1, []).append("v_add_u32 v19, s20, v17")
            f.setdefault(NM-3, []).extend(["s_mov_b32 s19, s20", f"s_add_u32 s20, s20, {SLOT3}"])
            f.setdefault(NM-2, []).append(f"s_and_b32 s20, s20, {R3*SLOT3-1}")
        interleave(a, ms, f)
    a(f"s_add_u32 s18, s18, 1\n s_cmp_lt_u32 s18, 2\n s_cbranch_scc1 L_{name}_loop")

def tile_vec(a, vec):
    a("""
    s_lshl_b32 s26, s67, 5
    s_lshl_b32 s27, s3, 3
    s_add_u32 s26, s26, s27
    s_lshl_b32 s27, s26, 7
    v_lshrrev_b32 v2, 3, v1
    v_lshlrev_b32 v2, 14, v2
    v_add_u32 v2, s27, v2
    s_lshr_b32 s26, s26, 1
    v_and_b32 v3, 7, v1
    v_xor_b32 v3, s26, v3
    v_and_b32 v3, 7, v3
    """)
    for i in range(8):
        a(f"v_xor_b32 v4, {i>>1}, v3\n v_lshl_add_u32 v4, v4, 4, v2\n ds_read_b128 v[{208+4*i}:{211+4*i}], v4 offset:{i*128}")
    for i in range(8): a(f"v_mov_b32 v{40+i}, 0")
    a("s_waitcnt lgkmcnt(0)")
    for j in range(4):
        for i in range(8): a(f"v_dot2_f32_bf16 v{40+i}, v{208+4*i+j}, v{vec+j}, v{40+i}")
    a("s_nop 2")
    reduce_lanes(a, list(range(40, 48)), 48, ['ror1', 'ror2', 'ror4', 'ror8', 'p16', 'p32'])
    for i in range(1, 8): a(f"v_cmp_eq_u32 vcc, {i}, v1\n s_nop 1\n v_cndmask_b32 v40, v40, v{40+i}, vcc")

def acc_load(a, nm, vb, svec, wshift, off=0):
    a(f"v_lshrrev_b32 v2, 4, v1\n v_lshlrev_b32 v2, 4, v2\n s_lshl_b32 s26, s3, {wshift}\n v_add_u32 v2, s26, v2")
    for mb in range(nm): a(f"buffer_load_dwordx4 v[{vb+4*mb}:{vb+3+4*mb}], v2, s[12:15], s{svec} offen offset:{off+mb*64} sc1")
def acc_init(a, nm, vb, accb, sscale, withx=False):
    a(f"v_lshlrev_b32 v3, 31, v1")
    for i in range(4*nm): a(f"v_mul_f32 v{vb+i}, s{sscale}, v{vb+i}")
    if withx:
        for i in range(4*nm): a(f"v_accvgpr_write_b32 a{128+i}, v{vb+i}")
    for i in range(4*nm): a(f"v_xor_b32 v{vb+i}, v3, v{vb+i}")
    for nb in range(8):
        for i in range(4*nm): a(f"v_accvgpr_write_b32 a{accb+nb*4*nm+i}, v{vb+i}")

def dft(a):
    vm = VM()
    a("s_waitcnt lgkmcnt(0)")
    srd(a, 4, 40, 2048*1024*2)
    srd(a, 32, 60, 2048)
    a("""
    v_lshlrev_b32 v2, 4, v1
    v_sub_u32 v3, 2032, v2
    s_mov_b32 s26, 0x100000
    s_mov_b32 s27, 0x300000
    buffer_load_dwordx4 v[128:131], v2, s[4:7], s26 offen
    buffer_load_dwordx4 v[132:135], v3, s[4:7], s26 offen
    buffer_load_dwordx4 v[140:143], v2, s[4:7], s27 offen
    buffer_load_dwordx4 v[144:147], v3, s[4:7], s27 offen
    """); vm.add('z', 4)
    fold_loads(a, vm)
    fold_round_loads(a, vm, 0); fold_round_loads(a, vm, 1)
    common_setup(a)
    a("s_lshr_b32 s30, s66, 2\n s_cmp_eq_u32 s30, 0\n s_cselect_b32 s26, s56, s58\n s_cselect_b32 s27, s57, s59")
    srd(a, 8, 26, 1024*1024*2)
    a("s_and_b32 s25, s66, 3\n s_lshl_b32 s25, s25, 18\n s_lshl_b32 s21, s3, 12")
    sh_voff(a, 32, 11, 25)
    srd(a, 36, 52, 2048*2048*2)
    srd(a, 80, 54, 2048*2048*2)
    a("s_and_b32 s24, s66, 3\n s_lshl_b32 s24, s24, 8\n s_add_u32 s24, s24, s30\n s_lshl_b32 s24, s24, 12")
    a("s_waitcnt lgkmcnt(0)\n s_mov_b32 s17, 0")
    nonce(a)
    started(a)
    stamp(a, 9)
    vm.wait(a, 'z')
    a("v_mov_b32 v136, 0\n v_mov_b32 v148, 0\n s_cmp_eq_u32 s30, 0\n s_cselect_b32 s26, 1.0, -1.0")
    a("v_mov_b32_dpp v136, v132 wave_shr:1 row_mask:0xf bank_mask:0xf\n v_mov_b32_dpp v148, v144 wave_shr:1 row_mask:0xf bank_mask:0xf")
    for k, b in enumerate((128, 140)):
        for j in range(8): a(unp(160+16*k+j, b, j))
        a(f"v_lshlrev_b32 v{168+16*k}, 16, v{b+8}")
        for j in range(1, 8): a(unp(168+16*k+j, b+4, 8-j))
    for j in range(16): a(f"v_fma_f32 v{160+j}, v{176+j}, s26, v{160+j}")
    for j in range(8): a(f"v_fma_f32 v{160+j}, v{168+j}, s26, v{160+j}")
    for j in range(4): a(f"v_cvt_pk_bf16_f32 v{36+j}, v{160+2*j}, v{161+2*j}")
    a("v_lshlrev_b32 v2, 16, v132\n v_lshlrev_b32 v3, 16, v144\n v_add_f32 v2, v2, v3\n s_nop 0\n v_readlane_b32 s75, v2, 63\n s_cselect_b32 s75, s75, 0")
    a(pk('', 160, 160, 162)); a(pk('', 164, 164, 166)); a(pk('', 160, 160, 164)); a("v_sub_f32 v160, v160, v161")
    reduce_lanes(a, [160], 176, ['ror1', 'ror2', 'ror4', 'ror8', 'p16', 'p32'])
    a("v_add_f32 v160, s75, v160\n s_nop 0\n v_readfirstlane_b32 s97, v160")
    def between(rnd):
        if rnd < 2: fold_round_loads(a, vm, rnd+2)
        for s in ((0, 1, 2), (3, 4, 5), (6, 7), ())[rnd]:
            a(f"s_add_u32 m0, s21, {s*SLOT3}\n s_nop 0")
            for x in sh_dma(32, 8): a(x)
            a("s_add_u32 s17, s17, 128")
            vm.add('pf', 4)
    fold_compute(a, vm, between)
    stamp(a, 1)
    a(f"s_lshl_b32 s23, s66, 2\n s_add_u32 s23, s23, s67\n s_lshl_b32 s23, s23, 7\n s_add_u32 s23, s23, {WS_FL+16384}")
    publish(a, 's23')
    for i in range(4): a(f"v_mov_b32 v{56+i}, 0")
    tile_vec(a, 36)
    for i in range(8): a(f"v_mfma_f32_32x32x16_bf16 v[{64+16*i}:{79+16*i}], v[56:59], v[56:59], 0\n v_mfma_f32_32x32x16_bf16 a[{16*i}:{15+16*i}], v[56:59], v[56:59], 0")
    a(f"""
    v_lshlrev_b32 v2, 31, v1
    v_xor_b32 v2, s75, v2
    v_add_f32 v40, v40, v2
    s_lshl_b32 s26, s66, 7
    s_lshl_b32 s27, s67, 5
    s_add_u32 s26, s26, s27
    s_lshl_b32 s27, s3, 3
    s_add_u32 s26, s26, s27
    s_lshl_b32 s26, s26, 2
    s_add_u32 s26, s26, {WS_RV}
    v_lshlrev_b32 v2, 2, v1
    s_mov_b64 exec, 0xff
    buffer_store_dword v40, v2, s[12:15], s26 offen sc1
    s_mov_b64 exec, -1
    """)
    stamp(a, 10)
    sh_voff(a, 20, 13, 24)
    a("v_lshlrev_b32 v12, 4, v1")
    a("""
    v_and_b32 v2, 15, v1
    v_lshrrev_b32 v3, 1, v2
    v_lshrrev_b32 v4, 4, v1
    v_xor_b32 v3, v3, v4
    v_lshlrev_b32 v2, 7, v2
    v_lshl_add_u32 v16, v3, 4, v2
    v_xor_b32 v3, 4, v3
    v_lshl_add_u32 v17, v3, 4, v2
    """)
    a(f"""
    s_lshl_b32 s26, s30, 1
    s_lshr_b32 s27, s67, 1
    s_add_u32 s26, s26, s27
    s_lshl_b32 s26, s26, 3
    s_and_b32 s27, s67, 1
    s_lshl_b32 s27, s27, 2
    s_add_u32 s26, s26, s27
    s_add_u32 s26, s26, s3
    s_lshl_b32 s26, s26, 16
    s_add_u32 s22, s26, {WS_Z}
    """)
    srd_ws(a, 32, 22, 65536)
    a(f"s_and_b32 s23, s67, 1\n s_lshl_b32 s23, s23, 2\n s_add_u32 s23, s23, s3\n s_lshl_b32 s23, s23, 9\n s_add_u32 s23, s23, {WS_FL+16384}")
    poll(a, [('s23', '0xf')], cnt=4)
    stamp(a, 2)
    a(f"s_lshl_b32 s22, s67, 10\n s_add_u32 s22, s22, {WS_CV}\n s_cmp_eq_u32 s30, 0\n s_cselect_b32 s23, 1.0, 0")
    acc_load(a, 4, 192, 22, 8)
    a("s_mov_b32 s74, s23")
    dloop(a, 'd1', 4, 0, (20, 36), D=4, mid=lambda: a(f"s_mov_b32 s31, {WS_FL+16384}\n v_and_b32 v6, 31, v1\n v_lshlrev_b32 v6, 7, v6\n buffer_load_dwordx2 v[48:49], v6, s[12:15], s31 offen sc1"), init=lambda: stamp(a, 11))
    a("s_lshl_b32 s22, s30, 13\n" + f"s_add_u32 s22, s22, {WS_UP}\n v_lshlrev_b32 v2, 5, v1\n s_add_u32 s23, s22, 4096")
    a(f"s_waitcnt lgkmcnt(0)\n s_nop 7")
    stamp(a, 3)
    a("v_cmp_ne_u32 vcc, s98, v48\n v_cmp_ne_u32 s[28:29], s99, v49\n s_or_b64 vcc, vcc, s[28:29]\n s_and_b64 vcc, vcc, 0xffffffff\n s_cbranch_scc0 L_uok")
    poll(a, [('s31', '0xffffffff')], cnt=32)
    a("s_waitcnt vmcnt(0)\n L_uok:")
    for i in range(8): a(f"buffer_load_dwordx4 v[{208+4*i}:{211+4*i}], v2, s[12:15], s{22+(i>>2)} offen offset:{((i>>1)&1)*2048+(i&1)*16} sc1")
    a(f"""
    v_lshrrev_b32 v2, 4, v1
    v_and_b32 v3, 1, v2
    v_lshrrev_b32 v2, 1, v2
    v_lshl_add_u32 v2, v3, 1, v2
    v_and_b32 v3, 15, v1
    v_lshlrev_b32 v3, 4, v3
    v_lshl_add_u32 v14, v2, 8, v3
    s_lshr_b32 s26, s67, 1
    s_lshl_b32 s26, s26, 4
    s_and_b32 s27, s66, 3
    s_lshl_b32 s27, s27, 2
    s_add_u32 s26, s26, s27
    s_lshl_b32 s26, s26, 16
    s_lshl_b32 s27, s30, 15
    s_add_u32 s26, s26, s27
    s_and_b32 s27, s67, 1
    s_lshl_b32 s27, s27, 14
    s_add_u32 s26, s26, s27
    s_lshl_b32 s27, s3, 12
    s_add_u32 s26, s26, s27
    s_add_u32 s25, s26, {WS_AT}
    """)
    a("v_lshlrev_b32 v3, 31, v1")
    for i in range(16): a(f"v_mul_f32 v{192+i}, s74, v{192+i}\n v_xor_b32 v{192+i}, v3, v{192+i}")
    for nb in range(8):
        t = 16 + (nb & 1)*8; c = 64 + nb*16
        for i in range(0, 16, 2): a(pk('', c+i, c+i, 192+i))
        for i in range(8): a(f"v_cvt_pk_bf16_f32 v{t+16+i}, v{c+2*i}, v{c+2*i+1}")
        a("s_nop 1")
        for p in range(2):
            a(f"v_permlane16_swap_b32 v{t+16+4*p}, v{t+18+4*p}\n v_permlane16_swap_b32 v{t+17+4*p}, v{t+19+4*p}")
        for p in range(2):
            a(f"s_add_u32 s26, s25, {(nb >> 1)*65536 + p*2048 + (nb & 1)*1024}")
            a(f"buffer_store_dwordx4 v[{t+16+4*p}:{t+19+4*p}], v14, s[12:15], s26 offen sc1")
    a(f"s_and_b32 s26, s66, 3\n s_lshl_b32 s26, s26, 1\n s_add_u32 s26, s26, s30\n s_lshl_b32 s26, s26, 2\n s_add_u32 s26, s26, s67\n s_lshl_b32 s26, s26, 7\n s_add_u32 s23, s26, {WS_FL+24576}")
    stamp(a, 12)
    publish(a, 's23')
    stamp(a, 13)
    for i in range(4): a(f"v_mov_b32 v{56+i}, 0")
    a("s_nop 1")
    for i in list(range(8)) + [11]: a(f"v_mfma_f32_32x32x16_bf16 v[{64+16*i}:{79+16*i}], v[56:59], v[56:59], 0")
    for j in range(0, 8, 2): a(pk('', 208+j, 208+j, 216+j)); a(pk('', 224+j, 224+j, 232+j))
    for j in range(0, 8, 2): a(pk('', 208+j, 208+j, 224+j))
    for j in range(4): a(f"v_cvt_pk_bf16_f32 v{60+j}, v{208+2*j}, v{209+2*j}")
    tile_vec(a, 60)
    a(f"s_lshl_b32 s23, s67, 10\n s_add_u32 s23, s23, {WS_FL+24576}\n v_and_b32 v6, 7, v1\n v_lshlrev_b32 v6, 7, v6\n buffer_load_dwordx2 v[56:57], v6, s[12:15], s23 offen sc1")
    a(f"v_mov_b32 v41, 0\n v_mov_b32 v42, {ALT}")
    for j in range(4): a(f"v_dot2_f32_bf16 v41, v{60+j}, v42, v41")
    a("s_nop 2")
    reduce_lanes(a, [41], 48, ['ror1', 'ror2', 'ror4', 'ror8', 'p16', 'p32'])
    a(f"""
    v_cmp_eq_u32 vcc, 8, v1
    s_cmp_eq_u32 s30, 0
    s_cselect_b32 s26, 1.0, 0
    v_cndmask_b32 v40, v40, v41, vcc
    v_mov_b32 v7, s97
    v_mul_f32 v7, s26, v7
    v_lshlrev_b32 v2, 31, v1
    v_xor_b32 v2, v2, v7
    v_add_f32 v40, v40, v2
    v_cvt_pk_bf16_f32 v40, v40, v40
    s_and_b32 s26, s66, 3
    s_lshl_b32 s26, s26, 7
    s_lshl_b32 s27, s67, 5
    s_add_u32 s26, s26, s27
    s_lshl_b32 s27, s3, 3
    s_add_u32 s26, s26, s27
    v_add_u32 v3, s26, v1
    v_mov_b32 v4, 512
    v_cndmask_b32 v3, v3, v4, vcc
    v_lshlrev_b32 v3, 6, v3
    s_mul_i32 s26, s30, {TPS}
    s_add_u32 s26, s26, {WS_Y + 16*EGS}
    s_add_u32 s27, s26, {YD}
    s_cmp_eq_u32 s30, 0
    s_mov_b32 s28, 0xff
    s_cselect_b32 exec_lo, 0x1ff, s28
    s_mov_b32 exec_hi, 0
    buffer_store_dword v40, v3, s[12:15], s26 offen sc1
    buffer_store_dword v40, v3, s[12:15], s27 offen sc1
    s_mov_b64 exec, -1
    """)
    a(f"""
    s_lshl_b32 s26, s30, 4
    s_lshl_b32 s27, s67, 2
    s_add_u32 s26, s26, s27
    s_add_u32 s26, s26, s3
    s_lshl_b32 s26, s26, 16
    s_add_u32 s22, s26, {WS_AT}
    """)
    srd_ws(a, 32, 22, 65536)
    a(f"""
    s_cmp_eq_u32 s66, 0
    s_cselect_b32 s31, 1, 0
    v_mov_b32 v24, {ALT}
    v_mov_b32 v25, {ALT}
    v_mov_b32 v26, {ALT}
    v_mov_b32 v27, {ALT}
    """)
    srd(a, 4, 88, 3584*1024*2)
    g2_wpre(a, [(8, 4)])
    a("s_waitcnt vmcnt(2)\n v_cmp_ne_u32 vcc, s98, v56\n v_cmp_ne_u32 s[28:29], s99, v57\n s_or_b64 vcc, vcc, s[28:29]\n s_cbranch_scc0 L_s2_ok")
    poll(a, [('s23', '0xff')], gap=2, cnt=8)
    a("L_s2_ok:")
    stamp(a, 4)
    a(f"s_lshl_b32 s22, s67, 9\n s_add_u32 s22, s22, {WS_RV}\n s_cmp_eq_u32 s30, 0\n s_cselect_b32 s23, 1.0, 0")
    a("s_cselect_b32 s75, 0, -1.0\n s_mov_b32 s74, s23")
    acc_load(a, 2, 192, 22, 7)
    acc_load(a, 2, 200, 22, 7, 2048)
    dloop(a, 'd2a', 2, 0, (20, 80), extra=True, init=lambda: stamp(a, 14))
    stamp(a, 15)
    dloop(a, 'd2b', 2, 64, (8, 4), first=False, inc=64*2048)
    stamp(a, 16)
    a("s_waitcnt lgkmcnt(0)\n s_nop 7")
    a(f"""
    v_and_b32 v2, 15, v1
    v_lshlrev_b32 v20, 6, v2
    v_lshrrev_b32 v3, 4, v1
    v_and_b32 v4, 1, v3
    v_lshl_add_u32 v20, v4, 5, v20
    v_lshrrev_b32 v4, 1, v3
    v_lshl_add_u32 v20, v4, 4, v20
    v_lshlrev_b32 v21, 3, v3
    s_lshl_b32 s22, s67, 2
    s_add_u32 s22, s22, s3
    s_mul_i32 s22, s22, {EGS}
    s_mul_i32 s27, s30, {TPS}
    s_add_u32 s22, s22, s27
    s_add_u32 s22, s22, {WS_Y}
    s_and_b32 s26, s66, 3
    s_lshl_b32 s26, s26, 13
    s_add_u32 s25, s22, s26
    """)
    a("v_lshlrev_b32 v3, 31, v1")
    for i in range(8): a(f"v_mul_f32 v{192+i}, s74, v{192+i}\n v_mul_f32 v{200+i}, s75, v{200+i}")
    for i in range(8): a(f"v_sub_f32 v{208+i}, v{192+i}, v{200+i}\n v_add_f32 v{216+i}, v{192+i}, v{200+i}")
    for i in range(16): a(f"v_xor_b32 v{208+i}, v3, v{208+i}")
    for nb in range(8):
        t = 8 + (nb & 1)*8; P = 64 + nb*8; Qr = 128 + nb*8
        for i in range(0, 8, 2): a(pk('', 48+i, P+i, Qr+i, neg=True)); a(pk('', P+i, P+i, Qr+i))
        for i in range(0, 8, 2): a(pk('', 48+i, 48+i, 208+i)); a(pk('', P+i, P+i, 216+i))
        for i in range(4): a(f"v_cvt_pk_bf16_f32 v{t+24+i}, v{48+2*i}, v{49+2*i}\n v_cvt_pk_bf16_f32 v{t+28+i}, v{P+2*i}, v{P+2*i+1}")
        a("s_nop 1")
        for p in range(2):
            a(f"v_permlane16_swap_b32 v{t+24+4*p}, v{t+26+4*p}\n v_permlane16_swap_b32 v{t+25+4*p}, v{t+27+4*p}")
        for p in range(2):
            a(f"s_add_u32 s26, s25, {nb*1024 + p*YD}")
            a(f"buffer_store_dwordx4 v[{t+24+4*p}:{t+27+4*p}], v20, s[12:15], s26 offen sc1")
    a("s_cmp_eq_u32 s31, 0\n s_cbranch_scc1 L_dft_nox")
    for i in range(0, 8, 2): a(pk('', 240+i, 240+i, 192+i))
    for i in range(4): a(f"v_cvt_pk_bf16_f32 v{56+i}, v{240+2*i}, v{241+2*i}")
    a(f"s_add_u32 s26, s22, {512*64}\n s_add_u32 s27, s26, {YD}\n s_mov_b32 exec_lo, 0x00010001\n s_mov_b32 exec_hi, 0x00010001")
    for mb in range(2):
        a(f"buffer_store_dwordx2 v[{56+2*mb}:{57+2*mb}], v21, s[12:15], s26 offen offset:{mb*32} sc1\n buffer_store_dwordx2 v[{56+2*mb}:{57+2*mb}], v21, s[12:15], s27 offen offset:{mb*32} sc1")
    a("s_mov_b64 exec, -1\nL_dft_nox:")
    stamp(a, 17)
    a(f"s_lshl_b32 s23, s66, 2\n s_add_u32 s23, s23, s67\n s_lshl_b32 s23, s23, 7\n s_add_u32 s23, s23, {WS_FL+32768}")
    a(f"s_cmp_eq_u32 s3, 0\n s_cselect_b32 s87, s23, {OOB}\n s_mov_b32 s68, {OOB}")
    g2_pre(a, True)
    a("s_waitcnt vmcnt(16)\n s_barrier")
    stamp(a, 18)
    poll(a, [('s44', '3')], vb=192, gap=opt.dgap, cnt=2)
    h_chunk(a, 0)
    a("s_waitcnt vmcnt(0)")
    stamp(a, 5)


def common_setup(a):
    a(f"s_add_u32 s28, s48, {WS_FL}\n s_addc_u32 s29, s49, 0\n s_load_dword s98, s[28:29], 0")
    srd(a, 12, 48, WS_SZ)
    g2_ids(a)

def kern():
    a = Asm()
    a(f"""
    s_cmp_ge_u32 s2, 256
    s_cbranch_scc1 L_end
    s_load_dwordx2 s[40:41], s[0:1], 0
    s_load_dwordx4 s[44:47], s[0:1], 48
    s_load_dwordx2 s[48:49], s[0:1], 96
    s_load_dwordx2 s[88:89], s[0:1], 64
    s_load_dwordx2 s[42:43], s[0:1], 80
    s_load_dwordx8 s[52:59], s[0:1], 8
    s_load_dwordx2 s[60:61], s[0:1], 72
    s_getpc_b64 s[28:29]
    s_lshr_b32 s27, s2, 3
    s_mul_i32 s26, s27, {CODE_LINES*128}
    v_lshlrev_b32 v2, 7, v0
    v_add_u32 v2, s26, v2
    v_cmp_gt_u32 vcc, {CODE_LINES}, v0
    s_and_saveexec_b64 s[30:31], vcc
    s_cbranch_execz L_nocp
    global_load_dword a255, v2, s[28:29]
    L_nocp:
    s_mov_b64 exec, s[30:31]
    v_and_b32 v1, 63, v0
    v_lshrrev_b32 v2, 6, v0
    s_and_b32 s66, s2, 7
    v_readfirstlane_b32 s3, v2
    s_lshr_b32 s27, s2, 3
    s_sub_u32 s67, s27, 28
    s_and_b32 s24, s66, 1
    s_lshl_b32 s24, s24, 2
    s_and_b32 s68, s27, 3
    s_add_u32 s24, s24, s68
    s_lshr_b32 s25, s66, 1
    s_mul_i32 s25, s25, 7
    s_lshr_b32 s69, s27, 2
    s_add_u32 s25, s25, s69
    """)
    stamp(a, 0)
    if opt.spin: a("s_memrealtime s[100:101]")
    a("s_lshr_b32 s27, s2, 3\n s_cmp_ge_u32 s27, 28\n s_cbranch_scc1 L_dft")
    gemm1(a)
    a("s_branch L_g2")
    a("L_dft:")
    if opt.xdft: a("s_branch L_end")
    dft(a)
    gemm2(a)
    a("L_end:")
    if opt.spin:
        a(f"s_cmp_lg_u32 s2, 0\n s_cbranch_scc1 L_end3\n L_spin:\n s_memrealtime s[92:93]\n s_waitcnt lgkmcnt(0)\n s_sub_u32 s92, s92, s100\n s_cmp_lt_u32 s92, {opt.spin}\n s_cbranch_scc1 L_spin\n L_end3:")
    if opt.stamp:
        a("s_cmp_ge_u32 s2, 256\n s_cbranch_scc1 L_end2\n s_mov_b64 exec, -1")
        srd(a, 12, 48, WS_SZ)
        stamp(a, 8)
        if opt.amp is not None:
            a(f"s_cmp_lg_u32 s2, {opt.ampwg}\n s_cbranch_scc1 L_amp_d\n v_readlane_b32 s20, v31, {40+opt.amp}\n v_readlane_b32 s21, v31, 40\n v_readlane_b32 s22, v31, 48\n s_sub_u32 s20, s20, s21\n s_lshl_b32 s20, s20, 3")
            a("L_amp:\n s_memrealtime s[92:93]\n s_waitcnt lgkmcnt(0)\n s_sub_u32 s92, s92, s22\n s_cmp_lt_u32 s92, s20\n s_cbranch_scc1 L_amp\n L_amp_d:")
        else: stamp_flush(a, 0)
        if opt.dbgmax:
            a("s_load_dwordx2 s[28:29], s[0:1], 88\n v_subrev_u32 v2, 40, v1\n v_lshlrev_b32 v2, 2, v2\n v_not_b32 v3, v31\n v_cmp_eq_u32 vcc, 40, v1\n s_nop 1\n v_cndmask_b32 v31, v31, v3, vcc")
            a("s_lshr_b32 s27, s2, 3\n s_cmp_ge_u32 s27, 28\n s_cbranch_scc1 L_dm_d\n s_mov_b32 exec_lo, 0\n s_mov_b32 exec_hi, 0x1ff00\n s_branch L_dm_go\n L_dm_d:")
            for k, w in ((1, 9), (2, 10), (3, 11), (4, 12), (16, 13), (18, 14), (0, 15)):
                a(f"v_mov_b32 v3, {4*w}\n v_cmp_eq_u32 vcc, {40+k}, v1\n s_nop 1\n v_cndmask_b32 v2, v2, v3, vcc")
            m = sum(1 << (8+k) for k in (0, 1, 2, 3, 4, 16, 18))
            a(f"s_mov_b32 exec_lo, 0\n s_mov_b32 exec_hi, {m}\n L_dm_go:\n s_waitcnt lgkmcnt(0)\n global_atomic_umax v2, v31, s[28:29] sc1\n s_waitcnt vmcnt(0)")
        a("L_end2:")
    return kernel(KN, a.text(), vgpr=256, agpr=256)

KN = 'gated_mix__spectral_fnet__geglu_ffn__prompt_kernel'
def main():
    fn = sys.argv[1]
    for o in sys.argv[2:]:
        k, v = o.split('=', 1)
        setattr(opt, k, eval(v))
    c, d = kern()
    hdr = open('gated_mix__spectral_fnet__geglu_ffn__prompt.s.ref').read().split('; Override launch')[0]
    src = hdr + f'; @launch grid=(256,1,1) block=(256,1,1) lds={R1*SLOT1}\n.amdgcn_target "amdgcn-amd-amdhsa--gfx950"\n' + c + '.text\n.fill 3072, 4, 0xbf800000\n' + d
    open(fn, 'w').write(src)
if __name__ == '__main__': main()
```
